```python
import torch

def _softmax(x, axis=-1):
    return torch.softmax(x, dim=axis)
def _gelu(x):
    return torch.nn.functional.gelu(x, approximate="tanh")
def _silu(x):
    return torch.nn.functional.silu(x)
def _sigmoid(x):
    return torch.sigmoid(x)
def _layernorm(x, axis=-1, eps=1e-5):
    m = x.mean(dim=axis, keepdim=True)
    v = x.var(dim=axis, keepdim=True, unbiased=False)
    return (x - m) / torch.sqrt(v + eps)
def _scatter_add(tgt, idx, src, axis=0):
    return tgt.clone().index_add_(axis, idx, src)
def _segment_sum(src, seg, n):
    out = torch.zeros((n,) + src.shape[1:], dtype=src.dtype)
    return out.index_add_(0, seg, src)
def _pad(x, pw):
    flat = tuple(v for pair in reversed(pw) for v in pair)
    return torch.nn.functional.pad(x, flat)

kernel_name = 'gated_mix__ssm_conv_s4__dense_activation_silu__prompt'

def setup_inputs():

    _w = (lambda a: (lambda t: t.to(torch.bfloat16) if t.is_floating_point() else t)(torch.as_tensor(a)))
    def _A_setup():
        B, L, D, N = 1, 2048, 640, 192
        A_re = -(lambda _x: torch.exp(torch.as_tensor(_x)))((lambda *s: torch.randn(*s, dtype=torch.bfloat16) * 6.4)(D, N))
        A_im = torch.pi * (lambda *s: torch.randn(*s, dtype=torch.bfloat16) * 0.05)(D, N)
        B_re = (lambda *s: torch.randn(*s, dtype=torch.bfloat16) * 0.2)(D, N)
        B_im = (lambda *s: torch.randn(*s, dtype=torch.bfloat16) * 0.2)(D, N)
        C_re = (lambda *s: torch.randn(*s, dtype=torch.bfloat16) * 0.2)(D, N)
        C_im = (lambda *s: torch.randn(*s, dtype=torch.bfloat16) * 0.2)(D, N)
        log_dt = (lambda *s: torch.randn(*s, dtype=torch.bfloat16) * 0.05)(D) * 0.5 - 4.0
        Dskip = (lambda *s: torch.randn(*s, dtype=torch.bfloat16) * 0.05)(D)
        return {
            "u": _w((lambda *s: torch.randn(*s, dtype=torch.bfloat16) * 0.05)(B, L, D)),
            "A_re": _w(A_re),
            "A_im": _w(A_im),
            "B_re": _w(B_re),
            "B_im": _w(B_im),
            "C_re": _w(C_re),
            "C_im": _w(C_im),
            "log_dt": _w(log_dt),
            "Dskip": _w(Dskip),
        }
    _A_in = _A_setup()

    def _B_setup():
        B, S, D, F = 1, 2048, 640, 1536
        return {
            "x": _w((lambda *s: torch.randn(*s, dtype=torch.bfloat16) * 0.05)(B, S, D)),
            "w1": _w((lambda *s: torch.randn(*s, dtype=torch.bfloat16) * 6.4)(D, F) * (D ** -0.5)),
            "w2": _w((lambda *s: torch.randn(*s, dtype=torch.bfloat16) * 0.2)(F, D) * (F ** -0.5)),
        }
    _B_in = _B_setup()

    return {
        "A_u": _A_in["u"],
        "A_A_re": _A_in["A_re"],
        "A_A_im": _A_in["A_im"],
        "A_B_re": _A_in["B_re"],
        "A_B_im": _A_in["B_im"],
        "A_C_re": _A_in["C_re"],
        "A_C_im": _A_in["C_im"],
        "A_log_dt": _A_in["log_dt"],
        "A_Dskip": _A_in["Dskip"],
        "B_x": _B_in["x"],
        "B_w1": _B_in["w1"],
        "B_w2": _B_in["w2"],
        "gate_w": _w((lambda *s: torch.randn(*s, dtype=torch.bfloat16) * 0.05)(640) * 16.0),
    }

def reference(A_u, A_A_re, A_A_im, A_B_re, A_B_im, A_C_re, A_C_im, A_log_dt, A_Dskip, B_x, B_w1, B_w2, gate_w):
    def _A_ref(u, A_re, A_im, B_re, B_im, C_re, C_im, log_dt, Dskip):
        Bsz, L, D = u.shape
        dt = torch.exp(log_dt)[:, None]
        A = A_re + 1j * A_im
        Bc = B_re + 1j * B_im
        Cc = C_re + 1j * C_im
        logdA = dt * A
        dB = dt * Bc
        l = (lambda x, dt: x.to(dt))(torch.arange(L), A_re.dtype)
        P = torch.exp(logdA[:, :, None] * l[None, None, :])
        K = torch.einsum("dn,dnl,dn->dl", Cc, P, dB).real
        L2 = 2 * L
        Kp = _pad(K, ((0, 0), (0, L)))
        up = (lambda x, *d: x.permute(*d))(u, 0, 2, 1)
        up = _pad(up, ((0, 0), (0, 0), (0, L)))
        Kf = (lambda x, axes=(-2,-1): torch.fft.rfft2(x.float(), dim=axes))(Kp[:, None, :], axes=(-2, -1))
        Uf = (lambda x, axes=(-2,-1): torch.fft.rfft2(x.float(), dim=axes))(up[:, :, None, :], axes=(-2, -1))
        Yf = Uf * Kf[None, :, :, :]
        y = (lambda x, s, axes=(-2,-1): torch.fft.irfft2(x, s=s, dim=axes).to(torch.bfloat16))(Yf, (1, L2), axes=(-2, -1))[:, :, 0, :L]
        y = (lambda x, *d: x.permute(*d))(y, 0, 2, 1) + u * Dskip[None, None, :]
        return y

    def _B_ref(x, w1, w2):
        h = torch.einsum("bsd,df->bsf", x, w1)
        h = _silu(h)
        out = torch.einsum("bsf,fd->bsd", h, w2)
        return out

    x = A_u
    g = _sigmoid((x * gate_w).sum(-1, keepdims=True))
    a = _A_ref(x, A_A_re, A_A_im, A_B_re, A_B_im, A_C_re, A_C_im, A_log_dt, A_Dskip)
    b = _B_ref(x, B_w1, B_w2)
    return g * a + (1 - g) * b
```

```python
from kgen import *
from gen1 import *

def emit(G):
    k = G.k
    opt = G.opt
    S_TAU, S_PHI = 12, 13
    S_XOFF, S_WOFF = 68, 69
    S_HB = 14
    S_WB = 15
    S_G0 = 70
    S_ROT = 73
    S_NL2 = 74
    G.srd(R_W, P_W1, 640 * 1536 * 2)
    G.srd(R_O, P_OUT, 2048 * 640 * 2)
    k('s_and_b32 s%d, s%d, 1' % (S_TAU, S_WAVE))
    k('s_lshr_b32 s%d, s%d, 1' % (S_PHI, S_WAVE))
    if opt.get('grot'):
        k('s_mul_i32 s64, s%d, 43' % S_RHO)
        k('s_lshr_b32 s64, s64, 7')
        k('s_mul_i32 s64, s64, 3')
        k('s_sub_u32 s%d, s%d, s64' % (S_G0, S_RHO))
        for r in (1, 2):
            k('s_add_u32 s%d, s%d, 1' % (S_G0 + r, S_G0 + r - 1))
            k('s_cmp_eq_u32 s%d, 3' % (S_G0 + r))
            k('s_cselect_b32 s%d, 0, s%d' % (S_G0 + r, S_G0 + r))
    else:
        for r in range(3): k('s_mov_b32 s%d, %d' % (S_G0 + r, r))
    if opt.get('krot'):
        k('s_and_b32 s%d, s%d, 3' % (S_ROT, S_J))
    else:
        k('s_mov_b32 s%d, 0' % S_ROT)
    VX, VW = 2, 6
    k('v_lshrrev_b32 v10, 4, v0')
    k('v_and_b32 v11, 15, v0')
    k('s_lshl_b32 s64, s%d, 4' % S_WAVE)
    for n in range(4):
        k('v_add_u32 v12, %d, v10' % (4 * n))
        k('v_xor_b32 v13, v11, v12')
        k('v_add_u32 v12, s64, v12')
        k('v_mul_u32_u24 v12, 1280, v12')
        k('v_lshl_add_u32 v12, v13, 4, v12')
        k('v_subrev_u32 v%d, %d, v12' % (VX + n, 1024 * n))
    k('v_lshrrev_b32 v12, 3, v0')
    k('s_lshl_b32 s64, s%d, 5' % S_WAVE)
    k('v_add_u32 v12, s64, v12')
    k('v_mul_u32_u24 v12, 3072, v12')
    k('v_and_b32 v13, 7, v0')
    k('v_and_b32 v14, 1, v10')
    k('v_lshlrev_b32 v14, 2, v14')
    k('v_xor_b32 v13, v13, v14')
    k('v_lshl_add_u32 v12, v13, 4, v12')
    for n in range(4):
        k('v_add_u32 v%d, %d, v12' % (VW + n, n * (8 * 3072 - 1024)))
    k('s_mul_i32 s76, s%d, %d' % (S_RHO, 64 * 1280))
    k('s_mul_i32 s77, s%d, 384' % S_J)
    k('s_lshl_b32 s9, s%d, 12' % S_WAVE)
    seq = []
    for z in range(5): seq += [('X', z, 0), ('W', z, 0)]
    for r in (1, 2):
        for z in range(5): seq.append(('W', z, r))
    def dma(i):
        typ, z, r = seq[i]
        out = []
        out.append('s_add_u32 s64, s%d, %d' % (S_ROT, z))
        out.append('s_sub_u32 s65, s64, 5')
        out.append('s_cmp_ge_u32 s64, 5')
        out.append('s_cselect_b32 s64, s65, s64')
        if typ == 'X':
            out.append('s_lshl_b32 s64, s64, 8')
            out.append('s_add_u32 s64, s64, s76')
        else:
            out.append('s_mul_i32 s64, s64, %d' % (128 * 3072))
            out.append('s_lshl_b32 s65, s%d, 7' % (S_G0 + r))
            out.append('s_add_u32 s64, s64, s65')
            out.append('s_add_u32 s64, s64, s77')
        out.append('s_add_u32 m0, s9, %d' % (16384 * (i % 5)))
        ld = []
        for n in range(4):
            ld.append(('buffer_load_dwordx4 v%d, s[%d:%d], s64 offen offset:%d lds' % ((VX if typ == 'X' else VW) + n, R_U if typ == 'X' else R_W, (R_U if typ == 'X' else R_W) + 3, 1024 * n), 'S%d' % i))
        return out, ld
    for i in range(5):
        pre, ld = dma(i)
        for l in pre: k(l)
        for l, t in ld: k(l, tag=t)
    XA = 16
    WA, WAH = 24, 25
    VH = 26
    k('v_and_b32 v12, 31, v0')
    k('v_lshrrev_b32 v13, 5, v0')
    k('s_lshl_b32 s64, s%d, 13' % S_TAU)
    k('v_xor_b32 v14, v13, v11')
    k('v_lshlrev_b32 v14, 4, v14')
    k('v_lshl_add_u32 v14, v12, 8, v14')
    k('v_add_u32 v%d, s64, v14' % XA)
    for s in range(1, 8): k('v_xor_b32 v%d, %d, v%d' % (XA + s, 32 * s, XA))
    k('v_bfe_u32 v14, v0, 2, 2')
    k('v_lshl_add_u32 v15, v13, 3, v14')
    k('v_lshlrev_b32 v15, 7, v15')
    k('v_and_b32 v27, 1, v10')
    k('v_bfe_u32 v28, v0, 1, 1')
    k('v_lshl_add_u32 v27, v27, 1, v28')
    k('s_lshl_b32 s64, s%d, 2' % S_PHI)
    k('v_add_u32 v27, s64, v27')
    k('v_lshrrev_b32 v14, 1, v14')
    k('v_lshlrev_b32 v14, 2, v14')
    k('v_xor_b32 v27, v27, v14')
    k('v_lshl_add_u32 v15, v27, 4, v15')
    k('v_and_b32 v27, 1, v0')
    k('v_lshl_add_u32 v%d, v27, 3, v15' % WA)
    k('v_add_u32 v%d, 0x10000, v%d' % (WAH, WA))
    k('v_lshrrev_b32 v14, 4, v12')
    k('s_lshl_b32 s64, s%d, 1' % S_TAU)
    k('v_add_u32 v14, s64, v14')
    k('v_lshlrev_b32 v14, 10, v14')
    k('v_lshl_add_u32 v15, v13, 4, v11')
    k('v_lshl_add_u32 v%d, v15, 4, v14' % VH)
    k('s_mul_i32 s%d, s%d, %d' % (S_HB, S_RHO, 48 * 4096))
    k('s_add_u32 s%d, s%d, 0x%x' % (S_HB, S_HB, WS_H))
    k('s_mul_i32 s%d, s%d, %d' % (S_WB, S_J, 48 * 5120))
    k('s_add_u32 s%d, s%d, 0x%x' % (S_WB, S_WB, WS_W2P))
    k('s_mov_b32 s%d, %s' % (S_NL2, fhex(-LOG2E)))
    k('s_mov_b32 s%d, %s' % (S_NL2 + 1, fhex(-LOG2E)))
    FA, FBs = 32, 48
    ACC = [64, 80, 64]
    XF = 96
    TMP = 10
    def wread(i, half):
        base = 16384 * (i % 5)
        reg = WAH if base >= 65536 else WA
        off = base & 0xffff
        fs = FA if half == 0 else FBs
        out = []
        for s in range(4):
            for e in range(2):
                out.append('ds_read_b64_tr_b16 %s, v%d offset:%d' % (vr(fs + 4 * s + 2 * e, 2), reg, off + (4 * half + s) * 2048 + 512 * e))
        return out
    def mfmas(i, half):
        typ, z, r = seq[i]
        fs = FA if half == 0 else FBs
        out = []
        for s in range(4):
            c = '0' if (z == 0 and half == 0 and s == 0) else vr(ACC[r], 16)
            out.append('v_mfma_f32_32x32x16_bf16 %s, %s, %s, %s' % (vr(ACC[r], 16), vr(fs + 4 * s, 4), vr(XF + 4 * (8 * z + 4 * half + s), 4), c))
        return out
    def epi(r):
        a = ACC[r]
        out = []
        for p in range(8):
            t = 10 if p % 2 == 0 else 28
            out += ['v_cvt_pk_bf16_f32 v%d, v%d, v%d' % (t + 2, a + 2 * p, a + 2 * p + 1),
                    'v_lshlrev_b32 v%d, 16, v%d' % (t, t + 2),
                    'v_and_b32 v%d, 0xffff0000, v%d' % (t + 1, t + 2),
                    'v_pk_mul_f32 %s, %s, s[%d:%d]' % (vr(t + 2, 2), vr(t, 2), S_NL2, S_NL2 + 1),
                    'v_exp_f32 v%d, v%d' % (t + 2, t + 2),
                    'v_exp_f32 v%d, v%d' % (t + 3, t + 3),
                    'v_pk_add_f32 %s, %s, 1.0 op_sel_hi:[1,0]' % (vr(t + 2, 2), vr(t + 2, 2)),
                    'v_rcp_f32 v%d, v%d' % (t + 2, t + 2),
                    'v_rcp_f32 v%d, v%d' % (t + 3, t + 3),
                    'v_pk_mul_f32 %s, %s, %s' % (vr(t, 2), vr(t, 2), vr(t + 2, 2)),
                    'v_cvt_pk_bf16_f32 v%d, v%d, v%d' % (a + p, t, t + 1)]
        return out
    def hstore(r):
        a = ACC[r]
        k('s_mul_i32 s66, s%d, 6' % S_J)
        k('s_lshl_b32 s67, s%d, 1' % (S_G0 + r))
        k('s_add_u32 s66, s66, s67')
        k('s_add_u32 s66, s66, s%d' % S_PHI)
        k('s_lshl_b32 s66, s66, 12')
        k('s_add_u32 s66, s66, s%d' % S_HB)
        for s in range(2):
            k('buffer_store_dwordx4 %s, v%d, s[%d:%d], s66 offen offset:%d sc1' % (vr(a + 4 * s, 4), VH, R_WS, R_WS + 3, 512 * s), tag='hst%d' % r)
    def hflag(r):
        k('s_mul_i32 s66, s%d, 768' % S_RHO)
        k('s_lshr_b32 s67, s%d, 1' % S_J)
        k('s_mul_i32 s67, s67, 192')
        k('s_add_u32 s66, s66, s67')
        k('s_and_b32 s67, s%d, 1' % S_J)
        k('s_lshl_b32 s67, s67, 2')
        k('s_add_u32 s67, s67, s%d' % S_WAVE)
        k('s_lshl_b32 s67, s67, 2')
        k('s_add_u32 s66, s66, s67')
        k('s_add_u32 s66, s66, 0x%x' % (WS_FH + 64 * r))
        G.flag_store(14, 15, 's66')

    pend = None
    epq = []
    def weave(ms, fill, per):
        for m in ms:
            k(m)
            for _ in range(per):
                if fill:
                    f = fill.pop(0)
                    if isinstance(f, tuple): k(f[0], tag=f[1])
                    else: k(f)
    for i in range(20):
        typ, z, r = seq[i]
        k.wait(vm='S%d' % i, lg='all' if i else None)
        k('s_barrier')
        if i == 0: G.ts(1)
        if i == 10: G.ts(2)
        if i == 15: G.ts(3)
        fill = []
        if typ == 'X':
            base = 16384 * (i % 5)
            for s in range(8):
                if base >= 65536:
                    k('v_add_u32 v%d, 0x10000, v%d' % (10 + s % 4, XA + s))
                    k('ds_read_b128 %s, v%d' % (vr(XF + 4 * (8 * z + s), 4), 10 + s % 4))
                else:
                    k('ds_read_b128 %s, v%d offset:%d' % (vr(XF + 4 * (8 * z + s), 4), XA + s, base))
        else:
            for l in wread(i, 0): k(l, tag='wa')
        if 1 <= i and i + 4 < 20:
            pre, ld = dma(i + 4)
            fill += pre + ld
        if i == 3:
            pass
        if pend is not None:
            weave(pend, fill, 4)
            pend = None
            if typ == 'W' and z == 0 and r > 0:
                epq = epi(r - 1)
        while fill:
            f = fill.pop(0)
            if isinstance(f, tuple): k(f[0], tag=f[1])
            else: k(f)
        if typ == 'W':
            for l in wread(i, 1): k(l, tag='wb')
            k.wait(lg='wa')
            had = bool(epq)
            weave(mfmas(i, 0), epq, 11)
            pend = mfmas(i, 1)
            if had and not epq:
                hstore(r - 1)
    k.wait(lg='all')
    k('s_barrier')
    weave(pend, [], 0)
    G.ts(4)
    for l in epi(2): k(l)
    hstore(2)
    G.get_nonce(14, 15)
    for r in range(3): hflag(r)
    G.ts(5)
    if opt.get('nogemm2'):
        G.ts_store()
        k('s_endpgm'); return
    VL, VL4 = 2, 3
    VT = 4
    k('v_lshlrev_b32 v%d, 4, v0' % VL)
    k('v_add_u32 v%d, 0x1000, v%d' % (VL4, VL))
    for T in range(4):
        k('s_xor_b32 s64, s%d, %d' % (S_WAVE, T))
        k('s_lshl_b32 s64, s64, 10')
        k('v_add_u32 v%d, s64, v%d' % (VT + T, VL))
    k('s_mul_i32 s64, s%d, 5' % S_J)
    k('s_lshr_b32 s65, s64, 3')
    k('s_add_u32 s64, s64, 4')
    k('s_lshr_b32 s64, s64, 3')
    k('s_sub_u32 s64, s64, s65')
    k('s_mul_i32 s64, s64, 192')
    k('s_mul_i32 s65, s65, 192')
    k('s_mul_i32 s66, s%d, 48' % S_WAVE)
    k('s_add_u32 s65, s65, s66')
    k('s_add_u32 s65, s65, 0x%x' % WS_FW)
    k('v_and_b32 v8, 15, v0')
    k('v_min_u32 v8, 11, v8')
    k('v_lshlrev_b32 v8, 2, v8')
    k('v_bfe_u32 v9, v0, 4, 1')
    k('v_mul_u32_u24 v9, s64, v9')
    k('v_add_u32 v8, v8, v9')
    G.poll(9, 8, 's65')
    k('s_mul_i32 s65, s%d, 768' % S_RHO)
    k('s_mul_i32 s66, s%d, 192' % S_WAVE)
    k('s_add_u32 s65, s65, s66')
    k('s_add_u32 s65, s65, 0x%x' % WS_FH)
    k('v_and_b32 v8, 7, v0')
    k('v_lshrrev_b32 v9, 3, v0')
    k('v_min_u32 v9, 2, v9')
    k('v_lshlrev_b32 v8, 2, v8')
    k('v_lshl_add_u32 v8, v9, 6, v8')
    G.poll(9, 8, 's65')
    G.ts(6)
    SB = 96
    accs = [32 + 4 * i for i in range(16)] + [240 + 4 * i for i in range(4)]
    A2 = lambda T, sub: accs[5 * T + sub]
    def loads(st):
        rank, p, ph = st >> 2, (st >> 1) & 1, st & 1
        b = SB + 36 * (st % 4)
        out = ['s_mul_i32 s64, s%d, 12' % S_WAVE,
               's_lshl_b32 s65, s%d, 1' % (S_G0 + rank),
               's_add_u32 s64, s64, s65',
               's_add_u32 s64, s64, %d' % (6 * p + ph),
               's_mul_i32 s65, s64, 5120',
               's_add_u32 s65, s65, s%d' % S_WB,
               's_lshl_b32 s64, s64, 12',
               's_add_u32 s64, s64, s%d' % S_HB]
        for sub in range(5):
            out.append(('buffer_load_dwordx4 %s, v%d, s[%d:%d], s65 offen offset:%d sc1' % (vr(b + 4 * sub, 4), VL4 if sub == 4 else VL, R_WS, R_WS + 3, 1024 * (sub % 4)), 'st%d' % st))
        for T in range(4):
            out.append(('buffer_load_dwordx4 %s, v%d, s[%d:%d], s64 offen sc1' % (vr(b + 20 + 4 * T, 4), VT + T, R_WS, R_WS + 3), 'st%d' % st))
        return out
    def flush(fill):
        while fill:
            f = fill.pop(0)
            if isinstance(f, tuple): k(f[0], tag=f[1])
            else: k(f)
    for st in range(4): flush(loads(st))
    for st in range(12):
        b = SB + 36 * (st % 4)
        k.wait(vm='st%d' % st)
        for T in range(4):
            for sub in range(5):
                c = '0' if st == 0 else vr(A2(T, sub), 4)
                k('v_mfma_f32_16x16x32_bf16 %s, %s, %s, %s' % (vr(A2(T, sub), 4), vr(b + 4 * sub, 4), vr(b + 20 + 4 * T, 4), c))
        if st + 4 < 12: flush(loads(st + 4))
    G.ts(7)
    k('s_mul_i32 s65, s%d, 320' % S_J)
    k('s_add_u32 s65, s65, 0x%x' % WS_FA)
    k('v_min_u32 v8, 39, v0')
    k('v_lshlrev_b32 v8, 3, v8')
    G.poll(10, 8, 's65', n=2)
    LA = 61440
    k('v_lshrrev_b32 v8, 3, v0')
    k('v_and_b32 v9, 7, v0')
    k('v_lshlrev_b32 v8, 12, v8')
    k('v_lshl_add_u32 v8, v9, 4, v8')
    k('s_mul_i32 s64, s%d, %d' % (S_J, 80 * 4096))
    k('s_lshl_b32 s65, s%d, 7' % S_RHO)
    k('s_add_u32 s64, s64, s65')
    k('s_add_u32 s64, s64, 0x%x' % WS_AT)
    for n in range(3):
        k('s_add_u32 s65, s%d, %d' % (S_WAVE, 4 * n))
        k('s_min_u32 s65, s65, 9')
        k('s_lshl_b32 s66, s65, 15')
        k('s_add_u32 s66, s66, s64')
        k('s_lshl_b32 s65, s65, 10')
        k('s_add_u32 m0, s65, %d' % LA)
        k('buffer_load_dwordx4 v8, s[%d:%d], s66 offen sc1 lds' % (R_WS, R_WS + 3), tag='a')
    for T in range(1, 4):
        k('s_xor_b32 s64, s%d, %d' % (S_WAVE, T))
        k('s_mul_i32 s64, s64, 15360')
        k('s_add_u32 s64, s64, %d' % (5120 * (T - 1)))
        k('v_add_u32 v%d, s64, v%d' % (10 + T, VL))
    for T in range(1, 4):
        for sub in range(5):
            k('ds_write_b128 v%d, %s offset:%d' % (10 + T, vr(A2(T, sub), 4), 1024 * sub))
    k('s_lshl_b32 s64, s%d, 2' % S_RHO)
    k('s_add_u32 s64, s64, s%d' % S_WAVE)
    k('s_lshl_b32 s64, s64, 7')
    k('s_add_u32 s64, s64, 0x%x' % WS_G)
    k('v_and_b32 v8, 15, v0')
    k('v_lshlrev_b32 v8, 3, v8')
    L = k.newlabel('L_pg'); D = k.newlabel('L_pg_ok')
    k('s_movk_i32 s%d, 0x4000' % S_TMO)
    k.label(L)
    k('buffer_load_dwordx2 v[16:17], v8, s[%d:%d], s64 offen sc1' % (R_WS, R_WS + 3))
    k('s_waitcnt vmcnt(0)')
    k('v_cmp_ne_u32 vcc, s%d, v17' % S_NONCE)
    k('s_cmp_eq_u64 vcc, 0')
    k('s_cbranch_scc1 %s' % D)
    k('s_sub_u32 s%d, s%d, 1' % (S_TMO, S_TMO))
    k('s_cmp_lg_u32 s%d, 0' % S_TMO)
    k('s_cbranch_scc1 %s' % L)
    k.label(D)
    k('s_waitcnt vmcnt(0) lgkmcnt(0)')
    k('s_barrier')
    G.ts(8)
    k('s_mul_i32 s64, s%d, 15360' % S_WAVE)
    k('v_add_u32 v10, s64, v%d' % VL)
    RB = 96
    for sub in range(5):
        for p in range(3):
            k('ds_read_b128 %s, v10 offset:%d' % (vr(RB + 12 * sub + 4 * p, 4), 5120 * p + 1024 * sub), tag='r%d' % sub)
    k('v_lshrrev_b32 v11, 2, v0')
    k('v_and_b32 v12, 3, v0')
    k('v_lshlrev_b32 v11, 7, v11')
    k('v_lshl_add_u32 v11, v12, 3, v11')
    k('s_lshl_b32 s64, s%d, 5' % S_WAVE)
    k('s_add_u32 s64, s64, %d' % LA)
    k('v_add_u32 v11, s64, v11')
    AR = 160
    for sub in range(5):
        k('ds_read_b64_tr_b16 %s, v11 offset:%d' % (vr(AR + 2 * sub, 2), 2048 * sub), tag='ar')
    k('v_sub_f32 v18, 1.0, v16')
    k('v_mov_b32 v17, v16')
    k('v_cvt_pk_bf16_f32 v18, v18, v18')
    k('v_lshlrev_b32 v18, 16, v18')
    k('v_mov_b32 v19, v18')
    k('v_and_b32 v12, 15, v0')
    k('v_lshrrev_b32 v13, 4, v0')
    k('v_mul_u32_u24 v12, 1280, v12')
    k('v_lshl_add_u32 v12, v13, 3, v12')
    k('s_lshl_b32 s64, s%d, 2' % S_RHO)
    k('s_add_u32 s64, s64, s%d' % S_WAVE)
    k('s_mul_i32 s64, s64, %d' % (16 * 1280))
    k('s_mul_i32 s65, s%d, 160' % S_J)
    k('s_add_u32 s64, s64, s65')
    k.wait(lg='all')
    for sub in range(5):
        a = A2(0, sub); rb = RB + 12 * sub
        for hf in range(2):
            k('v_pk_add_f32 %s, %s, %s' % (vr(a + 2 * hf, 2), vr(a + 2 * hf, 2), vr(rb + 2 * hf, 2)))
            k('v_pk_add_f32 %s, %s, %s' % (vr(rb + 4 + 2 * hf, 2), vr(rb + 4 + 2 * hf, 2), vr(rb + 8 + 2 * hf, 2)))
        for hf in range(2):
            t = 20 + 6 * hf
            k('v_pk_add_f32 %s, %s, %s' % (vr(a + 2 * hf, 2), vr(a + 2 * hf, 2), vr(rb + 4 + 2 * hf, 2)))
            k('v_lshlrev_b32 v%d, 16, v%d' % (t + 2, AR + 2 * sub + hf))
            k('v_cvt_pk_bf16_f32 v%d, v%d, v%d' % (t + 4, a + 2 * hf, a + 2 * hf + 1))
            k('v_and_b32 v%d, 0xffff0000, v%d' % (t + 3, AR + 2 * sub + hf))
            k('v_lshlrev_b32 v%d, 16, v%d' % (t, t + 4))
            k('v_and_b32 v%d, 0xffff0000, v%d' % (t + 1, t + 4))
            k('v_pk_mul_f32 %s, %s, v[16:17]' % (vr(t + 2, 2), vr(t + 2, 2)))
            k('v_pk_mul_f32 %s, %s, v[18:19]' % (vr(t, 2), vr(t, 2)))
            k('v_cvt_pk_bf16_f32 v%d, v%d, v%d' % (t + 4, t + 2, t + 3))
            k('v_cvt_pk_bf16_f32 v%d, v%d, v%d' % (t + 5, t, t + 1))
            k('v_lshlrev_b32 v%d, 16, v%d' % (t, t + 4))
            k('v_and_b32 v%d, 0xffff0000, v%d' % (t + 1, t + 4))
            k('v_lshlrev_b32 v%d, 16, v%d' % (t + 2, t + 5))
            k('v_and_b32 v%d, 0xffff0000, v%d' % (t + 3, t + 5))
            k('v_pk_add_f32 %s, %s, %s' % (vr(t, 2), vr(t, 2), vr(t + 2, 2)))
            k('v_cvt_pk_bf16_f32 v%d, v%d, v%d' % (AR + 12 + 2 * sub + hf, t, t + 1))
        k('buffer_store_dwordx2 %s, v12, s[%d:%d], s64 offen offset:%d' % (vr(AR + 12 + 2 * sub, 2), R_O, R_O + 3, 32 * sub))
    G.ts(9)
    G.ts_store()
    k('s_endpgm')
```

```python
import re
TRANS = ('v_exp_f32', 'v_log_f32', 'v_rcp_f32', 'v_rsq_f32', 'v_sqrt_f32', 'v_sin_f32', 'v_cos_f32')
RE_REG = re.compile(r'(?<![\w.])(-?\|?)([vsa])(\d+|\[(\d+):(\d+)\])(?![\w])|\b(vcc|exec|m0)\b')

def regs_of(op):
    out = set()
    for m in RE_REG.finditer(op):
        if m.group(6):
            out.add(m.group(6)); continue
        t = m.group(2)
        if m.group(4) is not None:
            for i in range(int(m.group(4)), int(m.group(5)) + 1): out.add(t + str(i))
        else:
            out.add(t + m.group(3))
    return out

class Ins:
    def __init__(self, text):
        self.text = text
        t = text.split(';')[0].strip()
        parts = t.split(None, 1)
        self.mn = parts[0]
        mn = self.mn
        rest = parts[1] if len(parts) > 1 else ''
        ops = []; depth = 0; cur = ''
        for ch in rest:
            if ch == '[': depth += 1
            if ch == ']': depth -= 1
            if ch == ',' and depth == 0:
                ops.append(cur.strip()); cur = ''
            else: cur += ch
        if cur.strip(): ops.append(cur.strip())
        self.mods = ''
        if ops:
            sp = ops[-1].split(None, 1)
            if len(sp) > 1: ops[-1], self.mods = sp[0], sp[1]
        self.ops = ops
        self.wr = set(); self.rd = set()
        self.kind = 'other'
        base = re.sub(r'_(e32|e64|dpp|sdwa)$', '', mn)
        self.base = base
        R = [regs_of(o) for o in ops]
        allr = set().union(*R) if R else set()
        self.passes = 0; self.srcc = set(); self.srcab = set()
        self.dpp = mn.endswith('_dpp')
        if mn.startswith('v_mfma'):
            self.kind = 'mfma'
            self.wr = R[0]; self.srcab = R[1] | R[2]; self.srcc = R[3]; self.rd = self.srcab | self.srcc
            self.passes = 8 if '32x32' in mn else 4
        elif mn.startswith('v_'):
            self.kind = 'trans' if base in TRANS else 'valu'
            if base.startswith('v_permlane') and 'swap' in base:
                self.wr = R[0] | R[1]; self.rd = R[0] | R[1]
            elif base.startswith(('v_add_co', 'v_sub_co', 'v_addc_co', 'v_subb_co')):
                self.wr = R[0] | R[1]; self.rd = set().union(*R[2:])
            else:
                self.wr = set(R[0]); self.rd = set().union(*R[1:]) if len(R) > 1 else set()
                if base.startswith(('v_fmac', 'v_writelane', 'v_mac')) or self.dpp: self.rd |= R[0]
                if base.startswith('v_cmpx'): self.wr.add('exec')
                if base == 'v_cndmask_b32' and len(ops) == 3: self.rd.add('vcc')
        elif mn.startswith('ds_'):
            self.kind = 'ds'
            if mn.startswith(('ds_read', 'ds_bpermute', 'ds_permute', 'ds_swizzle')):
                self.wr = R[0]; self.rd = set().union(*R[1:]) if len(R) > 1 else set()
            else: self.rd = allr
            if 'addtid' in mn: self.rd.add('m0')
        elif mn.startswith(('buffer_', 'global_')):
            self.kind = 'vmem'
            self.lds = bool(re.search(r'\blds\b', self.mods))
            if 'load' in mn and not self.lds:
                self.wr = R[0]; self.rd = set().union(*R[1:])
                if 'd16' in mn: self.rd |= R[0]
            else:
                self.rd = allr
                if self.lds: self.rd.add('m0')
            self.wide_store = ('store' in mn) and mn.endswith(('x3', 'x4'))
            if self.wide_store:
                self.sdata = R[0] if mn.startswith('buffer') else R[1]
        elif mn.startswith('s_'):
            self.kind = 'salu'
            if mn.startswith(('s_load', 's_memtime', 's_memrealtime', 's_buffer_load')):
                self.kind = 'smem'; self.wr = R[0]; self.rd = set().union(*R[1:]) if len(R) > 1 else set()
            elif mn.startswith(('s_cmp', 's_cbranch', 's_branch', 's_waitcnt', 's_barrier', 's_nop', 's_endpgm', 's_sleep', 's_setprio', 's_bitcmp')):
                self.rd = allr
            else:
                self.wr = set(R[0]) if R else set(); self.rd = set().union(*R[1:]) if len(R) > 1 else set()
                if 'saveexec' in mn: self.wr.add('exec'); self.rd.add('exec')
    def states(self):
        if self.mn == 's_nop': return int(self.ops[0], 0) + 1
        return 1

def isv(r): return r[0] in 'va' and r not in ('vcc',)
def iss(r): return r[0] == 's' or r == 'vcc'

def need(p, c):
    n = 0
    pv = p.kind in ('valu', 'trans')
    cv = c.kind in ('valu', 'trans')
    if pv:
        wv = {r for r in p.wr if isv(r)}; ws = {r for r in p.wr if iss(r)}
        if c.kind == 'mfma' and (wv & c.rd): n = max(n, 2)
        if c.kind == 'mfma' and 'exec' in p.wr: n = max(n, 4)
        if c.kind == 'vmem' and (ws & c.rd): n = max(n, 5)
        if cv and (ws & c.rd):
            n = max(n, 4 if c.base in ('v_readlane_b32', 'v_writelane_b32') else 2)
        if c.kind in ('salu', 'smem') and (ws & c.rd): n = max(n, 1)
        if cv and c.dpp and (wv & c.rd): n = max(n, 2)
        if cv and c.dpp and 'exec' in p.wr: n = max(n, 5)
        if cv and c.base in ('v_readlane_b32', 'v_readfirstlane_b32') and (wv & c.rd): n = max(n, 1)
        if cv and c.base.startswith('v_permlane') and (wv & c.rd): n = max(n, 2)
        if p.kind == 'trans' and c.kind in ('valu', 'mfma') and (wv & c.rd): n = max(n, 1 if c.kind == 'valu' else 2)
        if 'exec' in p.wr and cv and c.base in ('v_readlane_b32', 'v_readfirstlane_b32', 'v_writelane_b32'): n = max(n, 4)
    if p.kind == 'salu' and 'm0' in p.wr and 'm0' in c.rd and c.kind in ('vmem', 'ds'): n = max(n, 1)
    if p.kind == 'vmem' and getattr(p, 'wide_store', False) and (p.sdata & c.wr): n = max(n, 2)
    if p.kind == 'mfma':
        tab_use = {4: 8, 8: 12}[p.passes]
        if c.kind == 'mfma':
            if p.wr & c.srcab: n = max(n, tab_use)
            if p.wr & c.srcc:
                if not (p.wr == c.srcc and p.passes == c.passes): n = max(n, {4: 6, 8: 10}[p.passes])
            elif p.wr & c.wr: n = max(n, tab_use)
        elif c.kind in ('valu', 'trans', 'vmem', 'ds'):
            if p.wr & (c.rd | c.wr): n = max(n, tab_use)
            if cv and (p.srcc & c.wr): n = max(n, {4: 3, 8: 7}[p.passes])
    return n

class K:
    def __init__(self):
        self.items = []
        self.hist = []
        self.nlab = 0
        self.vm = []
        self.lg = []
        self.nops = 0
    def raw(self, s): self.items.append(s)
    def label(self, name, flush=True):
        self.items.append(name + ':')
    def newlabel(self, base='L'):
        self.nlab += 1
        return '%s_%d' % (base, self.nlab)
    def __call__(self, text, tag=None):
        for l in text.split('\n'):
            l = l.strip()
            if not l: continue
            ins = Ins(l)
            req = 0; dist = 0
            for p in reversed(self.hist):
                r = need(p, ins) - dist
                if r > req: req = r
                dist += p.states()
                if dist >= 20: break
            if req > 0:
                nop = Ins('s_nop %d' % (req - 1))
                self.items.append(nop); self.hist.append(nop); self.nops += req
            self.items.append(ins); self.hist.append(ins)
            if len(self.hist) > 40: self.hist = self.hist[-30:]
            if ins.kind == 'vmem': self.vm.append(tag)
            if ins.kind == 'ds': self.lg.append(tag)
    def pad(self, n):
        while n > 0:
            k = min(n, 16); self('s_nop %d' % (k - 1)); n -= k
    def _cnt(self, lst, tag):
        idx = max(i for i, t in enumerate(lst) if t == tag)
        return len(lst) - 1 - idx
    def wait(self, vm=None, lg=None):
        parts = []
        if vm is not None:
            n = 0 if vm == 'all' else min(self._cnt(self.vm, vm), 63)
            parts.append('vmcnt(%d)' % n)
        if lg is not None:
            n = 0 if lg == 'all' else min(self._cnt(self.lg, lg), 15)
            parts.append('lgkmcnt(%d)' % n)
        self('s_waitcnt ' + ' '.join(parts))
    def reset_counts(self):
        self.vm = []; self.lg = []
    def text(self):
        out = []
        for it in self.items:
            out.append(('    ' + it.text) if isinstance(it, Ins) else it)
        return '\n'.join(out) + '\n'
def vr(a, n=1):
    return 'v%d' % a if n == 1 else 'v[%d:%d]' % (a, a + n - 1)
def sr(a, n=1):
    return 's%d' % a if n == 1 else 's[%d:%d]' % (a, a + n - 1)
import struct
def f2u(x): return struct.unpack('<I', struct.pack('<f', x))[0]
def fhex(x): return '0x%08x' % f2u(x)
```

```python
import sys, math
from kgen import *
KNAME = 'gated_mix__ssm_conv_s4__dense_activation_silu__prompt_kernel'

WS_UT, WS_AT, WS_H, WS_W2P, WS_G = 0x000000, 0x300000, 0x600000, 0xC00000, 0xE00000
WS_FH, WS_FU, WS_FW, WS_FA, WS_TS = 0xE10000, 0xE20000, 0xE21000, 0xE22000, 0xE30000
WS_SZ = 0x1000000
LOG2E = 1.4426950408889634
INV2PI = 0.15915494309189535

S_WG, S_WAVE, S_M, S_RHO, S_J, S_NONCE, S_TMO = 2, 3, 4, 5, 6, 7, 8
P_U, P_ARE, P_AIM, P_BRE, P_BIM, P_CRE, P_CIM, P_LDT = 16, 18, 20, 22, 24, 26, 28, 30
P_DSK, P_BX, P_W1, P_W2, P_GW, P_OUT, P_DBG, P_WS = 32, 34, 36, 38, 40, 42, 44, 46
R_WS, R_U, R_W, R_O = 48, 52, 56, 60
S_T = 64
S_TS = 80

class Gen:
    def __init__(self, opt):
        self.k = K()
        self.opt = opt
        self.nts = 0
    def srd(self, r, p, size):
        k = self.k
        k('s_mov_b32 s%d, s%d' % (r, p))
        k('s_mov_b32 s%d, s%d' % (r + 1, p + 1))
        k('s_mov_b32 s%d, 0x%x' % (r + 2, size))
        k('s_mov_b32 s%d, 0x20000' % (r + 3))
    def ts(self, i):
        if self.opt.get('ts'):
            self.k('s_memrealtime s[%d:%d]' % (S_TS + 2 * i, S_TS + 2 * i + 1))
    def ts_store(self):
        if not self.opt.get('ts'): return
        k = self.k
        k('s_waitcnt vmcnt(0) lgkmcnt(0)')
        k('s_lshl_b32 s64, s%d, 2' % S_WG)
        k('s_add_u32 s64, s64, s%d' % S_WAVE)
        k('s_lshl_b32 s64, s64, 6')
        k('s_add_u32 s64, s64, 0x%x' % WS_TS)
        k('v_mov_b32 v1, 0')
        for i in range(10):
            k('v_mov_b32 v2, s%d' % (S_TS + 2 * i))
            k('buffer_store_dword v2, v1, s[%d:%d], s64 offen offset:%d' % (R_WS, R_WS + 3, 4 * i))
        k('s_waitcnt vmcnt(0)')
    def get_nonce(self, vt, vz):
        k = self.k
        L = k.newlabel('L_nonce'); D = k.newlabel('L_nonce_ok')
        k('v_mov_b32 %s, 0' % vr(vz))
        k('s_movk_i32 s%d, 0x4000' % S_TMO)
        k.label(L)
        k('global_load_dword %s, %s, s[%d:%d] sc1' % (vr(vt), vr(vz), P_DBG, P_DBG + 1))
        k('s_waitcnt vmcnt(0)')
        k('v_readfirstlane_b32 s%d, %s' % (S_NONCE, vr(vt)))
        k('s_cmp_lg_u32 s%d, 0' % S_NONCE)
        k('s_cbranch_scc1 %s' % D)
        k('s_sub_u32 s%d, s%d, 1' % (S_TMO, S_TMO))
        k('s_cmp_lg_u32 s%d, 0' % S_TMO)
        k('s_cbranch_scc1 %s' % L)
        k.label(D)
    def poll(self, vt, vaddr, soff, n=1, first_issued=None):
        k = self.k
        L = k.newlabel('L_poll'); D = k.newlabel('L_poll_ok'); C = k.newlabel('L_poll_chk')
        k('s_movk_i32 s%d, 0x4000' % S_TMO)
        if first_issued is not None:
            k.wait(vm=first_issued)
            k('s_branch %s' % C)
        k.label(L)
        nvm = len(k.vm)
        k('buffer_load_dword%s %s, %s, s[%d:%d], %s offen sc1' % ('x2' if n == 2 else '', vr(vt, n), vr(vaddr), R_WS, R_WS + 3, soff))
        if first_issued is not None: k.vm.pop()
        k('s_waitcnt vmcnt(0)')
        k.label(C)
        k('v_cmp_ne_u32 vcc, s%d, %s' % (S_NONCE, vr(vt)))
        if n == 2:
            k('v_cmp_ne_u32 s[78:79], s%d, %s' % (S_NONCE, vr(vt + 1)))
            k('s_or_b64 vcc, vcc, s[78:79]')
        k('s_cmp_eq_u64 vcc, 0')
        k('s_cbranch_scc1 %s' % D)
        k('s_sub_u32 s%d, s%d, 1' % (S_TMO, S_TMO))
        k('s_cmp_lg_u32 s%d, 0' % S_TMO)
        k('s_cbranch_scc1 %s' % L)
        k.label(D)
    def flag_store(self, vt, vz, soff, tag=None):
        k = self.k
        k('v_mov_b32 %s, s%d' % (vr(vt), S_NONCE))
        k('v_mov_b32 %s, 0' % vr(vz))
        k('s_mov_b64 exec, 1')
        k('buffer_store_dword %s, %s, s[%d:%d], %s offen sc1' % (vr(vt), vr(vz), R_WS, R_WS + 3, soff), tag=tag)
        k('s_mov_b64 exec, -1')

    def prologue(self):
        k = self.k
        k('s_cmp_ge_u32 s2, 512')
        k('s_cbranch_scc1 L_end')
        k('s_load_dwordx16 s[16:31], s[0:1], 0')
        k('s_load_dwordx16 s[32:47], s[0:1], 64')
        k('s_memrealtime s[10:11]')
        k('v_lshrrev_b32 v1, 6, v0')
        k('v_and_b32 v0, 63, v0')
        k('v_readfirstlane_b32 s%d, v1' % S_WAVE)
        k('s_and_b32 s%d, s2, 255' % S_M)
        k('s_and_b32 s64, s%d, 7' % S_M)
        k('s_lshr_b32 s65, s%d, 3' % S_M)
        k('s_lshr_b32 s66, s64, 1')
        k('s_lshl_b32 s66, s66, 3')
        k('s_and_b32 s67, s65, 7')
        k('s_add_u32 s%d, s66, s67' % S_RHO)
        k('s_and_b32 s66, s64, 1')
        k('s_lshl_b32 s66, s66, 2')
        k('s_lshr_b32 s67, s65, 3')
        k('s_add_u32 s%d, s66, s67' % S_J)
        k('s_waitcnt lgkmcnt(0)')
        if self.opt.get('ts'):
            for i in range(10):
                k('s_mov_b32 s%d, s10' % (S_TS + 2 * i))
        self.srd(R_WS, P_WS, WS_SZ)
        self.srd(R_U, P_U, 2048 * 640 * 2)
        k('s_lshl_b32 s64, s2, 2')
        k('s_add_u32 s64, s64, s%d' % S_WAVE)
        k('s_cmp_lg_u32 s64, 0')
        k('s_cbranch_scc1 L_nonn')
        k('s_or_b32 s10, s10, 1')
        k('v_mov_b32 v1, s10')
        k('v_mov_b32 v2, 0')
        k('s_mov_b64 exec, 1')
        k('global_store_dword v2, v1, s[%d:%d] sc1' % (P_DBG, P_DBG + 1))
        k('s_mov_b64 exec, -1')
        k.label('L_nonn')
        k('s_cmp_lt_u32 s2, 256')
        k('s_cbranch_scc1 L_gemm')
        k('s_cmp_eq_u32 s%d, 3' % S_WAVE)
        k('s_cbranch_scc1 L_misc')

    def misc(self):
        k = self.k
        k.reset_counts()
        LT, LW = 52608, 52608 + 10240
        k.label('L_misc')
        self.srd(R_W, P_W2, 1536 * 640 * 2)
        for i in range(5):
            k('v_add_u32 v1, %d, v0' % (64 * i))
            k('v_mul_u32_u24 v2, 205, v1')
            k('v_lshrrev_b32 v2, 11, v2')
            k('v_mul_u32_u24 v3, 10, v2')
            k('v_sub_u32 v3, v1, v3')
            k('v_mul_u32_u24 v2, 1280, v2')
            k('v_lshl_add_u32 v%d, v3, 4, v2' % (10 + i))
        k('s_mul_i32 s64, s%d, %d' % (S_RHO, 64 * 1280))
        k('s_mul_i32 s65, s%d, 160' % S_J)
        k('s_add_u32 s64, s64, s65')
        k('s_add_u32 s65, s64, %d' % (32 * 1280))
        for i in range(10):
            k('s_mov_b32 m0, %d' % (LT + 1024 * i))
            k('buffer_load_dwordx4 v%d, s[%d:%d], s%d offen lds' % (10 + i % 5, R_U, R_U + 3, 64 + i // 5), tag='T')
        k('s_min_u32 s66, s%d, 239' % S_M)
        k('s_mul_i32 s67, s66, 205')
        k('s_lshr_b32 s67, s67, 10')
        k('s_mul_i32 s68, s67, 5')
        k('s_sub_u32 s68, s66, s68')
        k('s_mul_i32 s69, s67, %d' % (32 * 1280))
        k('s_lshl_b32 s70, s68, 8')
        k('s_add_u32 s69, s69, s70')
        k('v_lshrrev_b32 v1, 4, v0')
        k('v_and_b32 v2, 15, v0')
        k('v_mul_u32_u24 v1, 1280, v1')
        k('v_lshl_add_u32 v15, v2, 4, v1')
        for i in range(8):
            k('s_mov_b32 m0, %d' % (LW + 1024 * i))
            k('buffer_load_dwordx4 v15, s[%d:%d], s69 offen lds' % (R_W, R_W + 3), tag='W')
            k('s_add_u32 s69, s69, %d' % (4 * 1280))
        k('v_lshrrev_b32 v1, 3, v0')
        k('v_and_b32 v2, 7, v0')
        k('v_lshlrev_b32 v16, 4, v2')
        k('v_mul_u32_u24 v1, 1280, v1')
        k('v_add_u32 v17, v1, v16')
        k('s_lshl_b32 s70, s%d, 3' % S_RHO)
        k('s_add_u32 s70, s70, s%d' % S_J)
        k('s_mul_i32 s71, s70, %d' % (8 * 1280))
        GX, GW = 96, 136
        for i in range(10):
            k('buffer_load_dwordx4 %s, v17, s[%d:%d], s71 offen offset:%d' % (vr(GX + 4 * i, 4), R_U, R_U + 3, 128 * i), tag='G')
        for i in range(10):
            k('global_load_dwordx4 %s, v16, s[%d:%d] offset:%d' % (vr(GW + 4 * i, 4), P_GW, P_GW + 1, 128 * i), tag='G')
        k('v_lshrrev_b32 v1, 4, v0')
        k('v_bfe_u32 v2, v0, 2, 2')
        k('v_and_b32 v3, 3, v0')
        k('v_lshl_add_u32 v4, v1, 3, v2')
        k('v_mul_u32_u24 v4, 160, v4')
        k('v_lshl_add_u32 v4, v3, 3, v4')
        k('v_add_u32 v18, %d, v4' % LT)
        k('v_and_b32 v5, 15, v0')
        k('v_lshlrev_b32 v5, 12, v5')
        k('v_lshl_add_u32 v19, v1, 4, v5')
        k('v_lshrrev_b32 v5, 1, v1')
        k('v_and_b32 v6, 1, v1')
        k('v_lshlrev_b32 v5, 4, v5')
        k('v_lshl_add_u32 v5, v6, 2, v5')
        k('v_add_u32 v5, v5, v2')
        k('v_lshlrev_b32 v5, 8, v5')
        k('v_lshl_add_u32 v5, v3, 3, v5')
        k('v_add_u32 v20, %d, v5' % LW)
        k('v_lshlrev_b32 v21, 4, v0')
        k('s_mul_i32 s72, s%d, %d' % (S_J, 80 * 4096))
        k('s_lshl_b32 s73, s%d, 7' % S_RHO)
        k('s_add_u32 s72, s72, s73')
        k.wait(vm='T')
        self.ts(1)
        for dl in range(5):
            for z in range(2):
                b = 24 + 8 * dl + 4 * z
                for e in range(2):
                    k('ds_read_b64_tr_b16 %s, v18 offset:%d' % (vr(b + 2 * e, 2), (32 * z + 4 * e) * 160 + 32 * dl), tag='t%d' % dl)
        for dl in range(5):
            k.wait(lg='t%d' % dl)
            for z in range(2):
                k('buffer_store_dwordx4 %s, v19, s[%d:%d], s72 offen offset:%d sc1' % (vr(24 + 8 * dl + 4 * z, 4), R_WS, R_WS + 3, 64 * z), tag='Tst')
            k('s_add_u32 s72, s72, %d' % (16 * 4096))
        k.wait(vm='W')
        for fr in range(8):
            for e in range(2):
                k('ds_read_b64_tr_b16 %s, v20 offset:%d' % (vr(64 + 4 * fr + 2 * e, 2), 8 * e * 256 + 32 * fr), tag='w%d' % fr)
        for fr in range(8):
            k('s_lshl_b32 s73, s68, 3')
            k('s_add_u32 s73, s73, %d' % fr)
            k('s_mul_i32 s74, s73, 205')
            k('s_lshr_b32 s74, s74, 10')
            k('s_mul_i32 s75, s74, 235')
            k('s_add_u32 s75, s75, s73')
            k('s_mul_i32 s76, s67, 5')
            k('s_add_u32 s75, s75, s76')
            k('s_lshl_b32 s75, s75, 10')
            k('s_add_u32 s75, s75, 0x%x' % WS_W2P)
            k.wait(lg='w%d' % fr)
            k('buffer_store_dwordx4 %s, v21, s[%d:%d], s75 offen sc1' % (vr(64 + 4 * fr, 4), R_WS, R_WS + 3), tag='Wst')
        self.get_nonce(8, 9)
        self.ts(2)
        k('s_lshl_b32 s73, s%d, 5' % S_J)
        k('s_add_u32 s73, s73, s%d' % S_RHO)
        k('s_lshl_b32 s73, s73, 2')
        k('s_add_u32 s73, s73, 0x%x' % WS_FU)
        self.flag_store(8, 9, 's73')
        k('s_mul_i32 s73, s68, 48')
        k('s_add_u32 s73, s73, s67')
        k('s_lshl_b32 s73, s73, 2')
        k('s_add_u32 s73, s73, 0x%x' % WS_FW)
        self.flag_store(8, 9, 's73')
        k('v_mov_b32 v24, 0')
        k('v_mov_b32 v25, 0')
        for i in range(40):
            x, w = GX + i, GW + i
            t = 28 + 8 * (i % 2)
            k('v_lshlrev_b32 v%d, 16, v%d' % (t, x))
            k('v_and_b32 v%d, 0xffff0000, v%d' % (t + 1, x))
            k('v_lshlrev_b32 v%d, 16, v%d' % (t + 2, w))
            k('v_and_b32 v%d, 0xffff0000, v%d' % (t + 3, w))
            k('v_pk_mul_f32 %s, %s, %s' % (vr(t, 2), vr(t, 2), vr(t + 2, 2)))
            k('v_cvt_pk_bf16_f32 v%d, v%d, v%d' % (t + 4, t, t + 1))
            k('v_lshlrev_b32 v%d, 16, v%d' % (t, t + 4))
            k('v_and_b32 v%d, 0xffff0000, v%d' % (t + 1, t + 4))
            k('v_pk_add_f32 v[24:25], v[24:25], %s' % vr(t, 2))
        k('v_add_f32 v24, v24, v25')
        k('v_add_f32_dpp v24, v24, v24 quad_perm:[1,0,3,2] row_mask:0xf bank_mask:0xf')
        k('v_add_f32_dpp v24, v24, v24 quad_perm:[2,3,0,1] row_mask:0xf bank_mask:0xf')
        k('v_add_f32_dpp v24, v24, v24 row_half_mirror row_mask:0xf bank_mask:0xf')
        k('v_cvt_pk_bf16_f32 v24, v24, v24')
        k('v_lshlrev_b32 v24, 16, v24')
        k('v_mul_f32 v24, %s, v24' % fhex(-LOG2E))
        k('v_exp_f32 v24, v24')
        k('v_add_f32 v24, 1.0, v24')
        k('v_rcp_f32 v24, v24')
        k('v_cvt_pk_bf16_f32 v24, v24, v24')
        k('v_lshlrev_b32 v24, 16, v24')
        k('v_mov_b32 v25, s%d' % S_NONCE)
        k('v_and_b32 v26, 0x38, v0')
        k('s_lshl_b32 s73, s70, 6')
        k('s_add_u32 s73, s73, 0x%x' % WS_G)
        k('s_mov_b32 s74, 0x01010101')
        k('s_mov_b32 s75, 0x01010101')
        k('s_mov_b64 exec, s[74:75]')
        k('buffer_store_dwordx2 v[24:25], v26, s[%d:%d], s73 offen sc1' % (R_WS, R_WS + 3))
        k('s_mov_b64 exec, -1')
        self.ts(3)
        self.ts_store()
        k('s_endpgm')

    def cmul(self, d, a, b):
        return ['v_pk_mul_f32 %s, %s, %s op_sel:[0,0] op_sel_hi:[0,1]' % (vr(d, 2), vr(a, 2), vr(b, 2)),
                'v_pk_fma_f32 %s, %s, %s, %s op_sel:[1,1,0] op_sel_hi:[1,0,1] neg_lo:[1,0,0]' % (vr(d, 2), vr(a, 2), vr(b, 2), vr(d, 2))]
    def chan(self):
        k = self.k
        k.reset_counts()
        S_D, S_CB, S_DSK = 12, 13, 14
        KO, UX, UY = 4576, 9120, 9120 + 4224
        k('s_mul_i32 s64, s%d, 3' % S_M)
        k('s_lshl_b32 s65, s%d, 1' % S_M)
        k('s_add_u32 s65, s65, 128')
        k('s_cmp_lt_u32 s%d, 128' % S_M)
        k('s_cselect_b32 s64, s64, s65')
        k('s_cselect_b32 s65, 3, 2')
        k('s_cmp_ge_u32 s%d, s65' % S_WAVE)
        k('s_cbranch_scc1 L_end')
        k('s_add_u32 s%d, s64, s%d' % (S_D, S_WAVE))
        k('s_mul_i32 s%d, s%d, 17536' % (S_CB, S_WAVE))
        PR = 200
        for i in range(18): k('v_mov_b32 v%d, 0' % (PR + i))
        k('s_mul_i32 s64, s%d, 384' % S_D)
        k('v_lshlrev_b32 v1, 1, v0')
        k('v_add_u32 v1, s64, v1')
        for ps in range(3):
            for ai, p in enumerate((P_ARE, P_AIM, P_BRE, P_BIM, P_CRE, P_CIM)):
                k('global_load_short_d16_hi v%d, v1, s[%d:%d] offset:%d' % (PR + 3 * ai + ps, p, p + 1, 128 * ps), tag='par%d' % ps)
        k('s_lshr_b32 s64, s%d, 1' % S_D)
        k('s_lshl_b32 s64, s64, 2')
        k('s_load_dword s65, s[%d:%d], s64' % (P_LDT, P_LDT + 1))
        k('s_load_dword s66, s[%d:%d], s64' % (P_DSK, P_DSK + 1))
        V_PA, V_QA, V_WA, V_DT = 2, 3, 4, 5
        k('v_mov_b32 v6, 0')
        for i in range(32):
            r = 4 * (i >> 3) + (i & 3); hh = (i >> 2) & 1
            if r <= 4: row = r + 4 * hh
            elif r <= 7: row = 9 + (r - 5) + 2 * hh
            elif r <= 10: row = 14 + (r - 8) + 3 * hh
            elif r <= 12: row = 20 + (r - 11) + 4 * hh
            elif r <= 14: row = 22 + (r - 13) + 4 * hh
            else: row = 0
            if row: k('v_writelane_b32 v6, %d, %d' % (row, i))
        k('v_mov_b32 v7, v6')
        k('v_permlane32_swap_b32 v6, v7')
        k('v_lshrrev_b32 v8, 5, v0')
        k('v_lshlrev_b32 v8, 4, v8')
        k('v_add_u32 v8, s%d, v8' % S_CB)
        k('v_mul_u32_u24 v6, 272, v6')
        k('v_add_u32 v%d, v6, v8' % V_PA)
        k('v_and_b32 v6, 31, v0')
        k('v_mul_u32_u24 v6, 272, v6')
        k('v_add_u32 v%d, v6, v8' % V_QA)
        k('v_lshlrev_b32 v6, 2, v0')
        k('v_add_u32 v%d, s%d, v6' % (V_WA, S_CB))
        k('v_and_b32 v6, 15, v0')
        k('v_lshlrev_b32 v6, 2, v6')
        k('v_add_u32 v6, s%d, v6' % S_CB)
        k('v_mov_b32 v7, 0')
        k('ds_write_b32 v6, v7 offset:%d' % UX)
        k('ds_write_b32 v6, v7 offset:%d' % UY)
        k('s_waitcnt lgkmcnt(0)')
        k('s_and_b32 s64, s%d, 1' % S_D)
        k('s_lshl_b32 s64, s64, 4')
        k('s_lshr_b32 s65, s65, s64')
        k('s_lshl_b32 s65, s65, 16')
        k('s_lshr_b32 s66, s66, s64')
        k('s_lshl_b32 s%d, s66, 16' % S_DSK)
        k('s_mov_b32 s%d, s%d' % (S_DSK + 1, S_DSK))
        k('v_mov_b32 v6, s65')
        k('v_mul_f32 v6, %s, v6' % fhex(LOG2E))
        k('v_exp_f32 v6, v6')
        k('v_cvt_pk_bf16_f32 v6, v6, v6')
        k('v_lshlrev_b32 v%d, 16, v6' % V_DT)
        k('s_mul_i32 s64, s%d, 205' % S_D)
        k('s_lshr_b32 s64, s64, 14')
        k('s_lshl_b32 s64, s64, 7')
        k('s_add_u32 s9, s64, 0x%x' % WS_FU)
        ACC = 16
        QF, PF = 32, 64
        X_, C_, E1, E2, E4, E8, E256, E8C, E16C = 100, 102, 104, 106, 108, 110, 112, 114, 116
        T0 = 120
        for ps in range(3):
            k.wait(vm='par%d' % ps)
            if ps == 0: self.ts(1)
            ar, ai, br, bi, cr, ci = [PR + 3 * a + ps for a in range(6)]
            k('v_mul_f32 v%d, v%d, v%d' % (X_, V_DT, ar))
            k('v_mul_f32 v%d, v%d, v%d' % (X_ + 1, V_DT, ai))
            k('v_mul_f32 v%d, v%d, v%d' % (T0, V_DT, br))
            k('v_mul_f32 v%d, v%d, v%d' % (T0 + 1, V_DT, bi))
            k('v_mul_f32 v%d, %s, v%d' % (X_, fhex(LOG2E), X_))
            k('v_mul_f32 v%d, %s, v%d' % (X_ + 1, fhex(INV2PI), X_ + 1))
            k('v_mul_f32 v%d, v%d, v%d' % (C_, cr, T0))
            k('v_mul_f32 v%d, v%d, v%d' % (C_ + 1, cr, T0 + 1))
            k('v_rndne_f32 v%d, v%d' % (T0 + 2, X_ + 1))
            k('v_fma_f32 v%d, -v%d, v%d, v%d' % (C_, ci, T0 + 1, C_))
            k('v_fma_f32 v%d, v%d, v%d, v%d' % (C_ + 1, ci, T0, C_ + 1))
            k('v_sub_f32 v%d, v%d, v%d' % (X_ + 1, X_ + 1, T0 + 2))
            for idx, (dst, p) in enumerate(((E8, 8.0), (E1, 1.0), (E256, 256.0))):
                t = T0 + 4 + 4 * idx
                if p == 1.0:
                    m, th = X_, X_ + 1
                else:
                    k('v_mul_f32 v%d, %s, v%d' % (t, fhex(p), X_))
                    k('v_mul_f32 v%d, %s, v%d' % (t + 1, fhex(p), X_ + 1))
                    m, th = t, t + 1
                k('v_exp_f32 v%d, v%d' % (t + 2, m))
                k('v_cos_f32 v%d, v%d' % (dst, th))
                k('v_sin_f32 v%d, v%d' % (dst + 1, th))
            for idx, dst in enumerate((E8, E1, E256)):
                t = T0 + 4 + 4 * idx
                k('v_pk_mul_f32 %s, %s, %s op_sel_hi:[1,0]' % (vr(dst, 2), vr(dst, 2), vr(t + 2, 2)))
            k('v_mov_b32 v%d, v%d' % (E8C, E8))
            k('v_xor_b32 v%d, 0x80000000, v%d' % (E8C + 1, E8 + 1))
            for l in self.cmul(E16C, E8C, E8C): k(l)
            CV = 140
            cvn = [0]
            def put(row, src):
                t = CV + cvn[0] % 8; cvn[0] += 1
                return ['v_cvt_pk_bf16_f32 v%d, v%d, v%d' % (t, src, src + 1),
                        'ds_write_b32 v%d, v%d offset:%d' % (V_WA, t, 272 * row)]
            k('v_mov_b32 v%d, 0x3f80' % (CV + 8))
            k('ds_write_b32 v%d, v%d' % (V_WA, CV + 8))
            for l in put(1, E8C) + put(2, E16C): k(l)
            qa, qb = E8C, E16C
            pp = [(150, 152), (154, 156)]
            for b in range(3, 32, 2):
                na, nb = pp[((b - 3) // 2) % 2]
                ma = self.cmul(na, qa, E16C)
                if b + 1 < 32:
                    mb = self.cmul(nb, qb, E16C)
                    pa, pb = put(b, na), put(b + 1, nb)
                    for l in (ma[0], mb[0], ma[1], mb[1], pa[0], pb[0], pa[1], pb[1]): k(l)
                else:
                    for l in ma + put(b, na): k(l)
                qa, qb = na, nb
            for s in range(8):
                k('ds_read_b128 %s, v%d offset:%d' % (vr(QF + 4 * s, 4), V_QA, 32 * s), tag='q')
            for l in self.cmul(E2, E1, E1): k(l)
            for l in put(0, C_): k(l)
            for l in self.cmul(E4, E2, E2): k(l)
            G = [None] + [160 + 2 * i for i in range(7)]
            sa = []; sb = []
            prev = C_
            for r in range(1, 9):
                d = 150 + 2 * (r % 2)
                sa.append((d, prev, E1, r)); prev = d
            prev = C_
            grow = {1: 9, 2: 14, 3: 17, 4: 20, 5: 22, 6: 24, 7: 26}
            for g in range(1, 8):
                sb.append((G[g], prev, E256, grow[g])); prev = G[g]
            prev = G[1]
            for r in range(4):
                d = 150 + 2 * ((r + 1) % 2)
                sa.append((d, prev, E2, 10 + r)); prev = d
            ex = [(G[2], E4, 15), (G[2], E8, 16), (G[3], E4, 18), (G[3], E8, 19), (G[4], E8, 21), (G[5], E8, 23), (G[6], E8, 25), (G[7], E8, 27)]
            for i, (a_, b_, row) in enumerate(ex):
                if i < 6: sb.append((154 + 2 * (i % 2), a_, b_, row))
                else: sa.append((176 + 2 * (i % 2), a_, b_, row))
            n = max(len(sa), len(sb))
            for i in range(n):
                seq = []
                for st in (sa, sb):
                    if i < len(st):
                        d, a_, b_, row = st[i]
                        seq.append(self.cmul(d, a_, b_) + put(row, d))
                for j in range(4):
                    for q in seq: k(q[j])
            for s in range(8):
                k('ds_read_b128 %s, v%d offset:%d' % (vr(PF + 4 * s, 4), V_PA, 32 * s), tag='p%d' % s)
            if ps == 1:
                self.get_nonce(8, 9)
                k('v_and_b32 v8, 31, v0')
                k('v_lshlrev_b32 v8, 2, v8')
                self.poll(9, 8, 's9')
                self.ts(2)
                k('v_lshlrev_b32 v8, 4, v0')
                k('s_lshl_b32 s64, s%d, 12' % S_D)
                k('s_add_u32 s65, s64, 4')
                k('s_add_u32 m0, s%d, %d' % (S_CB, UX + 64))
                for i in range(4):
                    k('buffer_load_dwordx4 v8, s[%d:%d], s64 offen offset:%d sc1 lds' % (R_WS, R_WS + 3, 1024 * i), tag='u')
                k('s_add_u32 m0, s%d, %d' % (S_CB, UY + 64))
                for i in range(4):
                    k('buffer_load_dwordx4 v8, s[%d:%d], s65 offen offset:%d sc1 lds' % (R_WS, R_WS + 3, 1024 * i), tag='u')
            for s in range(8):
                k.wait(lg='p%d' % s)
                c = '0' if (ps == 0 and s == 0) else vr(ACC, 16)
                k('v_mfma_f32_32x32x16_bf16 %s, %s, %s, %s' % (vr(ACC, 16), vr(PF + 4 * s, 4), vr(QF + 4 * s, 4), c))
        self.ts(3)
        V = lambda r: ACC + r
        k('v_and_b32 v6, 31, v0')
        k('v_lshrrev_b32 v7, 5, v0')
        k('v_lshlrev_b32 v8, 4, v6')
        k('v_sub_u32 v8, s%d, v8' % S_CB)
        k('v_lshlrev_b32 v9, 3, v7')
        k('v_sub_u32 v9, v8, v9')
        k('v_add_u32 v9, 504, v9')
        k('v_lshlrev_b32 v10, 9, v7')
        k('v_sub_u32 v10, v8, v10')
        k('v_add_u32 v10, 1008, v10')
        k('v_lshlrev_b32 v11, 10, v7')
        k('v_sub_u32 v11, v8, v11')
        k('v_add_u32 v11, 1520, v11')
        k('v_add_u32 v12, %d, v9' % (KO + 4084 - 504))
        k('v_add_u32 v13, %d, v9' % (KO + 4084 - 512 - 504))
        k('v_and_b32 v6, 1, v0')
        k('v_cmp_eq_u32 vcc, 1, v6')
        k('v_min_u32 v14, 27, v0')
        k('v_lshlrev_b32 v14, 4, v14')
        k('v_add_u32 v14, s%d, v14' % S_CB)
        for i in range(4): k('v_mov_b32 v%d, 0' % (96 + i))
        k('ds_write_b128 v14, v[96:99] offset:4096')
        k('ds_write_b128 v14, v[96:99] offset:%d' % (KO + 4096))
        pk = lambda d, lo, hi: k('v_cvt_pk_bf16_f32 v%d, v%d, v%d' % (d, lo, hi))
        k('v_cndmask_b32 v100, v%d, v%d, vcc' % (V(11), V(12)))
        k('v_cndmask_b32 v101, v%d, v%d, vcc' % (V(13), V(14)))
        pk(32, V(3), V(2)); pk(33, V(1), V(0))
        k('ds_write_b64 v9, v[32:33] offset:%d' % (4088 - 504))
        pk(34, V(7), V(6)); pk(35, V(5), V(5))
        k('ds_write_b64 v9, v[34:35] offset:%d' % (4088 - 512 - 504))
        pk(36, V(10), V(10)); pk(37, V(9), V(9)); pk(38, V(9), V(8)); pk(39, V(8), V(8))
        k('ds_write_b128 v10, v[36:39] offset:%d' % (3056 - 1008))
        pk(40, V(10), V(9)); k('v_mov_b32 v41, v37'); k('v_mov_b32 v42, v39'); k('v_mov_b32 v43, v39')
        k('ds_write_b128 v10, v[40:43] offset:%d' % (KO + 3056 - 1008))
        for (lo, hi, T, off, rb) in ((11, 12, 100, 2032, 44), (13, 14, 101, 1520, 52)):
            pk(rb, V(hi), V(hi)); pk(rb + 1, V(hi), T); pk(rb + 2, V(lo), V(lo)); k('v_mov_b32 v%d, v%d' % (rb + 3, rb + 2))
            k('ds_write_b128 v11, %s offset:%d' % (vr(rb, 4), off - 1520))
            k('v_mov_b32 v%d, v%d' % (rb + 4, rb)); pk(rb + 5, T, V(lo)); k('v_mov_b32 v%d, v%d' % (rb + 6, rb + 2)); k('v_mov_b32 v%d, v%d' % (rb + 7, rb + 2))
            k('ds_write_b128 v11, %s offset:%d' % (vr(rb + 4, 4), KO + off - 1520))
        pk(60, V(4), V(3)); pk(61, V(2), V(1))
        k('ds_write2_b32 v12, v60, v61 offset0:0 offset1:1')
        pk(62, V(7), V(7)); pk(63, V(6), V(5))
        k('ds_write2_b32 v13, v62, v63 offset0:0 offset1:1')
        pk(64, V(0), 96)
        k('v_mov_b32 v65, s%d' % S_CB)
        k.wait(vm='u')
        k('ds_read_b32 v66, v65 offset:%d' % (UX + 64), tag='fx')
        k.wait(lg='fx')
        k('s_mov_b64 exec, 1')
        k('ds_write_b32 v65, v64 offset:%d' % (KO + 4092))
        k('ds_write_b32 v65, v66 offset:%d' % (UY + 60))
        k('s_mov_b64 exec, -1')
        V_A, V_B = 2, 3
        k('v_and_b32 v6, 15, v0')
        k('v_lshrrev_b32 v7, 4, v0')
        k('v_lshlrev_b32 v7, 4, v7')
        k('v_add_u32 v7, s%d, v7' % S_CB)
        k('v_lshrrev_b32 v8, 1, v6')
        k('v_lshlrev_b32 v8, 6, v8')
        k('v_sub_u32 v8, v7, v8')
        k('v_mov_b32 v9, %d' % (448 + KO))
        k('v_mov_b32 v10, 448')
        k('v_cndmask_b32 v9, v9, v10, vcc')
        k('v_add_u32 v%d, v8, v9' % V_A)
        k('v_lshl_add_u32 v8, v6, 2, v7')
        k('v_mov_b32 v9, %d' % UY)
        k('v_mov_b32 v10, %d' % (UX + 4))
        k('v_cndmask_b32 v9, v9, v10, vcc')
        k('v_add_u32 v%d, v8, v9' % V_B)
        Y = 16
        FB = [64, 128]
        def reads(sg):
            fb = FB[sg % 2]
            out = []
            for c in range(8):
                out.append('ds_read_b128 %s, v%d offset:%d' % (vr(fb + 4 * c, 4), V_A, 4032 - 512 * c - 64 * sg))
                out.append('ds_read_b64 %s, v%d offset:%d' % (vr(fb + 32 + 4 * c, 2), V_B, 448 - 64 * sg + 512 * c))
                out.append('ds_read_b64 %s, v%d offset:%d' % (vr(fb + 34 + 4 * c, 2), V_B, 448 - 64 * sg + 512 * c + 8))
            return out
        self.ts(4)
        for l in reads(0): k(l)
        pairs = [(c, m) for c in range(8) for m in range(8 - c)]
        for sg in range(8):
            k.wait(lg='all')
            fb = FB[sg % 2]
            nx = reads(sg + 1) if sg < 7 else []
            for i, (c, m) in enumerate(pairs):
                cc = '0' if (sg == 0 and c == 0) else vr(Y + 4 * (c + m), 4)
                k('v_mfma_f32_16x16x32_bf16 %s, %s, %s, %s' % (vr(Y + 4 * (c + m), 4), vr(fb + 4 * c, 4), vr(fb + 32 + 4 * m, 4), cc))
                if i < len(nx): k(nx[i])
        self.ts(5)
        k('v_and_b32 v6, 15, v0')
        k('v_lshrrev_b32 v7, 4, v0')
        k('v_lshl_add_u32 v6, v7, 5, v6')
        k('v_lshlrev_b32 v6, 2, v6')
        k('v_add_u32 v6, s%d, v6' % S_CB)
        k('v_lshlrev_b32 v8, 4, v0')
        k('v_add_u32 v7, s%d, v8' % S_CB)
        for z in range(4):
            k('ds_read_b128 %s, v7 offset:%d' % (vr(96 + 4 * z, 4), UX + 64 + 1024 * z), tag='fu')
        for i in range(8):
            for rr in range(2):
                t = 64 + 2 * i + rr
                pk(t, Y + 4 * i + 2 * rr, Y + 4 * i + 2 * rr + 1)
                k('ds_write_b32 v6, v%d offset:%d' % (t, 512 * i + 64 * rr))
        for z in range(4):
            k('ds_read_b128 %s, v7 offset:%d' % (vr(80 + 4 * z, 4), 1024 * z), tag='fy%d' % z)
        k('s_lshl_b32 s64, s%d, 12' % S_D)
        k('s_add_u32 s64, s64, 0x%x' % WS_AT)
        for z in range(4):
            k.wait(lg='fy%d' % z)
            for e in range(4):
                u_, y_ = 96 + 4 * z + e, 80 + 4 * z + e
                t = 112 + 6 * (e % 2)
                k('v_lshlrev_b32 v%d, 16, v%d' % (t, u_))
                k('v_and_b32 v%d, 0xffff0000, v%d' % (t + 1, u_))
                k('v_pk_mul_f32 %s, %s, s[%d:%d]' % (vr(t, 2), vr(t, 2), S_DSK, S_DSK + 1))
                k('v_lshlrev_b32 v%d, 16, v%d' % (t + 2, y_))
                k('v_cvt_pk_bf16_f32 v%d, v%d, v%d' % (t + 4, t, t + 1))
                k('v_and_b32 v%d, 0xffff0000, v%d' % (t + 3, y_))
                k('v_lshlrev_b32 v%d, 16, v%d' % (t, t + 4))
                k('v_and_b32 v%d, 0xffff0000, v%d' % (t + 1, t + 4))
                k('v_pk_add_f32 %s, %s, %s' % (vr(t, 2), vr(t, 2), vr(t + 2, 2)))
                k('v_cvt_pk_bf16_f32 v%d, v%d, v%d' % (128 + 4 * z + e, t, t + 1))
            k('buffer_store_dwordx4 %s, v8, s[%d:%d], s64 offen offset:%d sc1' % (vr(128 + 4 * z, 4), R_WS, R_WS + 3, 1024 * z))
        k('s_lshl_b32 s64, s%d, 2' % S_D)
        k('s_add_u32 s64, s64, 0x%x' % WS_FA)
        k.wait(vm='all')
        self.flag_store(9, 10, 's64')
        self.ts(6)
        self.ts_store()
        k('s_endpgm')

    def gemm(self):
        k = self.k
        k.reset_counts()
        k.label('L_gemm')
        if self.opt.get('nogemm'):
            k('s_endpgm'); return
        import gemm1
        gemm1.emit(self)

    def build(self):
        k = self.k
        self.prologue()
        self.chan()
        self.misc()
        self.gemm()
        k.label('L_end')
        k('s_endpgm')
        hdr = open('gated_mix__ssm_conv_s4__dense_activation_silu__prompt.s.ref').read().split('; Override launch')[0]
        s = hdr + '; @launch grid=(512,1,1) block=(256,1,1) lds=81920\n'
        s += '.amdgcn_target "amdgcn-amd-amdhsa--gfx950"\n.text\n.globl %s\n.p2align 8\n.type %s,@function\n%s:\n' % (KNAME, KNAME, KNAME)
        s += k.text()
        s += '.section .rodata,"a"\n.p2align 6\n.amdhsa_kernel %s\n' % KNAME
        s += '  .amdhsa_next_free_vgpr 256\n  .amdhsa_next_free_sgpr 102\n  .amdhsa_accum_offset 256\n  .amdhsa_group_segment_fixed_size 0\n'
        s += '  .amdhsa_kernarg_size 128\n  .amdhsa_user_sgpr_count 2\n  .amdhsa_user_sgpr_kernarg_segment_ptr 1\n  .amdhsa_system_sgpr_workgroup_id_x 1\n.end_amdhsa_kernel\n'
        return s

if __name__ == '__main__':
    opt = {}
    out = sys.argv[1]
    for a in sys.argv[2:]:
        if '=' in a:
            kk, v = a.split('='); opt[kk] = int(v)
        else: opt[a] = 1
    g = Gen(opt)
    open(out, 'w').write(g.build())
    print('nops inserted', g.k.nops, 'lines', len(g.k.items))
```

```python
from kgen import *
from gen1 import *

def emit(G):
    k = G.k
    opt = G.opt
    S_TAU, S_PHI = 12, 13
    S_XOFF, S_WOFF = 68, 69
    S_HB = 14
    S_WB = 15
    S_G0 = 70
    S_ROT = 73
    S_NL2 = 74
    G.srd(R_W, P_W1, 640 * 1536 * 2)
    G.srd(R_O, P_OUT, 2048 * 640 * 2)
    k('s_and_b32 s%d, s%d, 1' % (S_TAU, S_WAVE))
    k('s_lshr_b32 s%d, s%d, 1' % (S_PHI, S_WAVE))
    if opt.get('grot'):
        k('s_mul_i32 s64, s%d, 43' % S_RHO)
        k('s_lshr_b32 s64, s64, 7')
        k('s_mul_i32 s64, s64, 3')
        k('s_sub_u32 s%d, s%d, s64' % (S_G0, S_RHO))
        for r in (1, 2):
            k('s_add_u32 s%d, s%d, 1' % (S_G0 + r, S_G0 + r - 1))
            k('s_cmp_eq_u32 s%d, 3' % (S_G0 + r))
            k('s_cselect_b32 s%d, 0, s%d' % (S_G0 + r, S_G0 + r))
    else:
        for r in range(3): k('s_mov_b32 s%d, %d' % (S_G0 + r, r))
    if opt.get('krot'):
        k('s_and_b32 s%d, s%d, 3' % (S_ROT, S_J))
    else:
        k('s_mov_b32 s%d, 0' % S_ROT)
    VX, VW = 2, 6
    k('v_lshrrev_b32 v10, 4, v0')
    k('v_and_b32 v11, 15, v0')
    k('s_lshl_b32 s64, s%d, 4' % S_WAVE)
    for n in range(4):
        k('v_add_u32 v12, %d, v10' % (4 * n))
        k('v_xor_b32 v13, v11, v12')
        k('v_add_u32 v12, s64, v12')
        k('v_mul_u32_u24 v12, 1280, v12')
        k('v_lshl_add_u32 v12, v13, 4, v12')
        k('v_subrev_u32 v%d, %d, v12' % (VX + n, 1024 * n))
    k('v_lshrrev_b32 v12, 3, v0')
    k('s_lshl_b32 s64, s%d, 5' % S_WAVE)
    k('v_add_u32 v12, s64, v12')
    k('v_mul_u32_u24 v12, 3072, v12')
    k('v_and_b32 v13, 7, v0')
    k('v_and_b32 v14, 1, v10')
    k('v_lshlrev_b32 v14, 2, v14')
    k('v_xor_b32 v13, v13, v14')
    k('v_lshl_add_u32 v12, v13, 4, v12')
    for n in range(4):
        k('v_add_u32 v%d, %d, v12' % (VW + n, n * (8 * 3072 - 1024)))
    k('s_mul_i32 s76, s%d, %d' % (S_RHO, 64 * 1280))
    k('s_mul_i32 s77, s%d, 384' % S_J)
    k('s_lshl_b32 s9, s%d, 12' % S_WAVE)
    seq = []
    for z in range(5): seq += [('X', z, 0), ('W', z, 0)]
    for r in (1, 2):
        for z in range(5): seq.append(('W', z, r))
    def dma(i):
        typ, z, r = seq[i]
        out = []
        out.append('s_add_u32 s64, s%d, %d' % (S_ROT, z))
        out.append('s_sub_u32 s65, s64, 5')
        out.append('s_cmp_ge_u32 s64, 5')
        out.append('s_cselect_b32 s64, s65, s64')
        if typ == 'X':
            out.append('s_lshl_b32 s64, s64, 8')
            out.append('s_add_u32 s64, s64, s76')
        else:
            out.append('s_mul_i32 s64, s64, %d' % (128 * 3072))
            out.append('s_lshl_b32 s65, s%d, 7' % (S_G0 + r))
            out.append('s_add_u32 s64, s64, s65')
            out.append('s_add_u32 s64, s64, s77')
        out.append('s_add_u32 m0, s9, %d' % (16384 * (i % 5)))
        ld = []
        for n in range(4):
            ld.append(('buffer_load_dwordx4 v%d, s[%d:%d], s64 offen offset:%d lds' % ((VX if typ == 'X' else VW) + n, R_U if typ == 'X' else R_W, (R_U if typ == 'X' else R_W) + 3, 1024 * n), 'S%d' % i))
        return out, ld
    for i in range(5):
        pre, ld = dma(i)
        for l in pre: k(l)
        for l, t in ld: k(l, tag=t)
    XA = 16
    WA, WAH = 24, 25
    VH = 26
    k('v_and_b32 v12, 31, v0')
    k('v_lshrrev_b32 v13, 5, v0')
    k('s_lshl_b32 s64, s%d, 13' % S_TAU)
    k('v_xor_b32 v14, v13, v11')
    k('v_lshlrev_b32 v14, 4, v14')
    k('v_lshl_add_u32 v14, v12, 8, v14')
    k('v_add_u32 v%d, s64, v14' % XA)
    for s in range(1, 8): k('v_xor_b32 v%d, %d, v%d' % (XA + s, 32 * s, XA))
    k('v_bfe_u32 v14, v0, 2, 2')
    k('v_lshl_add_u32 v15, v13, 3, v14')
    k('v_lshlrev_b32 v15, 7, v15')
    k('v_and_b32 v27, 1, v10')
    k('v_bfe_u32 v28, v0, 1, 1')
    k('v_lshl_add_u32 v27, v27, 1, v28')
    k('s_lshl_b32 s64, s%d, 2' % S_PHI)
    k('v_add_u32 v27, s64, v27')
    k('v_lshrrev_b32 v14, 1, v14')
    k('v_lshlrev_b32 v14, 2, v14')
    k('v_xor_b32 v27, v27, v14')
    k('v_lshl_add_u32 v15, v27, 4, v15')
    k('v_and_b32 v27, 1, v0')
    k('v_lshl_add_u32 v%d, v27, 3, v15' % WA)
    k('v_add_u32 v%d, 0x10000, v%d' % (WAH, WA))
    k('v_lshrrev_b32 v14, 4, v12')
    k('s_lshl_b32 s64, s%d, 1' % S_TAU)
    k('v_add_u32 v14, s64, v14')
    k('v_lshlrev_b32 v14, 10, v14')
    k('v_lshl_add_u32 v15, v13, 4, v11')
    k('v_lshl_add_u32 v%d, v15, 4, v14' % VH)
    k('s_mul_i32 s%d, s%d, %d' % (S_HB, S_RHO, 48 * 4096))
    k('s_add_u32 s%d, s%d, 0x%x' % (S_HB, S_HB, WS_H))
    k('s_mul_i32 s%d, s%d, %d' % (S_WB, S_J, 48 * 5120))
    k('s_add_u32 s%d, s%d, 0x%x' % (S_WB, S_WB, WS_W2P))
    k('s_mov_b32 s%d, %s' % (S_NL2, fhex(-LOG2E)))
    k('s_mov_b32 s%d, %s' % (S_NL2 + 1, fhex(-LOG2E)))
    FA, FBs = 32, 48
    ACC = [64, 80, 64]
    XF = 96
    TMP = 10
    def wread(i, half):
        base = 16384 * (i % 5)
        reg = WAH if base >= 65536 else WA
        off = base & 0xffff
        fs = FA if half == 0 else FBs
        out = []
        for s in range(4):
            for e in range(2):
                out.append('ds_read_b64_tr_b16 %s, v%d offset:%d' % (vr(fs + 4 * s + 2 * e, 2), reg, off + (4 * half + s) * 2048 + 512 * e))
        return out
    def mfmas(i, half):
        typ, z, r = seq[i]
        fs = FA if half == 0 else FBs
        out = []
        for s in range(4):
            c = '0' if (z == 0 and half == 0 and s == 0) else vr(ACC[r], 16)
            out.append('v_mfma_f32_32x32x16_bf16 %s, %s, %s, %s' % (vr(ACC[r], 16), vr(fs + 4 * s, 4), vr(XF + 4 * (8 * z + 4 * half + s), 4), c))
        return out
    def epi(r):
        a = ACC[r]
        out = []
        for p in range(8):
            t = 10 if p % 2 == 0 else 28
            out += ['v_cvt_pk_bf16_f32 v%d, v%d, v%d' % (t + 2, a + 2 * p, a + 2 * p + 1),
                    'v_lshlrev_b32 v%d, 16, v%d' % (t, t + 2),
                    'v_and_b32 v%d, 0xffff0000, v%d' % (t + 1, t + 2),
                    'v_pk_mul_f32 %s, %s, s[%d:%d]' % (vr(t + 2, 2), vr(t, 2), S_NL2, S_NL2 + 1),
                    'v_exp_f32 v%d, v%d' % (t + 2, t + 2),
                    'v_exp_f32 v%d, v%d' % (t + 3, t + 3),
                    'v_pk_add_f32 %s, %s, 1.0 op_sel_hi:[1,0]' % (vr(t + 2, 2), vr(t + 2, 2)),
                    'v_rcp_f32 v%d, v%d' % (t + 2, t + 2),
                    'v_rcp_f32 v%d, v%d' % (t + 3, t + 3),
                    'v_pk_mul_f32 %s, %s, %s' % (vr(t, 2), vr(t, 2), vr(t + 2, 2)),
                    'v_cvt_pk_bf16_f32 v%d, v%d, v%d' % (a + p, t, t + 1)]
        return out
    def hstore(r):
        a = ACC[r]
        k('s_mul_i32 s66, s%d, 6' % S_J)
        k('s_lshl_b32 s67, s%d, 1' % (S_G0 + r))
        k('s_add_u32 s66, s66, s67')
        k('s_add_u32 s66, s66, s%d' % S_PHI)
        k('s_lshl_b32 s66, s66, 12')
        k('s_add_u32 s66, s66, s%d' % S_HB)
        for s in range(2):
            k('buffer_store_dwordx4 %s, v%d, s[%d:%d], s66 offen offset:%d sc1' % (vr(a + 4 * s, 4), VH, R_WS, R_WS + 3, 512 * s), tag='hst%d' % r)
    def hflag(r):
        k('s_mul_i32 s66, s%d, 768' % S_RHO)
        k('s_lshr_b32 s67, s%d, 1' % S_J)
        k('s_mul_i32 s67, s67, 192')
        k('s_add_u32 s66, s66, s67')
        k('s_and_b32 s67, s%d, 1' % S_J)
        k('s_lshl_b32 s67, s67, 2')
        k('s_add_u32 s67, s67, s%d' % S_WAVE)
        k('s_lshl_b32 s67, s67, 2')
        k('s_add_u32 s66, s66, s67')
        k('s_add_u32 s66, s66, 0x%x' % (WS_FH + 64 * r))
        G.flag_store(14, 15, 's66')

    pend = None
    epq = []
    def weave(ms, fill, per):
        for m in ms:
            k(m)
            for _ in range(per):
                if fill:
                    f = fill.pop(0)
                    if isinstance(f, tuple): k(f[0], tag=f[1])
                    else: k(f)
    for i in range(20):
        typ, z, r = seq[i]
        G.pr(100 + i - 1, 6)
        k.wait(vm='S%d' % i, lg='all' if i else None)
        G.pr(100 + i - 1, 7)
        k('s_barrier')
        G.pr(100 + i - 1, 8)
        G.pr(100 + i, 0)
        if i == 0: G.ts(1)
        if i == 10: G.ts(2)
        if i == 15: G.ts(3)
        fill = []
        if typ == 'X':
            base = 16384 * (i % 5)
            for s in range(8):
                if base >= 65536:
                    k('v_add_u32 v%d, 0x10000, v%d' % (10 + s % 4, XA + s))
                    k('ds_read_b128 %s, v%d' % (vr(XF + 4 * (8 * z + s), 4), 10 + s % 4))
                else:
                    k('ds_read_b128 %s, v%d offset:%d' % (vr(XF + 4 * (8 * z + s), 4), XA + s, base))
        else:
            for l in wread(i, 0): k(l, tag='wa')
        G.pr(100 + i, 1)
        if 1 <= i and i + 4 < 20:
            pre, ld = dma(i + 4)
            fill += pre + ld
        if i == 3:
            pass
        if pend is not None:
            weave(pend, fill, 4)
            pend = None
            if typ == 'W' and z == 0 and r > 0:
                epq = epi(r - 1)
        while fill:
            f = fill.pop(0)
            if isinstance(f, tuple): k(f[0], tag=f[1])
            else: k(f)
        G.pr(100 + i, 2)
        if typ == 'W':
            for l in wread(i, 1): k(l, tag='wb')
            G.pr(100 + i, 3)
            k.wait(lg='wa')
            G.pr(100 + i, 4)
            had = bool(epq)
            weave(mfmas(i, 0), epq, 11)
            pend = mfmas(i, 1)
            if had and not epq:
                hstore(r - 1)
    k.wait(lg='all')
    k('s_barrier')
    weave(pend, [], 0)
    G.ts(4)
    for l in epi(2): k(l)
    hstore(2)
    G.get_nonce(14, 15)
    for r in range(3): hflag(r)
    G.ts(5)
    if opt.get('nogemm2'):
        G.ts_store()
        k('s_endpgm'); return
    VL, VL4 = 2, 3
    VT = 4
    k('v_lshlrev_b32 v%d, 4, v0' % VL)
    k('v_add_u32 v%d, 0x1000, v%d' % (VL4, VL))
    for T in range(4):
        k('s_xor_b32 s64, s%d, %d' % (S_WAVE, T))
        k('s_lshl_b32 s64, s64, 10')
        k('v_add_u32 v%d, s64, v%d' % (VT + T, VL))
    k('s_mul_i32 s64, s%d, 5' % S_J)
    k('s_lshr_b32 s65, s64, 3')
    k('s_add_u32 s64, s64, 4')
    k('s_lshr_b32 s64, s64, 3')
    k('s_sub_u32 s64, s64, s65')
    k('s_mul_i32 s64, s64, 192')
    k('s_mul_i32 s65, s65, 192')
    k('s_mul_i32 s66, s%d, 48' % S_WAVE)
    k('s_add_u32 s65, s65, s66')
    k('s_add_u32 s65, s65, 0x%x' % WS_FW)
    k('v_and_b32 v8, 15, v0')
    k('v_min_u32 v8, 11, v8')
    k('v_lshlrev_b32 v8, 2, v8')
    k('v_bfe_u32 v9, v0, 4, 1')
    k('v_mul_u32_u24 v9, s64, v9')
    k('v_add_u32 v8, v8, v9')
    G.poll(9, 8, 's65')
    k('s_mul_i32 s65, s%d, 768' % S_RHO)
    k('s_mul_i32 s66, s%d, 192' % S_WAVE)
    k('s_add_u32 s65, s65, s66')
    k('s_add_u32 s65, s65, 0x%x' % WS_FH)
    k('v_and_b32 v8, 7, v0')
    k('v_lshrrev_b32 v9, 3, v0')
    k('v_min_u32 v9, 2, v9')
    k('v_lshlrev_b32 v8, 2, v8')
    k('v_lshl_add_u32 v8, v9, 6, v8')
    G.poll(9, 8, 's65')
    G.ts(6)
    SB = 96
    accs = [32 + 4 * i for i in range(16)] + [240 + 4 * i for i in range(4)]
    A2 = lambda T, sub: accs[5 * T + sub]
    def loads(st):
        rank, p, ph = st >> 2, (st >> 1) & 1, st & 1
        b = SB + 36 * (st % 4)
        out = ['s_mul_i32 s64, s%d, 12' % S_WAVE,
               's_lshl_b32 s65, s%d, 1' % (S_G0 + rank),
               's_add_u32 s64, s64, s65',
               's_add_u32 s64, s64, %d' % (6 * p + ph),
               's_mul_i32 s65, s64, 5120',
               's_add_u32 s65, s65, s%d' % S_WB,
               's_lshl_b32 s64, s64, 12',
               's_add_u32 s64, s64, s%d' % S_HB]
        for sub in range(5):
            out.append(('buffer_load_dwordx4 %s, v%d, s[%d:%d], s65 offen offset:%d sc1' % (vr(b + 4 * sub, 4), VL4 if sub == 4 else VL, R_WS, R_WS + 3, 1024 * (sub % 4)), 'st%d' % st))
        for T in range(4):
            out.append(('buffer_load_dwordx4 %s, v%d, s[%d:%d], s64 offen sc1' % (vr(b + 20 + 4 * T, 4), VT + T, R_WS, R_WS + 3), 'st%d' % st))
        return out
    def flush(fill):
        while fill:
            f = fill.pop(0)
            if isinstance(f, tuple): k(f[0], tag=f[1])
            else: k(f)
    for st in range(4): flush(loads(st))
    for st in range(12):
        b = SB + 36 * (st % 4)
        k.wait(vm='st%d' % st)
        for T in range(4):
            for sub in range(5):
                c = '0' if st == 0 else vr(A2(T, sub), 4)
                k('v_mfma_f32_16x16x32_bf16 %s, %s, %s, %s' % (vr(A2(T, sub), 4), vr(b + 4 * sub, 4), vr(b + 20 + 4 * T, 4), c))
        if st + 4 < 12: flush(loads(st + 4))
    G.ts(7)
    k('s_mul_i32 s65, s%d, 320' % S_J)
    k('s_add_u32 s65, s65, 0x%x' % WS_FA)
    k('v_min_u32 v8, 39, v0')
    k('v_lshlrev_b32 v8, 3, v8')
    G.poll(10, 8, 's65', n=2)
    LA = 61440
    k('v_lshrrev_b32 v8, 3, v0')
    k('v_and_b32 v9, 7, v0')
    k('v_lshlrev_b32 v8, 12, v8')
    k('v_lshl_add_u32 v8, v9, 4, v8')
    k('s_mul_i32 s64, s%d, %d' % (S_J, 80 * 4096))
    k('s_lshl_b32 s65, s%d, 7' % S_RHO)
    k('s_add_u32 s64, s64, s65')
    k('s_add_u32 s64, s64, 0x%x' % WS_AT)
    for n in range(3):
        k('s_add_u32 s65, s%d, %d' % (S_WAVE, 4 * n))
        k('s_min_u32 s65, s65, 9')
        k('s_lshl_b32 s66, s65, 15')
        k('s_add_u32 s66, s66, s64')
        k('s_lshl_b32 s65, s65, 10')
        k('s_add_u32 m0, s65, %d' % LA)
        k('buffer_load_dwordx4 v8, s[%d:%d], s66 offen sc1 lds' % (R_WS, R_WS + 3), tag='a')
    for T in range(1, 4):
        k('s_xor_b32 s64, s%d, %d' % (S_WAVE, T))
        k('s_mul_i32 s64, s64, 15360')
        k('s_add_u32 s64, s64, %d' % (5120 * (T - 1)))
        k('v_add_u32 v%d, s64, v%d' % (10 + T, VL))
    for T in range(1, 4):
        for sub in range(5):
            k('ds_write_b128 v%d, %s offset:%d' % (10 + T, vr(A2(T, sub), 4), 1024 * sub))
    k('s_lshl_b32 s64, s%d, 2' % S_RHO)
    k('s_add_u32 s64, s64, s%d' % S_WAVE)
    k('s_lshl_b32 s64, s64, 7')
    k('s_add_u32 s64, s64, 0x%x' % WS_G)
    k('v_and_b32 v8, 15, v0')
    k('v_lshlrev_b32 v8, 3, v8')
    L = k.newlabel('L_pg'); D = k.newlabel('L_pg_ok')
    k('s_movk_i32 s%d, 0x4000' % S_TMO)
    k.label(L)
    k('buffer_load_dwordx2 v[16:17], v8, s[%d:%d], s64 offen sc1' % (R_WS, R_WS + 3))
    k('s_waitcnt vmcnt(0)')
    k('v_cmp_ne_u32 vcc, s%d, v17' % S_NONCE)
    k('s_cmp_eq_u64 vcc, 0')
    k('s_cbranch_scc1 %s' % D)
    k('s_sub_u32 s%d, s%d, 1' % (S_TMO, S_TMO))
    k('s_cmp_lg_u32 s%d, 0' % S_TMO)
    k('s_cbranch_scc1 %s' % L)
    k.label(D)
    k('s_waitcnt vmcnt(0) lgkmcnt(0)')
    k('s_barrier')
    G.ts(8)
    k('s_mul_i32 s64, s%d, 15360' % S_WAVE)
    k('v_add_u32 v10, s64, v%d' % VL)
    RB = 96
    for sub in range(5):
        for p in range(3):
            k('ds_read_b128 %s, v10 offset:%d' % (vr(RB + 12 * sub + 4 * p, 4), 5120 * p + 1024 * sub), tag='r%d' % sub)
    k('v_lshrrev_b32 v11, 2, v0')
    k('v_and_b32 v12, 3, v0')
    k('v_lshlrev_b32 v11, 7, v11')
    k('v_lshl_add_u32 v11, v12, 3, v11')
    k('s_lshl_b32 s64, s%d, 5' % S_WAVE)
    k('s_add_u32 s64, s64, %d' % LA)
    k('v_add_u32 v11, s64, v11')
    AR = 160
    for sub in range(5):
        k('ds_read_b64_tr_b16 %s, v11 offset:%d' % (vr(AR + 2 * sub, 2), 2048 * sub), tag='ar')
    k('v_sub_f32 v18, 1.0, v16')
    k('v_mov_b32 v17, v16')
    k('v_cvt_pk_bf16_f32 v18, v18, v18')
    k('v_lshlrev_b32 v18, 16, v18')
    k('v_mov_b32 v19, v18')
    k('v_and_b32 v12, 15, v0')
    k('v_lshrrev_b32 v13, 4, v0')
    k('v_mul_u32_u24 v12, 1280, v12')
    k('v_lshl_add_u32 v12, v13, 3, v12')
    k('s_lshl_b32 s64, s%d, 2' % S_RHO)
    k('s_add_u32 s64, s64, s%d' % S_WAVE)
    k('s_mul_i32 s64, s64, %d' % (16 * 1280))
    k('s_mul_i32 s65, s%d, 160' % S_J)
    k('s_add_u32 s64, s64, s65')
    k.wait(lg='all')
    for sub in range(5):
        a = A2(0, sub); rb = RB + 12 * sub
        for hf in range(2):
            k('v_pk_add_f32 %s, %s, %s' % (vr(a + 2 * hf, 2), vr(a + 2 * hf, 2), vr(rb + 2 * hf, 2)))
            k('v_pk_add_f32 %s, %s, %s' % (vr(rb + 4 + 2 * hf, 2), vr(rb + 4 + 2 * hf, 2), vr(rb + 8 + 2 * hf, 2)))
        for hf in range(2):
            t = 20 + 6 * hf
            k('v_pk_add_f32 %s, %s, %s' % (vr(a + 2 * hf, 2), vr(a + 2 * hf, 2), vr(rb + 4 + 2 * hf, 2)))
            k('v_lshlrev_b32 v%d, 16, v%d' % (t + 2, AR + 2 * sub + hf))
            k('v_cvt_pk_bf16_f32 v%d, v%d, v%d' % (t + 4, a + 2 * hf, a + 2 * hf + 1))
            k('v_and_b32 v%d, 0xffff0000, v%d' % (t + 3, AR + 2 * sub + hf))
            k('v_lshlrev_b32 v%d, 16, v%d' % (t, t + 4))
            k('v_and_b32 v%d, 0xffff0000, v%d' % (t + 1, t + 4))
            k('v_pk_mul_f32 %s, %s, v[16:17]' % (vr(t + 2, 2), vr(t + 2, 2)))
            k('v_pk_mul_f32 %s, %s, v[18:19]' % (vr(t, 2), vr(t, 2)))
            k('v_cvt_pk_bf16_f32 v%d, v%d, v%d' % (t + 4, t + 2, t + 3))
            k('v_cvt_pk_bf16_f32 v%d, v%d, v%d' % (t + 5, t, t + 1))
            k('v_lshlrev_b32 v%d, 16, v%d' % (t, t + 4))
            k('v_and_b32 v%d, 0xffff0000, v%d' % (t + 1, t + 4))
            k('v_lshlrev_b32 v%d, 16, v%d' % (t + 2, t + 5))
            k('v_and_b32 v%d, 0xffff0000, v%d' % (t + 3, t + 5))
            k('v_pk_add_f32 %s, %s, %s' % (vr(t, 2), vr(t, 2), vr(t + 2, 2)))
            k('v_cvt_pk_bf16_f32 v%d, v%d, v%d' % (AR + 12 + 2 * sub + hf, t, t + 1))
        k('buffer_store_dwordx2 %s, v12, s[%d:%d], s64 offen offset:%d' % (vr(AR + 12 + 2 * sub, 2), R_O, R_O + 3, 32 * sub))
    G.ts(9)
    G.ts_store()
    G.span()
    k('s_endpgm')
```

```python
import sys, math
from kgen import *
KNAME = 'gated_mix__ssm_conv_s4__dense_activation_silu__prompt_kernel'

WS_UT, WS_AT, WS_H, WS_W2P, WS_G = 0x000000, 0x300000, 0x600000, 0xC00000, 0xE00000
WS_FH, WS_FU, WS_FW, WS_FA, WS_TS = 0xE10000, 0xE20000, 0xE21000, 0xE22000, 0xE30000
WS_SZ = 0x1000000
LOG2E = 1.4426950408889634
INV2PI = 0.15915494309189535

S_WG, S_WAVE, S_M, S_RHO, S_J, S_NONCE, S_TMO = 2, 3, 4, 5, 6, 7, 8
P_U, P_ARE, P_AIM, P_BRE, P_BIM, P_CRE, P_CIM, P_LDT = 16, 18, 20, 22, 24, 26, 28, 30
P_DSK, P_BX, P_W1, P_W2, P_GW, P_OUT, P_DBG, P_WS = 32, 34, 36, 38, 40, 42, 44, 46
R_WS, R_U, R_W, R_O = 48, 52, 56, 60
S_T = 64
S_TS = 80

class Gen:
    def __init__(self, opt):
        self.k = K()
        self.opt = opt
        self.nts = 0
    def srd(self, r, p, size):
        k = self.k
        k('s_mov_b32 s%d, s%d' % (r, p))
        k('s_mov_b32 s%d, s%d' % (r + 1, p + 1))
        k('s_mov_b32 s%d, 0x%x' % (r + 2, size))
        k('s_mov_b32 s%d, 0x20000' % (r + 3))
    def ts(self, i):
        if self.opt.get('ts') and not self.opt.get('probe'):
            self.k('%s s[%d:%d]' % ('s_memtime' if self.opt.get('cyc') else 's_memrealtime', S_TS + 2 * i, S_TS + 2 * i + 1))
    def pr(self, key, i):
        if self.opt.get('probe') == key:
            self.k('s_memtime s[%d:%d]' % (S_TS + 2 * i, S_TS + 2 * i + 1))
    def ts_store(self):
        if not self.opt.get('ts'): return
        k = self.k
        k('s_waitcnt vmcnt(0) lgkmcnt(0)')
        k('s_lshl_b32 s64, s%d, 2' % S_WG)
        k('s_add_u32 s64, s64, s%d' % S_WAVE)
        k('s_lshl_b32 s64, s64, 6')
        k('s_add_u32 s64, s64, 0x%x' % WS_TS)
        k('v_mov_b32 v1, 0')
        for i in range(10):
            k('v_mov_b32 v2, s%d' % (S_TS + 2 * i))
            k('buffer_store_dword v2, v1, s[%d:%d], s64 offen offset:%d' % (R_WS, R_WS + 3, 4 * i))
        k('s_waitcnt vmcnt(0)')
    def span(self):
        if not self.opt.get('span'): return
        k = self.k
        k('s_waitcnt vmcnt(0)')
        k('s_memrealtime s[64:65]')
        k('s_cmp_lg_u32 s%d, 0' % S_WAVE)
        k('s_cbranch_scc1 L_end')
        k('s_waitcnt lgkmcnt(0)')
        k('s_not_b32 s10, s10')
        k('v_mov_b32 v1, s64')
        k('v_mov_b32 v2, s10')
        k('v_mov_b32 v3, 0')
        k('s_mov_b64 exec, 1')
        k('global_atomic_umax v3, v1, s[%d:%d] offset:8 sc1' % (P_DBG, P_DBG + 1))
        k('global_atomic_umax v3, v2, s[%d:%d] offset:12 sc1' % (P_DBG, P_DBG + 1))
    def get_nonce(self, vt, vz):
        k = self.k
        L = k.newlabel('L_nonce'); D = k.newlabel('L_nonce_ok')
        k('v_mov_b32 %s, 0' % vr(vz))
        k('s_movk_i32 s%d, 0x4000' % S_TMO)
        k.label(L)
        k('global_load_dword %s, %s, s[%d:%d] sc1' % (vr(vt), vr(vz), P_DBG, P_DBG + 1))
        k('s_waitcnt vmcnt(0)')
        k('v_readfirstlane_b32 s%d, %s' % (S_NONCE, vr(vt)))
        k('s_cmp_lg_u32 s%d, 0' % S_NONCE)
        k('s_cbranch_scc1 %s' % D)
        if self.opt.get('sleep'): k('s_sleep %d' % self.opt['sleep'])
        k('s_sub_u32 s%d, s%d, 1' % (S_TMO, S_TMO))
        k('s_cmp_lg_u32 s%d, 0' % S_TMO)
        k('s_cbranch_scc1 %s' % L)
        k.label(D)
    def poll(self, vt, vaddr, soff, n=1, first_issued=None):
        k = self.k
        L = k.newlabel('L_poll'); D = k.newlabel('L_poll_ok'); C = k.newlabel('L_poll_chk')
        k('s_movk_i32 s%d, 0x4000' % S_TMO)
        if first_issued is not None:
            k.wait(vm=first_issued)
            k('s_branch %s' % C)
        k.label(L)
        nvm = len(k.vm)
        k('buffer_load_dword%s %s, %s, s[%d:%d], %s offen sc1' % ('x2' if n == 2 else '', vr(vt, n), vr(vaddr), R_WS, R_WS + 3, soff))
        if first_issued is not None: k.vm.pop()
        k('s_waitcnt vmcnt(0)')
        k.label(C)
        k('v_cmp_ne_u32 vcc, s%d, %s' % (S_NONCE, vr(vt)))
        if n == 2:
            k('v_cmp_ne_u32 s[78:79], s%d, %s' % (S_NONCE, vr(vt + 1)))
            k('s_or_b64 vcc, vcc, s[78:79]')
        k('s_cmp_eq_u64 vcc, 0')
        k('s_cbranch_scc1 %s' % D)
        if self.opt.get('sleep'): k('s_sleep %d' % self.opt['sleep'])
        k('s_sub_u32 s%d, s%d, 1' % (S_TMO, S_TMO))
        k('s_cmp_lg_u32 s%d, 0' % S_TMO)
        k('s_cbranch_scc1 %s' % L)
        k.label(D)
    def flag_store(self, vt, vz, soff, tag=None):
        k = self.k
        k('v_mov_b32 %s, s%d' % (vr(vt), S_NONCE))
        k('v_mov_b32 %s, 0' % vr(vz))
        k('s_mov_b64 exec, 1')
        k('buffer_store_dword %s, %s, s[%d:%d], %s offen sc1' % (vr(vt), vr(vz), R_WS, R_WS + 3, soff), tag=tag)
        k('s_mov_b64 exec, -1')

    def prologue(self):
        k = self.k
        k('s_cmp_ge_u32 s2, 512')
        k('s_cbranch_scc1 L_end')
        k('s_load_dwordx16 s[16:31], s[0:1], 0')
        k('s_load_dwordx16 s[32:47], s[0:1], 64')
        k('s_memrealtime s[10:11]')
        if self.opt.get('cyc'): k('s_memtime s[100:101]')
        k('v_lshrrev_b32 v1, 6, v0')
        k('v_and_b32 v0, 63, v0')
        k('v_readfirstlane_b32 s%d, v1' % S_WAVE)
        k('s_and_b32 s%d, s2, 255' % S_M)
        k('s_and_b32 s64, s%d, 7' % S_M)
        k('s_lshr_b32 s65, s%d, 3' % S_M)
        k('s_lshr_b32 s66, s64, 1')
        k('s_lshl_b32 s66, s66, 3')
        k('s_and_b32 s67, s65, 7')
        k('s_add_u32 s%d, s66, s67' % S_RHO)
        k('s_and_b32 s66, s64, 1')
        k('s_lshl_b32 s66, s66, 2')
        k('s_lshr_b32 s67, s65, 3')
        k('s_add_u32 s%d, s66, s67' % S_J)
        k('s_waitcnt lgkmcnt(0)')
        if self.opt.get('ts'):
            for i in range(10):
                k('s_mov_b32 s%d, s%d' % (S_TS + 2 * i, 100 if self.opt.get('cyc') else 10))
        self.srd(R_WS, P_WS, WS_SZ)
        self.srd(R_U, P_U, 2048 * 640 * 2)
        k('s_lshl_b32 s64, s2, 2')
        k('s_add_u32 s64, s64, s%d' % S_WAVE)
        k('s_cmp_lg_u32 s64, 0')
        k('s_cbranch_scc1 L_nonn')
        k('s_or_b32 s10, s10, 1')
        k('v_mov_b32 v1, s10')
        k('v_mov_b32 v2, 0')
        k('s_mov_b64 exec, 1')
        k('global_store_dword v2, v1, s[%d:%d] sc1' % (P_DBG, P_DBG + 1))
        k('s_mov_b64 exec, -1')
        k.label('L_nonn')
        k('s_cmp_lt_u32 s2, 256')
        k('s_cbranch_scc1 L_gemm')
        if self.opt.get('nossm'): k('s_endpgm')
        k('s_cmp_eq_u32 s%d, 3' % S_WAVE)
        k('s_cbranch_scc1 L_misc')
        if self.opt.get('nochan'): k('s_endpgm')

    def misc(self):
        k = self.k
        k.reset_counts()
        LT, LW = 52608, 52608 + 10240
        k.label('L_misc')
        self.srd(R_W, P_W2, 1536 * 640 * 2)
        for i in range(5):
            k('v_add_u32 v1, %d, v0' % (64 * i))
            k('v_mul_u32_u24 v2, 205, v1')
            k('v_lshrrev_b32 v2, 11, v2')
            k('v_mul_u32_u24 v3, 10, v2')
            k('v_sub_u32 v3, v1, v3')
            k('v_mul_u32_u24 v2, 1280, v2')
            k('v_lshl_add_u32 v%d, v3, 4, v2' % (10 + i))
        k('s_mul_i32 s64, s%d, %d' % (S_RHO, 64 * 1280))
        k('s_mul_i32 s65, s%d, 160' % S_J)
        k('s_add_u32 s64, s64, s65')
        k('s_add_u32 s65, s64, %d' % (32 * 1280))
        for i in range(10):
            k('s_mov_b32 m0, %d' % (LT + 1024 * i))
            k('buffer_load_dwordx4 v%d, s[%d:%d], s%d offen lds' % (10 + i % 5, R_U, R_U + 3, 64 + i // 5), tag='T')
        k('s_min_u32 s66, s%d, 239' % S_M)
        k('s_mul_i32 s67, s66, 205')
        k('s_lshr_b32 s67, s67, 10')
        k('s_mul_i32 s68, s67, 5')
        k('s_sub_u32 s68, s66, s68')
        k('s_mul_i32 s69, s67, %d' % (32 * 1280))
        k('s_lshl_b32 s70, s68, 8')
        k('s_add_u32 s69, s69, s70')
        k('v_lshrrev_b32 v1, 4, v0')
        k('v_and_b32 v2, 15, v0')
        k('v_mul_u32_u24 v1, 1280, v1')
        k('v_lshl_add_u32 v15, v2, 4, v1')
        for i in range(8):
            k('s_mov_b32 m0, %d' % (LW + 1024 * i))
            k('buffer_load_dwordx4 v15, s[%d:%d], s69 offen lds' % (R_W, R_W + 3), tag='W')
            k('s_add_u32 s69, s69, %d' % (4 * 1280))
        k('v_lshrrev_b32 v1, 3, v0')
        k('v_and_b32 v2, 7, v0')
        k('v_lshlrev_b32 v16, 4, v2')
        k('v_mul_u32_u24 v1, 1280, v1')
        k('v_add_u32 v17, v1, v16')
        k('s_lshl_b32 s70, s%d, 3' % S_RHO)
        k('s_add_u32 s70, s70, s%d' % S_J)
        k('s_mul_i32 s71, s70, %d' % (8 * 1280))
        GX, GW = 96, 136
        for i in range(10):
            k('buffer_load_dwordx4 %s, v17, s[%d:%d], s71 offen offset:%d' % (vr(GX + 4 * i, 4), R_U, R_U + 3, 128 * i), tag='G')
        for i in range(10):
            k('global_load_dwordx4 %s, v16, s[%d:%d] offset:%d' % (vr(GW + 4 * i, 4), P_GW, P_GW + 1, 128 * i), tag='G')
        k('v_lshrrev_b32 v1, 4, v0')
        k('v_bfe_u32 v2, v0, 2, 2')
        k('v_and_b32 v3, 3, v0')
        k('v_lshl_add_u32 v4, v1, 3, v2')
        k('v_mul_u32_u24 v4, 160, v4')
        k('v_lshl_add_u32 v4, v3, 3, v4')
        k('v_add_u32 v18, %d, v4' % LT)
        k('v_and_b32 v5, 15, v0')
        k('v_lshlrev_b32 v5, 12, v5')
        k('v_lshl_add_u32 v19, v1, 4, v5')
        k('v_lshrrev_b32 v5, 1, v1')
        k('v_and_b32 v6, 1, v1')
        k('v_lshlrev_b32 v5, 4, v5')
        k('v_lshl_add_u32 v5, v6, 2, v5')
        k('v_add_u32 v5, v5, v2')
        k('v_lshlrev_b32 v5, 8, v5')
        k('v_lshl_add_u32 v5, v3, 3, v5')
        k('v_add_u32 v20, %d, v5' % LW)
        k('v_lshlrev_b32 v21, 4, v0')
        k('s_mul_i32 s72, s%d, %d' % (S_J, 80 * 4096))
        k('s_lshl_b32 s73, s%d, 7' % S_RHO)
        k('s_add_u32 s72, s72, s73')
        k.wait(vm='T')
        self.ts(1)
        for dl in range(5):
            for z in range(2):
                b = 24 + 8 * dl + 4 * z
                for e in range(2):
                    k('ds_read_b64_tr_b16 %s, v18 offset:%d' % (vr(b + 2 * e, 2), (32 * z + 4 * e) * 160 + 32 * dl), tag='t%d' % dl)
        for dl in range(5):
            k.wait(lg='t%d' % dl)
            for z in range(2):
                k('buffer_store_dwordx4 %s, v19, s[%d:%d], s72 offen offset:%d sc1' % (vr(24 + 8 * dl + 4 * z, 4), R_WS, R_WS + 3, 64 * z), tag='Tst')
            k('s_add_u32 s72, s72, %d' % (16 * 4096))
        k.wait(vm='W')
        for fr in range(8):
            for e in range(2):
                k('ds_read_b64_tr_b16 %s, v20 offset:%d' % (vr(64 + 4 * fr + 2 * e, 2), 8 * e * 256 + 32 * fr), tag='w%d' % fr)
        for fr in range(8):
            k('s_lshl_b32 s73, s68, 3')
            k('s_add_u32 s73, s73, %d' % fr)
            k('s_mul_i32 s74, s73, 205')
            k('s_lshr_b32 s74, s74, 10')
            k('s_mul_i32 s75, s74, 235')
            k('s_add_u32 s75, s75, s73')
            k('s_mul_i32 s76, s67, 5')
            k('s_add_u32 s75, s75, s76')
            k('s_lshl_b32 s75, s75, 10')
            k('s_add_u32 s75, s75, 0x%x' % WS_W2P)
            k.wait(lg='w%d' % fr)
            k('buffer_store_dwordx4 %s, v21, s[%d:%d], s75 offen sc1' % (vr(64 + 4 * fr, 4), R_WS, R_WS + 3), tag='Wst')
        self.get_nonce(8, 9)
        self.ts(2)
        k('s_lshl_b32 s73, s%d, 5' % S_J)
        k('s_add_u32 s73, s73, s%d' % S_RHO)
        k('s_lshl_b32 s73, s73, 2')
        k('s_add_u32 s73, s73, 0x%x' % WS_FU)
        self.flag_store(8, 9, 's73')
        k('s_mul_i32 s73, s68, 48')
        k('s_add_u32 s73, s73, s67')
        k('s_lshl_b32 s73, s73, 2')
        k('s_add_u32 s73, s73, 0x%x' % WS_FW)
        self.flag_store(8, 9, 's73')
        k('v_mov_b32 v24, 0')
        k('v_mov_b32 v25, 0')
        for i in range(40):
            x, w = GX + i, GW + i
            t = 28 + 8 * (i % 2)
            k('v_lshlrev_b32 v%d, 16, v%d' % (t, x))
            k('v_and_b32 v%d, 0xffff0000, v%d' % (t + 1, x))
            k('v_lshlrev_b32 v%d, 16, v%d' % (t + 2, w))
            k('v_and_b32 v%d, 0xffff0000, v%d' % (t + 3, w))
            k('v_pk_mul_f32 %s, %s, %s' % (vr(t, 2), vr(t, 2), vr(t + 2, 2)))
            k('v_cvt_pk_bf16_f32 v%d, v%d, v%d' % (t + 4, t, t + 1))
            k('v_lshlrev_b32 v%d, 16, v%d' % (t, t + 4))
            k('v_and_b32 v%d, 0xffff0000, v%d' % (t + 1, t + 4))
            k('v_pk_add_f32 v[24:25], v[24:25], %s' % vr(t, 2))
        k('v_add_f32 v24, v24, v25')
        k('v_add_f32_dpp v24, v24, v24 quad_perm:[1,0,3,2] row_mask:0xf bank_mask:0xf')
        k('v_add_f32_dpp v24, v24, v24 quad_perm:[2,3,0,1] row_mask:0xf bank_mask:0xf')
        k('v_add_f32_dpp v24, v24, v24 row_half_mirror row_mask:0xf bank_mask:0xf')
        k('v_cvt_pk_bf16_f32 v24, v24, v24')
        k('v_lshlrev_b32 v24, 16, v24')
        k('v_mul_f32 v24, %s, v24' % fhex(-LOG2E))
        k('v_exp_f32 v24, v24')
        k('v_add_f32 v24, 1.0, v24')
        k('v_rcp_f32 v24, v24')
        k('v_cvt_pk_bf16_f32 v24, v24, v24')
        k('v_lshlrev_b32 v24, 16, v24')
        k('v_mov_b32 v25, s%d' % S_NONCE)
        k('v_and_b32 v26, 0x38, v0')
        k('s_lshl_b32 s73, s70, 6')
        k('s_add_u32 s73, s73, 0x%x' % WS_G)
        k('s_mov_b32 s74, 0x01010101')
        k('s_mov_b32 s75, 0x01010101')
        k('s_mov_b64 exec, s[74:75]')
        k('buffer_store_dwordx2 v[24:25], v26, s[%d:%d], s73 offen sc1' % (R_WS, R_WS + 3))
        k('s_mov_b64 exec, -1')
        self.ts(3)
        self.ts_store()
        k('s_endpgm')

    def cmul(self, d, a, b):
        return ['v_pk_mul_f32 %s, %s, %s op_sel:[0,0] op_sel_hi:[0,1]' % (vr(d, 2), vr(a, 2), vr(b, 2)),
                'v_pk_fma_f32 %s, %s, %s, %s op_sel:[1,1,0] op_sel_hi:[1,0,1] neg_lo:[1,0,0]' % (vr(d, 2), vr(a, 2), vr(b, 2), vr(d, 2))]
    def chan(self):
        k = self.k
        k.reset_counts()
        S_D, S_CB, S_DSK = 12, 13, 14
        KO, UX, UY = 4576, 9120, 9120 + 4224
        k('s_mul_i32 s64, s%d, 3' % S_M)
        k('s_lshl_b32 s65, s%d, 1' % S_M)
        k('s_add_u32 s65, s65, 128')
        k('s_cmp_lt_u32 s%d, 128' % S_M)
        k('s_cselect_b32 s64, s64, s65')
        k('s_cselect_b32 s65, 3, 2')
        k('s_cmp_ge_u32 s%d, s65' % S_WAVE)
        k('s_cbranch_scc1 L_end')
        k('s_add_u32 s%d, s64, s%d' % (S_D, S_WAVE))
        k('s_mul_i32 s%d, s%d, 17536' % (S_CB, S_WAVE))
        PR = 200
        for i in range(18): k('v_mov_b32 v%d, 0' % (PR + i))
        k('s_mul_i32 s64, s%d, 384' % S_D)
        k('v_lshlrev_b32 v1, 1, v0')
        k('v_add_u32 v1, s64, v1')
        for ps in range(3):
            for ai, p in enumerate((P_ARE, P_AIM, P_BRE, P_BIM, P_CRE, P_CIM)):
                k('global_load_short_d16_hi v%d, v1, s[%d:%d] offset:%d' % (PR + 3 * ai + ps, p, p + 1, 128 * ps), tag='par%d' % ps)
        k('s_lshr_b32 s64, s%d, 1' % S_D)
        k('s_lshl_b32 s64, s64, 2')
        k('s_load_dword s65, s[%d:%d], s64' % (P_LDT, P_LDT + 1))
        k('s_load_dword s66, s[%d:%d], s64' % (P_DSK, P_DSK + 1))
        V_PA, V_QA, V_WA, V_DT = 2, 3, 4, 5
        k('v_mov_b32 v6, 0')
        for i in range(32):
            r = 4 * (i >> 3) + (i & 3); hh = (i >> 2) & 1
            if r <= 4: row = r + 4 * hh
            elif r <= 7: row = 9 + (r - 5) + 2 * hh
            elif r <= 10: row = 14 + (r - 8) + 3 * hh
            elif r <= 12: row = 20 + (r - 11) + 4 * hh
            elif r <= 14: row = 22 + (r - 13) + 4 * hh
            else: row = 0
            if row: k('v_writelane_b32 v6, %d, %d' % (row, i))
        k('v_mov_b32 v7, v6')
        k('v_permlane32_swap_b32 v6, v7')
        k('v_lshrrev_b32 v8, 5, v0')
        k('v_lshlrev_b32 v8, 4, v8')
        k('v_add_u32 v8, s%d, v8' % S_CB)
        k('v_mul_u32_u24 v6, 272, v6')
        k('v_add_u32 v%d, v6, v8' % V_PA)
        k('v_and_b32 v6, 31, v0')
        k('v_mul_u32_u24 v6, 272, v6')
        k('v_add_u32 v%d, v6, v8' % V_QA)
        k('v_lshlrev_b32 v6, 2, v0')
        k('v_add_u32 v%d, s%d, v6' % (V_WA, S_CB))
        k('v_and_b32 v6, 15, v0')
        k('v_lshlrev_b32 v6, 2, v6')
        k('v_add_u32 v6, s%d, v6' % S_CB)
        k('v_mov_b32 v7, 0')
        k('ds_write_b32 v6, v7 offset:%d' % UX)
        k('ds_write_b32 v6, v7 offset:%d' % UY)
        k('s_waitcnt lgkmcnt(0)')
        k('s_and_b32 s64, s%d, 1' % S_D)
        k('s_lshl_b32 s64, s64, 4')
        k('s_lshr_b32 s65, s65, s64')
        k('s_lshl_b32 s65, s65, 16')
        k('s_lshr_b32 s66, s66, s64')
        k('s_lshl_b32 s%d, s66, 16' % S_DSK)
        k('s_mov_b32 s%d, s%d' % (S_DSK + 1, S_DSK))
        k('v_mov_b32 v6, s65')
        k('v_mul_f32 v6, %s, v6' % fhex(LOG2E))
        k('v_exp_f32 v6, v6')
        k('v_cvt_pk_bf16_f32 v6, v6, v6')
        k('v_lshlrev_b32 v%d, 16, v6' % V_DT)
        k('s_mul_i32 s64, s%d, 205' % S_D)
        k('s_lshr_b32 s64, s64, 14')
        k('s_lshl_b32 s64, s64, 7')
        k('s_add_u32 s9, s64, 0x%x' % WS_FU)
        ACC = 16
        QF, PF = 32, 64
        X_, C_, E1, E2, E4, E8, E256, E8C, E16C = 100, 102, 104, 106, 108, 110, 112, 114, 116
        T0 = 120
        for ps in range(3):
            k.wait(vm='par%d' % ps)
            if ps == 0: self.ts(1)
            ar, ai, br, bi, cr, ci = [PR + 3 * a + ps for a in range(6)]
            k('v_mul_f32 v%d, v%d, v%d' % (X_, V_DT, ar))
            k('v_mul_f32 v%d, v%d, v%d' % (X_ + 1, V_DT, ai))
            k('v_mul_f32 v%d, v%d, v%d' % (T0, V_DT, br))
            k('v_mul_f32 v%d, v%d, v%d' % (T0 + 1, V_DT, bi))
            k('v_mul_f32 v%d, %s, v%d' % (X_, fhex(LOG2E), X_))
            k('v_mul_f32 v%d, %s, v%d' % (X_ + 1, fhex(INV2PI), X_ + 1))
            k('v_mul_f32 v%d, v%d, v%d' % (C_, cr, T0))
            k('v_mul_f32 v%d, v%d, v%d' % (C_ + 1, cr, T0 + 1))
            k('v_rndne_f32 v%d, v%d' % (T0 + 2, X_ + 1))
            k('v_fma_f32 v%d, -v%d, v%d, v%d' % (C_, ci, T0 + 1, C_))
            k('v_fma_f32 v%d, v%d, v%d, v%d' % (C_ + 1, ci, T0, C_ + 1))
            k('v_sub_f32 v%d, v%d, v%d' % (X_ + 1, X_ + 1, T0 + 2))
            for idx, (dst, p) in enumerate(((E8, 8.0), (E1, 1.0), (E256, 256.0))):
                t = T0 + 4 + 4 * idx
                if p == 1.0:
                    m, th = X_, X_ + 1
                else:
                    k('v_mul_f32 v%d, %s, v%d' % (t, fhex(p), X_))
                    k('v_mul_f32 v%d, %s, v%d' % (t + 1, fhex(p), X_ + 1))
                    m, th = t, t + 1
                k('v_exp_f32 v%d, v%d' % (t + 2, m))
                k('v_cos_f32 v%d, v%d' % (dst, th))
                k('v_sin_f32 v%d, v%d' % (dst + 1, th))
            for idx, dst in enumerate((E8, E1, E256)):
                t = T0 + 4 + 4 * idx
                k('v_pk_mul_f32 %s, %s, %s op_sel_hi:[1,0]' % (vr(dst, 2), vr(dst, 2), vr(t + 2, 2)))
            k('v_mov_b32 v%d, v%d' % (E8C, E8))
            k('v_xor_b32 v%d, 0x80000000, v%d' % (E8C + 1, E8 + 1))
            for l in self.cmul(E16C, E8C, E8C): k(l)
            CV = 140
            cvn = [0]
            def put(row, src):
                t = CV + cvn[0] % 8; cvn[0] += 1
                return ['v_cvt_pk_bf16_f32 v%d, v%d, v%d' % (t, src, src + 1),
                        'ds_write_b32 v%d, v%d offset:%d' % (V_WA, t, 272 * row)]
            k('v_mov_b32 v%d, 0x3f80' % (CV + 8))
            k('ds_write_b32 v%d, v%d' % (V_WA, CV + 8))
            for l in put(1, E8C) + put(2, E16C): k(l)
            qa, qb = E8C, E16C
            pp = [(150, 152), (154, 156)]
            for b in range(3, 32, 2):
                na, nb = pp[((b - 3) // 2) % 2]
                ma = self.cmul(na, qa, E16C)
                if b + 1 < 32:
                    mb = self.cmul(nb, qb, E16C)
                    pa, pb = put(b, na), put(b + 1, nb)
                    for l in (ma[0], mb[0], ma[1], mb[1], pa[0], pb[0], pa[1], pb[1]): k(l)
                else:
                    for l in ma + put(b, na): k(l)
                qa, qb = na, nb
            for s in range(8):
                k('ds_read_b128 %s, v%d offset:%d' % (vr(QF + 4 * s, 4), V_QA, 32 * s), tag='q')
            for l in self.cmul(E2, E1, E1): k(l)
            for l in put(0, C_): k(l)
            for l in self.cmul(E4, E2, E2): k(l)
            G = [None] + [160 + 2 * i for i in range(7)]
            sa = []; sb = []
            prev = C_
            for r in range(1, 9):
                d = 150 + 2 * (r % 2)
                sa.append((d, prev, E1, r)); prev = d
            prev = C_
            grow = {1: 9, 2: 14, 3: 17, 4: 20, 5: 22, 6: 24, 7: 26}
            for g in range(1, 8):
                sb.append((G[g], prev, E256, grow[g])); prev = G[g]
            prev = G[1]
            for r in range(4):
                d = 150 + 2 * ((r + 1) % 2)
                sa.append((d, prev, E2, 10 + r)); prev = d
            ex = [(G[2], E4, 15), (G[2], E8, 16), (G[3], E4, 18), (G[3], E8, 19), (G[4], E8, 21), (G[5], E8, 23), (G[6], E8, 25), (G[7], E8, 27)]
            for i, (a_, b_, row) in enumerate(ex):
                if i < 6: sb.append((154 + 2 * (i % 2), a_, b_, row))
                else: sa.append((176 + 2 * (i % 2), a_, b_, row))
            n = max(len(sa), len(sb))
            for i in range(n):
                seq = []
                for st in (sa, sb):
                    if i < len(st):
                        d, a_, b_, row = st[i]
                        seq.append(self.cmul(d, a_, b_) + put(row, d))
                for j in range(4):
                    for q in seq: k(q[j])
            for s in range(8):
                k('ds_read_b128 %s, v%d offset:%d' % (vr(PF + 4 * s, 4), V_PA, 32 * s), tag='p%d' % s)
            if ps == 1:
                self.get_nonce(8, 9)
                k('v_and_b32 v8, 31, v0')
                k('v_lshlrev_b32 v8, 2, v8')
                self.poll(9, 8, 's9')
                self.ts(2)
                k('v_lshlrev_b32 v8, 4, v0')
                k('s_lshl_b32 s64, s%d, 12' % S_D)
                k('s_add_u32 s65, s64, 4')
                k('s_add_u32 m0, s%d, %d' % (S_CB, UX + 64))
                for i in range(4):
                    k('buffer_load_dwordx4 v8, s[%d:%d], s64 offen offset:%d sc1 lds' % (R_WS, R_WS + 3, 1024 * i), tag='u')
                k('s_add_u32 m0, s%d, %d' % (S_CB, UY + 64))
                for i in range(4):
                    k('buffer_load_dwordx4 v8, s[%d:%d], s65 offen offset:%d sc1 lds' % (R_WS, R_WS + 3, 1024 * i), tag='u')
            for s in range(8):
                k.wait(lg='p%d' % s)
                c = '0' if (ps == 0 and s == 0) else vr(ACC, 16)
                k('v_mfma_f32_32x32x16_bf16 %s, %s, %s, %s' % (vr(ACC, 16), vr(PF + 4 * s, 4), vr(QF + 4 * s, 4), c))
        self.ts(3)
        V = lambda r: ACC + r
        k('v_and_b32 v6, 31, v0')
        k('v_lshrrev_b32 v7, 5, v0')
        k('v_lshlrev_b32 v8, 4, v6')
        k('v_sub_u32 v8, s%d, v8' % S_CB)
        k('v_lshlrev_b32 v9, 3, v7')
        k('v_sub_u32 v9, v8, v9')
        k('v_add_u32 v9, 504, v9')
        k('v_lshlrev_b32 v10, 9, v7')
        k('v_sub_u32 v10, v8, v10')
        k('v_add_u32 v10, 1008, v10')
        k('v_lshlrev_b32 v11, 10, v7')
        k('v_sub_u32 v11, v8, v11')
        k('v_add_u32 v11, 1520, v11')
        k('v_add_u32 v12, %d, v9' % (KO + 4084 - 504))
        k('v_add_u32 v13, %d, v9' % (KO + 4084 - 512 - 504))
        k('v_and_b32 v6, 1, v0')
        k('v_cmp_eq_u32 vcc, 1, v6')
        k('v_min_u32 v14, 27, v0')
        k('v_lshlrev_b32 v14, 4, v14')
        k('v_add_u32 v14, s%d, v14' % S_CB)
        for i in range(4): k('v_mov_b32 v%d, 0' % (96 + i))
        k('ds_write_b128 v14, v[96:99] offset:4096')
        k('ds_write_b128 v14, v[96:99] offset:%d' % (KO + 4096))
        pk = lambda d, lo, hi: k('v_cvt_pk_bf16_f32 v%d, v%d, v%d' % (d, lo, hi))
        k('v_cndmask_b32 v100, v%d, v%d, vcc' % (V(11), V(12)))
        k('v_cndmask_b32 v101, v%d, v%d, vcc' % (V(13), V(14)))
        pk(32, V(3), V(2)); pk(33, V(1), V(0))
        k('ds_write_b64 v9, v[32:33] offset:%d' % (4088 - 504))
        pk(34, V(7), V(6)); pk(35, V(5), V(5))
        k('ds_write_b64 v9, v[34:35] offset:%d' % (4088 - 512 - 504))
        pk(36, V(10), V(10)); pk(37, V(9), V(9)); pk(38, V(9), V(8)); pk(39, V(8), V(8))
        k('ds_write_b128 v10, v[36:39] offset:%d' % (3056 - 1008))
        pk(40, V(10), V(9)); k('v_mov_b32 v41, v37'); k('v_mov_b32 v42, v39'); k('v_mov_b32 v43, v39')
        k('ds_write_b128 v10, v[40:43] offset:%d' % (KO + 3056 - 1008))
        for (lo, hi, T, off, rb) in ((11, 12, 100, 2032, 44), (13, 14, 101, 1520, 52)):
            pk(rb, V(hi), V(hi)); pk(rb + 1, V(hi), T); pk(rb + 2, V(lo), V(lo)); k('v_mov_b32 v%d, v%d' % (rb + 3, rb + 2))
            k('ds_write_b128 v11, %s offset:%d' % (vr(rb, 4), off - 1520))
            k('v_mov_b32 v%d, v%d' % (rb + 4, rb)); pk(rb + 5, T, V(lo)); k('v_mov_b32 v%d, v%d' % (rb + 6, rb + 2)); k('v_mov_b32 v%d, v%d' % (rb + 7, rb + 2))
            k('ds_write_b128 v11, %s offset:%d' % (vr(rb + 4, 4), KO + off - 1520))
        pk(60, V(4), V(3)); pk(61, V(2), V(1))
        k('ds_write2_b32 v12, v60, v61 offset0:0 offset1:1')
        pk(62, V(7), V(7)); pk(63, V(6), V(5))
        k('ds_write2_b32 v13, v62, v63 offset0:0 offset1:1')
        pk(64, V(0), 96)
        k('v_mov_b32 v65, s%d' % S_CB)
        k.wait(vm='u')
        k('ds_read_b32 v66, v65 offset:%d' % (UX + 64), tag='fx')
        k.wait(lg='fx')
        k('s_mov_b64 exec, 1')
        k('ds_write_b32 v65, v64 offset:%d' % (KO + 4092))
        k('ds_write_b32 v65, v66 offset:%d' % (UY + 60))
        k('s_mov_b64 exec, -1')
        V_A, V_B = 2, 3
        k('v_and_b32 v6, 15, v0')
        k('v_lshrrev_b32 v7, 4, v0')
        k('v_lshlrev_b32 v7, 4, v7')
        k('v_add_u32 v7, s%d, v7' % S_CB)
        k('v_lshrrev_b32 v8, 1, v6')
        k('v_lshlrev_b32 v8, 6, v8')
        k('v_sub_u32 v8, v7, v8')
        k('v_mov_b32 v9, %d' % (448 + KO))
        k('v_mov_b32 v10, 448')
        k('v_cndmask_b32 v9, v9, v10, vcc')
        k('v_add_u32 v%d, v8, v9' % V_A)
        k('v_lshl_add_u32 v8, v6, 2, v7')
        k('v_mov_b32 v9, %d' % UY)
        k('v_mov_b32 v10, %d' % (UX + 4))
        k('v_cndmask_b32 v9, v9, v10, vcc')
        k('v_add_u32 v%d, v8, v9' % V_B)
        Y = 16
        FB = [64, 128]
        def reads(sg):
            fb = FB[sg % 2]
            out = []
            for c in range(8):
                out.append('ds_read_b128 %s, v%d offset:%d' % (vr(fb + 4 * c, 4), V_A, 4032 - 512 * c - 64 * sg))
                out.append('ds_read_b64 %s, v%d offset:%d' % (vr(fb + 32 + 4 * c, 2), V_B, 448 - 64 * sg + 512 * c))
                out.append('ds_read_b64 %s, v%d offset:%d' % (vr(fb + 34 + 4 * c, 2), V_B, 448 - 64 * sg + 512 * c + 8))
            return out
        self.ts(4)
        for l in reads(0): k(l)
        pairs = [(c, m) for c in range(8) for m in range(8 - c)]
        for sg in range(8):
            k.wait(lg='all')
            fb = FB[sg % 2]
            nx = reads(sg + 1) if sg < 7 else []
            for i, (c, m) in enumerate(pairs):
                cc = '0' if (sg == 0 and c == 0) else vr(Y + 4 * (c + m), 4)
                k('v_mfma_f32_16x16x32_bf16 %s, %s, %s, %s' % (vr(Y + 4 * (c + m), 4), vr(fb + 4 * c, 4), vr(fb + 32 + 4 * m, 4), cc))
                if i < len(nx): k(nx[i])
        self.ts(5)
        k('v_and_b32 v6, 15, v0')
        k('v_lshrrev_b32 v7, 4, v0')
        k('v_lshl_add_u32 v6, v7, 5, v6')
        k('v_lshlrev_b32 v6, 2, v6')
        k('v_add_u32 v6, s%d, v6' % S_CB)
        k('v_lshlrev_b32 v8, 4, v0')
        k('v_add_u32 v7, s%d, v8' % S_CB)
        for z in range(4):
            k('ds_read_b128 %s, v7 offset:%d' % (vr(96 + 4 * z, 4), UX + 64 + 1024 * z), tag='fu')
        for i in range(8):
            for rr in range(2):
                t = 64 + 2 * i + rr
                pk(t, Y + 4 * i + 2 * rr, Y + 4 * i + 2 * rr + 1)
                k('ds_write_b32 v6, v%d offset:%d' % (t, 512 * i + 64 * rr))
        for z in range(4):
            k('ds_read_b128 %s, v7 offset:%d' % (vr(80 + 4 * z, 4), 1024 * z), tag='fy%d' % z)
        k('s_lshl_b32 s64, s%d, 12' % S_D)
        k('s_add_u32 s64, s64, 0x%x' % WS_AT)
        for z in range(4):
            k.wait(lg='fy%d' % z)
            for e in range(4):
                u_, y_ = 96 + 4 * z + e, 80 + 4 * z + e
                t = 112 + 6 * (e % 2)
                k('v_lshlrev_b32 v%d, 16, v%d' % (t, u_))
                k('v_and_b32 v%d, 0xffff0000, v%d' % (t + 1, u_))
                k('v_pk_mul_f32 %s, %s, s[%d:%d]' % (vr(t, 2), vr(t, 2), S_DSK, S_DSK + 1))
                k('v_lshlrev_b32 v%d, 16, v%d' % (t + 2, y_))
                k('v_cvt_pk_bf16_f32 v%d, v%d, v%d' % (t + 4, t, t + 1))
                k('v_and_b32 v%d, 0xffff0000, v%d' % (t + 3, y_))
                k('v_lshlrev_b32 v%d, 16, v%d' % (t, t + 4))
                k('v_and_b32 v%d, 0xffff0000, v%d' % (t + 1, t + 4))
                k('v_pk_add_f32 %s, %s, %s' % (vr(t, 2), vr(t, 2), vr(t + 2, 2)))
                k('v_cvt_pk_bf16_f32 v%d, v%d, v%d' % (128 + 4 * z + e, t, t + 1))
            k('buffer_store_dwordx4 %s, v8, s[%d:%d], s64 offen offset:%d sc1' % (vr(128 + 4 * z, 4), R_WS, R_WS + 3, 1024 * z))
        k('s_lshl_b32 s64, s%d, 2' % S_D)
        k('s_add_u32 s64, s64, 0x%x' % WS_FA)
        k.wait(vm='all')
        self.flag_store(9, 10, 's64')
        self.ts(6)
        self.ts_store()
        k('s_endpgm')

    def gemm(self):
        k = self.k
        k.reset_counts()
        k.label('L_gemm')
        if self.opt.get('nogemm'):
            k('s_endpgm'); return
        import gemm1
        gemm1.emit(self)

    def build(self):
        k = self.k
        self.prologue()
        self.chan()
        self.misc()
        self.gemm()
        k.label('L_end')
        k('s_endpgm')
        hdr = open('gated_mix__ssm_conv_s4__dense_activation_silu__prompt.s.ref').read().split('; Override launch')[0]
        s = hdr + '; @launch grid=(512,1,1) block=(256,1,1) lds=81920\n'
        s += '.amdgcn_target "amdgcn-amd-amdhsa--gfx950"\n.text\n.globl %s\n.p2align 8\n.type %s,@function\n%s:\n' % (KNAME, KNAME, KNAME)
        s += k.text()
        s += '.section .rodata,"a"\n.p2align 6\n.amdhsa_kernel %s\n' % KNAME
        s += '  .amdhsa_next_free_vgpr 256\n  .amdhsa_next_free_sgpr 102\n  .amdhsa_accum_offset 256\n  .amdhsa_group_segment_fixed_size 0\n'
        s += '  .amdhsa_kernarg_size 128\n  .amdhsa_user_sgpr_count 2\n  .amdhsa_user_sgpr_kernarg_segment_ptr 1\n  .amdhsa_system_sgpr_workgroup_id_x 1\n.end_amdhsa_kernel\n'
        return s

if __name__ == '__main__':
    opt = {}
    out = sys.argv[1]
    for a in sys.argv[2:]:
        if '=' in a:
            kk, v = a.split('='); opt[kk] = int(v)
        else: opt[a] = 1
    g = Gen(opt)
    open(out, 'w').write(g.build())
    print('nops inserted', g.k.nops, 'lines', len(g.k.items))
```

```python
import sys, math
from kgen import *
KNAME = 'gated_mix__ssm_conv_s4__dense_activation_silu__prompt_kernel'

WS_UT, WS_AT, WS_H, WS_W2P, WS_G = 0x000000, 0x300000, 0x600000, 0xC00000, 0xE00000
WS_FH, WS_FU, WS_FW, WS_FA, WS_TS = 0xE10000, 0xE20000, 0xE21000, 0xE22000, 0xE30000
WS_SZ = 0x1000000
LOG2E = 1.4426950408889634
INV2PI = 0.15915494309189535

S_WG, S_WAVE, S_M, S_RHO, S_J, S_NONCE, S_TMO = 2, 3, 4, 5, 6, 7, 8
P_U, P_ARE, P_AIM, P_BRE, P_BIM, P_CRE, P_CIM, P_LDT = 16, 18, 20, 22, 24, 26, 28, 30
P_DSK, P_BX, P_W1, P_W2, P_GW, P_OUT, P_DBG, P_WS = 32, 34, 36, 38, 40, 42, 44, 46
R_WS, R_U, R_W, R_O = 48, 52, 56, 60
S_T = 64
S_TS = 80

class Gen:
    def __init__(self, opt):
        self.k = K()
        self.opt = opt
        self.nts = 0
    def srd(self, r, p, size):
        k = self.k
        k('s_mov_b32 s%d, s%d' % (r, p))
        k('s_mov_b32 s%d, s%d' % (r + 1, p + 1))
        k('s_mov_b32 s%d, 0x%x' % (r + 2, size))
        k('s_mov_b32 s%d, 0x20000' % (r + 3))
    def ts(self, i):
        if self.opt.get('ts') and not self.opt.get('probe'):
            self.k('%s s[%d:%d]' % ('s_memtime' if self.opt.get('cyc') else 's_memrealtime', S_TS + 2 * i, S_TS + 2 * i + 1))
    def pr(self, key, i):
        if self.opt.get('probe') == key:
            self.k('s_memtime s[%d:%d]' % (S_TS + 2 * i, S_TS + 2 * i + 1))
    def ts_store(self):
        if not self.opt.get('ts'): return
        k = self.k
        k('s_waitcnt vmcnt(0) lgkmcnt(0)')
        k('s_lshl_b32 s64, s%d, 2' % S_WG)
        k('s_add_u32 s64, s64, s%d' % S_WAVE)
        k('s_lshl_b32 s64, s64, 6')
        k('s_add_u32 s64, s64, 0x%x' % WS_TS)
        k('v_mov_b32 v1, 0')
        for i in range(10):
            k('v_mov_b32 v2, s%d' % (S_TS + 2 * i))
            k('buffer_store_dword v2, v1, s[%d:%d], s64 offen offset:%d' % (R_WS, R_WS + 3, 4 * i))
        k('s_waitcnt vmcnt(0)')
    def span(self):
        if self.opt.get('calib'):
            k = self.k
            k.label('L_cal')
            k('s_memrealtime s[64:65]')
            k('s_waitcnt lgkmcnt(0)')
            k('s_sub_u32 s64, s64, s%d' % S_NONCE)
            k('s_cmp_lt_u32 s64, %d' % self.opt['calib'])
            k('s_cbranch_scc1 L_cal')
        if not self.opt.get('span'): return
        k = self.k
        k('s_waitcnt vmcnt(0)')
        k('s_memrealtime s[64:65]')
        k('s_cmp_lg_u32 s%d, 0' % S_WAVE)
        k('s_cbranch_scc1 L_end')
        k('s_waitcnt lgkmcnt(0)')
        k('s_not_b32 s10, s10')
        k('v_mov_b32 v1, s64')
        k('v_mov_b32 v2, s10')
        k('v_mov_b32 v3, 0')
        k('s_mov_b64 exec, 1')
        k('global_atomic_umax v3, v1, s[%d:%d] offset:8 sc1' % (P_DBG, P_DBG + 1))
        k('global_atomic_umax v3, v2, s[%d:%d] offset:12 sc1' % (P_DBG, P_DBG + 1))
    def get_nonce(self, vt, vz):
        k = self.k
        L = k.newlabel('L_nonce'); D = k.newlabel('L_nonce_ok')
        k('v_mov_b32 %s, 0' % vr(vz))
        k('s_movk_i32 s%d, 0x4000' % S_TMO)
        k.label(L)
        k('global_load_dword %s, %s, s[%d:%d] sc1' % (vr(vt), vr(vz), P_DBG, P_DBG + 1))
        k('s_waitcnt vmcnt(0)')
        k('v_readfirstlane_b32 s%d, %s' % (S_NONCE, vr(vt)))
        k('s_cmp_lg_u32 s%d, 0' % S_NONCE)
        k('s_cbranch_scc1 %s' % D)
        if self.opt.get('sleep'): k('s_sleep %d' % self.opt['sleep'])
        k('s_sub_u32 s%d, s%d, 1' % (S_TMO, S_TMO))
        k('s_cmp_lg_u32 s%d, 0' % S_TMO)
        k('s_cbranch_scc1 %s' % L)
        k.label(D)
    def poll(self, vt, vaddr, soff, n=1, first_issued=None):
        k = self.k
        L = k.newlabel('L_poll'); D = k.newlabel('L_poll_ok'); C = k.newlabel('L_poll_chk')
        k('s_movk_i32 s%d, 0x4000' % S_TMO)
        if first_issued is not None:
            k.wait(vm=first_issued)
            k('s_branch %s' % C)
        k.label(L)
        nvm = len(k.vm)
        k('buffer_load_dword%s %s, %s, s[%d:%d], %s offen sc1' % ('x2' if n == 2 else '', vr(vt, n), vr(vaddr), R_WS, R_WS + 3, soff))
        if first_issued is not None: k.vm.pop()
        k('s_waitcnt vmcnt(0)')
        k.label(C)
        k('v_cmp_ne_u32 vcc, s%d, %s' % (S_NONCE, vr(vt)))
        if n == 2:
            k('v_cmp_ne_u32 s[78:79], s%d, %s' % (S_NONCE, vr(vt + 1)))
            k('s_or_b64 vcc, vcc, s[78:79]')
        k('s_cmp_eq_u64 vcc, 0')
        k('s_cbranch_scc1 %s' % D)
        if self.opt.get('sleep'): k('s_sleep %d' % self.opt['sleep'])
        k('s_sub_u32 s%d, s%d, 1' % (S_TMO, S_TMO))
        k('s_cmp_lg_u32 s%d, 0' % S_TMO)
        k('s_cbranch_scc1 %s' % L)
        k.label(D)
    def flag_store(self, vt, vz, soff, tag=None):
        k = self.k
        k('v_mov_b32 %s, s%d' % (vr(vt), S_NONCE))
        k('v_mov_b32 %s, 0' % vr(vz))
        k('s_mov_b64 exec, 1')
        k('buffer_store_dword %s, %s, s[%d:%d], %s offen sc1' % (vr(vt), vr(vz), R_WS, R_WS + 3, soff), tag=tag)
        k('s_mov_b64 exec, -1')

    def prologue(self):
        k = self.k
        k('s_cmp_ge_u32 s2, 512')
        k('s_cbranch_scc1 L_end')
        k('s_load_dwordx16 s[16:31], s[0:1], 0')
        k('s_load_dwordx16 s[32:47], s[0:1], 64')
        k('s_memrealtime s[10:11]')
        if self.opt.get('cyc'): k('s_memtime s[100:101]')
        k('v_lshrrev_b32 v1, 6, v0')
        k('v_and_b32 v0, 63, v0')
        k('v_readfirstlane_b32 s%d, v1' % S_WAVE)
        k('s_and_b32 s%d, s2, 255' % S_M)
        k('s_and_b32 s64, s%d, 7' % S_M)
        k('s_lshr_b32 s65, s%d, 3' % S_M)
        k('s_lshr_b32 s66, s64, 1')
        k('s_lshl_b32 s66, s66, 3')
        k('s_and_b32 s67, s65, 7')
        k('s_add_u32 s%d, s66, s67' % S_RHO)
        k('s_and_b32 s66, s64, 1')
        k('s_lshl_b32 s66, s66, 2')
        k('s_lshr_b32 s67, s65, 3')
        k('s_add_u32 s%d, s66, s67' % S_J)
        k('s_waitcnt lgkmcnt(0)')
        if self.opt.get('ts'):
            for i in range(10):
                k('s_mov_b32 s%d, s%d' % (S_TS + 2 * i, 100 if self.opt.get('cyc') else 10))
        self.srd(R_WS, P_WS, WS_SZ)
        self.srd(R_U, P_U, 2048 * 640 * 2)
        k('s_lshl_b32 s64, s2, 2')
        k('s_add_u32 s64, s64, s%d' % S_WAVE)
        k('s_cmp_lg_u32 s64, 0')
        k('s_cbranch_scc1 L_nonn')
        k('s_or_b32 s10, s10, 1')
        k('v_mov_b32 v1, s10')
        k('v_mov_b32 v2, 0')
        k('s_mov_b64 exec, 1')
        k('global_store_dword v2, v1, s[%d:%d] sc1' % (P_DBG, P_DBG + 1))
        k('s_mov_b64 exec, -1')
        k.label('L_nonn')
        k('s_cmp_lt_u32 s2, 256')
        k('s_cbranch_scc1 L_gemm')
        if self.opt.get('nossm'): k('s_endpgm')
        k('s_cmp_eq_u32 s%d, 3' % S_WAVE)
        k('s_cbranch_scc1 L_misc')
        if self.opt.get('nochan'): k('s_endpgm')

    def misc(self):
        k = self.k
        k.reset_counts()
        LT, LW = 52608, 52608 + 10240
        k.label('L_misc')
        self.srd(R_W, P_W2, 1536 * 640 * 2)
        for i in range(5):
            k('v_add_u32 v1, %d, v0' % (64 * i))
            k('v_mul_u32_u24 v2, 205, v1')
            k('v_lshrrev_b32 v2, 11, v2')
            k('v_mul_u32_u24 v3, 10, v2')
            k('v_sub_u32 v3, v1, v3')
            k('v_mul_u32_u24 v2, 1280, v2')
            k('v_lshl_add_u32 v%d, v3, 4, v2' % (10 + i))
        k('s_mul_i32 s64, s%d, %d' % (S_RHO, 64 * 1280))
        k('s_mul_i32 s65, s%d, 160' % S_J)
        k('s_add_u32 s64, s64, s65')
        k('s_add_u32 s65, s64, %d' % (32 * 1280))
        for i in range(10):
            k('s_mov_b32 m0, %d' % (LT + 1024 * i))
            k('buffer_load_dwordx4 v%d, s[%d:%d], s%d offen lds' % (10 + i % 5, R_U, R_U + 3, 64 + i // 5), tag='T')
        k('s_min_u32 s66, s%d, 239' % S_M)
        k('s_mul_i32 s67, s66, 205')
        k('s_lshr_b32 s67, s67, 10')
        k('s_mul_i32 s68, s67, 5')
        k('s_sub_u32 s68, s66, s68')
        k('s_mul_i32 s69, s67, %d' % (32 * 1280))
        k('s_lshl_b32 s70, s68, 8')
        k('s_add_u32 s69, s69, s70')
        k('v_lshrrev_b32 v1, 4, v0')
        k('v_and_b32 v2, 15, v0')
        k('v_mul_u32_u24 v1, 1280, v1')
        k('v_lshl_add_u32 v15, v2, 4, v1')
        for i in range(8):
            k('s_mov_b32 m0, %d' % (LW + 1024 * i))
            k('buffer_load_dwordx4 v15, s[%d:%d], s69 offen lds' % (R_W, R_W + 3), tag='W')
            k('s_add_u32 s69, s69, %d' % (4 * 1280))
        k('v_lshrrev_b32 v1, 3, v0')
        k('v_and_b32 v2, 7, v0')
        k('v_lshlrev_b32 v16, 4, v2')
        k('v_mul_u32_u24 v1, 1280, v1')
        k('v_add_u32 v17, v1, v16')
        k('s_lshl_b32 s70, s%d, 3' % S_RHO)
        k('s_add_u32 s70, s70, s%d' % S_J)
        k('s_mul_i32 s71, s70, %d' % (8 * 1280))
        GX, GW = 96, 136
        for i in range(10):
            k('buffer_load_dwordx4 %s, v17, s[%d:%d], s71 offen offset:%d' % (vr(GX + 4 * i, 4), R_U, R_U + 3, 128 * i), tag='G')
        for i in range(10):
            k('global_load_dwordx4 %s, v16, s[%d:%d] offset:%d' % (vr(GW + 4 * i, 4), P_GW, P_GW + 1, 128 * i), tag='G')
        k('v_lshrrev_b32 v1, 4, v0')
        k('v_bfe_u32 v2, v0, 2, 2')
        k('v_and_b32 v3, 3, v0')
        k('v_lshl_add_u32 v4, v1, 3, v2')
        k('v_mul_u32_u24 v4, 160, v4')
        k('v_lshl_add_u32 v4, v3, 3, v4')
        k('v_add_u32 v18, %d, v4' % LT)
        k('v_and_b32 v5, 15, v0')
        k('v_lshlrev_b32 v5, 12, v5')
        k('v_lshl_add_u32 v19, v1, 4, v5')
        k('v_lshrrev_b32 v5, 1, v1')
        k('v_and_b32 v6, 1, v1')
        k('v_lshlrev_b32 v5, 4, v5')
        k('v_lshl_add_u32 v5, v6, 2, v5')
        k('v_add_u32 v5, v5, v2')
        k('v_lshlrev_b32 v5, 8, v5')
        k('v_lshl_add_u32 v5, v3, 3, v5')
        k('v_add_u32 v20, %d, v5' % LW)
        k('v_lshlrev_b32 v21, 4, v0')
        k('s_mul_i32 s72, s%d, %d' % (S_J, 80 * 4096))
        k('s_lshl_b32 s73, s%d, 7' % S_RHO)
        k('s_add_u32 s72, s72, s73')
        k.wait(vm='T')
        self.ts(1)
        for dl in range(5):
            for z in range(2):
                b = 24 + 8 * dl + 4 * z
                for e in range(2):
                    k('ds_read_b64_tr_b16 %s, v18 offset:%d' % (vr(b + 2 * e, 2), (32 * z + 4 * e) * 160 + 32 * dl), tag='t%d' % dl)
        for dl in range(5):
            k.wait(lg='t%d' % dl)
            for z in range(2):
                k('buffer_store_dwordx4 %s, v19, s[%d:%d], s72 offen offset:%d sc1' % (vr(24 + 8 * dl + 4 * z, 4), R_WS, R_WS + 3, 64 * z), tag='Tst')
            k('s_add_u32 s72, s72, %d' % (16 * 4096))
        k.wait(vm='W')
        for fr in range(8):
            for e in range(2):
                k('ds_read_b64_tr_b16 %s, v20 offset:%d' % (vr(64 + 4 * fr + 2 * e, 2), 8 * e * 256 + 32 * fr), tag='w%d' % fr)
        for fr in range(8):
            k('s_lshl_b32 s73, s68, 3')
            k('s_add_u32 s73, s73, %d' % fr)
            k('s_mul_i32 s74, s73, 205')
            k('s_lshr_b32 s74, s74, 10')
            k('s_mul_i32 s75, s74, 235')
            k('s_add_u32 s75, s75, s73')
            k('s_mul_i32 s76, s67, 5')
            k('s_add_u32 s75, s75, s76')
            k('s_lshl_b32 s75, s75, 10')
            k('s_add_u32 s75, s75, 0x%x' % WS_W2P)
            k.wait(lg='w%d' % fr)
            k('buffer_store_dwordx4 %s, v21, s[%d:%d], s75 offen sc1' % (vr(64 + 4 * fr, 4), R_WS, R_WS + 3), tag='Wst')
        self.get_nonce(8, 9)
        self.ts(2)
        k('s_lshl_b32 s73, s%d, 5' % S_J)
        k('s_add_u32 s73, s73, s%d' % S_RHO)
        k('s_lshl_b32 s73, s73, 2')
        k('s_add_u32 s73, s73, 0x%x' % WS_FU)
        self.flag_store(8, 9, 's73')
        k('s_mul_i32 s73, s68, 48')
        k('s_add_u32 s73, s73, s67')
        k('s_lshl_b32 s73, s73, 2')
        k('s_add_u32 s73, s73, 0x%x' % WS_FW)
        self.flag_store(8, 9, 's73')
        k('v_mov_b32 v24, 0')
        k('v_mov_b32 v25, 0')
        for i in range(40):
            x, w = GX + i, GW + i
            t = 28 + 8 * (i % 2)
            k('v_lshlrev_b32 v%d, 16, v%d' % (t, x))
            k('v_and_b32 v%d, 0xffff0000, v%d' % (t + 1, x))
            k('v_lshlrev_b32 v%d, 16, v%d' % (t + 2, w))
            k('v_and_b32 v%d, 0xffff0000, v%d' % (t + 3, w))
            k('v_pk_mul_f32 %s, %s, %s' % (vr(t, 2), vr(t, 2), vr(t + 2, 2)))
            k('v_cvt_pk_bf16_f32 v%d, v%d, v%d' % (t + 4, t, t + 1))
            k('v_lshlrev_b32 v%d, 16, v%d' % (t, t + 4))
            k('v_and_b32 v%d, 0xffff0000, v%d' % (t + 1, t + 4))
            k('v_pk_add_f32 v[24:25], v[24:25], %s' % vr(t, 2))
        k('v_add_f32 v24, v24, v25')
        k('v_add_f32_dpp v24, v24, v24 quad_perm:[1,0,3,2] row_mask:0xf bank_mask:0xf')
        k('v_add_f32_dpp v24, v24, v24 quad_perm:[2,3,0,1] row_mask:0xf bank_mask:0xf')
        k('v_add_f32_dpp v24, v24, v24 row_half_mirror row_mask:0xf bank_mask:0xf')
        k('v_cvt_pk_bf16_f32 v24, v24, v24')
        k('v_lshlrev_b32 v24, 16, v24')
        k('v_mul_f32 v24, %s, v24' % fhex(-LOG2E))
        k('v_exp_f32 v24, v24')
        k('v_add_f32 v24, 1.0, v24')
        k('v_rcp_f32 v24, v24')
        k('v_cvt_pk_bf16_f32 v24, v24, v24')
        k('v_lshlrev_b32 v24, 16, v24')
        k('v_mov_b32 v25, s%d' % S_NONCE)
        k('v_and_b32 v26, 0x38, v0')
        k('s_lshl_b32 s73, s70, 6')
        k('s_add_u32 s73, s73, 0x%x' % WS_G)
        k('s_mov_b32 s74, 0x01010101')
        k('s_mov_b32 s75, 0x01010101')
        k('s_mov_b64 exec, s[74:75]')
        k('buffer_store_dwordx2 v[24:25], v26, s[%d:%d], s73 offen sc1' % (R_WS, R_WS + 3))
        k('s_mov_b64 exec, -1')
        self.ts(3)
        self.ts_store()
        k('s_endpgm')

    def cmul(self, d, a, b):
        return ['v_pk_mul_f32 %s, %s, %s op_sel:[0,0] op_sel_hi:[0,1]' % (vr(d, 2), vr(a, 2), vr(b, 2)),
                'v_pk_fma_f32 %s, %s, %s, %s op_sel:[1,1,0] op_sel_hi:[1,0,1] neg_lo:[1,0,0]' % (vr(d, 2), vr(a, 2), vr(b, 2), vr(d, 2))]
    def chan(self):
        k = self.k
        k.reset_counts()
        S_D, S_CB, S_DSK = 12, 13, 14
        KO, UX, UY = 4576, 9120, 9120 + 4224
        k('s_mul_i32 s64, s%d, 3' % S_M)
        k('s_lshl_b32 s65, s%d, 1' % S_M)
        k('s_add_u32 s65, s65, 128')
        k('s_cmp_lt_u32 s%d, 128' % S_M)
        k('s_cselect_b32 s64, s64, s65')
        k('s_cselect_b32 s65, 3, 2')
        k('s_cmp_ge_u32 s%d, s65' % S_WAVE)
        k('s_cbranch_scc1 L_end')
        k('s_add_u32 s%d, s64, s%d' % (S_D, S_WAVE))
        k('s_mul_i32 s%d, s%d, 17536' % (S_CB, S_WAVE))
        PR = 200
        for i in range(18): k('v_mov_b32 v%d, 0' % (PR + i))
        k('s_mul_i32 s64, s%d, 384' % S_D)
        k('v_lshlrev_b32 v1, 1, v0')
        k('v_add_u32 v1, s64, v1')
        for ps in range(3):
            for ai, p in enumerate((P_ARE, P_AIM, P_BRE, P_BIM, P_CRE, P_CIM)):
                k('global_load_short_d16_hi v%d, v1, s[%d:%d] offset:%d' % (PR + 3 * ai + ps, p, p + 1, 128 * ps), tag='par%d' % ps)
        k('s_lshr_b32 s64, s%d, 1' % S_D)
        k('s_lshl_b32 s64, s64, 2')
        k('s_load_dword s65, s[%d:%d], s64' % (P_LDT, P_LDT + 1))
        k('s_load_dword s66, s[%d:%d], s64' % (P_DSK, P_DSK + 1))
        V_PA, V_QA, V_WA, V_DT = 2, 3, 4, 5
        k('v_mov_b32 v6, 0')
        for i in range(32):
            r = 4 * (i >> 3) + (i & 3); hh = (i >> 2) & 1
            if r <= 4: row = r + 4 * hh
            elif r <= 7: row = 9 + (r - 5) + 2 * hh
            elif r <= 10: row = 14 + (r - 8) + 3 * hh
            elif r <= 12: row = 20 + (r - 11) + 4 * hh
            elif r <= 14: row = 22 + (r - 13) + 4 * hh
            else: row = 0
            if row: k('v_writelane_b32 v6, %d, %d' % (row, i))
        k('v_mov_b32 v7, v6')
        k('v_permlane32_swap_b32 v6, v7')
        k('v_lshrrev_b32 v8, 5, v0')
        k('v_lshlrev_b32 v8, 4, v8')
        k('v_add_u32 v8, s%d, v8' % S_CB)
        k('v_mul_u32_u24 v6, 272, v6')
        k('v_add_u32 v%d, v6, v8' % V_PA)
        k('v_and_b32 v6, 31, v0')
        k('v_mul_u32_u24 v6, 272, v6')
        k('v_add_u32 v%d, v6, v8' % V_QA)
        k('v_lshlrev_b32 v6, 2, v0')
        k('v_add_u32 v%d, s%d, v6' % (V_WA, S_CB))
        k('v_and_b32 v6, 15, v0')
        k('v_lshlrev_b32 v6, 2, v6')
        k('v_add_u32 v6, s%d, v6' % S_CB)
        k('v_mov_b32 v7, 0')
        k('ds_write_b32 v6, v7 offset:%d' % UX)
        k('ds_write_b32 v6, v7 offset:%d' % UY)
        k('s_waitcnt lgkmcnt(0)')
        k('s_and_b32 s64, s%d, 1' % S_D)
        k('s_lshl_b32 s64, s64, 4')
        k('s_lshr_b32 s65, s65, s64')
        k('s_lshl_b32 s65, s65, 16')
        k('s_lshr_b32 s66, s66, s64')
        k('s_lshl_b32 s%d, s66, 16' % S_DSK)
        k('s_mov_b32 s%d, s%d' % (S_DSK + 1, S_DSK))
        k('v_mov_b32 v6, s65')
        k('v_mul_f32 v6, %s, v6' % fhex(LOG2E))
        k('v_exp_f32 v6, v6')
        k('v_cvt_pk_bf16_f32 v6, v6, v6')
        k('v_lshlrev_b32 v%d, 16, v6' % V_DT)
        k('s_mul_i32 s64, s%d, 205' % S_D)
        k('s_lshr_b32 s64, s64, 14')
        k('s_lshl_b32 s64, s64, 7')
        k('s_add_u32 s9, s64, 0x%x' % WS_FU)
        ACC = 16
        QF, PF = 32, 64
        X_, C_, E1, E2, E4, E8, E256, E8C, E16C = 100, 102, 104, 106, 108, 110, 112, 114, 116
        T0 = 120
        for ps in range(3):
            k.wait(vm='par%d' % ps)
            if ps == 0: self.ts(1)
            ar, ai, br, bi, cr, ci = [PR + 3 * a + ps for a in range(6)]
            k('v_mul_f32 v%d, v%d, v%d' % (X_, V_DT, ar))
            k('v_mul_f32 v%d, v%d, v%d' % (X_ + 1, V_DT, ai))
            k('v_mul_f32 v%d, v%d, v%d' % (T0, V_DT, br))
            k('v_mul_f32 v%d, v%d, v%d' % (T0 + 1, V_DT, bi))
            k('v_mul_f32 v%d, %s, v%d' % (X_, fhex(LOG2E), X_))
            k('v_mul_f32 v%d, %s, v%d' % (X_ + 1, fhex(INV2PI), X_ + 1))
            k('v_mul_f32 v%d, v%d, v%d' % (C_, cr, T0))
            k('v_mul_f32 v%d, v%d, v%d' % (C_ + 1, cr, T0 + 1))
            k('v_rndne_f32 v%d, v%d' % (T0 + 2, X_ + 1))
            k('v_fma_f32 v%d, -v%d, v%d, v%d' % (C_, ci, T0 + 1, C_))
            k('v_fma_f32 v%d, v%d, v%d, v%d' % (C_ + 1, ci, T0, C_ + 1))
            k('v_sub_f32 v%d, v%d, v%d' % (X_ + 1, X_ + 1, T0 + 2))
            for idx, (dst, p) in enumerate(((E8, 8.0), (E1, 1.0), (E256, 256.0))):
                t = T0 + 4 + 4 * idx
                if p == 1.0:
                    m, th = X_, X_ + 1
                else:
                    k('v_mul_f32 v%d, %s, v%d' % (t, fhex(p), X_))
                    k('v_mul_f32 v%d, %s, v%d' % (t + 1, fhex(p), X_ + 1))
                    m, th = t, t + 1
                k('v_exp_f32 v%d, v%d' % (t + 2, m))
                k('v_cos_f32 v%d, v%d' % (dst, th))
                k('v_sin_f32 v%d, v%d' % (dst + 1, th))
            for idx, dst in enumerate((E8, E1, E256)):
                t = T0 + 4 + 4 * idx
                k('v_pk_mul_f32 %s, %s, %s op_sel_hi:[1,0]' % (vr(dst, 2), vr(dst, 2), vr(t + 2, 2)))
            k('v_mov_b32 v%d, v%d' % (E8C, E8))
            k('v_xor_b32 v%d, 0x80000000, v%d' % (E8C + 1, E8 + 1))
            for l in self.cmul(E16C, E8C, E8C): k(l)
            CV = 140
            cvn = [0]
            def put(row, src):
                t = CV + cvn[0] % 8; cvn[0] += 1
                return ['v_cvt_pk_bf16_f32 v%d, v%d, v%d' % (t, src, src + 1),
                        'ds_write_b32 v%d, v%d offset:%d' % (V_WA, t, 272 * row)]
            k('v_mov_b32 v%d, 0x3f80' % (CV + 8))
            k('ds_write_b32 v%d, v%d' % (V_WA, CV + 8))
            for l in put(1, E8C) + put(2, E16C): k(l)
            qa, qb = E8C, E16C
            pp = [(150, 152), (154, 156)]
            for b in range(3, 32, 2):
                na, nb = pp[((b - 3) // 2) % 2]
                ma = self.cmul(na, qa, E16C)
                if b + 1 < 32:
                    mb = self.cmul(nb, qb, E16C)
                    pa, pb = put(b, na), put(b + 1, nb)
                    for l in (ma[0], mb[0], ma[1], mb[1], pa[0], pb[0], pa[1], pb[1]): k(l)
                else:
                    for l in ma + put(b, na): k(l)
                qa, qb = na, nb
            for s in range(8):
                k('ds_read_b128 %s, v%d offset:%d' % (vr(QF + 4 * s, 4), V_QA, 32 * s), tag='q')
            for l in self.cmul(E2, E1, E1): k(l)
            for l in put(0, C_): k(l)
            for l in self.cmul(E4, E2, E2): k(l)
            G = [None] + [160 + 2 * i for i in range(7)]
            sa = []; sb = []
            prev = C_
            for r in range(1, 9):
                d = 150 + 2 * (r % 2)
                sa.append((d, prev, E1, r)); prev = d
            prev = C_
            grow = {1: 9, 2: 14, 3: 17, 4: 20, 5: 22, 6: 24, 7: 26}
            for g in range(1, 8):
                sb.append((G[g], prev, E256, grow[g])); prev = G[g]
            prev = G[1]
            for r in range(4):
                d = 150 + 2 * ((r + 1) % 2)
                sa.append((d, prev, E2, 10 + r)); prev = d
            ex = [(G[2], E4, 15), (G[2], E8, 16), (G[3], E4, 18), (G[3], E8, 19), (G[4], E8, 21), (G[5], E8, 23), (G[6], E8, 25), (G[7], E8, 27)]
            for i, (a_, b_, row) in enumerate(ex):
                if i < 6: sb.append((154 + 2 * (i % 2), a_, b_, row))
                else: sa.append((176 + 2 * (i % 2), a_, b_, row))
            n = max(len(sa), len(sb))
            for i in range(n):
                seq = []
                for st in (sa, sb):
                    if i < len(st):
                        d, a_, b_, row = st[i]
                        seq.append(self.cmul(d, a_, b_) + put(row, d))
                for j in range(4):
                    for q in seq: k(q[j])
            for s in range(8):
                k('ds_read_b128 %s, v%d offset:%d' % (vr(PF + 4 * s, 4), V_PA, 32 * s), tag='p%d' % s)
            if ps == 1:
                self.get_nonce(8, 9)
                k('v_and_b32 v8, 31, v0')
                k('v_lshlrev_b32 v8, 2, v8')
                self.poll(9, 8, 's9')
                self.ts(2)
                k('v_lshlrev_b32 v8, 4, v0')
                k('s_lshl_b32 s64, s%d, 12' % S_D)
                k('s_add_u32 s65, s64, 4')
                k('s_add_u32 m0, s%d, %d' % (S_CB, UX + 64))
                for i in range(4):
                    k('buffer_load_dwordx4 v8, s[%d:%d], s64 offen offset:%d sc1 lds' % (R_WS, R_WS + 3, 1024 * i), tag='u')
                k('s_add_u32 m0, s%d, %d' % (S_CB, UY + 64))
                for i in range(4):
                    k('buffer_load_dwordx4 v8, s[%d:%d], s65 offen offset:%d sc1 lds' % (R_WS, R_WS + 3, 1024 * i), tag='u')
            for s in range(8):
                k.wait(lg='p%d' % s)
                c = '0' if (ps == 0 and s == 0) else vr(ACC, 16)
                k('v_mfma_f32_32x32x16_bf16 %s, %s, %s, %s' % (vr(ACC, 16), vr(PF + 4 * s, 4), vr(QF + 4 * s, 4), c))
        self.ts(3)
        V = lambda r: ACC + r
        k('v_and_b32 v6, 31, v0')
        k('v_lshrrev_b32 v7, 5, v0')
        k('v_lshlrev_b32 v8, 4, v6')
        k('v_sub_u32 v8, s%d, v8' % S_CB)
        k('v_lshlrev_b32 v9, 3, v7')
        k('v_sub_u32 v9, v8, v9')
        k('v_add_u32 v9, 504, v9')
        k('v_lshlrev_b32 v10, 9, v7')
        k('v_sub_u32 v10, v8, v10')
        k('v_add_u32 v10, 1008, v10')
        k('v_lshlrev_b32 v11, 10, v7')
        k('v_sub_u32 v11, v8, v11')
        k('v_add_u32 v11, 1520, v11')
        k('v_add_u32 v12, %d, v9' % (KO + 4084 - 504))
        k('v_add_u32 v13, %d, v9' % (KO + 4084 - 512 - 504))
        k('v_and_b32 v6, 1, v0')
        k('v_cmp_eq_u32 vcc, 1, v6')
        k('v_min_u32 v14, 27, v0')
        k('v_lshlrev_b32 v14, 4, v14')
        k('v_add_u32 v14, s%d, v14' % S_CB)
        for i in range(4): k('v_mov_b32 v%d, 0' % (96 + i))
        k('ds_write_b128 v14, v[96:99] offset:4096')
        k('ds_write_b128 v14, v[96:99] offset:%d' % (KO + 4096))
        pk = lambda d, lo, hi: k('v_cvt_pk_bf16_f32 v%d, v%d, v%d' % (d, lo, hi))
        k('v_cndmask_b32 v100, v%d, v%d, vcc' % (V(11), V(12)))
        k('v_cndmask_b32 v101, v%d, v%d, vcc' % (V(13), V(14)))
        pk(32, V(3), V(2)); pk(33, V(1), V(0))
        k('ds_write_b64 v9, v[32:33] offset:%d' % (4088 - 504))
        pk(34, V(7), V(6)); pk(35, V(5), V(5))
        k('ds_write_b64 v9, v[34:35] offset:%d' % (4088 - 512 - 504))
        pk(36, V(10), V(10)); pk(37, V(9), V(9)); pk(38, V(9), V(8)); pk(39, V(8), V(8))
        k('ds_write_b128 v10, v[36:39] offset:%d' % (3056 - 1008))
        pk(40, V(10), V(9)); k('v_mov_b32 v41, v37'); k('v_mov_b32 v42, v39'); k('v_mov_b32 v43, v39')
        k('ds_write_b128 v10, v[40:43] offset:%d' % (KO + 3056 - 1008))
        for (lo, hi, T, off, rb) in ((11, 12, 100, 2032, 44), (13, 14, 101, 1520, 52)):
            pk(rb, V(hi), V(hi)); pk(rb + 1, V(hi), T); pk(rb + 2, V(lo), V(lo)); k('v_mov_b32 v%d, v%d' % (rb + 3, rb + 2))
            k('ds_write_b128 v11, %s offset:%d' % (vr(rb, 4), off - 1520))
            k('v_mov_b32 v%d, v%d' % (rb + 4, rb)); pk(rb + 5, T, V(lo)); k('v_mov_b32 v%d, v%d' % (rb + 6, rb + 2)); k('v_mov_b32 v%d, v%d' % (rb + 7, rb + 2))
            k('ds_write_b128 v11, %s offset:%d' % (vr(rb + 4, 4), KO + off - 1520))
        pk(60, V(4), V(3)); pk(61, V(2), V(1))
        k('ds_write2_b32 v12, v60, v61 offset0:0 offset1:1')
        pk(62, V(7), V(7)); pk(63, V(6), V(5))
        k('ds_write2_b32 v13, v62, v63 offset0:0 offset1:1')
        pk(64, V(0), 96)
        k('v_mov_b32 v65, s%d' % S_CB)
        k.wait(vm='u')
        k('ds_read_b32 v66, v65 offset:%d' % (UX + 64), tag='fx')
        k.wait(lg='fx')
        k('s_mov_b64 exec, 1')
        k('ds_write_b32 v65, v64 offset:%d' % (KO + 4092))
        k('ds_write_b32 v65, v66 offset:%d' % (UY + 60))
        k('s_mov_b64 exec, -1')
        V_A, V_B = 2, 3
        k('v_and_b32 v6, 15, v0')
        k('v_lshrrev_b32 v7, 4, v0')
        k('v_lshlrev_b32 v7, 4, v7')
        k('v_add_u32 v7, s%d, v7' % S_CB)
        k('v_lshrrev_b32 v8, 1, v6')
        k('v_lshlrev_b32 v8, 6, v8')
        k('v_sub_u32 v8, v7, v8')
        k('v_mov_b32 v9, %d' % (448 + KO))
        k('v_mov_b32 v10, 448')
        k('v_cndmask_b32 v9, v9, v10, vcc')
        k('v_add_u32 v%d, v8, v9' % V_A)
        k('v_lshl_add_u32 v8, v6, 2, v7')
        k('v_mov_b32 v9, %d' % UY)
        k('v_mov_b32 v10, %d' % (UX + 4))
        k('v_cndmask_b32 v9, v9, v10, vcc')
        k('v_add_u32 v%d, v8, v9' % V_B)
        Y = 16
        FB = [64, 128]
        def reads(sg):
            fb = FB[sg % 2]
            out = []
            for c in range(8):
                out.append('ds_read_b128 %s, v%d offset:%d' % (vr(fb + 4 * c, 4), V_A, 4032 - 512 * c - 64 * sg))
                out.append('ds_read_b64 %s, v%d offset:%d' % (vr(fb + 32 + 4 * c, 2), V_B, 448 - 64 * sg + 512 * c))
                out.append('ds_read_b64 %s, v%d offset:%d' % (vr(fb + 34 + 4 * c, 2), V_B, 448 - 64 * sg + 512 * c + 8))
            return out
        self.ts(4)
        for l in reads(0): k(l)
        pairs = [(c, m) for c in range(8) for m in range(8 - c)]
        for sg in range(8):
            k.wait(lg='all')
            fb = FB[sg % 2]
            nx = reads(sg + 1) if sg < 7 else []
            for i, (c, m) in enumerate(pairs):
                cc = '0' if (sg == 0 and c == 0) else vr(Y + 4 * (c + m), 4)
                k('v_mfma_f32_16x16x32_bf16 %s, %s, %s, %s' % (vr(Y + 4 * (c + m), 4), vr(fb + 4 * c, 4), vr(fb + 32 + 4 * m, 4), cc))
                if i < len(nx): k(nx[i])
        self.ts(5)
        k('v_and_b32 v6, 15, v0')
        k('v_lshrrev_b32 v7, 4, v0')
        k('v_lshl_add_u32 v6, v7, 5, v6')
        k('v_lshlrev_b32 v6, 2, v6')
        k('v_add_u32 v6, s%d, v6' % S_CB)
        k('v_lshlrev_b32 v8, 4, v0')
        k('v_add_u32 v7, s%d, v8' % S_CB)
        for z in range(4):
            k('ds_read_b128 %s, v7 offset:%d' % (vr(96 + 4 * z, 4), UX + 64 + 1024 * z), tag='fu')
        for i in range(8):
            for rr in range(2):
                t = 64 + 2 * i + rr
                pk(t, Y + 4 * i + 2 * rr, Y + 4 * i + 2 * rr + 1)
                k('ds_write_b32 v6, v%d offset:%d' % (t, 512 * i + 64 * rr))
        for z in range(4):
            k('ds_read_b128 %s, v7 offset:%d' % (vr(80 + 4 * z, 4), 1024 * z), tag='fy%d' % z)
        k('s_lshl_b32 s64, s%d, 12' % S_D)
        k('s_add_u32 s64, s64, 0x%x' % WS_AT)
        for z in range(4):
            k.wait(lg='fy%d' % z)
            for e in range(4):
                u_, y_ = 96 + 4 * z + e, 80 + 4 * z + e
                t = 112 + 6 * (e % 2)
                k('v_lshlrev_b32 v%d, 16, v%d' % (t, u_))
                k('v_and_b32 v%d, 0xffff0000, v%d' % (t + 1, u_))
                k('v_pk_mul_f32 %s, %s, s[%d:%d]' % (vr(t, 2), vr(t, 2), S_DSK, S_DSK + 1))
                k('v_lshlrev_b32 v%d, 16, v%d' % (t + 2, y_))
                k('v_cvt_pk_bf16_f32 v%d, v%d, v%d' % (t + 4, t, t + 1))
                k('v_and_b32 v%d, 0xffff0000, v%d' % (t + 3, y_))
                k('v_lshlrev_b32 v%d, 16, v%d' % (t, t + 4))
                k('v_and_b32 v%d, 0xffff0000, v%d' % (t + 1, t + 4))
                k('v_pk_add_f32 %s, %s, %s' % (vr(t, 2), vr(t, 2), vr(t + 2, 2)))
                k('v_cvt_pk_bf16_f32 v%d, v%d, v%d' % (128 + 4 * z + e, t, t + 1))
            k('buffer_store_dwordx4 %s, v8, s[%d:%d], s64 offen offset:%d sc1' % (vr(128 + 4 * z, 4), R_WS, R_WS + 3, 1024 * z))
        k('s_lshl_b32 s64, s%d, 2' % S_D)
        k('s_add_u32 s64, s64, 0x%x' % WS_FA)
        k.wait(vm='all')
        self.flag_store(9, 10, 's64')
        self.ts(6)
        self.ts_store()
        k('s_endpgm')

    def gemm(self):
        k = self.k
        k.reset_counts()
        k.label('L_gemm')
        if self.opt.get('nogemm'):
            k('s_endpgm'); return
        import gemm1
        gemm1.emit(self)

    def build(self):
        k = self.k
        self.prologue()
        self.chan()
        self.misc()
        self.gemm()
        k.label('L_end')
        k('s_endpgm')
        hdr = open('gated_mix__ssm_conv_s4__dense_activation_silu__prompt.s.ref').read().split('; Override launch')[0]
        s = hdr + '; @launch grid=(512,1,1) block=(256,1,1) lds=81920\n'
        s += '.amdgcn_target "amdgcn-amd-amdhsa--gfx950"\n.text\n.globl %s\n.p2align 8\n.type %s,@function\n%s:\n' % (KNAME, KNAME, KNAME)
        s += k.text()
        s += '.section .rodata,"a"\n.p2align 6\n.amdhsa_kernel %s\n' % KNAME
        s += '  .amdhsa_next_free_vgpr 256\n  .amdhsa_next_free_sgpr 102\n  .amdhsa_accum_offset 256\n  .amdhsa_group_segment_fixed_size 0\n'
        s += '  .amdhsa_kernarg_size 128\n  .amdhsa_user_sgpr_count 2\n  .amdhsa_user_sgpr_kernarg_segment_ptr 1\n  .amdhsa_system_sgpr_workgroup_id_x 1\n.end_amdhsa_kernel\n'
        return s

if __name__ == '__main__':
    opt = {}
    out = sys.argv[1]
    for a in sys.argv[2:]:
        if '=' in a:
            kk, v = a.split('='); opt[kk] = int(v)
        else: opt[a] = 1
    g = Gen(opt)
    open(out, 'w').write(g.build())
    print('nops inserted', g.k.nops, 'lines', len(g.k.items))
```

```python
from kgen import *
from gen2 import *

def emit(G):
    k = G.k
    opt = G.opt
    S_TAU, S_PHI = 12, 13
    S_HB = 14
    S_LW = 9
    S_X, S_W = 76, 77
    S_FH = 15
    S_HS = 70
    R_W2 = 72
    VX, VW = 2, 6
    k('v_lshrrev_b32 v10, 4, v0')
    k('v_and_b32 v11, 15, v0')
    k('s_lshl_b32 s64, s%d, 4' % S_WAVE)
    for n in range(4):
        k('v_add_u32 v12, %d, v10' % (4 * n))
        k('v_xor_b32 v13, v11, v12')
        k('v_add_u32 v12, s64, v12')
        k('v_mul_u32_u24 v12, 1280, v12')
        k('v_lshl_add_u32 v12, v13, 4, v12')
        k('v_subrev_u32 v%d, %d, v12' % (VX + n, 1024 * n))
    k('v_lshrrev_b32 v12, 3, v0')
    k('s_lshl_b32 s64, s%d, 5' % S_WAVE)
    k('v_add_u32 v12, s64, v12')
    k('v_mul_u32_u24 v12, 3072, v12')
    k('v_and_b32 v13, 7, v0')
    k('v_and_b32 v14, 1, v10')
    k('v_lshlrev_b32 v14, 2, v14')
    k('v_xor_b32 v13, v13, v14')
    k('v_lshl_add_u32 v%d, v13, 4, v12' % VW)
    for n in range(1, 4):
        k('v_add_u32 v%d, %d, v%d' % (VW + n, n * (8 * 3072 - 1024), VW))
    k('s_mul_i32 s%d, s%d, %d' % (S_X, S_RHO, 64 * 1280))
    k('s_mul_i32 s%d, s%d, 384' % (S_W, S_J))
    k('s_lshl_b32 s%d, s%d, 12' % (S_LW, S_WAVE))
    G.srd_tail(R_W, 640 * 1536 * 2)
    seq = []
    if opt.get('xfirst'):
        seq = [('X', 0, 0), ('X', 1, 0), ('W', 0, 0), ('X', 2, 0), ('W', 1, 0), ('X', 3, 0), ('W', 2, 0), ('X', 4, 0), ('W', 3, 0), ('W', 4, 0)]
    else:
        for z in range(5): seq += [('X', z, 0), ('W', z, 0)]
    for r in (1, 2):
        for z in range(5): seq.append(('W', z, r))
    def dma(i):
        typ, z, r = seq[i]
        out = ['s_add_u32 m0, s%d, %d' % (S_LW, 16384 * (i % 5))]
        if typ == 'X':
            out.append('s_add_u32 s64, s%d, %d' % (S_X, 256 * z))
        else:
            out.append('s_add_u32 s64, s%d, %d' % (S_W, z * 128 * 3072 + 128 * r))
        rr = R_U if typ == 'X' else R_W
        for n in range(4):
            out.append(('buffer_load_dwordx4 v%d, s[%d:%d], s64 offen offset:%d lds' % ((VX if typ == 'X' else VW) + n, rr, rr + 3, 1024 * n), 'S%d' % i))
        return out
    k('s_waitcnt lgkmcnt(0)')
    G.srd_base(R_U, P_U)
    G.srd_base(R_W, P_W1)
    if opt.get('gdelay'):
        k('s_sleep %d' % opt['gdelay'])
    NPRE = opt.get('npre', 5)
    for i in range(NPRE): emit_list(k, dma(i))
    G.ts_init()
    if opt.get('gprio'): k('s_setprio %d' % opt['gprio'])
    G.srd_base(R_WS, P_WS)
    G.srd_base(R_O, P_OUT); G.srd_tail(R_O, 2048 * 640 * 2)
    G.srd_base(R_W2, P_W2); G.srd_tail(R_W2, 1536 * 640 * 2)
    k('s_and_b32 s%d, s%d, 1' % (S_TAU, S_WAVE))
    k('s_lshr_b32 s%d, s%d, 1' % (S_PHI, S_WAVE))
    XA = 16
    WA, WAH, VH = 24, 25, 26
    k('v_and_b32 v12, 31, v0')
    k('v_lshrrev_b32 v13, 5, v0')
    k('s_lshl_b32 s64, s%d, 13' % S_TAU)
    k('v_xor_b32 v14, v13, v11')
    k('v_lshlrev_b32 v14, 4, v14')
    k('v_lshl_add_u32 v14, v12, 8, v14')
    k('v_add_u32 v%d, s64, v14' % XA)
    for s in range(1, 8): k('v_xor_b32 v%d, %d, v%d' % (XA + s, 32 * s, XA))
    k('v_bfe_u32 v14, v0, 2, 2')
    k('v_lshl_add_u32 v15, v13, 3, v14')
    k('v_lshlrev_b32 v15, 7, v15')
    k('v_and_b32 v27, 1, v10')
    k('v_bfe_u32 v28, v0, 1, 1')
    k('v_lshl_add_u32 v27, v27, 1, v28')
    k('s_lshl_b32 s64, s%d, 2' % S_PHI)
    k('v_add_u32 v27, s64, v27')
    k('v_lshrrev_b32 v14, 1, v14')
    k('v_lshlrev_b32 v14, 2, v14')
    k('v_xor_b32 v27, v27, v14')
    k('v_lshl_add_u32 v15, v27, 4, v15')
    k('v_and_b32 v27, 1, v0')
    k('v_lshl_add_u32 v%d, v27, 3, v15' % WA)
    k('v_add_u32 v%d, 0x10000, v%d' % (WAH, WA))
    k('v_lshrrev_b32 v14, 4, v12')
    k('s_lshl_b32 s64, s%d, 1' % S_TAU)
    k('v_add_u32 v14, s64, v14')
    k('v_lshlrev_b32 v14, 10, v14')
    k('v_lshl_add_u32 v15, v13, 4, v11')
    k('v_lshl_add_u32 v%d, v15, 4, v14' % VH)
    k('s_mul_i32 s%d, s%d, %d' % (S_HB, S_RHO, 48 * 4096))
    k('s_add_u32 s%d, s%d, 0x%x' % (S_HB, S_HB, WS_H))
    k('s_mul_i32 s66, s%d, 6' % S_J)
    k('s_add_u32 s66, s66, s%d' % S_PHI)
    k('s_lshl_b32 s66, s66, 12')
    k('s_add_u32 s%d, s66, s%d' % (S_HS, S_HB))
    k('s_mul_i32 s66, s%d, 1536' % S_RHO)
    k('s_lshr_b32 s67, s%d, 1' % S_J)
    k('s_mul_i32 s67, s67, 384')
    k('s_add_u32 s66, s66, s67')
    k('s_and_b32 s67, s%d, 1' % S_J)
    k('s_lshl2_add_u32 s67, s67, s%d' % S_WAVE)
    k('s_lshl2_add_u32 s66, s67, s66')
    k('s_add_u32 s%d, s66, 0x%x' % (S_FH, WS_FH))
    FA, FBs = 32, 48
    ACC = [64, 80, 64]
    XF = 96
    def wread(i, half, s):
        base = 16384 * (i % 5)
        reg = WAH if base >= 65536 else WA
        off = base & 0xffff
        fs = FA if half == 0 else FBs
        return [('ds_read_b64_tr_b16 %s, v%d offset:%d' % (vr(fs + 4 * s + 2 * e, 2), reg, off + (4 * half + s) * 2048 + 512 * e), 'w%d%d' % (half, s)) for e in range(2)]
    def mfma(i, half, s):
        typ, z, r = seq[i]
        fs = FA if half == 0 else FBs
        c = '0' if (z == 0 and half == 0 and s == 0) else vr(ACC[r], 16)
        return 'v_mfma_f32_32x32x16_bf16 %s, %s, %s, %s' % (vr(ACC[r], 16), vr(fs + 4 * s, 4), vr(XF + 4 * (8 * z + 4 * half + s), 4), c)
    NL2 = fhex(-LOG2E)
    def epi(r):
        a = ACC[r]
        out = []
        for p in range(8):
            t = 10 if p % 2 == 0 else 28
            if opt.get('fastsilu'):
                x0, x1 = a + 2 * p, a + 2 * p + 1
            else:
                x0, x1 = t, t + 1
                out += ['v_cvt_pk_bf16_f32 v%d, v%d, v%d' % (t + 2, a + 2 * p, a + 2 * p + 1),
                        'v_lshlrev_b32 v%d, 16, v%d' % (t, t + 2),
                        'v_and_b32 v%d, 0xffff0000, v%d' % (t + 1, t + 2)]
            out += ['v_mul_f32 v%d, %s, v%d' % (t + 2, NL2, x0),
                    'v_mul_f32 v%d, %s, v%d' % (t + 3, NL2, x1),
                    'v_exp_f32 v%d, v%d' % (t + 2, t + 2),
                    'v_exp_f32 v%d, v%d' % (t + 3, t + 3),
                    'v_add_f32 v%d, 1.0, v%d' % (t + 2, t + 2),
                    'v_add_f32 v%d, 1.0, v%d' % (t + 3, t + 3),
                    'v_rcp_f32 v%d, v%d' % (t + 2, t + 2),
                    'v_rcp_f32 v%d, v%d' % (t + 3, t + 3),
                    'v_mul_f32 v%d, v%d, v%d' % (t + 2, x0, t + 2),
                    'v_mul_f32 v%d, v%d, v%d' % (t + 3, x1, t + 3),
                    'v_cvt_pk_bf16_f32 v%d, v%d, v%d' % (a + p, t + 2, t + 3)]
            if p in (3, 7):
                s = p >> 2
                if s == 0: out.append('s_add_u32 s66, s%d, %d' % (S_HS, 8192 * r))
                out.append(('buffer_store_dwordx4 %s, v%d, s[%d:%d], s66 offen offset:%d sc1' % (vr(a + 4 * s, 4), VH, R_WS, R_WS + 3, 512 * s), 'hst%d' % r))
        return out
    def hflag(r):
        k('s_add_u32 s67, s%d, %d' % (S_FH, 128 * r))
        G.flag_store(14, 15, 's67')
    VW2 = 2
    VT = 16
    WR = 20
    VL = 22
    S_K0 = 71
    S_H0 = 68
    S_L2 = 69
    S_FP = 62
    def kap(st):
        rank, p, ph = st >> 2, (st >> 1) & 1, st & 1
        return 6 * p + 2 * rank + ph
    def g2_setup():
        o = []
        for n in range(5):
            o += ['v_add_u32 v23, %d, v0' % (64 * n), 'v_mul_u32_u24 v27, 205, v23', 'v_lshrrev_b32 v27, 11, v27',
                  'v_mul_u32_u24 v27, %d, v27' % (1280 - 160), 'v_lshl_add_u32 v27, v23, 4, v27']
            o.append('v_subrev_u32 v%d, %d, v27' % (VW2 + n, 1024 * (n % 4)))
        o += ['v_lshlrev_b32 v%d, 4, v0' % VL]
        for T in range(4):
            o += ['s_xor_b32 s65, s%d, %d' % (S_WAVE, T), 's_lshl_b32 s65, s65, 10', 'v_add_u32 v%d, s65, v%d' % (VT + T, VL)]
        o += ['s_mul_i32 s%d, s%d, 5120' % (S_L2, S_WAVE),
              'v_lshrrev_b32 v23, 5, v0', 'v_bfe_u32 v27, v0, 2, 3', 'v_lshl_add_u32 v23, v23, 4, v27',
              'v_mul_u32_u24 v23, 160, v23', 'v_and_b32 v27, 3, v0', 'v_lshl_add_u32 v23, v27, 3, v23',
              'v_add_u32 v%d, s%d, v23' % (WR, S_L2), 'v_add_u32 v%d, %d, v%d' % (WR + 1, 61440, WR),
              's_mul_i32 s%d, s%d, %d' % (S_K0, S_WAVE, 12 * 32 * 1280), 's_mul_i32 s65, s%d, 160' % S_J, 's_add_u32 s%d, s%d, s65' % (S_K0, S_K0),
              's_mul_i32 s%d, s%d, %d' % (S_H0, S_WAVE, 12 * 4096), 's_add_u32 s%d, s%d, s%d' % (S_H0, S_H0, S_HB)]
        return o
    def w2dma(st):
        b = st % 4
        o = ['s_add_u32 m0, s%d, %d' % (S_L2, 20480 * b), 's_add_u32 s64, s%d, %d' % (S_K0, kap(st) * 32 * 1280)]
        for n in range(5):
            if n == 4: o.append('s_add_u32 m0, s%d, %d' % (S_L2, 20480 * b + 4096))
            o.append(('buffer_load_dwordx4 v%d, s[%d:%d], s64 offen offset:%d lds' % (VW2 + n, R_W2, R_W2 + 3, 1024 * (n % 4)), 'W%d' % st))
        return o
    HD = opt.get('hdepth', 4)
    HB_ = 96
    WF = [HB_ + 16 * HD, HB_ + 16 * HD + 20]
    assert WF[1] + 20 <= 240
    def hload(st, T):
        return ('buffer_load_dwordx4 %s, v%d, s[%d:%d], s65 offen sc1' % (vr(HB_ + 16 * (st % HD) + 4 * T, 4), VT + T, R_WS, R_WS + 3), 'H%d' % st)
    def hoff(st): return 's_add_u32 s65, s%d, %d' % (S_H0, kap(st) * 4096)
    def w2read(st):
        b = st % 4
        reg, off = (WR + 1, 0) if b == 3 else (WR, 20480 * b)
        return [('ds_read_b64_tr_b16 %s, v%d offset:%d' % (vr(WF[st % 2] + 4 * sub + 2 * e, 2), reg, off + 8 * 160 * e + 32 * sub), 'r%d' % st) for sub in range(5) for e in range(2)]

    def take(q, n):
        o = q[:n]; del q[:n]; return o
    pend = None
    epq = []
    misc = []
    EPN = opt.get('epn', 8)
    for i in range(20):
        typ, z, r = seq[i]
        G.pr(100 + i - 1, 6)
        k.wait(vm='S%d' % i, lg='all' if i else None)
        G.pr(100 + i - 1, 7)
        k('s_barrier')
        G.pr(100 + i - 1, 8)
        G.pr(100 + i, 0)
        if i < 10: G.pr(301, i)
        if i >= 10: G.pr(302, i - 10)
        if i == 0: G.ts(1)
        if i == 10: G.ts(2)
        if i == 15: G.ts(3)
        fill = []
        lo = NPRE if i == 0 else i + 4
        for j in (range(NPRE, 5) if i == 0 else [i + 4]):
            if j < 20: fill += dma(j)
        if i == 6: fill = [('v_mov_b32 v15, 0'), ('global_load_dword v14, v15, s[%d:%d] sc1' % (P_DBG, P_DBG + 1), 'non')] + fill
        if i == 10: G.nonce_get(14, 15, waited=True)
        if i == 16: misc = g2_setup()
        if i >= 17: fill += w2dma(i - 17)
        if i == opt.get('f0at', 17):
            k.wait(vm='hst0'); hflag(0)
        if typ == 'X':
            base = 16384 * (i % 5)
            rd = []
            for s in range(8):
                if base >= 65536:
                    rd.append([('v_add_u32 v%d, 0x10000, v%d' % (10 + s % 4, XA + s)), 'ds_read_b128 %s, v%d' % (vr(XF + 4 * (8 * z + s), 4), 10 + s % 4)])
                else:
                    rd.append(['ds_read_b128 %s, v%d offset:%d' % (vr(XF + 4 * (8 * z + s), 4), XA + s, base)])
            rds = [rd[2 * s] + rd[2 * s + 1] for s in range(4)]
        else:
            rds = [wread(i, 0, s) for s in range(4)]
        per = (len(fill) + 3) // 4
        for s in range(4):
            if pend is not None: k(pend[s])
            emit_list(k, rds[s])
            emit_list(k, take(fill, per))
            emit_list(k, take(epq, EPN - 2))
            if not epq: emit_list(k, take(misc, 4))
        if pend is not None and typ == 'W' and z == 0 and r > 0: epq = epi(r - 1)
        pend = None
        G.pr(100 + i, 2)
        if typ == 'W':
            for s in range(4):
                k.wait(lg='w0%d' % s)
                k(mfma(i, 0, s))
                if s < 2:
                    emit_list(k, wread(i, 1, 2 * s) + wread(i, 1, 2 * s + 1))
                    if s == 1: emit_list(k, take(epq, EPN - 3))
                else:
                    emit_list(k, take(epq, EPN))
                    if not epq: emit_list(k, take(misc, 5))
            pend = [mfma(i, 1, s) for s in range(4)]
        if i == 16: emit_list(k, take(misc, 1000))
        if i in (14, 19): emit_list(k, take(epq, 1000))
    S_FL = 16
    k('s_mul_i32 s66, s%d, 1536' % S_RHO)
    k('s_mul_i32 s67, s%d, 384' % S_WAVE)
    k('s_add_u32 s66, s66, s67')
    k('s_add_u32 s26, s66, 0x%x' % WS_FH)
    k('v_and_b32 v8, 7, v0')
    k('v_lshlrev_b32 v8, 2, v8')
    def sflag_issue(rank):
        k('s_add_u32 s27, s26, %d' % (128 * rank))
        k('s_load_dwordx8 s[16:23], s[%d:%d], s27' % (P_WS, P_WS + 1))
    def sflag_check(rank):
        D = k.newlabel('L_sf_ok')
        for i in range(8):
            k('s_xor_b32 s%d, s%d, s%d' % (16 + i, 16 + i, S_NONCE))
        k('s_or_b64 s[16:17], s[16:17], s[18:19]')
        k('s_or_b64 s[20:21], s[20:21], s[22:23]')
        k('s_or_b64 s[16:17], s[16:17], s[20:21]')
        k('s_cbranch_scc0 %s' % D)
        G.poll(9, 8, 's27')
        k.label(D)
    k.wait(lg='all')
    k('s_barrier')
    sflag_issue(0)
    fill = w2dma(3)
    for s in range(4):
        k(pend[s]); emit_list(k, take(fill, 2))
    G.ts(4)
    if opt.get('f1early'):
        k.wait(vm='hst1'); hflag(1)
    epq = epi(2)
    emit_list(k, take(epq, opt.get('e2pre', 30)))
    k('s_waitcnt lgkmcnt(0)')
    sflag_check(0)
    for st in range(4):
        k(hoff(st))
        for T in range(4): emit_list(k, [hload(st, T)])
    if not opt.get('f1early'):
        k.wait(vm='hst1'); hflag(1)
    emit_list(k, take(epq, 1000))
    G.ts(5)
    accs = [32 + 4 * i for i in range(16)] + [240 + 4 * i for i in range(4)]
    A2 = lambda T, sub: accs[5 * T + sub]
    LA = 0
    k('v_lshrrev_b32 v10, 3, v0')
    k('v_min_u32 v10, 2, v10')
    k('v_lshlrev_b32 v10, 2, v10')
    k('v_add_u32 v10, s%d, v10' % S_WAVE)
    k('v_min_u32 v10, 9, v10')
    k('v_and_b32 v11, 7, v0')
    k('v_lshl_add_u32 v10, v10, 3, v11')
    k('v_lshlrev_b32 v10, 7, v10')
    k('s_mul_i32 s28, s%d, %d' % (S_J, 80 * 128))
    k('s_add_u32 s28, s28, 0x%x' % WS_FA)
    k('v_lshrrev_b32 v12, 3, v0')
    k('v_lshlrev_b32 v12, 12, v12')
    k('v_lshl_add_u32 v12, v11, 4, v12')
    k('s_mul_i32 s29, s%d, %d' % (S_J, 80 * 4096))
    k('s_lshl_b32 s65, s%d, 7' % S_RHO)
    k('s_add_u32 s29, s29, s65')
    k('s_add_u32 s29, s29, 0x%x' % WS_AT)
    k('s_lshl2_add_u32 s30, s%d, s%d' % (S_RHO, S_WAVE))
    k('s_lshl_b32 s30, s30, 7')
    k('s_add_u32 s30, s30, 0x%x' % WS_G)
    k('v_and_b32 v13, 15, v0')
    k('v_lshlrev_b32 v13, 3, v13')
    k.wait(vm='W0')
    emit_list(k, w2read(0))
    F2AT = opt.get('f2at', 2)
    for st in range(12):
        if st + 1 < 12: k.wait(vm=('W%d' % (st + 1)) if st >= 3 else ('H%d' % st), lg='all')
        else: k.wait(vm='H%d' % st, lg='all')
        if st == 0: G.ts(6)
        if st < 10: G.pr(300, st)
        if st == F2AT:
            k.wait(vm='hst2'); hflag(2)
        nxt = st + HD
        if nxt < 12 and nxt % 4 == 0 and st > 0: sflag_check(nxt >> 2)
        if st == 0: sflag_issue(1)
        elif nxt + 1 < 12 and (nxt + 1) % 4 == 0: sflag_issue((nxt + 1) >> 2)
        fill = []
        if st + 1 < 12: fill += w2read(st + 1)
        if st + 4 < 12: fill += w2dma(st + 4)
        if st == 8:
            fill += [('buffer_load_dwordx2 v[30:31], v13, s[%d:%d], s30 offen sc1' % (R_WS, R_WS + 3), 'g')]
        late = []
        for T in range(4):
            for sub in range(5):
                c = '0' if st == 0 else vr(A2(T, sub), 4)
                k('v_mfma_f32_16x16x32_bf16 %s, %s, %s, %s' % (vr(A2(T, sub), 4), vr(WF[st % 2] + 4 * sub, 4), vr(HB_ + 16 * (st % HD) + 4 * T, 4), c))
                emit_list(k, take(fill, 1))
        emit_list(k, take(fill, 100))
        if nxt < 12:
            if st == 0:
                k('s_waitcnt lgkmcnt(0)')
                sflag_check(1)
            k(hoff(nxt))
            for T in range(4): emit_list(k, [hload(nxt, T)])
    G.ts(7)
    G.poll_issue(11, 10, 's28', 'fa')
    k('v_add_u32 v14, s%d, v%d' % (S_L2, VL))
    k('v_add_u32 v15, 61440, v14')
    for T in range(1, 4):
        for sub in range(5):
            if T == 3: k('ds_write_b128 v15, %s offset:%d' % (vr(A2(T, sub), 4), 1024 * sub))
            else: k('ds_write_b128 v14, %s offset:%d' % (vr(A2(T, sub), 4), 20480 * T + 1024 * sub))
    for T in range(1, 4):
        k('s_xor_b32 s64, s%d, %d' % (S_WAVE, T))
        k('s_mul_i32 s64, s64, 5120')
        k('s_add_u32 s64, s64, %d' % (20480 * T))
        k('v_add_u32 v%d, s64, v%d' % (2 + T, VL))
    k('s_waitcnt lgkmcnt(0)')
    k('s_barrier')
    RB = 96
    for sub in range(5):
        for p in range(3):
            k('ds_read_b128 %s, v%d offset:%d' % (vr(RB + 12 * sub + 4 * p, 4), 3 + p, 1024 * sub), tag='r%d' % sub)
    if not opt.get('noa'): G.poll(11, 10, 's28', first='fa')
    for n in range(3):
        k('s_add_u32 s65, s%d, %d' % (S_WAVE, 4 * n))
        k('s_min_u32 s65, s65, 9')
        k('s_lshl_b32 s66, s65, 15')
        k('s_add_u32 s66, s66, s29')
        k('s_add_u32 m0, s%d, %d' % (S_L2, LA + 1024 * n))
        k('buffer_load_dwordx4 v12, s[%d:%d], s66 offen sc1 lds' % (R_WS, R_WS + 3), tag='a')
    G.ts(8)
    if not opt.get('noa'): G.poll(30, 13, 's30', n=2, first='g', waited=True, which=[1])
    k('v_sub_f32 v18, 1.0, v30')
    k('v_cvt_pk_bf16_f32 v18, v18, v18')
    k('v_lshlrev_b32 v18, 16, v18')
    k('v_lshrrev_b32 v11, 5, v0')
    k('v_mul_u32_u24 v11, 5120, v11')
    k('v_bfe_u32 v12, v0, 2, 3')
    k('v_lshl_add_u32 v11, v12, 7, v11')
    k('v_and_b32 v12, 3, v0')
    k('v_lshl_add_u32 v11, v12, 3, v11')
    k('s_lshl_b32 s64, s%d, 5' % S_WAVE)
    k('v_add_u32 v11, s64, v11')
    k('v_and_b32 v12, 15, v0')
    k('v_lshrrev_b32 v13, 4, v0')
    k('v_mul_u32_u24 v12, 1280, v12')
    k('v_lshl_add_u32 v12, v13, 3, v12')
    k('s_lshl2_add_u32 s64, s%d, s%d' % (S_RHO, S_WAVE))
    k('s_mul_i32 s64, s64, %d' % (16 * 1280))
    k('s_mul_i32 s65, s%d, 160' % S_J)
    k('s_add_u32 s64, s64, s65')
    for sub in range(5):
        a = A2(0, sub); rb = RB + 12 * sub
        k.wait(lg='r%d' % sub)
        for e in range(4):
            k('v_add_f32 v%d, v%d, v%d' % (a + e, a + e, rb + e))
            k('v_add_f32 v%d, v%d, v%d' % (rb + 4 + e, rb + 4 + e, rb + 8 + e))
            k('v_add_f32 v%d, v%d, v%d' % (a + e, a + e, rb + 4 + e))
        for hf in range(2):
            x = a + 2 * hf
            k('v_cvt_pk_bf16_f32 v%d, v%d, v%d' % (x + 1, x, x + 1))
            k('v_lshlrev_b32 v%d, 16, v%d' % (x, x + 1))
            k('v_and_b32 v%d, 0xffff0000, v%d' % (x + 1, x + 1))
            k('v_mul_f32 v%d, v18, v%d' % (x, x))
            k('v_mul_f32 v%d, v18, v%d' % (x + 1, x + 1))
            k('v_cvt_pk_bf16_f32 v%d, v%d, v%d' % (x + 1, x, x + 1))
            k('v_lshlrev_b32 v%d, 16, v%d' % (x, x + 1))
            k('v_and_b32 v%d, 0xffff0000, v%d' % (x + 1, x + 1))
    k('s_waitcnt vmcnt(0)')
    k('s_barrier')
    AR = 160
    for sub in range(5):
        k('ds_read_b64_tr_b16 %s, v11 offset:%d' % (vr(AR + 2 * sub, 2), LA + (sub & 1) * 10240 + (sub >> 1) * 1024), tag='ar%d' % sub)
    for sub in range(5):
        a = A2(0, sub)
        k.wait(lg='ar%d' % sub)
        for hf in range(2):
            t = 20; x = a + 2 * hf; ar = AR + 2 * sub + hf
            k('v_lshlrev_b32 v%d, 16, v%d' % (t, ar))
            k('v_and_b32 v%d, 0xffff0000, v%d' % (t + 1, ar))
            k('v_mul_f32 v%d, v30, v%d' % (t, t))
            k('v_mul_f32 v%d, v30, v%d' % (t + 1, t + 1))
            k('v_cvt_pk_bf16_f32 v%d, v%d, v%d' % (t + 1, t, t + 1))
            k('v_lshlrev_b32 v%d, 16, v%d' % (t, t + 1))
            k('v_and_b32 v%d, 0xffff0000, v%d' % (t + 1, t + 1))
            k('v_add_f32 v%d, v%d, v%d' % (t, t, x))
            k('v_add_f32 v%d, v%d, v%d' % (t + 1, t + 1, x + 1))
            k('v_cvt_pk_bf16_f32 v%d, v%d, v%d' % (ar, t, t + 1))
        k('buffer_store_dwordx2 %s, v12, s[%d:%d], s64 offen offset:%d %s' % (vr(AR + 2 * sub, 2), R_O, R_O + 3, 32 * sub, 'sc1' if opt.get('osc1') else ''))
    G.ts(9)
    G.ts_store()
    G.calib()
    k('s_endpgm')
```

```python
import sys, math
from kgen import *
KNAME = 'gated_mix__ssm_conv_s4__dense_activation_silu__prompt_kernel'

WS_UT, WS_AT, WS_H, WS_W2P, WS_G = 0x000000, 0x300000, 0x600000, 0xC00000, 0xE00000
WS_FH, WS_FU, WS_FW, WS_FA, WS_TS = 0xE10000, 0xE20000, 0xE28000, 0xE60000, 0xE30000
WS_SZ = 0x1000000
LOG2E = 1.4426950408889634
INV2PI = 0.15915494309189535

S_WG, S_WAVE, S_M, S_RHO, S_J, S_NONCE, S_TMO = 2, 3, 4, 5, 6, 7, 8
P_U, P_ARE, P_AIM, P_BRE, P_BIM, P_CRE, P_CIM, P_LDT = 16, 18, 20, 22, 24, 26, 28, 30
P_DSK, P_BX, P_W1, P_W2, P_GW, P_OUT, P_DBG, P_WS = 32, 34, 36, 38, 40, 42, 44, 46
R_WS, R_U, R_W, R_O = 48, 52, 56, 60
S_TS = 80
CBS = 17664
KO, UX = 4576, 9216
UY = UX + 4224

def emit_list(k, lst):
    for f in lst:
        if isinstance(f, tuple): k(f[0], tag=f[1])
        else: k(f)

class Gen:
    def __init__(self, opt):
        self.k = K()
        self.opt = opt
    def srd_tail(self, r, size):
        self.k('s_mov_b32 s%d, 0x%x' % (r + 2, size))
        self.k('s_mov_b32 s%d, 0x20000' % (r + 3))
    def srd_base(self, r, p):
        self.k('s_mov_b64 s[%d:%d], s[%d:%d]' % (r, r + 1, p, p + 1))
    def ts(self, i):
        if self.opt.get('ts') and not self.opt.get('probe'):
            self.k('%s s[%d:%d]' % ('s_memtime' if self.opt.get('cyc') else 's_memrealtime', S_TS + 2 * i, S_TS + 2 * i + 1))
    def pr(self, key, i):
        if self.opt.get('probe') == key:
            self.k('s_memtime s[%d:%d]' % (S_TS + 2 * i, S_TS + 2 * i + 1))
    def ts_init(self):
        if self.opt.get('ts'):
            for i in range(10):
                self.k('s_mov_b32 s%d, s%d' % (S_TS + 2 * i, 100 if self.opt.get('cyc') else 10))
    def ts_store(self):
        if not self.opt.get('ts'): return
        k = self.k
        k('s_waitcnt vmcnt(0) lgkmcnt(0)')
        k('s_xor_b32 s64, s%d, 256' % S_WG)
        k('s_lshl_b32 s64, s64, 2')
        k('s_add_u32 s64, s64, s%d' % S_WAVE)
        k('s_lshl_b32 s64, s64, 6')
        k('s_add_u32 s64, s64, 0x%x' % WS_TS)
        k('v_mov_b32 v1, 0')
        for i in range(10):
            k('v_mov_b32 v2, s%d' % (S_TS + 2 * i))
            k('buffer_store_dword v2, v1, s[%d:%d], s64 offen offset:%d' % (R_WS, R_WS + 3, 4 * i))
        k('s_waitcnt vmcnt(0)')
    def calib(self):
        if self.opt.get('calib'):
            k = self.k
            L = k.newlabel('L_cal')
            k.label(L)
            k('s_memrealtime s[64:65]')
            k('s_waitcnt lgkmcnt(0)')
            k('s_sub_u32 s64, s64, s%d' % S_NONCE)
            k('s_cmp_lt_u32 s64, %d' % self.opt['calib'])
            k('s_cbranch_scc1 %s' % L)
    def spin_tail(self, L, D):
        k = self.k
        k('s_cbranch_scc1 %s' % D)
        k('s_sleep %d' % self.opt.get('sleep', 2))
        k('s_sub_u32 s%d, s%d, 1' % (S_TMO, S_TMO))
        k('s_cmp_lg_u32 s%d, 0' % S_TMO)
        k('s_cbranch_scc1 %s' % L)
        k.label(D)
    def nonce_issue(self, vt, vz, tag):
        k = self.k
        k('v_mov_b32 %s, 0' % vr(vz))
        k('global_load_dword %s, %s, s[%d:%d] sc1' % (vr(vt), vr(vz), P_DBG, P_DBG + 1), tag=tag)
    def nonce_get(self, vt, vz, tag=None, waited=False):
        k = self.k
        L = k.newlabel('L_nonce'); D = k.newlabel('L_nonce_ok'); C = k.newlabel('L_nonce_chk')
        k('s_movk_i32 s%d, 0x4000' % S_TMO)
        if not waited: k.wait(vm=tag)
        k('s_branch %s' % C)
        k.label(L)
        k('v_mov_b32 %s, 0' % vr(vz))
        k('global_load_dword %s, %s, s[%d:%d] sc1' % (vr(vt), vr(vz), P_DBG, P_DBG + 1)); k.vm.pop()
        k('s_waitcnt vmcnt(0)')
        k.label(C)
        k('v_readfirstlane_b32 s%d, %s' % (S_NONCE, vr(vt)))
        k('s_cmp_lg_u32 s%d, 0' % S_NONCE)
        self.spin_tail(L, D)
    def poll_issue(self, vt, vaddr, soff, tag, n=1):
        self.k('buffer_load_dword%s %s, %s, s[%d:%d], %s offen sc1' % ('x2' if n == 2 else '', vr(vt, n), vr(vaddr), R_WS, R_WS + 3, soff), tag=tag)
    def poll_cmp(self, vt, which):
        k = self.k
        k('v_cmp_ne_u32 vcc, s%d, %s' % (S_NONCE, vr(vt + which[0])))
        if len(which) == 2:
            k('v_cmp_ne_u32 s[78:79], s%d, %s' % (S_NONCE, vr(vt + which[1])))
            k('s_or_b64 vcc, vcc, s[78:79]')
        k('s_cmp_eq_u64 vcc, 0')
    def poll(self, vt, vaddr, soff, n=1, first=None, waited=False, which=None):
        k = self.k
        if which is None: which = list(range(n))
        L = k.newlabel('L_poll'); D = k.newlabel('L_poll_ok'); C = k.newlabel('L_poll_chk')
        k('s_movk_i32 s%d, 0x4000' % S_TMO)
        if first is not None:
            if not waited: k.wait(vm=first)
            k('s_branch %s' % C)
        k.label(L)
        self.poll_issue(vt, vaddr, soff, None, n); k.vm.pop()
        k('s_waitcnt vmcnt(0)')
        k.label(C)
        self.poll_cmp(vt, which)
        self.spin_tail(L, D)
    def flag_store(self, vt, vz, soff, tag=None):
        k = self.k
        k('v_mov_b32 %s, s%d' % (vr(vt), S_NONCE))
        k('v_mov_b32 %s, 0' % vr(vz))
        k('s_mov_b64 exec, 1')
        k('buffer_store_dword %s, %s, s[%d:%d], %s offen sc1' % (vr(vt), vr(vz), R_WS, R_WS + 3, soff), tag=tag)
        k('s_mov_b64 exec, -1')

    def prologue(self):
        k = self.k
        k('s_load_dwordx16 s[16:31], s[0:1], 0')
        k('s_load_dwordx16 s[32:47], s[0:1], 64')
        k('s_memrealtime s[10:11]')
        if self.opt.get('cyc'): k('s_memtime s[100:101]')
        k('v_lshrrev_b32 v1, 6, v0')
        k('v_and_b32 v0, 63, v0')
        k('v_readfirstlane_b32 s%d, v1' % S_WAVE)
        k('s_cmp_ge_u32 s2, 512')
        k('s_cbranch_scc1 L_end')
        k('s_and_b32 s%d, s2, 255' % S_M)
        k('s_bfe_u32 s66, s2, 0x20001')
        k('s_bfe_u32 s67, s2, 0x30003')
        k('s_lshl3_add_u32 s%d, s66, s67' % S_RHO)
        k('s_and_b32 s66, s2, 1')
        k('s_bfe_u32 s67, s2, 0x20006')
        k('s_lshl2_add_u32 s%d, s66, s67' % S_J)
        self.srd_tail(R_WS, WS_SZ)
        self.srd_tail(R_U, 2048 * 640 * 2)
        k('s_cmp_ge_u32 s2, 256')
        k('s_cbranch_scc1 L_gemm')
        if self.opt.get('nossm'):
            k('s_cmp_eq_u32 s2, 128'); k('s_cbranch_scc1 L_idle'); k('s_endpgm')
        k('s_cmp_lg_u32 s%d, 3' % S_WAVE)
        k('s_cbranch_scc1 L_chan')

    def misc(self):
        k = self.k
        k.reset_counts()
        LT = 3 * CBS; LW = LT + 10240
        for i in range(5):
            k('v_add_u32 v1, %d, v0' % (64 * i))
            k('v_mul_u32_u24 v2, 205, v1')
            k('v_lshrrev_b32 v2, 11, v2')
            k('v_mul_u32_u24 v3, %d, v2' % (1280 - 160))
            k('v_lshl_add_u32 v%d, v1, 4, v3' % (10 + i))
        k('s_mul_i32 s64, s%d, %d' % (S_RHO, 64 * 1280))
        k('s_mul_i32 s65, s%d, 160' % S_J)
        k('s_add_u32 s64, s64, s65')
        k('s_add_u32 s65, s64, %d' % (32 * 1280))
        k('s_waitcnt lgkmcnt(0)')
        self.srd_base(R_U, P_U)
        for i in range(10):
            k('s_mov_b32 m0, %d' % (LT + 1024 * i))
            k('buffer_load_dwordx4 v%d, s[%d:%d], s%d offen lds' % (10 + i % 5, R_U, R_U + 3, 64 + i // 5), tag='T')
        self.ts_init()
        self.srd_base(R_WS, P_WS)
        k('v_lshrrev_b32 v1, 3, v0')
        k('v_and_b32 v2, 7, v0')
        k('v_lshlrev_b32 v16, 4, v2')
        k('v_mul_u32_u24 v1, 1280, v1')
        k('v_add_u32 v17, v1, v16')
        k('s_lshl3_add_u32 s70, s%d, s%d' % (S_RHO, S_J))
        k('s_mul_i32 s71, s70, %d' % (8 * 1280))
        k('v_lshrrev_b32 v1, 4, v0')
        k('v_bfe_u32 v2, v0, 2, 2')
        k('v_and_b32 v3, 3, v0')
        k('v_lshl_add_u32 v4, v1, 3, v2')
        k('v_mul_u32_u24 v4, 160, v4')
        k('v_lshl_add_u32 v4, v3, 3, v4')
        k('v_add_u32 v18, %d, v4' % LT)
        k('v_and_b32 v5, 15, v0')
        k('v_lshlrev_b32 v5, 12, v5')
        k('v_lshl_add_u32 v19, v1, 4, v5')
        k('s_mul_i32 s72, s%d, %d' % (S_J, 80 * 4096))
        k('s_lshl_b32 s73, s%d, 7' % S_RHO)
        k('s_add_u32 s72, s72, s73')
        k.wait(vm='T')
        self.ts(1)
        for dl in range(5):
            for z in range(2):
                b = 24 + 8 * dl + 4 * z
                for e in range(2):
                    k('ds_read_b64_tr_b16 %s, v18 offset:%d' % (vr(b + 2 * e, 2), (32 * z + 4 * e) * 160 + 32 * dl), tag='t%d' % dl)
        for dl in range(5):
            k.wait(lg='t%d' % dl)
            for z in range(2):
                k('buffer_store_dwordx4 %s, v19, s[%d:%d], s72 offen offset:%d sc1' % (vr(24 + 8 * dl + 4 * z, 4), R_WS, R_WS + 3, 64 * z), tag='Tst')
            k('s_add_u32 s72, s72, %d' % (16 * 4096))
        self.nonce_issue(8, 9, 'non')
        k('s_lshl_b32 s73, s%d, 5' % S_J)
        k('s_add_u32 s73, s73, s%d' % S_RHO)
        k('s_lshl_b32 s73, s73, 7')
        k('s_add_u32 s73, s73, 0x%x' % WS_FU)
        if self.opt.get('late_w'):
            self.nonce_get(8, 9, 'non')
            self.flag_store(8, 9, 's73')
            self.ts(2)
        GX, GW = 96, 136
        for i in range(10):
            k('buffer_load_dwordx4 %s, v17, s[%d:%d], s71 offen offset:%d' % (vr(GX + 4 * i, 4), R_U, R_U + 3, 128 * i), tag='G')
        for i in range(10):
            k('global_load_dwordx4 %s, v16, s[%d:%d] offset:%d' % (vr(GW + 4 * i, 4), P_GW, P_GW + 1, 128 * i), tag='G')
        if not self.opt.get('late_w'):
            self.nonce_get(8, 9, 'non')
            self.flag_store(8, 9, 's73')
            self.ts(2)
        k.wait(vm='G')
        self.ts(3)
        k('v_mov_b32 v24, 0')
        k('v_mov_b32 v25, 0')
        for i in range(40):
            x, w = GX + i, GW + i
            t = 28
            k('v_lshlrev_b32 v%d, 16, v%d' % (t, x))
            k('v_and_b32 v%d, 0xffff0000, v%d' % (t + 1, x))
            k('v_lshlrev_b32 v%d, 16, v%d' % (t + 2, w))
            k('v_and_b32 v%d, 0xffff0000, v%d' % (t + 3, w))
            k('v_mul_f32 v%d, v%d, v%d' % (t, t, t + 2))
            k('v_mul_f32 v%d, v%d, v%d' % (t + 1, t + 1, t + 3))
            k('v_cvt_pk_bf16_f32 v%d, v%d, v%d' % (t + 4, t, t + 1))
            k('v_lshlrev_b32 v%d, 16, v%d' % (t, t + 4))
            k('v_and_b32 v%d, 0xffff0000, v%d' % (t + 1, t + 4))
            k('v_add_f32 v24, v24, v%d' % t)
            k('v_add_f32 v25, v25, v%d' % (t + 1))
        k('v_add_f32 v24, v24, v25')
        k('v_add_f32_dpp v24, v24, v24 quad_perm:[1,0,3,2] row_mask:0xf bank_mask:0xf')
        k('v_add_f32_dpp v24, v24, v24 quad_perm:[2,3,0,1] row_mask:0xf bank_mask:0xf')
        k('v_add_f32_dpp v24, v24, v24 row_half_mirror row_mask:0xf bank_mask:0xf')
        k('v_cvt_pk_bf16_f32 v24, v24, v24')
        k('v_lshlrev_b32 v24, 16, v24')
        k('v_mul_f32 v24, %s, v24' % fhex(-LOG2E))
        k('v_exp_f32 v24, v24')
        k('v_add_f32 v24, 1.0, v24')
        k('v_rcp_f32 v24, v24')
        k('v_cvt_pk_bf16_f32 v24, v24, v24')
        k('v_lshlrev_b32 v24, 16, v24')
        k('v_mov_b32 v25, s%d' % S_NONCE)
        k('v_and_b32 v26, 0x38, v0')
        k('s_lshl_b32 s73, s70, 6')
        k('s_add_u32 s73, s73, 0x%x' % WS_G)
        k('s_mov_b32 s74, 0x01010101')
        k('s_mov_b32 s75, 0x01010101')
        k('s_mov_b64 exec, s[74:75]')
        k('buffer_store_dwordx2 v[24:25], v26, s[%d:%d], s73 offen sc1' % (R_WS, R_WS + 3))
        k('s_mov_b64 exec, -1')
        self.ts(4)
        self.ts_store()
        k('s_endpgm')
        k.label('L_idle')
        k('s_cmp_lg_u32 s2, 128')
        k('s_cbranch_scc1 L_end')
        k('s_cmp_lg_u32 s%d, 2' % S_WAVE)
        k('s_cbranch_scc1 L_end')
        k('v_mov_b32 v2, 0')
        k('s_waitcnt lgkmcnt(0)')
        k('s_or_b32 s10, s10, 1')
        k('v_mov_b32 v1, s10')
        k('s_mov_b64 exec, 1')
        k('global_store_dword v2, v1, s[%d:%d] sc1' % (P_DBG, P_DBG + 1))
        if self.opt.get('latprobe'):
            ptr = {1: P_BX, 2: P_WS, 3: P_BX}[self.opt['latprobe']]
            k.label('L_lp0')
            k('s_memrealtime s[64:65]')
            k('s_waitcnt lgkmcnt(0)')
            k('s_sub_u32 s64, s64, s10')
            k('s_cmp_lt_u32 s64, 3500')
            k('s_cbranch_scc1 L_lp0')
            k('v_mov_b32 v2, 0x%x' % (0x100000 if ptr == P_BX else 0x8000000))
            k('s_memtime s[70:71]')
            k('global_load_dword v3, v2, s[%d:%d]' % (ptr, ptr + 1))
            k('s_waitcnt vmcnt(0)')
            k('s_memtime s[66:67]')
            k('s_waitcnt lgkmcnt(0)')
            for i in range(4):
                k('v_add_u32 v2, 0x3480, v2')
                k('global_load_dword v3, v2, s[%d:%d]' % (ptr, ptr + 1))
                k('s_waitcnt vmcnt(0)')
            k('s_memtime s[68:69]')
            k('s_waitcnt lgkmcnt(0)')
            if self.opt['latprobe'] == 3:
                k('s_sub_u32 s68, s66, s70')
            else:
                k('s_sub_u32 s68, s68, s66')
                k('s_lshr_b32 s68, s68, 2')
            k('v_mov_b32 v1, s68')
            k('v_mov_b32 v2, 0')
            k('global_store_dword v2, v1, s[%d:%d] offset:16' % (P_DBG, P_DBG + 1))
            k('s_add_u32 s68, s68, 4000')
            k.label('L_lp1')
            k('s_memrealtime s[64:65]')
            k('s_waitcnt lgkmcnt(0)')
            k('s_sub_u32 s64, s64, s10')
            k('s_cmp_lt_u32 s64, s68')
            k('s_cbranch_scc1 L_lp1')
        k('s_endpgm')

    def cmul(self, d, a, b):
        if self.opt.get('nopk'):
            return ['v_mul_f32 v%d, v%d, v%d' % (d, a, b),
                    'v_mul_f32 v%d, v%d, v%d' % (d + 1, a, b + 1),
                    'v_fma_f32 v%d, -v%d, v%d, v%d' % (d, a + 1, b + 1, d),
                    'v_fmac_f32 v%d, v%d, v%d' % (d + 1, a + 1, b)]
        return ['v_pk_mul_f32 %s, %s, %s op_sel:[0,0] op_sel_hi:[0,1]' % (vr(d, 2), vr(a, 2), vr(b, 2)),
                'v_pk_fma_f32 %s, %s, %s, %s op_sel:[1,1,0] op_sel_hi:[1,0,1] neg_lo:[1,0,0]' % (vr(d, 2), vr(a, 2), vr(b, 2), vr(d, 2))]
    def chan(self):
        k = self.k; opt = self.opt
        k.reset_counts()
        k.label('L_chan')
        S_D, S_CB, S_DSK = 12, 13, 14
        k('s_mul_i32 s64, s%d, 3' % S_M)
        k('s_lshl_b32 s65, s%d, 1' % S_M)
        k('s_add_u32 s65, s65, 128')
        k('s_cmp_lt_u32 s%d, 128' % S_M)
        k('s_cselect_b32 s64, s64, s65')
        k('s_cselect_b32 s65, 3, 2')
        k('s_cmp_ge_u32 s%d, s65' % S_WAVE)
        k('s_cbranch_scc1 L_idle')
        if opt.get('nochan'): k('s_endpgm')
        k('s_add_u32 s%d, s64, s%d' % (S_D, S_WAVE))
        k('s_mul_i32 s%d, s%d, %d' % (S_CB, S_WAVE, CBS))
        PR = 232
        for i in range(18): k('v_mov_b32 v%d, 0' % (PR + i))
        k('s_mul_i32 s64, s%d, 384' % S_D)
        k('v_lshlrev_b32 v1, 1, v0')
        k('v_add_u32 v1, s64, v1')
        k('s_lshr_b32 s64, s%d, 1' % S_D)
        k('s_lshl_b32 s64, s64, 2')
        k('s_waitcnt lgkmcnt(0)')
        k('s_load_dword s65, s[%d:%d], s64' % (P_LDT, P_LDT + 1))
        k('s_load_dword s66, s[%d:%d], s64' % (P_DSK, P_DSK + 1))
        for ps in range(3):
            for ai, p in enumerate((P_ARE, P_AIM, P_BRE, P_BIM, P_CRE, P_CIM)):
                k('global_load_short_d16_hi v%d, v1, s[%d:%d] offset:%d' % (PR + 3 * ai + ps, p, p + 1, 128 * ps), tag='par%d' % ps)
        self.ts_init()
        self.srd_base(R_WS, P_WS)
        if opt.get('cprio'): k('s_setprio %d' % opt['cprio'])
        V_RA, V_WA, V_DT, V_FL = 2, 3, 4, 5
        k('v_lshrrev_b32 v6, 5, v0')
        k('v_bfe_u32 v7, v0, 3, 1')
        k('v_lshl_add_u32 v6, v6, 2, v7')
        k('v_mul_u32_u24 v6, 144, v6')
        k('v_bfe_u32 v7, v0, 2, 1')
        k('v_lshl_add_u32 v6, v7, 6, v6')
        k('v_bfe_u32 v7, v0, 4, 1')
        k('v_lshl_add_u32 v6, v7, 5, v6')
        k('v_and_b32 v7, 3, v0')
        k('v_lshl_add_u32 v6, v7, 3, v6')
        k('v_add_u32 v%d, s%d, v6' % (V_RA, S_CB))
        k('v_mul_u32_u24 v6, 144, v0')
        k('v_add_u32 v%d, s%d, v6' % (V_WA, S_CB))
        k('v_and_b32 v6, 15, v0')
        k('v_lshlrev_b32 v6, 2, v6')
        k('v_add_u32 v6, s%d, v6' % S_CB)
        k('v_mov_b32 v7, 0')
        k('ds_write_b32 v6, v7 offset:%d' % UX)
        k('ds_write_b32 v6, v7 offset:%d' % UY)
        k('v_and_b32 v%d, 31, v0' % V_FL)
        k('v_lshlrev_b32 v%d, 7, v%d' % (V_FL, V_FL))
        k('s_mul_i32 s67, s%d, 205' % S_D)
        k('s_lshr_b32 s67, s67, 14')
        k('s_lshl_b32 s67, s67, 12')
        k('s_add_u32 s9, s67, 0x%x' % WS_FU)
        k('s_and_b32 s64, s%d, 1' % S_D)
        k('s_lshl_b32 s64, s64, 4')
        k('s_waitcnt lgkmcnt(0)')
        k('s_lshr_b32 s65, s65, s64')
        k('s_lshl_b32 s65, s65, 16')
        k('s_lshr_b32 s66, s66, s64')
        k('s_lshl_b32 s%d, s66, 16' % S_DSK)
        k('v_mov_b32 v6, s65')
        k('v_mul_f32 v6, %s, v6' % fhex(LOG2E))
        k('v_exp_f32 v6, v6')
        k('v_cvt_pk_bf16_f32 v6, v6, v6')
        k('v_lshlrev_b32 v%d, 16, v6' % V_DT)
        ACC = 16
        QF, PF = 32, 64
        X_, E1, E2, E4, E8, E256, E16C = 100, 104, 106, 108, 110, 112, 116
        T0 = 120
        PV = 160
        WB = 136
        offs = list(range(9)) + [256, 258, 260, 262, 264, 512, 516, 520, 768, 772, 776, 1024, 1032, 1280, 1288, 1536, 1544, 1792, 1800]
        pv = {o: PV + 2 * i for i, o in enumerate(offs)}
        order = [0, 1, 2, 3, 4, 5, 6, 7, 4, 256, 258, 260, 8, 260, 262, 264, 512, 516, 520, 1024, 768, 772, 776, 1536, 1032, 1280, 1288, 1288, 1544, 1792, 1800, 1800]
        def frag_reads(dst, tag):
            for s in range(8):
                for e in range(2):
                    k('ds_read_b64_tr_b16 %s, v%d offset:%d' % (vr(dst + 4 * s + 2 * e, 2), V_RA, 1152 * s + 288 * e), tag='%s%d' % (tag, s))
        def kmfma(ps, s):
            c = '0' if (ps == 0 and s == 0) else vr(ACC, 16)
            return 'v_mfma_f32_32x32x16_bf16 %s, %s, %s, %s' % (vr(ACC, 16), vr(PF + 4 * s, 4), vr(QF + 4 * s, 4), c)
        def fetch_u():
            k('v_lshlrev_b32 v8, 4, v0')
            k('s_lshl_b32 s64, s%d, 12' % S_D)
            k('s_add_u32 s65, s64, 4')
            k('s_add_u32 m0, s%d, %d' % (S_CB, UX + 64))
            for i in range(4):
                k('buffer_load_dwordx4 v8, s[%d:%d], s64 offen offset:%d sc1 lds' % (R_WS, R_WS + 3, 1024 * i), tag='u')
            k('s_add_u32 m0, s%d, %d' % (S_CB, UY + 64))
            for i in range(4):
                k('buffer_load_dwordx4 v8, s[%d:%d], s65 offen offset:%d sc1 lds' % (R_WS, R_WS + 3, 1024 * i), tag='u')
        for ps in range(3):
            k.wait(vm='par%d' % ps)
            if ps == 0: self.ts(1)
            if ps == 1: self.nonce_issue(10, 11, 'non')
            if ps == 2:
                self.nonce_get(10, 11, 'non')
                self.poll_issue(9, V_FL, 's9', 'fu')
            ar, ai, br, bi, cr, ci = [PR + 3 * a + ps for a in range(6)]
            self.pr(200 + ps, 0)
            C_ = pv[0]
            su = []
            su.append('v_mul_f32 v%d, v%d, v%d' % (X_, V_DT, ar))
            su.append('v_mul_f32 v%d, v%d, v%d' % (X_ + 1, V_DT, ai))
            su.append('v_mul_f32 v%d, %s, v%d' % (X_, fhex(LOG2E), X_))
            su.append('v_mul_f32 v%d, %s, v%d' % (X_ + 1, fhex(INV2PI), X_ + 1))
            su.append('v_rndne_f32 v%d, v%d' % (T0 + 2, X_ + 1))
            su.append('v_mul_f32 v%d, v%d, v%d' % (T0, V_DT, br))
            su.append('v_mul_f32 v%d, v%d, v%d' % (T0 + 1, V_DT, bi))
            su.append('v_sub_f32 v%d, v%d, v%d' % (X_ + 1, X_ + 1, T0 + 2))
            su.append('v_mul_f32 v%d, v%d, v%d' % (C_, cr, T0))
            su.append('v_mul_f32 v%d, v%d, v%d' % (C_ + 1, cr, T0 + 1))
            su.append('v_fma_f32 v%d, -v%d, v%d, v%d' % (C_, ci, T0 + 1, C_))
            su.append('v_fmac_f32 v%d, v%d, v%d' % (C_ + 1, ci, T0))
            for idx, (dst, p) in enumerate(((E8, 8.0), (E1, 1.0), (E256, 256.0))):
                t = T0 + 4 + 4 * idx
                if p == 1.0: m, th = X_, X_ + 1
                else:
                    su.append('v_mul_f32 v%d, %s, v%d' % (t, fhex(p), X_))
                    su.append('v_mul_f32 v%d, %s, v%d' % (t + 1, fhex(p), X_ + 1))
                    m, th = t, t + 1
                su.append('v_exp_f32 v%d, v%d' % (t + 2, m))
                su.append('v_cos_f32 v%d, v%d' % (dst, th))
                su.append('v_sin_f32 v%d, v%d' % (dst + 1, th))
            for idx, dst in enumerate((E8, E1, E256)):
                t = T0 + 4 + 4 * idx
                su.append('v_mul_f32 v%d, v%d, v%d' % (dst, dst, t + 2))
                su.append('v_mul_f32 v%d, v%d, v%d' % (dst + 1, dst + 1, t + 2))
            if ps > 0:
                step = len(su) // 8
                for i, l in enumerate(su):
                    if i % step == 0 and i // step < 8:
                        k.wait(lg='p%d' % (i // step))
                        k(kmfma(ps - 1, i // step))
                    k(l)
            else:
                emit_list(k, su)
            self.pr(200 + ps, 1)
            qa, qb = 152, E8
            E16 = E16C
            emit_list(k, self.cmul(E16, E8, E8))
            pp = [(152, 154), (156, 158)]
            for st in range(16):
                w = WB + 8 * ((st >> 2) & 1) + (st & 3)
                if st == 0:
                    k('v_cvt_pk_bf16_f32 v%d, 1.0, v%d' % (w, E8))
                    k('v_cvt_pk_bf16_f32 v%d, 0, -v%d' % (w + 4, E8 + 1))
                    continue
                na, nb = pp[st % 2]
                if st == 1:
                    na = E16; ma = []
                else: ma = self.cmul(na, qa, E16)
                mb = self.cmul(nb, qb, E16)
                for i in range(len(mb)):
                    if ma: k(ma[i])
                    k(mb[i])
                k('v_cvt_pk_bf16_f32 v%d, v%d, v%d' % (w, na, nb))
                k('v_cvt_pk_bf16_f32 v%d, -v%d, -v%d' % (w + 4, na + 1, nb + 1))
                qa, qb = na, nb
                if st & 3 == 3:
                    wb = WB + 8 * ((st >> 2) & 1)
                    k('ds_write_b128 v%d, %s offset:%d' % (V_WA, vr(wb, 4), 16 * (st >> 2)))
                    k('ds_write_b128 v%d, %s offset:%d' % (V_WA, vr(wb + 4, 4), 64 + 16 * (st >> 2)))
            self.pr(200 + ps, 2)
            frag_reads(QF, 'q')
            self.pr(200 + ps, 3)
            if ps == 2:
                self.poll(9, V_FL, 's9', first='fu')
                self.ts(2)
                fetch_u()
            def pack(g):
                wb = WB + 8 * (g & 1)
                for i in range(4):
                    a_, b_ = pv[order[8 * g + 2 * i]], pv[order[8 * g + 2 * i + 1]]
                    k('v_cvt_pk_bf16_f32 v%d, v%d, v%d' % (wb + i, a_, b_))
                    k('v_cvt_pk_bf16_f32 v%d, v%d, v%d' % (wb + 4 + i, a_ + 1, b_ + 1))
                k('ds_write_b128 v%d, %s offset:%d' % (V_WA, vr(wb, 4), 16 * g))
                k('ds_write_b128 v%d, %s offset:%d' % (V_WA, vr(wb + 4, 4), 64 + 16 * g))
            cm = lambda o, a_, e: emit_list(k, self.cmul(pv[o], pv[a_], e))
            for o in range(1, 8): cm(o, o - 1, E1)
            self.pr(200 + ps, 4)
            pack(0)
            self.pr(200 + ps, 5)
            emit_list(k, self.cmul(E2, E1, E1))
            cm(8, 7, E1); cm(256, 0, E256)
            for o in (258, 260, 262, 264): cm(o, o - 2, E2)
            pack(1)
            emit_list(k, self.cmul(E4, E2, E2))
            for o in (512, 768, 1024, 1280, 1536): cm(o, o - 256, E256)
            cm(516, 512, E4); cm(520, 512, E8); cm(772, 768, E4); cm(776, 768, E8)
            pack(2)
            cm(1792, 1536, E256)
            for o in (1032, 1288, 1544, 1800): cm(o, o - 8, E8)
            pack(3)
            self.pr(200 + ps, 6)
            frag_reads(PF, 'p')
            self.pr(200 + ps, 7)
        ex = []
        ex += ['v_and_b32 v6, 31, v0', 'v_lshrrev_b32 v7, 5, v0', 'v_lshlrev_b32 v8, 4, v6', 'v_sub_u32 v8, s%d, v8' % S_CB,
               'v_lshlrev_b32 v9, 3, v7', 'v_sub_u32 v9, v8, v9', 'v_add_u32 v9, 504, v9',
               'v_lshlrev_b32 v10, 9, v7', 'v_sub_u32 v10, v8, v10', 'v_add_u32 v10, 1008, v10',
               'v_lshlrev_b32 v11, 10, v7', 'v_sub_u32 v11, v8, v11', 'v_add_u32 v11, 1520, v11',
               'v_add_u32 v12, %d, v9' % (KO + 4084 - 504), 'v_add_u32 v13, %d, v9' % (KO + 4084 - 512 - 504),
               'v_and_b32 v6, 1, v0', 'v_cmp_eq_u32 vcc, 1, v6',
               'v_min_u32 v14, 27, v0', 'v_lshlrev_b32 v14, 4, v14', 'v_add_u32 v14, s%d, v14' % S_CB]
        ex += ['v_mov_b32 v%d, 0' % (96 + i) for i in range(4)]
        V_A, V_B = 2, 3
        ex += ['v_and_b32 v6, 15, v0', 'v_lshrrev_b32 v7, 4, v0', 'v_lshlrev_b32 v7, 4, v7', 'v_add_u32 v7, s%d, v7' % S_CB,
               'v_lshrrev_b32 v8, 1, v6', 'v_lshlrev_b32 v8, 6, v8', 'v_sub_u32 v8, v7, v8',
               'v_mov_b32 v102, %d' % (448 + KO), 'v_mov_b32 v103, 448', 'v_cndmask_b32 v102, v102, v103, vcc', 'v_add_u32 v%d, v8, v102' % V_A,
               'v_lshl_add_u32 v8, v6, 2, v7', 'v_mov_b32 v102, %d' % UY, 'v_mov_b32 v103, %d' % (UX + 4),
               'v_cndmask_b32 v102, v102, v103, vcc', 'v_add_u32 v%d, v8, v102' % V_B, 'v_mov_b32 v15, s%d' % S_CB]
        emit_list(k, ex[:9]); ex = ex[9:]
        for s in range(8):
            k.wait(lg='p%d' % s)
            k(kmfma(2, s))
            emit_list(k, ex[:5]); ex = ex[5:]
        emit_list(k, ex)
        k('ds_write_b128 v14, v[96:99] offset:4096')
        k('ds_write_b128 v14, v[96:99] offset:%d' % (KO + 4096))
        self.ts(3)
        V = lambda r: ACC + r
        pk = lambda d, lo, hi: k('v_cvt_pk_bf16_f32 v%d, v%d, v%d' % (d, lo, hi))
        k('v_cndmask_b32 v100, v%d, v%d, vcc' % (V(11), V(12)))
        k('v_cndmask_b32 v101, v%d, v%d, vcc' % (V(13), V(14)))
        pk(32, V(3), V(2)); pk(33, V(1), V(0))
        pk(34, V(7), V(6)); pk(35, V(5), V(5))
        pk(36, V(10), V(10)); pk(37, V(9), V(9)); pk(38, V(9), V(8)); pk(39, V(8), V(8))
        pk(40, V(10), V(9)); k('v_mov_b32 v41, v37'); k('v_mov_b32 v42, v39'); k('v_mov_b32 v43, v39')
        for (lo, hi, T, off, rb) in ((11, 12, 100, 2032, 44), (13, 14, 101, 1520, 52)):
            pk(rb, V(hi), V(hi)); pk(rb + 1, V(hi), T); pk(rb + 2, V(lo), V(lo)); k('v_mov_b32 v%d, v%d' % (rb + 3, rb + 2))
            k('v_mov_b32 v%d, v%d' % (rb + 4, rb)); pk(rb + 5, T, V(lo)); k('v_mov_b32 v%d, v%d' % (rb + 6, rb + 2)); k('v_mov_b32 v%d, v%d' % (rb + 7, rb + 2))
        pk(60, V(4), V(3)); pk(61, V(2), V(1))
        pk(62, V(7), V(7)); pk(63, V(6), V(5))
        pk(102, V(0), 96)
        k('ds_write_b64 v9, v[32:33] offset:%d' % (4088 - 504))
        k('ds_write_b64 v9, v[34:35] offset:%d' % (4088 - 512 - 504))
        k('ds_write2_b32 v12, v60, v61 offset0:0 offset1:1')
        k('ds_write2_b32 v13, v62, v63 offset0:0 offset1:1')
        k('ds_write_b128 v10, v[36:39] offset:%d' % (3056 - 1008))
        k('ds_write_b128 v10, v[40:43] offset:%d' % (KO + 3056 - 1008))
        for (off, rb) in ((2032, 44), (1520, 52)):
            k('ds_write_b128 v11, %s offset:%d' % (vr(rb, 4), off - 1520))
            k('ds_write_b128 v11, %s offset:%d' % (vr(rb + 4, 4), KO + off - 1520))
        k.wait(vm='u')
        k('ds_read_b32 v103, v15 offset:%d' % (UX + 64), tag='fx')
        k('s_mov_b64 exec, 1')
        k('ds_write_b32 v15, v102 offset:%d' % (KO + 4092))
        k.wait(lg='fx')
        k('ds_write_b32 v15, v103 offset:%d' % (UY + 60))
        k('s_mov_b64 exec, -1')
        Y = 16
        FB = [64, 128]
        def reads(sg):
            fb = FB[sg % 2]
            out = []
            for c in range(8):
                out.append('ds_read_b128 %s, v%d offset:%d' % (vr(fb + 4 * c, 4), V_A, 4032 - 512 * c - 64 * sg))
                out.append('ds_read_b64 %s, v%d offset:%d' % (vr(fb + 32 + 4 * c, 2), V_B, 448 - 64 * sg + 512 * c))
                out.append('ds_read_b64 %s, v%d offset:%d' % (vr(fb + 34 + 4 * c, 2), V_B, 448 - 64 * sg + 512 * c + 8))
            return out
        self.ts(4)
        for l in reads(0): k(l)
        pairs = [(c, m) for c in range(8) for m in range(8 - c)]
        SK = 192
        fin = ['v_and_b32 v6, 15, v0', 'v_lshrrev_b32 v7, 4, v0', 'v_lshl_add_u32 v6, v7, 5, v6', 'v_lshlrev_b32 v6, 2, v6',
               'v_add_u32 v6, s%d, v6' % S_CB, 'v_lshlrev_b32 v8, 4, v0', 'v_add_u32 v7, s%d, v8' % S_CB]
        UR = 48
        skip = []
        for i in range(16):
            t = SK + 2 * i
            skip += ['v_lshlrev_b32 v%d, 16, v%d' % (t, UR + i), 'v_and_b32 v%d, 0xffff0000, v%d' % (t + 1, UR + i),
                     'v_mul_f32 v%d, s%d, v%d' % (t, S_DSK, t), 'v_mul_f32 v%d, s%d, v%d' % (t + 1, S_DSK, t + 1),
                     'v_cvt_pk_bf16_f32 v%d, v%d, v%d' % (t + 1, t, t + 1),
                     'v_lshlrev_b32 v%d, 16, v%d' % (t, t + 1), 'v_and_b32 v%d, 0xffff0000, v%d' % (t + 1, t + 1)]
        for sg in range(8):
            k.wait(lg='all')
            if opt.get('cpat'):
                k('s_setprio %d' % (2 if (opt['cpat'] >> sg) & 1 else 0))
            fb = FB[sg % 2]
            nx = reads(sg + 1) if sg < 7 else []
            if sg == 0:
                nx = nx + fin + ['ds_read_b128 %s, v7 offset:%d' % (vr(UR + 4 * z, 4), UX + 64 + 1024 * z) for z in range(4)]
            else:
                take = 12 if sg < 7 else 40
                nx = nx + skip[:take]; skip = skip[take:]
            for i, (c, m) in enumerate(pairs):
                cc = '0' if (sg == 0 and c == 0) else vr(Y + 4 * (c + m), 4)
                k('v_mfma_f32_16x16x32_bf16 %s, %s, %s, %s' % (vr(Y + 4 * (c + m), 4), vr(fb + 4 * c, 4), vr(fb + 32 + 4 * m, 4), cc))
                if nx: k(nx.pop(0))
            emit_list(k, nx)
        assert not skip
        self.ts(5)
        for i in range(8):
            for rr in range(2):
                pk(64 + 2 * i + rr, Y + 4 * i + 2 * rr, Y + 4 * i + 2 * rr + 1)
        for i in range(8):
            k('ds_write2_b32 v6, v%d, v%d offset0:%d offset1:%d' % (64 + 2 * i, 65 + 2 * i, (128 * i) % 256, (128 * i) % 256 + 16))
            if i % 2 == 1 and i < 7: k('v_add_u32 v6, 1024, v6')
        for z in range(4):
            k('ds_read_b128 %s, v7 offset:%d' % (vr(80 + 4 * z, 4), 1024 * z), tag='fy%d' % z)
        k('s_lshl_b32 s64, s%d, 12' % S_D)
        k('s_add_u32 s64, s64, 0x%x' % WS_AT)
        for z in range(4):
            k.wait(lg='fy%d' % z)
            for e in range(4):
                y_ = 80 + 4 * z + e; t = 112; s_ = SK + 2 * (4 * z + e)
                k('v_lshlrev_b32 v%d, 16, v%d' % (t, y_))
                k('v_and_b32 v%d, 0xffff0000, v%d' % (t + 1, y_))
                k('v_add_f32 v%d, v%d, v%d' % (t, t, s_))
                k('v_add_f32 v%d, v%d, v%d' % (t + 1, t + 1, s_ + 1))
                k('v_cvt_pk_bf16_f32 v%d, v%d, v%d' % (128 + 4 * z + e, t, t + 1))
            k('buffer_store_dwordx4 %s, v8, s[%d:%d], s64 offen offset:%d sc1' % (vr(128 + 4 * z, 4), R_WS, R_WS + 3, 1024 * z))
        k('s_lshl_b32 s64, s%d, 7' % S_D)
        k('s_add_u32 s64, s64, 0x%x' % WS_FA)
        self.ts(6)
        k.wait(vm='all')
        self.flag_store(9, 10, 's64')
        self.ts(7)
        self.ts_store()
        k('s_endpgm')

    def build(self):
        import gemm2
        k = self.k
        self.prologue()
        self.misc()
        self.chan()
        k.reset_counts()
        k.label('L_gemm')
        if self.opt.get('nogemm'): k('s_endpgm')
        else: gemm2.emit(self)
        k.label('L_end')
        k('s_endpgm')
        hdr = open('gated_mix__ssm_conv_s4__dense_activation_silu__prompt.s.ref').read().split('; Override launch')[0]
        s = hdr + '; @launch grid=(512,1,1) block=(256,1,1) lds=81920\n'
        s += '.amdgcn_target "amdgcn-amd-amdhsa--gfx950"\n.text\n.globl %s\n.p2align 8\n.type %s,@function\n%s:\n' % (KNAME, KNAME, KNAME)
        s += k.text()
        s += '.section .rodata,"a"\n.p2align 6\n.amdhsa_kernel %s\n' % KNAME
        s += '  .amdhsa_next_free_vgpr 256\n  .amdhsa_next_free_sgpr 102\n  .amdhsa_accum_offset 256\n  .amdhsa_group_segment_fixed_size 0\n'
        s += '  .amdhsa_kernarg_size 128\n  .amdhsa_user_sgpr_count 2\n  .amdhsa_user_sgpr_kernarg_segment_ptr 1\n  .amdhsa_system_sgpr_workgroup_id_x 1\n.end_amdhsa_kernel\n'
        return s

if __name__ == '__main__':
    opt = {}
    out = sys.argv[1]
    for a in sys.argv[2:]:
        if '=' in a:
            kk, v = a.split('='); opt[kk] = int(v, 0)
        else: opt[a] = 1
    g = Gen(opt)
    open(out, 'w').write(g.build())
    print('nops inserted', g.k.nops, 'lines', len(g.k.items))
```

```python
from kgen import *
from gen7 import *

def emit(G):
    k = G.k
    opt = G.opt
    S_TAU, S_PHI = 12, 13
    S_HB, S_FH = 14, 15
    S_LW = 9
    S_XZ, S_WZ = 68, 73
    S_HS = 11
    VX, VW = 2, 6
    k('v_lshrrev_b32 v10, 4, v0')
    k('v_and_b32 v11, 15, v0')
    k('s_lshl_b32 s64, s%d, 4' % S_WAVE)
    for n in range(4):
        k('v_add_u32 v12, %d, v10' % (4 * n))
        k('v_xor_b32 v13, v11, v12')
        k('v_add_u32 v12, s64, v12')
        k('v_mul_u32_u24 v12, 1280, v12')
        k('v_lshl_add_u32 v12, v13, 4, v12')
        k('v_subrev_u32 v%d, %d, v12' % (VX + n, 1024 * n))
    k('v_lshrrev_b32 v12, 3, v0')
    k('s_lshl_b32 s64, s%d, 5' % S_WAVE)
    k('v_add_u32 v12, s64, v12')
    k('v_mul_u32_u24 v12, 3072, v12')
    k('v_and_b32 v13, 7, v0')
    k('v_and_b32 v14, 1, v10')
    k('v_lshlrev_b32 v14, 2, v14')
    k('v_xor_b32 v13, v13, v14')
    k('v_lshl_add_u32 v%d, v13, 4, v12' % VW)
    for n in range(1, 4):
        k('v_add_u32 v%d, %d, v%d' % (VW + n, n * (8 * 3072 - 1024), VW))
    k('s_mul_i32 s64, s%d, %d' % (S_RHO, 64 * 1280))
    k('s_mul_i32 s65, s%d, 384' % S_J)
    S_G0 = 60
    if opt.get('grot'):
        k('s_and_b32 s66, s%d, 7' % S_RHO)
        k('s_mul_i32 s67, s66, 43')
        k('s_lshr_b32 s67, s67, 7')
        k('s_mul_i32 s%d, s67, 3' % S_G0)
        k('s_sub_u32 s%d, s66, s%d' % (S_G0, S_G0))
        k('s_and_b32 s66, s%d, 3' % S_J)
        k('s_lshl1_add_u32 s66, s67, s66')
        k('s_sub_u32 s67, s66, 5')
        k('s_cmp_ge_u32 s66, 5')
        k('s_cselect_b32 s66, s67, s66')
        k('s_lshl_b32 s67, s%d, 7' % S_G0)
        k('s_add_u32 s65, s65, s67')
    elif opt.get('krot'):
        k('s_mov_b32 s%d, 0' % S_G0)
        k('s_add_u32 s66, s%d, s%d' % (S_RHO, S_J))
        k('s_mul_i32 s67, s66, 205')
        k('s_lshr_b32 s67, s67, 10')
        k('s_mul_i32 s67, s67, 5')
        k('s_sub_u32 s66, s66, s67')
    else:
        k('s_mov_b32 s%d, 0' % S_G0)
        k('s_mov_b32 s66, 0')
    for z in range(5):
        k('s_lshl_b32 s67, s66, 8')
        k('s_add_u32 s%d, s64, s67' % (S_XZ + z))
        k('s_mul_i32 s67, s66, %d' % (128 * 3072))
        k('s_add_u32 s%d, s65, s67' % (S_WZ + z))
        if z < 4:
            k('s_add_u32 s66, s66, 1')
            k('s_cmp_eq_u32 s66, 5')
            k('s_cselect_b32 s66, 0, s66')
    k('s_lshl_b32 s%d, s%d, 12' % (S_LW, S_WAVE))
    G.srd_tail(R_W, 640 * 1536 * 2)
    seq = []
    seq = [('X', z, 0) for z in range(5)] + [('W', z, 0) for z in range(5)]
    for r in (1, 2):
        for z in range(5): seq.append(('W', z, r))
    def dma(i):
        typ, z, r = seq[i]
        out = ['s_add_u32 m0, s%d, %d' % (S_LW, 16384 * (i % 5))]
        so = S_XZ + z if typ == 'X' else S_WZ + z
        if typ == 'W' and r > 0: out.append('s_add_u32 s%d, s%d, s%d' % (so, so, 17 + r))
        rr = R_U if typ == 'X' else R_W
        for n in range(4):
            out.append(('buffer_load_dwordx4 v%d, s[%d:%d], s%d offen offset:%d lds' % ((VX if typ == 'X' else VW) + n, rr, rr + 3, so, 1024 * n), 'S%d' % i))
        return out
    def touch_w1(vt):
        o = ['v_min_u32 v%d, 59, v0' % vt, 'v_mul_u32_u24 v%d, 43, v%d' % (vt + 1, vt), 'v_lshrrev_b32 v%d, 9, v%d' % (vt + 1, vt + 1),
             'v_mul_u32_u24 v%d, %d, v%d' % (vt + 1, 3072 - 128 * 12, vt + 1), 'v_lshl_add_u32 v%d, v%d, 7, v%d' % (vt, vt, vt + 1),
             's_bfe_u32 s78, s2, 0x50003', 's_bfe_u32 s79, s2, 0x20001', 's_lshl_b32 s79, s79, 5', 's_add_u32 s78, s78, s79',
             's_mul_i32 s78, s78, %d' % (5 * 3072), 's_and_b32 s79, s2, 1', 's_mul_i32 s79, s79, %d' % (128 * 12), 's_add_u32 s78, s78, s79']
        return o
    def touch_go(vt):
        L = k.newlabel('L_nt')
        k('s_cmp_lg_u32 s%d, 0' % S_WAVE)
        k('s_cbranch_scc1 %s' % L)
        k('buffer_load_dword v%d, v%d, s[%d:%d], s78 offen' % (vt + 1, vt, R_W, R_W + 3)); k.vm.pop()
        k.label(L)
    PF = opt.get('pf1', -1)
    if PF >= 0: emit_list(k, touch_w1(30))
    k('s_waitcnt lgkmcnt(0)')
    G.ets(3)
    G.srd_base(R_U, P_U)
    G.srd_base(R_W, P_W1)
    if opt.get('gdelay'): k('s_sleep %d' % opt['gdelay'])
    LA_ = opt.get('la', 4)
    NPRE = min(opt.get('npre', 3), LA_ + 1)
    for i in range(NPRE):
        if i == PF: touch_go(30)
        emit_list(k, dma(i))
    if PF == NPRE: touch_go(30)
    G.ets(4)
    G.cut('gemm_main')
    G.ts_init()
    if opt.get('gprio'): k('s_setprio %d' % opt['gprio'])
    G.srd_base(R_WS, P_WS)
    S_GR = 20
    k('s_mov_b32 s20, s%d' % S_G0)
    for r in (1, 2):
        k('s_add_u32 s%d, s%d, 1' % (20 + r, 19 + r))
        k('s_cmp_eq_u32 s%d, 3' % (20 + r))
        k('s_cselect_b32 s%d, 0, s%d' % (20 + r, 20 + r))
        k('s_cselect_b32 s%d, -256, 128' % (17 + r)) if False else None
        k('s_sub_u32 s%d, s%d, s%d' % (17 + r, 20 + r, 19 + r))
        k('s_lshl_b32 s%d, s%d, 7' % (17 + r, 17 + r))
    G.srd_base(R_O, P_OUT); G.srd_tail(R_O, 2048 * 640 * 2)
    k('s_and_b32 s%d, s%d, 1' % (S_TAU, S_WAVE))
    k('s_lshr_b32 s%d, s%d, 1' % (S_PHI, S_WAVE))
    XA = 16
    WA, WAH, VH = 24, 25, 26
    k('v_and_b32 v12, 31, v0')
    k('v_lshrrev_b32 v13, 5, v0')
    k('s_lshl_b32 s64, s%d, 13' % S_TAU)
    k('v_xor_b32 v14, v13, v11')
    k('v_lshlrev_b32 v14, 4, v14')
    k('v_lshl_add_u32 v14, v12, 8, v14')
    k('v_add_u32 v%d, s64, v14' % XA)
    for s in range(1, 8): k('v_xor_b32 v%d, %d, v%d' % (XA + s, 32 * s, XA))
    k('v_bfe_u32 v14, v0, 2, 2')
    k('v_lshl_add_u32 v15, v13, 3, v14')
    k('v_lshlrev_b32 v15, 7, v15')
    k('v_and_b32 v27, 1, v10')
    k('v_bfe_u32 v28, v0, 1, 1')
    k('v_lshl_add_u32 v27, v27, 1, v28')
    k('s_lshl_b32 s64, s%d, 2' % S_PHI)
    k('v_add_u32 v27, s64, v27')
    k('v_lshrrev_b32 v14, 1, v14')
    k('v_lshlrev_b32 v14, 2, v14')
    k('v_xor_b32 v27, v27, v14')
    k('v_lshl_add_u32 v15, v27, 4, v15')
    k('v_and_b32 v27, 1, v0')
    k('v_lshl_add_u32 v%d, v27, 3, v15' % WA)
    k('v_add_u32 v%d, 0x10000, v%d' % (WAH, WA))
    k('v_lshrrev_b32 v14, 4, v12')
    k('s_lshl_b32 s64, s%d, 1' % S_TAU)
    k('v_add_u32 v14, s64, v14')
    k('v_lshlrev_b32 v14, 10, v14')
    k('v_lshl_add_u32 v15, v13, 4, v11')
    k('v_lshl_add_u32 v%d, v15, 4, v14' % VH)
    k('s_mul_i32 s%d, s%d, %d' % (S_HB, S_RHO, 48 * 4096))
    k('s_add_u32 s%d, s%d, 0x%x' % (S_HB, S_HB, WS_H))
    k('s_mul_i32 s66, s%d, 6' % S_J)
    k('s_add_u32 s66, s66, s%d' % S_PHI)
    k('s_lshl_b32 s66, s66, 12')
    k('s_add_u32 s%d, s66, s%d' % (S_HS, S_HB))
    k('s_mul_i32 s66, s%d, 1536' % S_RHO)
    k('s_add_u32 s66, s66, 0x%x' % WS_FH)
    k('s_mul_i32 s67, s%d, 384' % S_WAVE)
    k('s_add_u32 s26, s66, s67')
    k('s_lshr_b32 s67, s%d, 1' % S_J)
    k('s_mul_i32 s67, s67, 384')
    k('s_add_u32 s66, s66, s67')
    k('s_and_b32 s67, s%d, 1' % S_J)
    k('s_lshl2_add_u32 s67, s67, s%d' % S_WAVE)
    k('s_lshl2_add_u32 s%d, s67, s66' % S_FH)
    S_W0, S_H0, S_FA, S_AT, S_GG, S_FWb, S_AD = 24, 25, 28, 29, 30, 31, 34
    k('s_mul_i32 s64, s%d, %d' % (S_J, 48 * 5120))
    k('s_mul_i32 s65, s%d, %d' % (S_WAVE, 12 * 5120))
    k('s_add_u32 s64, s64, s65')
    k('s_add_u32 s%d, s64, 0x%x' % (S_W0, WS_W2P))
    k('s_mul_i32 s64, s%d, %d' % (S_WAVE, 12 * 4096))
    k('s_add_u32 s%d, s64, s%d' % (S_H0, S_HB))
    k('s_mul_i32 s64, s%d, %d' % (S_J, 10 * 128))
    k('s_add_u32 s%d, s64, 0x%x' % (S_FA, WS_FA))
    k('s_mul_i32 s64, s%d, %d' % (S_J, 80 * 4096))
    k('s_lshl_b32 s65, s%d, 7' % S_RHO)
    k('s_add_u32 s64, s64, s65')
    k('s_add_u32 s%d, s64, 0x%x' % (S_AT, WS_AT))
    k('s_lshl2_add_u32 s64, s%d, s%d' % (S_RHO, S_WAVE))
    k('s_lshl_b32 s64, s64, 7')
    k('s_add_u32 s%d, s64, 0x%x' % (S_GG, WS_G))
    k('s_mul_i32 s64, s%d, 5' % S_J)
    k('s_lshr_b32 s65, s64, 3')
    k('s_add_u32 s64, s64, 4')
    k('s_lshr_b32 s64, s64, 3')
    k('s_sub_u32 s64, s64, s65')
    k('s_lshl_b32 s64, s64, 8')
    k('s_lshl_b32 s65, s65, 8')
    k('s_mul_i32 s66, s%d, 48' % S_WAVE)
    k('s_add_u32 s65, s65, s66')
    k('s_add_u32 s%d, s65, 0x%x' % (S_FWb, WS_FW))
    VFW = 27
    k('v_min_u32 v%d, 11, v11' % VFW)
    k('v_lshlrev_b32 v%d, 2, v%d' % (VFW, VFW))
    k('v_and_b32 v14, 1, v10')
    k('v_mul_u32_u24 v14, s64, v14')
    k('v_add_u32 v%d, v%d, v14' % (VFW, VFW))
    k('s_mov_b32 s%d, 0' % S_AD)
    GSV = 40
    for r in range(3): k('s_mov_b32 s%d, s%d' % (GSV + r, 20 + r))
    FA, FBs = 32, 48
    ACC = [64, 80, 64]
    XF = 96
    def wread(i, half, s):
        base = 16384 * (i % 5)
        reg = WAH if base >= 65536 else WA
        off = base & 0xffff
        fs = FA if half == 0 else FBs
        return [('ds_read_b64_tr_b16 %s, v%d offset:%d' % (vr(fs + 4 * s + 2 * e, 2), reg, off + (4 * half + s) * 2048 + 512 * e), 'w%d%d' % (half, s)) for e in range(2)]
    def mfma(i, half, s):
        typ, z, r = seq[i]
        fs = FA if half == 0 else FBs
        c = '0' if (z == 0 and half == 0 and s == 0) else vr(ACC[r], 16)
        return 'v_mfma_f32_32x32x16_bf16 %s, %s, %s, %s' % (vr(ACC[r], 16), vr(fs + 4 * s, 4), vr(XF + 4 * (8 * z + 4 * half + s), 4), c)
    NL2 = fhex(-LOG2E)
    def epi(r):
        a = ACC[r]
        out = []
        for p in range(8):
            t = 10 if p % 2 == 0 else 28
            if opt.get('fastsilu'):
                x0, x1 = a + 2 * p, a + 2 * p + 1
            else:
                x0, x1 = t, t + 1
                out += ['v_cvt_pk_bf16_f32 v%d, v%d, v%d' % (t + 2, a + 2 * p, a + 2 * p + 1),
                        'v_lshlrev_b32 v%d, 16, v%d' % (t, t + 2),
                        'v_and_b32 v%d, 0xffff0000, v%d' % (t + 1, t + 2)]
            out += ['v_mul_f32 v%d, %s, v%d' % (t + 2, NL2, x0),
                    'v_mul_f32 v%d, %s, v%d' % (t + 3, NL2, x1),
                    'v_exp_f32 v%d, v%d' % (t + 2, t + 2),
                    'v_exp_f32 v%d, v%d' % (t + 3, t + 3),
                    'v_add_f32 v%d, 1.0, v%d' % (t + 2, t + 2),
                    'v_add_f32 v%d, 1.0, v%d' % (t + 3, t + 3),
                    'v_rcp_f32 v%d, v%d' % (t + 2, t + 2),
                    'v_rcp_f32 v%d, v%d' % (t + 3, t + 3),
                    'v_mul_f32 v%d, v%d, v%d' % (t + 2, x0, t + 2),
                    'v_mul_f32 v%d, v%d, v%d' % (t + 3, x1, t + 3),
                    'v_cvt_pk_bf16_f32 v%d, v%d, v%d' % (a + p, t + 2, t + 3)]
            if p in (3, 7):
                s = p >> 2
                if s == 0: out += ['s_lshl_b32 s66, s%d, 13' % (GSV + r), 's_add_u32 s66, s66, s%d' % S_HS]
                out.append(('buffer_store_dwordx4 %s, v%d, s[%d:%d], s66 offen offset:%d sc1' % (vr(a + 4 * s, 4), VH, R_WS, R_WS + 3, 512 * s), 'hst%d' % r))
        return out
    def hflag(r):
        k('s_add_u32 s67, s%d, %d' % (S_FH, 128 * r))
        G.flag_store_rep(14, 15, 's67', FH_RS)
    VL, VL4, VT = 16, 17, 18
    VFH, VPW = 22, 23
    WD, HD = opt.get('wdepth', 4), opt.get('hdepth', 2)
    assert 5 * WD + 4 * HD <= 36
    Wr = lambda st, sub: XF + 4 * (5 * (st % WD) + sub)
    Hr = lambda st, T: XF + 4 * (5 * WD + 4 * (st % HD) + T)
    def kap(st):
        rank, p, ph = st >> 2, (st >> 1) & 1, st & 1
        return 6 * p + ph
    def g2_setup():
        o = ['v_lshlrev_b32 v%d, 4, v0' % VL, 'v_add_u32 v%d, 0x1000, v%d' % (VL4, VL)]
        for T in range(4):
            o += ['s_xor_b32 s65, s%d, %d' % (S_WAVE, T), 's_lshl_b32 s65, s65, 10', 'v_add_u32 v%d, s65, v%d' % (VT + T, VL)]
        o += ['v_and_b32 v%d, 7, v0' % VFH, 'v_lshlrev_b32 v%d, 2, v%d' % (VFH, VFH)]
        return o
    GS2 = GSV
    def wload(st):
        o = ['s_mul_i32 s64, s%d, 10240' % (GS2 + (st >> 2)), 's_add_u32 s64, s64, s%d' % S_W0, 's_add_u32 s64, s64, %d' % (kap(st) * 5120)]
        for sub in range(5):
            o.append(('buffer_load_dwordx4 %s, v%d, s[%d:%d], s64 offen offset:%d sc1' % (vr(Wr(st, sub), 4), VL4 if sub == 4 else VL, R_WS, R_WS + 3, 1024 * (sub % 4)), 'W%d' % st))
        return o
    def hloads(st):
        o = ['s_lshl_b32 s65, s%d, 13' % (GS2 + (st >> 2)), 's_add_u32 s65, s65, s%d' % S_H0, 's_add_u32 s65, s65, %d' % (kap(st) * 4096)]
        for T in range(4):
            o.append(('buffer_load_dwordx4 %s, v%d, s[%d:%d], s65 offen sc1' % (vr(Hr(st, T), 4), VT + T, R_WS, R_WS + 3), 'H%d' % st))
        return o
    def take(q, n):
        o = q[:n]; del q[:n]; return o
    def h_issue():
        k('s_load_dwordx8 s[16:23], s[%d:%d], s36' % (R_WS, R_WS + 1))
    def sflag_issue(rank):
        k('s_add_u32 s27, s26, %d' % (128 * rank))
        k('s_mov_b32 s36, s27')
        h_issue()
        k('s_add_u32 s36, s36, %d' % FH_RS)
        k('s_add_u32 s37, s27, %d' % (NREP * FH_RS))
    def sflag_check(rank):
        D = k.newlabel('L_sf_ok')
        k('s_waitcnt lgkmcnt(0)')
        G.s_allok(16, 8)
        k('s_cbranch_scc0 %s' % D)
        G.spoll_loop(h_issue, 16, 8, 36, 37, FH_RS, lambda: G.poll(9, VFH, 's27'))
        k.label(D)
    epq = []; mq = []
    LA0 = opt.get('la0', LA_)
    GB = opt.get('gapb', 28)
    st8 = {'n': NPRE, 'w': 0}
    PWAT = opt.get('pwat', 12)
    def cost(f):
        t = f[0] if isinstance(f, tuple) else f
        return 8 if t.startswith(('v_exp', 'v_rcp')) else 4
    def gap(used):
        nv = 0
        while mq and nv < 2:
            f = mq.pop(0); emit_list(k, [f]); used += 4
            if isinstance(f, tuple): nv += 1
        while epq and used + cost(epq[0]) <= GB:
            f = epq.pop(0); emit_list(k, [f]); used += cost(f)
    def sync(i, lg):
        emit_list(k, take(mq, 1000))
        k.wait(vm='S%d' % i, lg=lg)
        k('s_barrier')
        if i < 10: G.pr(301, i)
        if i >= 10: G.pr(302, i - 10)
        if i == 0: G.ts(1)
        if i == 10: G.ts(2)
        if i == 15: G.ts(3)
    def refill(upto):
        while st8['n'] < 20 and st8['n'] <= upto:
            if st8['n'] == PF: touch_go(30)
            mq.extend(dma(st8['n'])); st8['n'] += 1
    for i in range(5):
        sync(i, 'all' if i else None)
        base = 16384 * i
        for s in range(8):
            if base >= 65536:
                k('v_add_u32 v%d, 0x10000, v%d' % (10 + s % 4, XA + s))
                k('ds_read_b128 %s, v%d' % (vr(XF + 4 * (8 * i + s), 4), 10 + s % 4))
            else:
                k('ds_read_b128 %s, v%d offset:%d' % (vr(XF + 4 * (8 * i + s), 4), XA + s, base))
        if i == 3: mq.extend(['v_mov_b32 v15, 0', ('global_load_dword v14, v15, s[%d:%d] sc1' % (P_DBG, P_DBG + 1), 'non')])
        refill(i + LA0)
    emit_list(k, take(mq, 1000))
    emit_list(k, g2_setup())
    sync(5, 'all')
    refill(5 + LA0)
    pend = None
    for i in range(5, 20):
        typ, z, r = seq[i]
        for s in range(4):
            used = 8
            if pend is not None:
                k.wait(lg='w1%d' % s); k(pend[s]); used += 4
            emit_list(k, wread(i, 0, s))
            gap(used)
        if z == 0 and r > 0: epq.extend(epi(r - 1))
        if r == 2 and z >= 1:
            if z == 1 and not opt.get('noa'): G.poll(VPW, VFW, 's%d' % S_FWb, first='pw')
            while st8['w'] < WD and 5 * (st8['w'] + 1) <= 8 * z:
                mq.extend(wload(st8['w'])); st8['w'] += 1
        for s in range(4):
            k.wait(lg='w0%d' % s)
            k(mfma(i, 0, s))
            if s < 2:
                emit_list(k, wread(i, 1, 2 * s) + wread(i, 1, 2 * s + 1))
                gap(20 if (z or s) else 1000)
            elif s == 2:
                if i < 19:
                    sync(i + 1, None)
                    if i + 1 == PWAT: mq.append(('buffer_load_dword v%d, v%d, s[%d:%d], s%d offen sc1' % (VPW, VFW, R_WS, R_WS + 3, S_FWb), 'pw'))
                    refill(i + min(LA0 + 1 if i < opt.get('la0end', 7) else LA_, 4))
                    if i == 8:
                        G.nonce_get(14, 15, 'non')
                        k('s_mov_b32 s0, s%d' % S_NONCE); k('s_mov_b32 s1, s%d' % S_NONCE)
                    if i + 1 == opt.get('f0at', 16):
                        k.wait(vm='hst0'); hflag(0)
                else: gap(4)
            else:
                gap(4)
        pend = [mfma(i, 1, s) for s in range(4)]
        if i in (14, 19): emit_list(k, take(epq, 1000))
    wnext = st8['w']
    emit_list(k, take(mq, 1000))
    k.wait(lg='all')
    k(pend[0])
    k('s_barrier')
    for s in range(1, 4): k(pend[s])
    while wnext < WD:
        emit_list(k, wload(wnext)); wnext += 1
    G.ts(4)
    if opt.get('f1early'):
        k.wait(vm='hst1'); hflag(1)
    epq = epi(2)
    E2A, E2B = opt.get('e2a', 10), opt.get('e2b', 60)
    emit_list(k, take(epq, E2A))
    sflag_issue(0)
    emit_list(k, take(epq, E2B))
    sflag_check(0)
    for st in range(HD): emit_list(k, hloads(st))
    if not opt.get('f1early'):
        k.wait(vm='hst1'); hflag(1)
    emit_list(k, take(epq, 1000))
    G.ts(5)
    accs = [32 + 4 * i for i in range(16)] + [240 + 4 * i for i in range(4)]
    A2 = lambda T, sub: accs[5 * T + sub]
    LA = 61440
    LO = 71680
    V_FA, V_AD, V_G, V_AR, V_OW, V_OR, V_OS = 2, 3, 4, 5, 6, 7, 10
    V_PW, V_PR = 24, 27
    su = ['v_lshrrev_b32 v10, 3, v0', 'v_min_u32 v11, 2, v10', 'v_lshlrev_b32 v11, 2, v11', 'v_add_u32 v11, s%d, v11' % S_WAVE,
          'v_min_u32 v11, 9, v11', 'v_and_b32 v12, 7, v0', 'v_lshl_add_u32 v11, v11, 5, v12', 'v_lshlrev_b32 v%d, 2, v11' % V_FA,
          's_lshl_b32 s38, s%d, 7' % S_WAVE, 's_add_u32 s38, s38, s%d' % S_FA, 's_add_u32 s39, s38, %d' % (NREP * FA_RS),
          's_cmp_lt_u32 s%d, 2' % S_WAVE, 's_cselect_b32 s33, 1024, 0',
          'v_lshlrev_b32 v10, 12, v10', 'v_lshl_add_u32 v%d, v12, 4, v10' % V_AD,
          'v_and_b32 v13, 15, v0', 'v_lshlrev_b32 v%d, 3, v13' % V_G,
          'v_lshrrev_b32 v10, 2, v0', 'v_and_b32 v11, 3, v0', 'v_lshlrev_b32 v10, 7, v10', 'v_lshl_add_u32 v10, v11, 3, v10',
          's_lshl_b32 s66, s%d, 5' % S_WAVE, 's_add_u32 s66, s66, %d' % LA, 'v_add_u32 v%d, s66, v10' % V_AR,
          's_mul_i32 s66, s%d, 2560' % S_WAVE, 's_add_u32 s66, s66, %d' % LO,
          'v_mul_u32_u24 v10, 160, v13', 'v_lshrrev_b32 v11, 4, v0', 'v_lshl_add_u32 v10, v11, 3, v10', 'v_add_u32 v%d, s66, v10' % V_OW,
          'v_add_u32 v%d, s66, v%d' % (V_OR, VL)]
    for n in range(3):
        su += ['v_add_u32 v13, %d, v0' % (64 * n), 'v_mul_u32_u24 v28, 205, v13', 'v_lshrrev_b32 v28, 11, v28',
               'v_mul_u32_u24 v28, %d, v28' % (1280 - 160), 'v_lshl_add_u32 v%d, v13, 4, v28' % (V_OS + n)]
    for T in range(1, 4):
        su += ['s_xor_b32 s66, s%d, %d' % (S_WAVE, T), 's_mul_i32 s66, s66, 15360', 's_add_u32 s66, s66, %d' % (5120 * (T - 1)),
               'v_add_u32 v%d, s66, v%d' % (V_PW + T - 1, VL)]
    su += ['s_mul_i32 s66, s%d, 15360' % S_WAVE, 'v_add_u32 v%d, s66, v%d' % (V_PR, VL),
           's_lshl2_add_u32 s35, s%d, s%d' % (S_RHO, S_WAVE), 's_mul_i32 s35, s35, %d' % (16 * 1280), 's_mul_i32 s66, s%d, 160' % S_J, 's_add_u32 s35, s35, s66']
    emit_list(k, su)
    def a_dma(count):
        for n in range(3):
            if n < 2: k('s_add_u32 s66, s%d, %d' % (S_WAVE, 4 * n))
            else:
                k('s_lshr_b32 s66, s33, 7')
                k('s_add_u32 s66, s66, s%d' % S_WAVE)
            k('s_lshl_b32 s67, s66, 15')
            k('s_add_u32 s67, s67, s%d' % S_AT)
            k('s_lshl_b32 s66, s66, 10')
            k('s_add_u32 m0, s66, %d' % LA)
            k('buffer_load_dwordx4 v%d, s[%d:%d], s67 offen sc1 lds' % (V_AD, R_WS, R_WS + 3), tag='a')
            if not count: k.vm.pop()
    def a_issue():
        k('s_load_dwordx8 s[68:75], s[%d:%d], s38' % (R_WS, R_WS + 1))
        k('s_load_dwordx8 s[16:23], s[%d:%d], s38 offset:512' % (R_WS, R_WS + 1))
        k('s_add_u32 s32, s38, s33')
        k('s_load_dwordx8 s[52:59], s[%d:%d], s32' % (R_WS, R_WS + 1))
    def a_allok():
        for b_ in (68, 16, 52):
            for i in range(0, 8, 2):
                k('s_xor_b64 s[%d:%d], s[%d:%d], s[0:1]' % (b_ + i, b_ + i + 1, b_ + i, b_ + i + 1))
        for b_ in (68, 16, 52):
            for i in range(0, 8, 2):
                if (b_, i) != (68, 0): k('s_or_b64 s[68:69], s[68:69], s[%d:%d]' % (b_ + i, b_ + i + 1))
    F2AT = opt.get('f2at', 1)
    AST = opt.get('ast', 10)
    def younger(a, b):
        ia = max(i for i, t in enumerate(k.vm) if t == a); ib = max(i for i, t in enumerate(k.vm) if t == b)
        return a if ia > ib else b
    for st in range(12):
        k.wait(vm=younger('W%d' % st, 'H%d' % st))
        if st == 0: G.ts(6)
        if st < 10: G.pr(300, st)
        if st == F2AT:
            k.wait(vm='hst2'); hflag(2)
        nxt = st + HD
        chk = nxt < 12 and nxt % 4 == 0
        if chk: sflag_issue(nxt >> 2)
        if st == AST and not opt.get('noa'):
            L = k.newlabel('L_noa')
            k('s_waitcnt lgkmcnt(0)')
            a_allok()
            k('s_cbranch_scc1 %s' % L)
            a_dma(False)
            k('s_mov_b32 s%d, 1' % S_AD)
            k.label(L)
        hl = hloads(nxt) if (nxt < 12 and not chk) else []
        emit_list(k, take(hl, 3))
        for T in range(4):
            for sub in range(5):
                c = '0' if st == 0 else vr(A2(T, sub), 4)
                k('v_mfma_f32_16x16x32_bf16 %s, %s, %s, %s' % (vr(A2(T, sub), 4), vr(Wr(st, sub), 4), vr(Hr(st, T), 4), c))
            emit_list(k, take(hl, 1))
        if chk:
            sflag_check(nxt >> 2)
            emit_list(k, hloads(nxt))
        if st == AST - 2:
            a_issue()
            k('s_add_u32 s38, s38, %d' % FA_RS)
            k('buffer_load_dwordx2 v[30:31], v%d, s[%d:%d], s%d offen sc1' % (V_G, R_WS, R_WS + 3, S_GG), tag='g')
        if st + WD < 12: emit_list(k, wload(st + WD))
    G.ts(7)
    for T in range(1, 4):
        for sub in range(5):
            k('ds_write_b128 v%d, %s offset:%d' % (V_PW + T - 1, vr(A2(T, sub), 4), 1024 * sub))
    k('s_waitcnt lgkmcnt(0)')
    k('s_barrier')
    RB = 96
    for sub in range(5):
        for p in range(3):
            k('ds_read_b128 %s, v%d offset:%d' % (vr(RB + 12 * sub + 4 * p, 4), V_PR, 5120 * p + 1024 * sub), tag='r%d' % sub)
    if not opt.get('noa'):
        L = k.newlabel('L_adone')
        k('s_cmp_lg_u32 s%d, 0' % S_AD)
        k('s_cbranch_scc1 %s' % L)
        sv = G.s_allok
        G.s_allok = lambda b_, n_: a_allok()
        G.spoll_loop(a_issue, 0, 0, 38, 39, FA_RS, lambda: G.poll(8, V_FA, 's%d' % S_FA), sleep=opt.get('asleep', 4))
        G.s_allok = sv
        a_dma(False)
        k.label(L)
        G.poll(30, V_G, 's%d' % S_GG, n=2, first='g', waited=True, which=[1])
    G.ts(8)
    k('v_sub_f32 v28, 1.0, v30')
    k('v_mov_b32 v31, v30')
    k('v_cvt_pk_bf16_f32 v28, v28, v28')
    k('v_lshlrev_b32 v28, 16, v28')
    k('v_mov_b32 v29, v28')
    fast = opt.get('fastfin')
    def rnd(x):
        k('v_cvt_pk_bf16_f32 v%d, v%d, v%d' % (x + 1, x, x + 1))
        k('v_lshlrev_b32 v%d, 16, v%d' % (x, x + 1))
        k('v_and_b32 v%d, 0xffff0000, v%d' % (x + 1, x + 1))
    for sub in range(5):
        a = A2(0, sub); rb = RB + 12 * sub
        k.wait(lg='r%d' % sub)
        for hf in range(2):
            x = a + 2 * hf
            k('v_pk_add_f32 %s, %s, %s' % (vr(x, 2), vr(x, 2), vr(rb + 2 * hf, 2)))
            k('v_pk_add_f32 %s, %s, %s' % (vr(rb + 4 + 2 * hf, 2), vr(rb + 4 + 2 * hf, 2), vr(rb + 8 + 2 * hf, 2)))
            k('v_pk_add_f32 %s, %s, %s' % (vr(x, 2), vr(x, 2), vr(rb + 4 + 2 * hf, 2)))
            if not fast: rnd(x)
            k('v_pk_mul_f32 %s, %s, v[28:29]' % (vr(x, 2), vr(x, 2)))
            if not fast: rnd(x)
    k('s_waitcnt vmcnt(0)')
    k('s_barrier')
    AR = 160
    for sub in range(5):
        k('ds_read_b64_tr_b16 %s, v%d offset:%d' % (vr(AR + 2 * sub, 2), V_AR, 2048 * sub), tag='ar%d' % sub)
    for sub in range(5):
        a = A2(0, sub)
        k.wait(lg='ar%d' % sub)
        for hf in range(2):
            t = 20; x = a + 2 * hf; ar = AR + 2 * sub + hf
            k('v_lshlrev_b32 v%d, 16, v%d' % (t, ar))
            k('v_and_b32 v%d, 0xffff0000, v%d' % (t + 1, ar))
            if fast:
                k('v_pk_fma_f32 %s, %s, v[30:31], %s' % (vr(t, 2), vr(t, 2), vr(x, 2)))
            else:
                k('v_pk_mul_f32 %s, %s, v[30:31]' % (vr(t, 2), vr(t, 2)))
                rnd(t)
                k('v_pk_add_f32 %s, %s, %s' % (vr(t, 2), vr(t, 2), vr(x, 2)))
            k('v_cvt_pk_bf16_f32 v%d, v%d, v%d' % (ar, t, t + 1))
        k('ds_write_b64 v%d, %s offset:%d' % (V_OW, vr(AR + 2 * sub, 2), 32 * sub))
    for n in range(3):
        k('ds_read_b128 %s, v%d offset:%d' % (vr(176 + 4 * n, 4), V_OR, 1024 * n), tag='o%d' % n)
    for n in range(3):
        k.wait(lg='o%d' % n)
        if n == 2: k('s_mov_b32 exec_hi, 0')
        k('buffer_store_dwordx4 %s, v%d, s[%d:%d], s35 offen %s' % (vr(176 + 4 * n, 4), V_OS + n, R_O, R_O + 3, 'sc1' if opt.get('osc1') else ''))
    k('s_mov_b64 exec, -1')
    G.ts(9)
    G.ts_store()
    G.calib()
    k('s_endpgm')
```

```python
import sys, math
from kgen import *
KNAME = 'gated_mix__ssm_conv_s4__dense_activation_silu__prompt_kernel'

WS_UT, WS_AT, WS_H, WS_W2P, WS_G = 0x000000, 0x300000, 0x600000, 0xC00000, 0xE00000
WS_FH, WS_FU, WS_FW, WS_FA, WS_TS = 0xE80000, 0xE10000, 0xE28000, 0xF00000, 0xE30000
import os
NREP = int([a.split('=')[1] for a in sys.argv if a.startswith('nrep=')][0]) if any(a.startswith('nrep=') for a in sys.argv) else 8
FU_RS, FA_RS, FH_RS = 0x1000, 0x4000, 0x10000
WS_SZ = 0x1000000
LOG2E = 1.4426950408889634
INV2PI = 0.15915494309189535

S_WG, S_WAVE, S_M, S_RHO, S_J, S_NONCE, S_TMO = 2, 3, 4, 5, 6, 7, 8
P_U, P_ARE, P_AIM, P_BRE, P_BIM, P_CRE, P_CIM, P_LDT = 16, 18, 20, 22, 24, 26, 28, 30
P_DSK, P_BX, P_W1, P_W2, P_GW, P_OUT, P_DBG, P_WS = 32, 34, 36, 38, 40, 42, 44, 46
R_WS, R_U, R_W, R_O = 48, 52, 56, 60
S_TS = 80
CBS = 17664
KO, UX = 4576, 9216
UY = UX + 4224

def emit_list(k, lst):
    for f in lst:
        if isinstance(f, tuple): k(f[0], tag=f[1])
        else: k(f)

class Gen:
    def __init__(self, opt):
        self.k = K()
        self.opt = opt
        self.marks = []
    def mark(self, name):
        self.marks.append((name, len(self.k.items)))
    def cut(self, name):
        self.k('s_branch L_%s' % name)
        self.mark(name)
        self.k.label('L_%s' % name)
    def srd_tail(self, r, size):
        self.k('s_mov_b32 s%d, 0x%x' % (r + 2, size))
        self.k('s_mov_b32 s%d, 0x20000' % (r + 3))
    def srd_base(self, r, p):
        self.k('s_mov_b64 s[%d:%d], s[%d:%d]' % (r, r + 1, p, p + 1))
    def ts(self, i):
        if self.opt.get('ts') and not self.opt.get('probe') and not (self.opt.get('early') and i in (1, 3, 4)):
            self.k('%s s[%d:%d]' % ('s_memtime' if self.opt.get('cyc') else 's_memrealtime', S_TS + 2 * i, S_TS + 2 * i + 1))
    def pr(self, key, i):
        if self.opt.get('probe') == key:
            self.k('s_memtime s[%d:%d]' % (S_TS + 2 * i, S_TS + 2 * i + 1))
    def ts_init(self):
        if self.opt.get('ts'):
            for i in range(10):
                if self.opt.get('early') and i in (1, 3, 4): continue
                self.k('s_mov_b32 s%d, s%d' % (S_TS + 2 * i, 100 if self.opt.get('cyc') else 10))
    def ets(self, i):
        if self.opt.get('early'): self.k('s_memtime s[%d:%d]' % (S_TS + 2 * i, S_TS + 2 * i + 1))
    def ts_store(self):
        if not self.opt.get('ts'): return
        k = self.k
        k('s_waitcnt vmcnt(0) lgkmcnt(0)')
        k('s_xor_b32 s64, s%d, 256' % S_WG)
        k('s_lshl_b32 s64, s64, 2')
        k('s_add_u32 s64, s64, s%d' % S_WAVE)
        k('s_lshl_b32 s64, s64, 6')
        k('s_add_u32 s64, s64, 0x%x' % WS_TS)
        k('v_mov_b32 v1, 0')
        for i in range(10):
            k('v_mov_b32 v2, s%d' % (S_TS + 2 * i))
            k('buffer_store_dword v2, v1, s[%d:%d], s64 offen offset:%d' % (R_WS, R_WS + 3, 4 * i))
        k('s_waitcnt vmcnt(0)')
    def calib(self):
        if self.opt.get('calib'):
            k = self.k
            L = k.newlabel('L_cal')
            k.label(L)
            k('s_memrealtime s[64:65]')
            k('s_waitcnt lgkmcnt(0)')
            k('s_sub_u32 s64, s64, s%d' % S_NONCE)
            k('s_cmp_lt_u32 s64, %d' % self.opt['calib'])
            k('s_cbranch_scc1 %s' % L)
    def spin_tail(self, L, D):
        k = self.k
        k('s_cbranch_scc1 %s' % D)
        k('s_sleep %d' % self.opt.get('sleep', 2))
        k('s_sub_u32 s%d, s%d, 1' % (S_TMO, S_TMO))
        k('s_cmp_lg_u32 s%d, 0' % S_TMO)
        k('s_cbranch_scc1 %s' % L)
        k.label(D)
    def nonce_issue(self, vt, vz, tag):
        k = self.k
        k('v_mov_b32 %s, 0' % vr(vz))
        k('global_load_dword %s, %s, s[%d:%d] sc1' % (vr(vt), vr(vz), P_DBG, P_DBG + 1), tag=tag)
    def nonce_get(self, vt, vz, tag=None, waited=False):
        k = self.k
        L = k.newlabel('L_nonce'); D = k.newlabel('L_nonce_ok'); C = k.newlabel('L_nonce_chk')
        k('s_movk_i32 s%d, 0x4000' % S_TMO)
        if not waited: k.wait(vm=tag)
        k('s_branch %s' % C)
        k.label(L)
        k('v_mov_b32 %s, 0' % vr(vz))
        k('global_load_dword %s, %s, s[%d:%d] sc1' % (vr(vt), vr(vz), P_DBG, P_DBG + 1)); k.vm.pop()
        k('s_waitcnt vmcnt(0)')
        k.label(C)
        k('v_readfirstlane_b32 s%d, %s' % (S_NONCE, vr(vt)))
        k('s_cmp_lg_u32 s%d, 0' % S_NONCE)
        self.spin_tail(L, D)
    def poll_issue(self, vt, vaddr, soff, tag, n=1):
        self.k('buffer_load_dword%s %s, %s, s[%d:%d], %s offen sc1' % ('x2' if n == 2 else '', vr(vt, n), vr(vaddr), R_WS, R_WS + 3, soff), tag=tag)
    def poll_cmp(self, vt, which):
        k = self.k
        k('v_cmp_ne_u32 vcc, s%d, %s' % (S_NONCE, vr(vt + which[0])))
        if len(which) == 2:
            k('v_cmp_ne_u32 s[78:79], s%d, %s' % (S_NONCE, vr(vt + which[1])))
            k('s_or_b64 vcc, vcc, s[78:79]')
        k('s_cmp_eq_u64 vcc, 0')
    def poll(self, vt, vaddr, soff, n=1, first=None, waited=False, which=None):
        k = self.k
        if which is None: which = list(range(n))
        L = k.newlabel('L_poll'); D = k.newlabel('L_poll_ok'); C = k.newlabel('L_poll_chk')
        k('s_movk_i32 s%d, 0x4000' % S_TMO)
        if first is not None:
            if not waited: k.wait(vm=first)
            k('s_branch %s' % C)
        else:
            k('s_mov_b64 vcc, -1')
        k.label(L)
        k('s_mov_b64 exec, vcc')
        self.poll_issue(vt, vaddr, soff, None, n); k.vm.pop()
        k('s_mov_b64 exec, -1')
        k('s_waitcnt vmcnt(0)')
        k.label(C)
        self.poll_cmp(vt, which)
        self.spin_tail(L, D)
    def snonce(self, vt, vz, first=0):
        k = self.k
        D = k.newlabel('L_sn_ok')
        for i in range(4):
            if i >= first: k('s_load_dword s%d, s[%d:%d], %d' % (S_NONCE, P_DBG, P_DBG + 1, 64 * i))
            k('s_waitcnt lgkmcnt(0)')
            k('s_cmp_lg_u32 s%d, 0' % S_NONCE)
            k('s_cbranch_scc1 %s' % D)
        k('v_mov_b32 %s, 0' % vr(vt))
        self.nonce_get(vt, vz, waited=True)
        k.label(D)
        k('s_mov_b32 s0, s%d' % S_NONCE)
        k('s_mov_b32 s1, s%d' % S_NONCE)
    def s_allok(self, base, n):
        k = self.k
        for i in range(0, n, 2):
            k('s_xor_b64 s[%d:%d], s[%d:%d], s[0:1]' % (base + i, base + i + 1, base + i, base + i + 1))
        for i in range(2, n, 2):
            k('s_or_b64 s[%d:%d], s[%d:%d], s[%d:%d]' % (base, base + 1, base, base + 1, base + i, base + i + 1))
    def spoll_loop(self, issue, base, n, s_off, s_end, rs, fallback, sleep=0):
        k = self.k
        L = k.newlabel('L_sp'); D = k.newlabel('L_sp_ok'); F = k.newlabel('L_sp_fb')
        k.label(L)
        k('s_cmp_ge_u32 s%d, s%d' % (s_off, s_end))
        k('s_cbranch_scc1 %s' % F)
        issue()
        k('s_add_u32 s%d, s%d, %d' % (s_off, s_off, rs))
        k('s_waitcnt lgkmcnt(0)')
        self.s_allok(base, n)
        k('s_cbranch_scc0 %s' % D)
        if sleep: k('s_sleep %d' % sleep)
        k('s_branch %s' % L)
        k.label(F)
        fallback()
        k.label(D)
    def flag_store_rep(self, vt, vz, soff, rs, tag=None):
        k = self.k
        k('v_mov_b32 %s, s%d' % (vr(vt), S_NONCE))
        k('v_mul_u32_u24 %s, %d, v0' % (vr(vz), rs))
        k('s_mov_b64 exec, %d' % ((1 << NREP) - 1))
        k('buffer_store_dword %s, %s, s[%d:%d], %s offen sc1' % (vr(vt), vr(vz), R_WS, R_WS + 3, soff), tag=tag)
        k('s_mov_b64 exec, -1')
    def flag_store(self, vt, vz, soff, tag=None):
        k = self.k
        k('v_mov_b32 %s, s%d' % (vr(vt), S_NONCE))
        k('v_mov_b32 %s, 0' % vr(vz))
        k('s_mov_b64 exec, 1')
        k('buffer_store_dword %s, %s, s[%d:%d], %s offen sc1' % (vr(vt), vr(vz), R_WS, R_WS + 3, soff), tag=tag)
        k('s_mov_b64 exec, -1')

    def prologue(self):
        k = self.k
        k('s_load_dwordx16 s[16:31], s[0:1], 0')
        k('s_load_dwordx16 s[32:47], s[0:1], 64')
        k('s_memrealtime s[10:11]')
        if self.opt.get('cyc'): k('s_memtime s[100:101]')
        k('v_lshrrev_b32 v1, 6, v0')
        k('v_and_b32 v0, 63, v0')
        k('v_readfirstlane_b32 s%d, v1' % S_WAVE)
        k('s_cmp_ge_u32 s2, 512')
        k('s_cbranch_scc1 L_end')
        k('s_and_b32 s%d, s2, 255' % S_M)
        k('s_bfe_u32 s66, s2, 0x20001')
        k('s_bfe_u32 s67, s2, 0x30003')
        k('s_lshl3_add_u32 s%d, s66, s67' % S_RHO)
        k('s_and_b32 s66, s2, 1')
        k('s_bfe_u32 s67, s2, 0x20006')
        k('s_lshl2_add_u32 s%d, s66, s67' % S_J)
        self.srd_tail(R_WS, WS_SZ)
        self.srd_tail(R_U, 2048 * 640 * 2)
        if self.opt.get('ipf'):
            k('s_cmp_lg_u32 s%d, 0' % S_WAVE)
            k('s_cbranch_scc1 L_noipf')
            k('s_getpc_b64 s[64:65]')
            k('s_lshr_b32 s66, s2, 3')
            k('s_mul_i32 s66, s66, %d' % (self.opt['ipf'] * 128))
            k('v_lshlrev_b32 v1, 7, v0')
            k('v_add_u32 v1, s66, v1')
            k('s_mov_b64 exec, %d' % ((1 << self.opt['ipf']) - 1))
            k('global_load_dword v255, v1, s[64:65]')
            k('s_mov_b64 exec, -1')
            k.label('L_noipf')
        k('s_cmp_ge_u32 s2, 256')
        k('s_cbranch_scc1 L_gemm')
        if self.opt.get('nossm'):
            k('s_cmp_eq_u32 s2, 128'); k('s_cbranch_scc1 L_idle'); k('s_endpgm')
        k('s_cmp_eq_u32 s%d, 3' % S_WAVE)
        k('s_cbranch_scc1 L_misc')

    def misc(self):
        k = self.k
        k.reset_counts()
        LT = 3 * CBS; LW = LT + 10240
        self.mark('misc_head')
        k.label('L_misc')
        for i in range(5):
            k('v_add_u32 v1, %d, v0' % (64 * i))
            k('v_mul_u32_u24 v2, 205, v1')
            k('v_lshrrev_b32 v2, 11, v2')
            k('v_mul_u32_u24 v3, %d, v2' % (1280 - 160))
            k('v_lshl_add_u32 v%d, v1, 4, v3' % (10 + i))
        k('s_mul_i32 s64, s%d, %d' % (S_RHO, 64 * 1280))
        k('s_mul_i32 s65, s%d, 160' % S_J)
        k('s_add_u32 s64, s64, s65')
        k('s_add_u32 s65, s64, %d' % (32 * 1280))
        k('s_waitcnt lgkmcnt(0)')
        self.srd_base(R_U, P_U)
        for i in range(10):
            k('s_mov_b32 m0, %d' % (LT + 1024 * i))
            k('buffer_load_dwordx4 v%d, s[%d:%d], s%d offen lds' % (10 + i % 5, R_U, R_U + 3, 64 + i // 5), tag='T')
        self.cut('misc_main')
        self.ts_init()
        k('s_setprio %d' % self.opt.get('mprio', 3))
        self.srd_base(R_WS, P_WS)
        self.srd_base(R_W, P_W2)
        self.srd_tail(R_W, 1536 * 640 * 2)
        k('s_min_u32 s66, s%d, 239' % S_M)
        k('s_mul_i32 s67, s66, 205')
        k('s_lshr_b32 s67, s67, 10')
        k('s_mul_i32 s68, s67, 5')
        k('s_sub_u32 s68, s66, s68')
        k('s_mul_i32 s69, s67, %d' % (32 * 1280))
        k('s_lshl_b32 s70, s68, 8')
        k('s_add_u32 s69, s69, s70')
        k('v_lshrrev_b32 v1, 4, v0')
        k('v_and_b32 v2, 15, v0')
        k('v_mul_u32_u24 v1, 1280, v1')
        k('v_lshl_add_u32 v15, v2, 4, v1')
        def wdma():
            for i in range(8):
                k('s_mov_b32 m0, %d' % (LW + 1024 * i))
                k('buffer_load_dwordx4 v15, s[%d:%d], s69 offen lds' % (R_W, R_W + 3), tag='W')
                k('s_add_u32 s69, s69, %d' % (4 * 1280))
        WPOS = self.opt.get('wpos', 0)
        if WPOS == 0: wdma()
        k('v_lshrrev_b32 v1, 3, v0')
        k('v_and_b32 v2, 7, v0')
        k('v_lshlrev_b32 v16, 4, v2')
        k('v_mul_u32_u24 v1, 1280, v1')
        k('v_add_u32 v17, v1, v16')
        k('s_lshl3_add_u32 s70, s%d, s%d' % (S_RHO, S_J))
        k('s_mul_i32 s71, s70, %d' % (8 * 1280))
        k('v_lshrrev_b32 v1, 4, v0')
        k('v_bfe_u32 v2, v0, 2, 2')
        k('v_and_b32 v3, 3, v0')
        k('v_lshl_add_u32 v4, v1, 3, v2')
        k('v_mul_u32_u24 v4, 160, v4')
        k('v_lshl_add_u32 v4, v3, 3, v4')
        k('v_add_u32 v18, %d, v4' % LT)
        k('v_and_b32 v5, 15, v0')
        k('v_lshlrev_b32 v5, 12, v5')
        k('v_lshl_add_u32 v19, v1, 4, v5')
        k('v_lshrrev_b32 v5, 1, v1')
        k('v_and_b32 v6, 1, v1')
        k('v_lshlrev_b32 v5, 4, v5')
        k('v_lshl_add_u32 v5, v6, 2, v5')
        k('v_add_u32 v5, v5, v2')
        k('v_lshlrev_b32 v5, 8, v5')
        k('v_lshl_add_u32 v5, v3, 3, v5')
        k('v_add_u32 v20, %d, v5' % LW)
        k('v_lshlrev_b32 v21, 4, v0')
        k('s_mul_i32 s72, s%d, %d' % (S_J, 80 * 4096))
        k('s_lshl_b32 s73, s%d, 7' % S_RHO)
        k('s_add_u32 s72, s72, s73')
        k('s_lshr_b32 s73, s%d, 3' % S_RHO)
        k('s_lshl2_add_u32 s73, s%d, s73' % S_J)
        k('s_lshl_b32 s73, s73, 5')
        k('s_and_b32 s74, s%d, 7' % S_RHO)
        k('s_add_u32 s73, s73, s74')
        k('s_lshl_b32 s73, s73, 2')
        k('s_add_u32 s77, s73, 0x%x' % WS_FU)
        if self.opt.get('ftouch'):
            k('v_mul_u32_u24 v9, %d, v0' % FU_RS)
            k('s_mov_b64 exec, %d' % ((1 << NREP) - 1))
            k('buffer_load_dword v8, v9, s[%d:%d], s77 offen' % (R_WS, R_WS + 3))
            k('s_mov_b64 exec, -1')
        k.wait(vm='T')
        self.ts(1)
        if self.opt.get('mstop') == 1: k('s_endpgm')
        for dl in range(5):
            for z in range(2):
                b = 24 + 8 * dl + 4 * z
                for e in range(2):
                    k('ds_read_b64_tr_b16 %s, v18 offset:%d' % (vr(b + 2 * e, 2), (32 * z + 4 * e) * 160 + 32 * dl), tag='t%d' % dl)
        for dl in range(5):
            k.wait(lg='t%d' % dl)
            for z in range(2):
                k('buffer_store_dwordx4 %s, v19, s[%d:%d], s72 offen offset:%d sc1' % (vr(24 + 8 * dl + 4 * z, 4), R_WS, R_WS + 3, 64 * z), tag='Tst')
            k('s_add_u32 s72, s72, %d' % (16 * 4096))
        if WPOS == 1: wdma()
        self.snonce(8, 9)
        def uflag():
            k.wait(vm='Tst')
            self.flag_store_rep(8, 9, 's77', FU_RS)
            self.ts(2)
        uflag()
        if self.opt.get('mstop') == 2: k('s_endpgm')
        if WPOS == 2: wdma()
        k('s_waitcnt vmcnt(0)')
        for fr in range(8):
            for e in range(2):
                k('ds_read_b64_tr_b16 %s, v20 offset:%d' % (vr(64 + 4 * fr + 2 * e, 2), 8 * e * 256 + 32 * fr), tag='w%d' % fr)
        k('s_mul_i32 s76, s67, 5')
        for fr in range(8):
            k('s_lshl_b32 s73, s68, 3')
            k('s_add_u32 s73, s73, %d' % fr)
            k('s_mul_i32 s74, s73, 205')
            k('s_lshr_b32 s74, s74, 10')
            k('s_mul_i32 s75, s74, 235')
            k('s_add_u32 s75, s75, s73')
            k('s_add_u32 s75, s75, s76')
            k('s_lshl_b32 s75, s75, 10')
            k('s_add_u32 s75, s75, 0x%x' % WS_W2P)
            k.wait(lg='w%d' % fr)
            k('buffer_store_dwordx4 %s, v21, s[%d:%d], s75 offen sc1' % (vr(64 + 4 * fr, 4), R_WS, R_WS + 3), tag='Wst')
        k('s_lshl_b32 s73, s68, 6')
        k('s_add_u32 s73, s73, s67')
        k('s_lshl_b32 s73, s73, 2')
        k('s_add_u32 s73, s73, 0x%x' % WS_FW)
        k('s_mul_i32 s60, s%d, 3' % S_M)
        k('s_lshl_b32 s61, s%d, 1' % S_M)
        k('s_add_u32 s61, s61, 128')
        k('s_cmp_lt_u32 s%d, 128' % S_M)
        k('s_cselect_b32 s60, s60, s61')
        k('s_cselect_b32 s61, 3, 2')
        k('v_lshrrev_b32 v1, 4, v0')
        k('v_min_u32 v1, 2, v1')
        k('v_mul_u32_u24 v22, %d, v1' % CBS)
        k('v_and_b32 v2, 15, v0')
        k('v_lshl_add_u32 v1, v2, 2, v22')
        k('v_mov_b32 v2, 0')
        k('ds_write_b32 v1, v2 offset:%d' % UX)
        k('ds_write_b32 v1, v2 offset:%d' % UY)
        k('v_bfe_u32 v1, v0, 3, 2')
        k('v_and_b32 v23, 7, v0')
        k('v_lshlrev_b32 v23, 2, v23')
        k('v_lshl_add_u32 v23, v1, 7, v23')
        k('s_mov_b64 s[14:15], s[%d:%d]' % (P_GW, P_GW + 1))
        def u_issue():
            for i in range(4):
                k('s_load_dwordx8 s[%d:%d], s[%d:%d], s62 offset:%d' % (16 + 8 * i, 23 + 8 * i, R_WS, R_WS + 1, 128 * i))
        k('s_mul_i32 s64, s60, 205')
        k('s_lshr_b32 s64, s64, 14')
        k('s_add_u32 s65, s60, s61')
        k('s_sub_u32 s65, s65, 1')
        k('s_mul_i32 s65, s65, 205')
        k('s_lshr_b32 s65, s65, 14')
        k.label('L_ugrp')
        k('s_lshl_b32 s9, s64, 9')
        k('s_add_u32 s9, s9, 0x%x' % WS_FU)
        k('s_mov_b32 s62, s9')
        k('s_add_u32 s63, s9, %d' % (NREP * FU_RS))
        self.spoll_loop(u_issue, 16, 32, 62, 63, FU_RS, lambda: self.poll(24, 23, 's9'), sleep=self.opt.get('ssleep', 2))
        k('s_add_u32 s64, s64, 1')
        k('s_cmp_le_u32 s64, s65')
        k('s_cbranch_scc1 L_ugrp')
        self.ts(5)
        k.wait(vm='Wst')
        k('s_lshl_b32 s64, s60, 12')
        for c in range(3):
            if c == 2:
                k('s_cmp_lt_u32 s61, 3')
                k('s_cbranch_scc1 L_u2')
            k('s_add_u32 s65, s64, 4')
            k('s_mov_b32 m0, %d' % (c * CBS + UX + 64))
            for i in range(4):
                k('buffer_load_dwordx4 v21, s[%d:%d], s64 offen offset:%d sc1 lds' % (R_WS, R_WS + 3, 1024 * i))
            k('s_mov_b32 m0, %d' % (c * CBS + UY + 64))
            for i in range(4):
                k('buffer_load_dwordx4 v21, s[%d:%d], s65 offen offset:%d sc1 lds' % (R_WS, R_WS + 3, 1024 * i))
            k('s_add_u32 s64, s64, 4096')
        k.label('L_u2')
        self.flag_store(8, 9, 's73')
        self.ts(7)
        k('s_waitcnt vmcnt(1)')
        k('ds_read_b32 v1, v22 offset:%d' % (UX + 64))
        k('s_waitcnt lgkmcnt(0)')
        k('ds_write_b32 v22, v1 offset:%d' % (UY + 60))
        k('s_waitcnt lgkmcnt(0)')
        self.ts(6)
        k('s_barrier')
        if self.opt.get('mstop') == 3: k('s_endpgm')
        GX, GW = 96, 136
        for i in range(10):
            k('buffer_load_dwordx4 %s, v17, s[%d:%d], s71 offen offset:%d' % (vr(GX + 4 * i, 4), R_U, R_U + 3, 128 * i), tag='G')
        for i in range(10):
            k('global_load_dwordx4 %s, v16, s[%d:%d] offset:%d' % (vr(GW + 4 * i, 4), 14, 15, 128 * i), tag='G')
        self.ts(3)
        k('s_setprio 0')
        k.wait(vm='G')
        k('v_mov_b32 v24, 0')
        k('v_mov_b32 v25, 0')
        for i in range(40):
            x, w = GX + i, GW + i
            t = 28
            k('v_lshlrev_b32 v%d, 16, v%d' % (t, x))
            k('v_and_b32 v%d, 0xffff0000, v%d' % (t + 1, x))
            k('v_lshlrev_b32 v%d, 16, v%d' % (t + 2, w))
            k('v_and_b32 v%d, 0xffff0000, v%d' % (t + 3, w))
            k('v_mul_f32 v%d, v%d, v%d' % (t, t, t + 2))
            k('v_mul_f32 v%d, v%d, v%d' % (t + 1, t + 1, t + 3))
            k('v_cvt_pk_bf16_f32 v%d, v%d, v%d' % (t + 4, t, t + 1))
            k('v_lshlrev_b32 v%d, 16, v%d' % (t, t + 4))
            k('v_and_b32 v%d, 0xffff0000, v%d' % (t + 1, t + 4))
            k('v_add_f32 v24, v24, v%d' % t)
            k('v_add_f32 v25, v25, v%d' % (t + 1))
        k('v_add_f32 v24, v24, v25')
        k('v_add_f32_dpp v24, v24, v24 quad_perm:[1,0,3,2] row_mask:0xf bank_mask:0xf')
        k('v_add_f32_dpp v24, v24, v24 quad_perm:[2,3,0,1] row_mask:0xf bank_mask:0xf')
        k('v_add_f32_dpp v24, v24, v24 row_half_mirror row_mask:0xf bank_mask:0xf')
        k('v_cvt_pk_bf16_f32 v24, v24, v24')
        k('v_lshlrev_b32 v24, 16, v24')
        k('v_mul_f32 v24, %s, v24' % fhex(-LOG2E))
        k('v_exp_f32 v24, v24')
        k('v_add_f32 v24, 1.0, v24')
        k('v_rcp_f32 v24, v24')
        k('v_cvt_pk_bf16_f32 v24, v24, v24')
        k('v_lshlrev_b32 v24, 16, v24')
        k('v_mov_b32 v25, s%d' % S_NONCE)
        k('v_and_b32 v26, 0x38, v0')
        k('s_lshl_b32 s73, s70, 6')
        k('s_add_u32 s73, s73, 0x%x' % WS_G)
        k('s_mov_b32 s74, 0x01010101')
        k('s_mov_b32 s75, 0x01010101')
        k('s_mov_b64 exec, s[74:75]')
        k('buffer_store_dwordx2 v[24:25], v26, s[%d:%d], s73 offen sc1' % (R_WS, R_WS + 3))
        k('s_mov_b64 exec, -1')
        self.ts(4)
        self.ts_store()
        k('s_endpgm')
        self.mark('idle')
        k.label('L_idle')
        k('s_cmp_lg_u32 s2, 128')
        k('s_cbranch_scc1 L_end')
        k('s_cmp_lg_u32 s%d, 2' % S_WAVE)
        k('s_cbranch_scc1 L_end')
        k('v_lshlrev_b32 v2, 6, v0')
        k('s_waitcnt lgkmcnt(0)')
        k('s_or_b32 s10, s10, 1')
        k('v_mov_b32 v1, s10')
        k('s_mov_b64 exec, 15')
        k('global_store_dword v2, v1, s[%d:%d] sc1' % (P_DBG, P_DBG + 1))
        if self.opt.get('latprobe'):
            ptr = {1: P_BX, 2: P_WS, 3: P_BX}[self.opt['latprobe']]
            k.label('L_lp0')
            k('s_memrealtime s[64:65]')
            k('s_waitcnt lgkmcnt(0)')
            k('s_sub_u32 s64, s64, s10')
            k('s_cmp_lt_u32 s64, 3500')
            k('s_cbranch_scc1 L_lp0')
            k('v_mov_b32 v2, 0x%x' % (0x100000 if ptr == P_BX else 0x8000000))
            k('s_memtime s[70:71]')
            k('global_load_dword v3, v2, s[%d:%d]' % (ptr, ptr + 1))
            k('s_waitcnt vmcnt(0)')
            k('s_memtime s[66:67]')
            k('s_waitcnt lgkmcnt(0)')
            for i in range(4):
                k('v_add_u32 v2, 0x3480, v2')
                k('global_load_dword v3, v2, s[%d:%d]' % (ptr, ptr + 1))
                k('s_waitcnt vmcnt(0)')
            k('s_memtime s[68:69]')
            k('s_waitcnt lgkmcnt(0)')
            if self.opt['latprobe'] == 3:
                k('s_sub_u32 s68, s66, s70')
            else:
                k('s_sub_u32 s68, s68, s66')
                k('s_lshr_b32 s68, s68, 2')
            k('v_mov_b32 v1, s68')
            k('v_mov_b32 v2, 0')
            k('global_store_dword v2, v1, s[%d:%d] offset:16' % (P_DBG, P_DBG + 1))
            k('s_add_u32 s68, s68, 4000')
            k.label('L_lp1')
            k('s_memrealtime s[64:65]')
            k('s_waitcnt lgkmcnt(0)')
            k('s_sub_u32 s64, s64, s10')
            k('s_cmp_lt_u32 s64, s68')
            k('s_cbranch_scc1 L_lp1')
        k('s_endpgm')

    def cmul(self, d, a, b):
        if self.opt.get('nopk'):
            return ['v_mul_f32 v%d, v%d, v%d' % (d, a, b),
                    'v_mul_f32 v%d, v%d, v%d' % (d + 1, a, b + 1),
                    'v_fma_f32 v%d, -v%d, v%d, v%d' % (d, a + 1, b + 1, d),
                    'v_fmac_f32 v%d, v%d, v%d' % (d + 1, a + 1, b)]
        return ['v_pk_mul_f32 %s, %s, %s op_sel:[0,0] op_sel_hi:[0,1]' % (vr(d, 2), vr(a, 2), vr(b, 2)),
                'v_pk_fma_f32 %s, %s, %s, %s op_sel:[1,1,0] op_sel_hi:[1,0,1] neg_lo:[1,0,0]' % (vr(d, 2), vr(a, 2), vr(b, 2), vr(d, 2))]
    def chan(self):
        k = self.k; opt = self.opt
        k.reset_counts()
        self.mark('chan_head')
        self.ets(1)
        S_D, S_CB, S_DSK = 12, 13, 14
        k('s_mul_i32 s64, s%d, 3' % S_M)
        k('s_lshl_b32 s65, s%d, 1' % S_M)
        k('s_add_u32 s65, s65, 128')
        k('s_cmp_lt_u32 s%d, 128' % S_M)
        k('s_cselect_b32 s64, s64, s65')
        k('s_cselect_b32 s65, 3, 2')
        k('s_cmp_ge_u32 s%d, s65' % S_WAVE)
        k('s_cbranch_scc1 L_idle')
        if opt.get('nochan'): k('s_endpgm')
        k('s_add_u32 s%d, s64, s%d' % (S_D, S_WAVE))
        k('s_mul_i32 s%d, s%d, %d' % (S_CB, S_WAVE, CBS))
        PR = 232
        for i in range(6): k('v_mov_b32 v%d, 0' % (PR + 3 * i + 2))
        k('s_mul_i32 s64, s%d, 384' % S_D)
        k('v_lshlrev_b32 v1, 1, v0')
        k('v_add_u32 v1, s64, v1')
        k('v_lshl_add_u32 v2, v0, 2, s64')
        k('s_lshr_b32 s64, s%d, 1' % S_D)
        k('s_lshl_b32 s64, s64, 2')
        k('s_waitcnt lgkmcnt(0)')
        self.ets(3)
        for ai, p in enumerate((P_ARE, P_AIM, P_BRE, P_BIM, P_CRE, P_CIM)):
            k('global_load_dword v%d, v2, s[%d:%d]' % (PR + 3 * ai + 1, p, p + 1), tag='par0')
        k('s_load_dword s65, s[%d:%d], s64' % (P_LDT, P_LDT + 1))
        k('s_load_dword s66, s[%d:%d], s64' % (P_DSK, P_DSK + 1))
        for ai, p in enumerate((P_ARE, P_AIM, P_BRE, P_BIM, P_CRE, P_CIM)):
            k('global_load_short_d16_hi v%d, v1, s[%d:%d] offset:256' % (PR + 3 * ai + 2, p, p + 1), tag='par2')
        self.cut('chan_main')
        self.ets(4)
        self.ts_init()
        self.srd_base(R_WS, P_WS)
        if opt.get('cprio'): k('s_setprio %d' % opt['cprio'])
        V_DT = 4
        ACC, QF, DT_, VV, GG, ID = 16, 32, 64, 128, 192, 208
        k('v_and_b32 v6, 31, v0')
        k('v_lshrrev_b32 v7, 5, v0')
        k('v_lshlrev_b32 v7, 3, v7')
        k('v_sub_u32 v6, v6, v7')
        k('v_and_b32 v7, 1, v0')
        k('v_lshlrev_b32 v7, 4, v7')
        k('v_mov_b32 v8, 0x3f80')
        k('v_lshlrev_b32 v7, v7, v8')
        k('v_lshrrev_b32 v6, 1, v6')
        for d in range(8):
            k('v_cmp_eq_u32 vcc, %d, v6' % (d if d < 4 else d + 4))
            k('v_cndmask_b32 v%d, 0, v7, vcc' % (ID + d))
        for i in range(16): k('v_mov_b32 v%d, 0' % (ACC + i))
        k('s_and_b32 s64, s%d, 1' % S_D)
        k('s_lshl_b32 s64, s64, 4')
        k('s_waitcnt lgkmcnt(0)')
        k('s_lshr_b32 s65, s65, s64')
        k('s_lshl_b32 s65, s65, 16')
        k('s_lshr_b32 s66, s66, s64')
        k('s_lshl_b32 s%d, s66, 16' % S_DSK)
        k('v_mov_b32 v6, s65')
        k('v_mul_f32 v6, %s, v6' % fhex(LOG2E))
        k('v_exp_f32 v6, v6')
        k('v_cvt_pk_bf16_f32 v6, v6, v6')
        k('v_lshlrev_b32 v%d, 16, v6' % V_DT)
        X_, E1, E2, E4, E8, E256, E16, C_ = 216, 218, 220, 222, 224, 226, 228, 230
        T0 = GG
        order = [0, 1, 2, 3, 4, 5, 6, 7, 4, 256, 258, 260, 8, 260, 262, 264, 512, 516, 520, 1024, 768, 772, 776, 1536, 1032, 1280, 1288, 1288, 1544, 1792, 1800, 1800]
        pv = {}
        for i, o in enumerate(order): pv.setdefault(o, VV + 2 * i)
        pv[0] = C_
        Dt = lambda t: DT_ + 16 * t
        def kmfma(s):
            return 'v_mfma_f32_32x32x16_bf16 %s, %s, %s, %s' % (vr(ACC, 16), vr(Dt(s >> 1) + 4 * (s & 1), 4), vr(QF + 4 * s, 4), vr(ACC, 16))
        S_PS = 73
        def setup(ps):
            if ps != 1: k.wait(vm='par%d' % ps)
            if ps == 0:
                for a_ in range(6):
                    k('v_lshlrev_b32 v%d, 16, v%d' % (PR + 3 * a_, PR + 3 * a_ + 1))
                    k('v_and_b32 v%d, 0xffff0000, v%d' % (PR + 3 * a_ + 1, PR + 3 * a_ + 1))
            ar, ai, br, bi, cr, ci = [PR + 3 * a + ps for a in range(6)]
            self.pr(200 + ps, 0)
            su = []
            su.append('v_mul_f32 v%d, v%d, v%d' % (X_, V_DT, ar))
            su.append('v_mul_f32 v%d, v%d, v%d' % (X_ + 1, V_DT, ai))
            su.append('v_mul_f32 v%d, %s, v%d' % (X_, fhex(LOG2E), X_))
            su.append('v_mul_f32 v%d, %s, v%d' % (X_ + 1, fhex(INV2PI), X_ + 1))
            su.append('v_rndne_f32 v%d, v%d' % (T0 + 2, X_ + 1))
            su.append('v_mul_f32 v%d, v%d, v%d' % (T0, V_DT, br))
            su.append('v_mul_f32 v%d, v%d, v%d' % (T0 + 1, V_DT, bi))
            su.append('v_sub_f32 v%d, v%d, v%d' % (X_ + 1, X_ + 1, T0 + 2))
            su.append('v_mul_f32 v%d, v%d, v%d' % (C_, cr, T0))
            su.append('v_mul_f32 v%d, v%d, v%d' % (C_ + 1, cr, T0 + 1))
            su.append('v_fma_f32 v%d, -v%d, v%d, v%d' % (C_, ci, T0 + 1, C_))
            su.append('v_fmac_f32 v%d, v%d, v%d' % (C_ + 1, ci, T0))
            for idx, (dst, p) in enumerate(((E8, 8.0), (E1, 1.0), (E256, 256.0))):
                t = T0 + 4 + 4 * idx
                if p == 1.0: m, th = X_, X_ + 1
                else:
                    su.append('v_mul_f32 v%d, %s, v%d' % (t, fhex(p), X_))
                    su.append('v_mul_f32 v%d, %s, v%d' % (t + 1, fhex(p), X_ + 1))
                    m, th = t, t + 1
                su.append('v_exp_f32 v%d, v%d' % (t + 2, m))
                su.append('v_cos_f32 v%d, v%d' % (dst, th))
                su.append('v_sin_f32 v%d, v%d' % (dst + 1, th))
            for idx, dst in enumerate((E8, E1, E256)):
                t = T0 + 4 + 4 * idx
                su.append('v_mul_f32 v%d, v%d, v%d' % (dst, dst, t + 2))
                su.append('v_mul_f32 v%d, v%d, v%d' % (dst + 1, dst + 1, t + 2))
            if ps > 0:
                for i, l in enumerate(su):
                    if i % 6 == 0 and i // 6 < 4: k(kmfma(4 + i // 6))
                    k(l)
            else:
                emit_list(k, su)
        setup(0)
        self.ts(1)
        k('s_mov_b32 s%d, 0' % S_PS)
        k.raw('.p2align 3')
        k.label('L_kbody')
        ps = 1
        def weave(ms, fill):
            per = -(-len(fill) // len(ms))
            for m in ms:
                k(m)
                emit_list(k, fill[:per]); fill = fill[per:]
        def cvts(src, part, neg):
            out = []
            for g in range(4):
                for d in range(4):
                    dst = GG + 4 * g + d if part == 0 else VV + 16 * g + d
                    ops = []
                    for o in src[8 * g + 2 * d: 8 * g + 2 * d + 2]:
                        if o is None: ops.append('1.0' if part == 0 else '0')
                        else: ops.append('%sv%d' % ('-' if neg else '', o + part))
                    out.append('v_cvt_pk_bf16_f32 v%d, %s, %s' % (dst, ops[0], ops[1]))
            return out
        grp = lambda part, g: GG + 4 * g if part == 0 else VV + 16 * g
        def swaps(part):
            return ['v_permlane32_swap_b32 v%d, v%d' % (grp(part, g) + d, grp(part, g + 1) + d) for g in (0, 2) for d in range(4)]
        def tm(part):
            t = 2 * part
            f = lambda tl, g, c: 'v_mfma_f32_32x32x16_bf16 %s, %s, %s, %s' % (vr(Dt(tl), 16), vr(grp(part, g), 4), vr(ID + 4 * (g >> 1), 4), c)
            return [f(t, 0, '0'), f(t, 2, vr(Dt(t), 16)), f(t + 1, 1, '0'), f(t + 1, 3, vr(Dt(t + 1), 16))]
        def back(t, dst):
            return ['v_cvt_pk_bf16_f32 v%d, v%d, v%d' % (dst + d, Dt(t) + 2 * d, Dt(t) + 2 * d + 1) for d in range(8)]
        self.pr(200 + ps, 1)
        qs = [None, E8, E16] + [VV + 2 * b_ for b_ in range(3, 32)]
        emit_list(k, self.cmul(E16, E8, E8))
        for b_ in range(3, 32): emit_list(k, self.cmul(qs[b_], qs[b_ - 2], E16))
        self.pr(200 + ps, 2)
        emit_list(k, cvts(qs, 0, False) + swaps(0))
        weave(tm(0), cvts(qs, 1, True) + swaps(1))
        weave(tm(1), back(0, QF) + back(1, QF + 8))
        self.pr(200 + ps, 3)
        cm = lambda o, a_, e: emit_list(k, self.cmul(pv[o], pv[a_], e))
        emit_list(k, self.cmul(E2, E1, E1))
        emit_list(k, self.cmul(E4, E2, E2))
        for o in range(1, 9): cm(o, o - 1, E1)
        for o in (256, 512, 768, 1024, 1280, 1536, 1792): cm(o, o - 256, E256)
        for o in (258, 260, 262, 264): cm(o, o - 2, E2)
        cm(516, 512, E4); cm(520, 512, E8); cm(772, 768, E4); cm(776, 768, E8)
        for o in (1032, 1288, 1544, 1800): cm(o, o - 8, E8)
        self.pr(200 + ps, 4)
        psrc = [pv[o] for o in order]
        emit_list(k, cvts(psrc, 0, False) + swaps(0))
        weave(tm(0), back(2, QF + 16) + back(3, QF + 24) + cvts(psrc, 1, False) + swaps(1))
        self.pr(200 + ps, 5)
        weave(tm(1), back(0, Dt(0)) + back(1, Dt(1)))
        weave([kmfma(s_) for s_ in range(4)], back(2, Dt(2)) + back(3, Dt(3)))
        self.pr(200 + ps, 7)
        k('s_add_u32 s%d, s%d, 1' % (S_PS, S_PS))
        k('s_cmp_eq_u32 s%d, 3' % S_PS)
        k('s_cbranch_scc1 L_kexit')
        k('s_cmp_eq_u32 s%d, 2' % S_PS)
        k('s_cbranch_scc1 L_ks2')
        lg_save = list(k.lg)
        setup(1)
        k('s_branch L_kbody')
        k.label('L_ks2')
        k.lg = list(lg_save)
        setup(2)
        k('s_branch L_kbody')
        k.label('L_kexit')
        k.lg = list(lg_save)
        ex = []
        ex += ['v_and_b32 v6, 31, v0', 'v_lshrrev_b32 v7, 5, v0', 'v_lshlrev_b32 v8, 4, v6', 'v_sub_u32 v8, s%d, v8' % S_CB,
               'v_lshlrev_b32 v9, 3, v7', 'v_sub_u32 v9, v8, v9', 'v_add_u32 v9, 504, v9',
               'v_lshlrev_b32 v10, 9, v7', 'v_sub_u32 v10, v8, v10', 'v_add_u32 v10, 1008, v10',
               'v_lshlrev_b32 v11, 10, v7', 'v_sub_u32 v11, v8, v11', 'v_add_u32 v11, 1520, v11',
               'v_add_u32 v12, %d, v9' % (KO + 4084 - 504), 'v_add_u32 v13, %d, v9' % (KO + 4084 - 512 - 504),
               'v_and_b32 v6, 1, v0', 'v_cmp_eq_u32 vcc, 1, v6',
               'v_min_u32 v14, 27, v0', 'v_lshlrev_b32 v14, 4, v14', 'v_add_u32 v14, s%d, v14' % S_CB]
        ex += ['v_mov_b32 v%d, 0' % (96 + i) for i in range(4)]
        V_A, V_B = 2, 3
        ex += ['v_and_b32 v6, 15, v0', 'v_lshrrev_b32 v7, 4, v0', 'v_lshlrev_b32 v7, 4, v7', 'v_add_u32 v7, s%d, v7' % S_CB,
               'v_lshrrev_b32 v8, 1, v6', 'v_lshlrev_b32 v8, 6, v8', 'v_sub_u32 v8, v7, v8',
               'v_mov_b32 v102, %d' % (448 + KO), 'v_mov_b32 v103, 448', 'v_cndmask_b32 v102, v102, v103, vcc', 'v_add_u32 v%d, v8, v102' % V_A,
               'v_lshl_add_u32 v8, v6, 2, v7', 'v_mov_b32 v102, %d' % UY, 'v_mov_b32 v103, %d' % (UX + 4),
               'v_cndmask_b32 v102, v102, v103, vcc', 'v_add_u32 v%d, v8, v102' % V_B, 'v_mov_b32 v15, s%d' % S_CB]
        ex = [l.replace('v102', 'v202').replace('v103', 'v203') for l in ex]
        ex = [l.replace('v_mov_b32 v9', 'v_mov_b32 v19') if l.startswith('v_mov_b32 v9') else l for l in ex]
        for s in range(4, 8):
            k(kmfma(s))
            emit_list(k, ex[:6]); ex = ex[6:]
        emit_list(k, ex)
        k('ds_write_b128 v14, v[196:199] offset:4096')
        k('ds_write_b128 v14, v[196:199] offset:%d' % (KO + 4096))
        self.ts(3)
        V = lambda r: ACC + r
        pk = lambda d, lo, hi: k('v_cvt_pk_bf16_f32 v%d, v%d, v%d' % (d, lo, hi))
        k('v_cndmask_b32 v100, v%d, v%d, vcc' % (V(11), V(12)))
        k('v_cndmask_b32 v101, v%d, v%d, vcc' % (V(13), V(14)))
        pk(32, V(3), V(2)); pk(33, V(1), V(0))
        pk(34, V(7), V(6)); pk(35, V(5), V(5))
        pk(36, V(10), V(10)); pk(37, V(9), V(9)); pk(38, V(9), V(8)); pk(39, V(8), V(8))
        pk(40, V(10), V(9)); k('v_mov_b32 v41, v37'); k('v_mov_b32 v42, v39'); k('v_mov_b32 v43, v39')
        for (lo, hi, T, off, rb) in ((11, 12, 100, 2032, 44), (13, 14, 101, 1520, 52)):
            pk(rb, V(hi), V(hi)); pk(rb + 1, V(hi), T); pk(rb + 2, V(lo), V(lo)); k('v_mov_b32 v%d, v%d' % (rb + 3, rb + 2))
            k('v_mov_b32 v%d, v%d' % (rb + 4, rb)); pk(rb + 5, T, V(lo)); k('v_mov_b32 v%d, v%d' % (rb + 6, rb + 2)); k('v_mov_b32 v%d, v%d' % (rb + 7, rb + 2))
        pk(60, V(4), V(3)); pk(61, V(2), V(1))
        pk(62, V(7), V(7)); pk(63, V(6), V(5))
        pk(102, V(0), 196)
        k('ds_write_b64 v9, v[32:33] offset:%d' % (4088 - 504))
        k('ds_write_b64 v9, v[34:35] offset:%d' % (4088 - 512 - 504))
        k('ds_write2_b32 v12, v60, v61 offset0:0 offset1:1')
        k('ds_write2_b32 v13, v62, v63 offset0:0 offset1:1')
        k('ds_write_b128 v10, v[36:39] offset:%d' % (3056 - 1008))
        k('ds_write_b128 v10, v[40:43] offset:%d' % (KO + 3056 - 1008))
        for (off, rb) in ((2032, 44), (1520, 52)):
            k('ds_write_b128 v11, %s offset:%d' % (vr(rb, 4), off - 1520))
            k('ds_write_b128 v11, %s offset:%d' % (vr(rb + 4, 4), KO + off - 1520))
        k('s_mov_b64 exec, 1')
        k('ds_write_b32 v15, v102 offset:%d' % (KO + 4092))
        k('s_mov_b64 exec, -1')
        self.snonce(104, 105)
        self.ts(2)
        k('s_barrier')
        Y = 16
        FB = [64, 128]
        def reads(sg):
            fb = FB[sg % 2]
            out = []
            for c in range(8):
                out.append('ds_read_b128 %s, v%d offset:%d' % (vr(fb + 4 * c, 4), V_A, 4032 - 512 * c - 64 * sg))
                out.append('ds_read_b64 %s, v%d offset:%d' % (vr(fb + 32 + 4 * c, 2), V_B, 448 - 64 * sg + 512 * c))
                out.append('ds_read_b64 %s, v%d offset:%d' % (vr(fb + 34 + 4 * c, 2), V_B, 448 - 64 * sg + 512 * c + 8))
            return out
        self.ts(4)
        k('s_setprio %d' % opt.get('vprio', 0))
        for l in reads(0): k(l)
        pairs = [(c, m) for c in range(8) for m in range(8 - c)]
        SK = 192
        fin = ['v_and_b32 v6, 15, v0', 'v_lshrrev_b32 v7, 4, v0', 'v_lshl_add_u32 v6, v7, 5, v6', 'v_lshlrev_b32 v6, 2, v6',
               'v_add_u32 v6, s%d, v6' % S_CB, 'v_lshlrev_b32 v8, 4, v0', 'v_add_u32 v7, s%d, v8' % S_CB]
        UR = 48
        skip = []
        for i in range(16):
            t = SK + 2 * i
            skip += ['v_lshlrev_b32 v%d, 16, v%d' % (t, UR + i), 'v_and_b32 v%d, 0xffff0000, v%d' % (t + 1, UR + i),
                     'v_mul_f32 v%d, s%d, v%d' % (t, S_DSK, t), 'v_mul_f32 v%d, s%d, v%d' % (t + 1, S_DSK, t + 1),
                     'v_cvt_pk_bf16_f32 v%d, v%d, v%d' % (t + 1, t, t + 1),
                     'v_lshlrev_b32 v%d, 16, v%d' % (t, t + 1), 'v_and_b32 v%d, 0xffff0000, v%d' % (t + 1, t + 1)]
        for sg in range(8):
            k.wait(lg='all')
            if opt.get('cpat'):
                k('s_setprio %d' % (3 if (opt['cpat'] >> sg) & 1 else 0))
            fb = FB[sg % 2]
            nx = reads(sg + 1) if sg < 7 else []
            if sg == 0:
                nx = nx + fin + ['ds_read_b128 %s, v7 offset:%d' % (vr(UR + 4 * z, 4), UX + 64 + 1024 * z) for z in range(4)]
            else:
                take = 12 if sg < 7 else 40
                nx = nx + skip[:take]; skip = skip[take:]
            for i, (c, m) in enumerate(pairs):
                cc = '0' if (sg == 0 and c == 0) else vr(Y + 4 * (c + m), 4)
                k('v_mfma_f32_16x16x32_bf16 %s, %s, %s, %s' % (vr(Y + 4 * (c + m), 4), vr(fb + 4 * c, 4), vr(fb + 32 + 4 * m, 4), cc))
                if nx: k(nx.pop(0))
            emit_list(k, nx)
        assert not skip
        self.ts(5)
        k('s_setprio 3')
        for i in range(8):
            for rr in range(2):
                pk(64 + 2 * i + rr, Y + 4 * i + 2 * rr, Y + 4 * i + 2 * rr + 1)
        for i in range(8):
            k('ds_write2_b32 v6, v%d, v%d offset0:%d offset1:%d' % (64 + 2 * i, 65 + 2 * i, (128 * i) % 256, (128 * i) % 256 + 16))
            if i % 2 == 1 and i < 7: k('v_add_u32 v6, 1024, v6')
        for z in range(4):
            k('ds_read_b128 %s, v7 offset:%d' % (vr(80 + 4 * z, 4), 1024 * z), tag='fy%d' % z)
        k('s_lshl_b32 s64, s%d, 12' % S_D)
        k('s_add_u32 s64, s64, 0x%x' % WS_AT)
        for z in range(4):
            k.wait(lg='fy%d' % z)
            for e in range(4):
                y_ = 80 + 4 * z + e; t = 112; s_ = SK + 2 * (4 * z + e)
                k('v_lshlrev_b32 v%d, 16, v%d' % (t, y_))
                k('v_and_b32 v%d, 0xffff0000, v%d' % (t + 1, y_))
                k('v_add_f32 v%d, v%d, v%d' % (t, t, s_))
                k('v_add_f32 v%d, v%d, v%d' % (t + 1, t + 1, s_ + 1))
                k('v_cvt_pk_bf16_f32 v%d, v%d, v%d' % (128 + 4 * z + e, t, t + 1))
            k('buffer_store_dwordx4 %s, v8, s[%d:%d], s64 offen offset:%d sc1' % (vr(128 + 4 * z, 4), R_WS, R_WS + 3, 1024 * z))
        k('s_lshr_b32 s64, s%d, 3' % S_D)
        k('s_lshl_b32 s64, s64, 5')
        k('s_and_b32 s65, s%d, 7' % S_D)
        k('s_add_u32 s64, s64, s65')
        k('s_lshl_b32 s64, s64, 2')
        k('s_add_u32 s64, s64, 0x%x' % WS_FA)
        self.ts(6)
        k.wait(vm='all')
        self.flag_store_rep(9, 10, 's64', FA_RS)
        self.ts(7)
        self.ts_store()
        k('s_endpgm')

    def build(self):
        import gemm7
        k = self.k
        self.prologue()
        self.misc()
        self.chan()
        k.reset_counts()
        self.mark('gemm_head')
        k.label('L_gemm')
        self.ets(1)
        if self.opt.get('nogemm'): k('s_endpgm')
        else: gemm7.emit(self)
        self.mark('end')
        k.label('L_end')
        k('s_endpgm')
        secs = {}; prev = ('pro', 0)
        for m in self.marks + [('eof', len(k.items))]:
            secs[prev[0]] = k.items[prev[1]:m[1]]; prev = m
        order = ['pro', 'chan_head', 'misc_head', 'idle', 'gemm_head', 'chan_main', 'misc_main', 'gemm_main', 'end']
        k.items = sum((secs[n] for n in order if n in secs), [])
        assert set(secs) <= set(order)
        if self.opt.get('ipf'): k.raw('.fill ((%d - (. - %s)) / 4), 4, 0xbf810000' % (64 * 128 * self.opt['ipf'] + 256, KNAME))
        hdr = open('gated_mix__ssm_conv_s4__dense_activation_silu__prompt.s.ref').read().split('; Override launch')[0]
        s = hdr + '; @launch grid=(512,1,1) block=(256,1,1) lds=81920\n'
        s += '.amdgcn_target "amdgcn-amd-amdhsa--gfx950"\n.text\n.globl %s\n.p2align 8\n.type %s,@function\n%s:\n' % (KNAME, KNAME, KNAME)
        s += k.text()
        s += '.section .rodata,"a"\n.p2align 6\n.amdhsa_kernel %s\n' % KNAME
        s += '  .amdhsa_next_free_vgpr 256\n  .amdhsa_next_free_sgpr 102\n  .amdhsa_accum_offset 256\n  .amdhsa_group_segment_fixed_size 0\n'
        s += '  .amdhsa_kernarg_size 128\n  .amdhsa_user_sgpr_count 2\n  .amdhsa_user_sgpr_kernarg_segment_ptr 1\n  .amdhsa_system_sgpr_workgroup_id_x 1\n.end_amdhsa_kernel\n'
        return s

if __name__ == '__main__':
    opt = {}
    out = sys.argv[1]
    for a in sys.argv[2:]:
        if '=' in a:
            kk, v = a.split('='); opt[kk] = int(v, 0)
        else: opt[a] = 1
    g = Gen(opt)
    open(out, 'w').write(g.build())
    print('nops inserted', g.k.nops, 'lines', len(g.k.items))
```

```python
from kgen import *
from gen10 import *

def emit(G):
    k = G.k
    opt = G.opt
    S_LW, S_HS, S_WST, S_FH, S_FC, S_GR, S_AD, S_OUT, S_A3 = 9, 11, 12, 14, 15, 40, 43, 46, 47
    S_XZ, S_WZ = 68, 73
    VX, VW = 2, 6
    ROT = opt.get('krot') or opt.get('grot')
    k('v_lshrrev_b32 v10, 4, v0')
    k('v_and_b32 v11, 15, v0')
    k('v_xor_b32 v13, v11, v10')
    k('v_lshlrev_b32 v13, 4, v13')
    k('s_mul_i32 s64, s%d, %d' % (S_WAVE, 16 * 1280))
    k('v_mul_u32_u24 v12, 1280, v10')
    k('v_add_u32 v12, s64, v12')
    k('v_add_u32 v%d, v12, v13' % VX)
    for n in range(1, 4):
        k('v_xor_b32 v14, %d, v13' % (64 * n))
        k('v_add_u32 v12, 4096, v12')
        k('v_add_u32 v%d, v12, v14' % (VX + n))
    k('s_mul_i32 s64, s%d, %d' % (S_RHO, 64 * 1280))
    if opt.get('grot'):
        k('s_and_b32 s66, s%d, 7' % S_RHO)
        k('s_mul_i32 s67, s66, 43')
        k('s_lshr_b32 s67, s67, 7')
        k('s_mul_i32 s65, s67, 3')
        k('s_sub_u32 s79, s66, s65')
        k('s_and_b32 s66, s%d, 3' % S_J)
        k('s_lshl1_add_u32 s66, s67, s66')
        k('s_sub_u32 s67, s66, 5')
        k('s_cmp_ge_u32 s66, 5')
        k('s_cselect_b32 s66, s67, s66')
    elif opt.get('krot'):
        k('s_mov_b32 s79, 0')
        k('s_add_u32 s66, s%d, s%d' % (S_RHO, S_J))
        k('s_mul_i32 s67, s66, 205')
        k('s_lshr_b32 s67, s67, 10')
        k('s_mul_i32 s67, s67, 5')
        k('s_sub_u32 s66, s66, s67')
    else:
        k('s_mov_b32 s79, 0')
        k('s_mov_b32 s66, 0')
    k('s_lshl_b32 s67, s66, 8')
    k('s_add_u32 s%d, s64, s67' % S_XZ)
    k('s_lshl_b32 s%d, s%d, 12' % (S_LW, S_WAVE))
    seq = []
    pat = {0: 'XWXWXWXWXW', 1: 'XXXXXWWWWW', 2: 'XXXWXWXWWW', 3: 'XXWXWXWXWW'}[opt.get('xfirst', 0)]
    cnt = {'X': 0, 'W': 0}
    for ch in pat:
        seq.append((ch, cnt[ch], 0)); cnt[ch] += 1
    LASTX = max(i for i in range(10) if pat[i] == 'X')
    for r in (1, 2):
        for z in range(5): seq.append(('W', z, r))
    def dma(i):
        typ, z, r = seq[i]
        out = ['s_add_u32 m0, s%d, %d' % (S_LW, 16384 * (i % 5))]
        so = S_XZ + z if typ == 'X' else S_WZ + z
        if typ == 'W' and r > 0: out.append('s_add_u32 s%d, s%d, s%d' % (so, so, S_WST + r - 1))
        rr = R_U if typ == 'X' else R_W
        for n in range(4):
            out.append(('buffer_load_dwordx4 v%d, s[%d:%d], s%d offen offset:%d lds' % ((VX if typ == 'X' else VW) + n, rr, rr + 3, so, 1024 * n), 'S%d' % i))
        return out
    k('s_waitcnt lgkmcnt(0)')
    G.ets(3)
    G.srd_base(R_U, P_U)
    if opt.get('gdelay'): k('s_sleep %d' % opt['gdelay'])
    emit_list(k, dma(0))
    k('v_lshrrev_b32 v12, 3, v0')
    k('s_lshl_b32 s65, s%d, 5' % S_WAVE)
    k('v_add_u32 v12, s65, v12')
    k('v_mul_u32_u24 v12, 3072, v12')
    k('v_and_b32 v13, 7, v0')
    k('v_and_b32 v14, 1, v10')
    k('v_lshlrev_b32 v14, 2, v14')
    k('v_xor_b32 v13, v13, v14')
    k('v_lshl_add_u32 v%d, v13, 4, v12' % VW)
    for n in range(1, 4):
        k('v_add_u32 v%d, %d, v%d' % (VW + n, n * (8 * 3072 - 1024), VW))
    k('s_mul_i32 s65, s%d, 384' % S_J)
    k('s_lshl_b32 s67, s79, 7')
    k('s_add_u32 s65, s65, s67')
    G.srd_base(R_W, P_W1); G.srd_tail(R_W, 640 * 1536 * 2)
    for z in range(5):
        if z:
            k('s_lshl_b32 s67, s66, 8')
            k('s_add_u32 s%d, s64, s67' % (S_XZ + z))
        k('s_mul_i32 s67, s66, %d' % (128 * 3072))
        k('s_add_u32 s%d, s65, s67' % (S_WZ + z))
        if z < 4:
            k('s_add_u32 s66, s66, 1')
            k('s_cmp_eq_u32 s66, 5')
            k('s_cselect_b32 s66, 0, s66')
    k('s_mov_b32 s%d, s79' % S_GR)
    def touch_go():
        L = k.newlabel('L_nt')
        k('s_cmp_lg_u32 s%d, 0' % S_WAVE)
        k('s_cbranch_scc1 %s' % L)
        emit_list(k, ['v_min_u32 v30, 59, v0', 'v_mul_u32_u24 v31, 43, v30', 'v_lshrrev_b32 v31, 9, v31',
             'v_mul_u32_u24 v31, %d, v31' % (3072 - 128 * 12), 'v_lshl_add_u32 v30, v30, 7, v31',
             's_bfe_u32 s78, s2, 0x50003', 's_bfe_u32 s79, s2, 0x20001', 's_lshl_b32 s79, s79, 5', 's_add_u32 s78, s78, s79',
             's_mul_i32 s78, s78, %d' % (5 * 3072), 's_and_b32 s79, s2, 1', 's_mul_i32 s79, s79, %d' % (128 * 12), 's_add_u32 s78, s78, s79'])
        k('buffer_load_dword v31, v30, s[%d:%d], s78 offen' % (R_W, R_W + 3)); k.vm.pop()
        k.label(L)
    PF = opt.get('pf1', -1)
    LA_ = opt.get('la', 4)
    NPRE = opt.get('npre', 2)
    for i in range(1, NPRE):
        if i == PF: touch_go()
        emit_list(k, dma(i))
    G.ets(4)
    G.cut('gemm_main')
    G.ts_init()
    if opt.get('gprio'): k('s_setprio %d' % opt['gprio'])
    G.srd_base(R_WS, P_WS)
    G.srd_base(R_O, P_OUT); G.srd_tail(R_O, 2048 * 640 * 2)
    for r in (1, 2):
        k('s_add_u32 s%d, s%d, 1' % (S_GR + r, S_GR + r - 1))
        k('s_cmp_eq_u32 s%d, 3' % (S_GR + r))
        k('s_cselect_b32 s%d, 0, s%d' % (S_GR + r, S_GR + r))
        k('s_sub_u32 s%d, s%d, s%d' % (S_WST + r - 1, S_GR + r, S_GR + r - 1))
        k('s_lshl_b32 s%d, s%d, 7' % (S_WST + r - 1, S_WST + r - 1))
    k('s_and_b32 s78, s%d, 1' % S_WAVE)
    k('s_lshr_b32 s79, s%d, 1' % S_WAVE)
    XA = 16
    WA, WAH, VH = 24, 25, 26
    k('v_and_b32 v12, 31, v0')
    k('v_lshrrev_b32 v13, 5, v0')
    k('s_lshl_b32 s64, s78, 13')
    k('v_xor_b32 v14, v13, v11')
    k('v_lshlrev_b32 v14, 4, v14')
    k('v_lshl_add_u32 v14, v12, 8, v14')
    k('v_add_u32 v%d, s64, v14' % XA)
    for s in range(1, 8): k('v_xor_b32 v%d, %d, v%d' % (XA + s, 32 * s, XA))
    k('v_bfe_u32 v14, v0, 2, 2')
    k('v_lshl_add_u32 v15, v13, 3, v14')
    k('v_lshlrev_b32 v15, 7, v15')
    k('v_and_b32 v27, 1, v10')
    k('v_bfe_u32 v28, v0, 1, 1')
    k('v_lshl_add_u32 v27, v27, 1, v28')
    k('s_lshl_b32 s64, s79, 2')
    k('v_add_u32 v27, s64, v27')
    k('v_lshrrev_b32 v14, 1, v14')
    k('v_lshlrev_b32 v14, 2, v14')
    k('v_xor_b32 v27, v27, v14')
    k('v_lshl_add_u32 v15, v27, 4, v15')
    k('v_and_b32 v27, 1, v0')
    k('v_lshl_add_u32 v%d, v27, 3, v15' % WA)
    k('v_add_u32 v%d, 0x10000, v%d' % (WAH, WA))
    k('v_lshrrev_b32 v14, 4, v12')
    k('s_lshl_b32 s64, s78, 1')
    k('v_add_u32 v14, s64, v14')
    k('v_lshlrev_b32 v14, 10, v14')
    k('v_lshl_add_u32 v15, v13, 4, v11')
    k('v_lshl_add_u32 v%d, v15, 4, v14' % VH)
    k('s_mul_i32 s66, s%d, 48' % S_RHO)
    k('s_mul_i32 s67, s%d, 6' % S_J)
    k('s_add_u32 s66, s66, s67')
    k('s_add_u32 s66, s66, s79')
    k('s_lshl_b32 s66, s66, 12')
    k('s_add_u32 s%d, s66, 0x%x' % (S_HS, WS_H))
    k('s_mul_i32 s66, s%d, 1536' % S_RHO)
    k('s_add_u32 s66, s66, 0x%x' % WS_FH)
    k('s_mul_i32 s67, s%d, 384' % S_WAVE)
    k('s_add_u32 s%d, s66, s67' % S_FC)
    k('s_lshr_b32 s67, s%d, 1' % S_J)
    k('s_mul_i32 s67, s67, 384')
    k('s_add_u32 s66, s66, s67')
    k('s_and_b32 s67, s%d, 1' % S_J)
    k('s_lshl2_add_u32 s%d, s67, s66' % S_FH)
    k('s_mov_b32 s%d, 0' % S_AD)
    k('s_lshl2_add_u32 s%d, s%d, s%d' % (S_OUT, S_RHO, S_WAVE))
    k('s_mul_i32 s%d, s%d, %d' % (S_OUT, S_OUT, 16 * 1280))
    k('s_mul_i32 s66, s%d, 160' % S_J)
    k('s_add_u32 s%d, s%d, s66' % (S_OUT, S_OUT))
    k('s_cmp_lt_u32 s%d, 2' % S_WAVE)
    k('s_cselect_b32 s%d, 1024, 0' % S_A3)
    FA, FBs = 32, 48
    ACC = [64, 80, 64]
    XF = 96
    def wread(i, half, s):
        base = 16384 * (i % 5)
        reg = WAH if base >= 65536 else WA
        off = base & 0xffff
        fs = FA if half == 0 else FBs
        return [('ds_read_b64_tr_b16 %s, v%d offset:%d' % (vr(fs + 4 * s + 2 * e, 2), reg, off + (4 * half + s) * 2048 + 512 * e), 'w%d%d' % (half, s)) for e in range(2)]
    def mfma(i, half, s):
        typ, z, r = seq[i]
        fs = FA if half == 0 else FBs
        c = '0' if (z == 0 and half == 0 and s == 0) else vr(ACC[r], 16)
        return 'v_mfma_f32_32x32x16_bf16 %s, %s, %s, %s' % (vr(ACC[r], 16), vr(fs + 4 * s, 4), vr(XF + 4 * (8 * z + 4 * half + s), 4), c)
    NL2 = fhex(-LOG2E)
    def epi(r):
        a = ACC[r]
        out = []
        for p in range(8):
            t = 10 if p % 2 == 0 else 28
            if opt.get('fastsilu'):
                x0, x1 = a + 2 * p, a + 2 * p + 1
            else:
                x0, x1 = t, t + 1
                out += ['v_cvt_pk_bf16_f32 v%d, v%d, v%d' % (t + 2, a + 2 * p, a + 2 * p + 1),
                        'v_lshlrev_b32 v%d, 16, v%d' % (t, t + 2),
                        'v_and_b32 v%d, 0xffff0000, v%d' % (t + 1, t + 2)]
            out += ['v_mul_f32 v%d, %s, v%d' % (t + 2, NL2, x0),
                    'v_mul_f32 v%d, %s, v%d' % (t + 3, NL2, x1),
                    'v_exp_f32 v%d, v%d' % (t + 2, t + 2),
                    'v_exp_f32 v%d, v%d' % (t + 3, t + 3),
                    'v_add_f32 v%d, 1.0, v%d' % (t + 2, t + 2),
                    'v_add_f32 v%d, 1.0, v%d' % (t + 3, t + 3),
                    'v_rcp_f32 v%d, v%d' % (t + 2, t + 2),
                    'v_rcp_f32 v%d, v%d' % (t + 3, t + 3),
                    'v_mul_f32 v%d, v%d, v%d' % (t + 2, x0, t + 2),
                    'v_mul_f32 v%d, v%d, v%d' % (t + 3, x1, t + 3),
                    'v_cvt_pk_bf16_f32 v%d, v%d, v%d' % (a + p, t + 2, t + 3)]
        out += ['s_lshl_b32 s66, s%d, 13' % (S_GR + r), 's_add_u32 s66, s66, s%d' % S_HS]
        for s in range(2):
            out.append(('buffer_store_dwordx4 %s, v%d, s[%d:%d], s66 offen offset:%d sc1' % (vr(a + 4 * s, 4), VH, R_WS, R_WS + 3, 512 * s), 'hst%d' % r))
        return out
    def hflag(r):
        L = k.newlabel('L_nf')
        k('s_cmp_lg_u32 s%d, %d' % (S_WAVE, r))
        k('s_cbranch_scc1 %s' % L)
        k('s_add_u32 s67, s%d, %d' % (S_FH, 128 * r))
        G.flag_store_rep(14, 15, 's67', FH_RS); k.vm.pop()
        k.label(L)
    S_W0, S_H0, S_FA, S_AT, S_GG, S_PC, S_PE, S_PB, S_AC, S_AE = 68, 69, 70, 71, 72, 73, 74, 75, 76, 77
    VL, VL4, VT = 16, 17, 18
    VFH, VFW = 22, 23
    WD, HD = opt.get('wdepth', 4), opt.get('hdepth', 2)
    assert 5 * WD + 4 * HD <= 36
    WB4 = opt.get('wb4', 3)
    def Wr(st, sub):
        b = st % WD
        return XF + 4 * (5 * b + sub + (4 * HD if b >= WB4 else 0))
    Hr = lambda st, T: XF + 4 * (5 * min(WB4, WD) + 4 * (st % HD) + T)
    kap = lambda st: 6 * ((st >> 1) & 1) + (st & 1)
    def g2_setup():
        o = ['v_lshlrev_b32 v%d, 4, v0' % VL, 'v_add_u32 v%d, 0x1000, v%d' % (VL4, VL)]
        for T in range(4):
            o += ['s_xor_b32 s65, s%d, %d' % (S_WAVE, T), 's_lshl_b32 s65, s65, 10', 'v_add_u32 v%d, s65, v%d' % (VT + T, VL)]
        o += ['v_and_b32 v%d, 1, v0' % VFH, 'v_lshlrev_b32 v%d, 2, v%d' % (VFH, VFH),
              's_lshl2_add_u32 s64, s%d, s%d' % (S_J, S_WAVE), 's_mul_i32 s64, s64, %d' % (12 * 5120), 's_add_u32 s%d, s64, 0x%x' % (S_W0, WS_W2P),
              's_lshl2_add_u32 s64, s%d, s%d' % (S_RHO, S_WAVE), 's_mul_i32 s65, s64, %d' % (12 * 4096), 's_add_u32 s%d, s65, 0x%x' % (S_H0, WS_H),
              's_lshl_b32 s64, s64, 7', 's_add_u32 s%d, s64, 0x%x' % (S_GG, WS_G),
              's_mul_i32 s64, s%d, %d' % (S_J, 10 * 128), 's_add_u32 s%d, s64, 0x%x' % (S_FA, WS_FA),
              's_mul_i32 s64, s%d, %d' % (S_J, 80 * 4096), 's_lshl_b32 s65, s%d, 7' % S_RHO, 's_add_u32 s64, s64, s65', 's_add_u32 s%d, s64, 0x%x' % (S_AT, WS_AT),
              's_mul_i32 s64, s%d, 5' % S_J, 's_lshr_b32 s78, s64, 3', 's_add_u32 s64, s64, 4', 's_lshr_b32 s79, s64, 3',
              's_lshl_b32 s78, s78, 8', 's_lshl_b32 s79, s79, 8', 's_mul_i32 s64, s%d, 48' % S_WAVE, 's_add_u32 s64, s64, 0x%x' % WS_FW,
              's_add_u32 s78, s78, s64', 's_add_u32 s79, s79, s64', 's_sub_u32 s64, s79, s78',
              'v_and_b32 v%d, 15, v0' % VFW, 'v_min_u32 v%d, 11, v%d' % (VFW, VFW), 'v_lshlrev_b32 v%d, 2, v%d' % (VFW, VFW),
              'v_bfe_u32 v27, v0, 4, 1', 'v_mul_u32_u24 v27, s64, v27', 'v_add_u32 v%d, v%d, v27' % (VFW, VFW)]
        return o
    def wload(st):
        o = ['s_mul_i32 s64, s%d, 10240' % (S_GR + (st >> 2)), 's_add_u32 s64, s64, s%d' % S_W0, 's_add_u32 s64, s64, %d' % (kap(st) * 5120)]
        for sub in range(5):
            o.append(('buffer_load_dwordx4 %s, v%d, s[%d:%d], s64 offen offset:%d sc1' % (vr(Wr(st, sub), 4), VL4 if sub == 4 else VL, R_WS, R_WS + 3, 1024 * (sub % 4)), 'W%d' % st))
        return o
    def hloads(st):
        o = ['s_lshl_b32 s65, s%d, 13' % (S_GR + (st >> 2)), 's_add_u32 s65, s65, s%d' % S_H0, 's_add_u32 s65, s65, %d' % (kap(st) * 4096)]
        for T in range(4):
            o.append(('buffer_load_dwordx4 %s, v%d, s[%d:%d], s65 offen sc1' % (vr(Hr(st, T), 4), VT + T, R_WS, R_WS + 3), 'H%d' % st))
        return o
    def take(q, n):
        o = q[:n]; del q[:n]; return o
    def h_issue():
        k('s_load_dwordx2 s[16:17], s[%d:%d], s18' % (R_WS, R_WS + 1))
    def sflag_issue(rank):
        k('s_add_u32 s20, s%d, %d' % (S_FC, 128 * rank))
        k('s_mov_b32 s18, s20')
        h_issue()
        k('s_add_u32 s18, s18, %d' % FH_RS)
        k('s_add_u32 s19, s20, %d' % (NREP * FH_RS))
    def sflag_check(rank):
        k('s_waitcnt lgkmcnt(0)')
        G.s_allok(16, 2)
        G.slow('scc1', lambda: G.spoll_loop(h_issue, 16, 2, 18, 19, FH_RS, lambda: G.poll(27, VFH, 's20')))
    def w_issue():
        k('s_load_dwordx8 s[16:23], s[%d:%d], s78' % (R_WS, R_WS + 1))
        k('s_load_dwordx4 s[24:27], s[%d:%d], s78 offset:32' % (R_WS, R_WS + 1))
        k('s_load_dwordx8 s[28:35], s[%d:%d], s79' % (R_WS, R_WS + 1))
        k('s_load_dwordx4 s[36:39], s[%d:%d], s79 offset:32' % (R_WS, R_WS + 1))
    def w_check():
        k('s_waitcnt lgkmcnt(0)')
        G.s_allok(16, 24)
        G.slow('scc1', lambda: G.poll(27, VFW, 's78'))
    epq = []; mq = []
    LA0 = opt.get('la0', LA_)
    GB = opt.get('gapb', 48)
    st8 = {'n': NPRE}
    def cost(f):
        t = f[0] if isinstance(f, tuple) else f
        return 8 if t.startswith(('v_exp', 'v_rcp')) else 4
    gcount = [0]
    VM_MASK = opt.get('vmask', 0xff)
    def gap(used, g=0):
        nv = 0
        while mq and nv < (opt.get('vper', 2) if (VM_MASK >> g) & 1 else 0):
            f = mq.pop(0); emit_list(k, [f]); used += 4
            if isinstance(f, tuple): nv += 1
        while epq and used + cost(epq[0]) <= GB:
            f = epq.pop(0); emit_list(k, [f]); used += cost(f)
    F0AT, PWAT, H0AT = opt.get('f0at', 15), opt.get('pwat', 14), opt.get('h0at', 18)
    def younger(a, b):
        ia = max(i for i, t in enumerate(k.vm) if t == a); ib = max(i for i, t in enumerate(k.vm) if t == b)
        return a if ia > ib else b
    def sync(i, lg):
        if any(isinstance(f, tuple) and f[1] == 'S%d' % i for f in mq): emit_list(k, take(mq, 1000))
        k.wait(vm=(younger('S%d' % i, 'hst0') if i == F0AT else 'S%d' % i), lg=lg)
        k('s_barrier')
        if i < 10: G.pr(301, i)
        if i >= 10: G.pr(302, i - 10)
        if i == 0: G.ts(1)
        if i == 10: G.ts(2)
        if i == 15: G.ts(3)
        if i == F0AT: hflag(0)
        la = LA0 if i < opt.get('la0end', 8) else LA_
        upto = max(min(i + la - 1, i + 3), min(4, i + la))
        while st8['n'] < 20 and st8['n'] <= upto:
            if st8['n'] == PF: touch_go()
            mq.extend(dma(st8['n'])); st8['n'] += 1
        if i == 6: k('s_load_dword s%d, s[%d:%d], 0' % (S_NONCE, P_DBG, P_DBG + 1))
        if i == 9: G.snonce(14, 15, first=1)
        if i == PWAT and not opt.get('noa'): w_issue()
        if i == H0AT - 1: sflag_issue(0)
    plan = []
    for b in range(WD):
        if b == WB4: plan += [('H', h) for h in range(HD)]
        plan.append(('W', b))
    if WB4 >= WD: plan += [('H', h) for h in range(HD)]
    def top(it): return ((Wr(it[1], 4) if it[0] == 'W' else Hr(it[1], 3)) - XF) // 4 + 1
    hchk = [False]
    def prefetch(free, now):
        while plan and top(plan[0]) <= free:
            it = plan[0]
            if it[0] == 'H':
                if now < H0AT:
                    nxt = [p for p in plan if p[0] == 'W' and top(p) <= free]
                    if not nxt: return
                    it = nxt[0]
                elif not hchk[0]:
                    sflag_check(0); hchk[0] = True
            plan.remove(it)
            mq.extend(wload(it[1]) if it[0] == 'W' else hloads(it[1]))
    sync(0, None)
    pend = None
    for i in range(20):
        typ, z, r = seq[i]
        base = 16384 * (i % 5)
        for s in range(4):
            used = 8
            if pend is not None:
                k.wait(lg='w1%d' % s); k(pend[s]); used += 4
            if typ == 'W': emit_list(k, wread(i, 0, s))
            else:
                for s2 in (2 * s, 2 * s + 1):
                    if base >= 65536:
                        k('v_add_u32 v%d, 0x10000, v%d' % (10 + s2 % 4, XA + s2))
                        k('ds_read_b128 %s, v%d' % (vr(XF + 4 * (8 * z + s2), 4), 10 + s2 % 4), tag='x%d' % i)
                    else:
                        k('ds_read_b128 %s, v%d offset:%d' % (vr(XF + 4 * (8 * z + s2), 4), XA + s2, base), tag='x%d' % i)
            gap(used, s)
        pend = None
        prevx = 'x%d' % (i - 1) if (i > 0 and seq[i - 1][0] == 'X') else None
        if typ == 'X':
            emit_list(k, take(mq, 1000))
            if i == LASTX: emit_list(k, g2_setup())
            sync(i + 1, prevx)
            continue
        if z == 0 and r > 0: epq.extend(epi(r - 1))
        if r == 2 and z >= 1:
            if z == 1 and not opt.get('noa'): w_check()
            prefetch(8 * z, i)
        for s in range(4):
            k.wait(lg='w0%d' % s)
            k(mfma(i, 0, s))
            if s < 2:
                emit_list(k, wread(i, 1, 2 * s) + wread(i, 1, 2 * s + 1))
                gap(20 if (z or s) else 1000, 4 + s)
            elif s == 2 and i < 19:
                if i + 1 == F0AT: emit_list(k, take(epq, 1000))
                sync(i + 1, None)
            else:
                gap(4, 4 + s)
        pend = [mfma(i, 1, s) for s in range(4)]
        if i in (14, 19): emit_list(k, take(epq, 1000))
    if not opt.get('pace'): emit_list(k, take(mq, 1000))
    F1AT = opt.get('f1at', -1)
    if F1AT == -2: k.wait(vm='hst1', lg='all')
    else: k.wait(lg='all')
    k(pend[0])
    k('s_barrier')
    if F1AT == -2: hflag(1)
    for s in range(1, 4): k(pend[s])
    G.ts(4)
    epq = epi(2)
    if H0AT >= 20:
        prefetch(40, 19); emit_list(k, take(mq, 1000))
        emit_list(k, take(epq, opt.get('e2a', 10)))
        if H0AT > 20: sflag_issue(0)
        emit_list(k, take(epq, opt.get('e2b', 40)))
    prefetch(40, 99)
    if opt.get('pace'):
        while mq and epq:
            while mq:
                f = mq.pop(0); emit_list(k, [f])
                if isinstance(f, tuple): break
            emit_list(k, take(epq, opt['pace']))
    emit_list(k, take(mq, 1000))
    emit_list(k, take(epq, 1000))
    if F1AT == -1:
        k.wait(vm='hst1'); k('s_barrier'); hflag(1)
    G.ts(5)
    accs = [32 + 4 * i for i in range(16)] + [240 + 4 * i for i in range(4)]
    A2 = lambda T, sub: accs[5 * T + sub]
    LA = 61440
    LO = 71680
    V_FA, V_AD, V_G, V_AR, V_OW, V_OR, V_OS = 2, 3, 4, 5, 6, 7, 10
    V_PW, V_PR = 24, 9
    su = ['v_lshrrev_b32 v10, 3, v0', 'v_min_u32 v11, 2, v10', 'v_lshlrev_b32 v11, 2, v11', 'v_add_u32 v11, s%d, v11' % S_WAVE,
          'v_min_u32 v11, 9, v11', 'v_and_b32 v12, 7, v0', 'v_lshl_add_u32 v11, v11, 5, v12', 'v_lshlrev_b32 v%d, 2, v11' % V_FA,
          's_lshl_b32 s%d, s%d, 7' % (S_AC, S_WAVE), 's_add_u32 s%d, s%d, s%d' % (S_AC, S_AC, S_FA), 's_add_u32 s%d, s%d, %d' % (S_AE, S_AC, NREP * FA_RS),
          'v_lshlrev_b32 v10, 12, v10', 'v_lshl_add_u32 v%d, v12, 4, v10' % V_AD,
          'v_and_b32 v13, 15, v0', 'v_lshlrev_b32 v%d, 3, v13' % V_G,
          'v_lshrrev_b32 v10, 2, v0', 'v_and_b32 v11, 3, v0', 'v_lshlrev_b32 v10, 7, v10', 'v_lshl_add_u32 v10, v11, 3, v10',
          's_lshl_b32 s66, s%d, 5' % S_WAVE, 's_add_u32 s66, s66, %d' % LA, 'v_add_u32 v%d, s66, v10' % V_AR,
          's_mul_i32 s66, s%d, 2560' % S_WAVE, 's_add_u32 s66, s66, %d' % LO,
          'v_mul_u32_u24 v10, 160, v13', 'v_lshrrev_b32 v11, 4, v0', 'v_lshl_add_u32 v10, v11, 3, v10', 'v_add_u32 v%d, s66, v10' % V_OW,
          'v_add_u32 v%d, s66, v%d' % (V_OR, VL)]
    for n in range(3):
        su += ['v_add_u32 v13, %d, v0' % (64 * n), 'v_mul_u32_u24 v28, 205, v13', 'v_lshrrev_b32 v28, 11, v28',
               'v_mul_u32_u24 v28, %d, v28' % (1280 - 160), 'v_lshl_add_u32 v%d, v13, 4, v28' % (V_OS + n)]
    for T in range(1, 4):
        su += ['s_xor_b32 s66, s%d, %d' % (S_WAVE, T), 's_mul_i32 s66, s66, 15360', 's_add_u32 s66, s66, %d' % (5120 * (T - 1)),
               'v_add_u32 v%d, s66, v%d' % (V_PW + T - 1, VL)]
    su += ['s_mul_i32 s66, s%d, 15360' % S_WAVE, 'v_add_u32 v%d, s66, v%d' % (V_PR, VL)]
    def a_dma():
        for n in range(3):
            if n < 2: k('s_add_u32 s66, s%d, %d' % (S_WAVE, 4 * n))
            else:
                k('s_lshr_b32 s66, s%d, 7' % S_A3)
                k('s_add_u32 s66, s66, s%d' % S_WAVE)
            k('s_lshl_b32 s67, s66, 15')
            k('s_add_u32 s67, s67, s%d' % S_AT)
            k('s_lshl_b32 s66, s66, 10')
            k('s_add_u32 m0, s66, %d' % LA)
            k('buffer_load_dwordx4 v%d, s[%d:%d], s67 offen sc1 lds' % (V_AD, R_WS, R_WS + 3)); k.vm.pop()
    def a_issue():
        k('s_load_dwordx8 s[16:23], s[%d:%d], s%d' % (R_WS, R_WS + 1, S_AC))
        k('s_load_dwordx8 s[24:31], s[%d:%d], s%d offset:512' % (R_WS, R_WS + 1, S_AC))
        k('s_add_u32 s67, s%d, s%d' % (S_AC, S_A3))
        k('s_load_dwordx8 s[32:39], s[%d:%d], s67' % (R_WS, R_WS + 1))
    F2AT = opt.get('f2at', 2)
    AST = opt.get('ast', 9)
    wr = [(T, sub) for T in range(1, 4) for sub in range(5)]
    pw = lambda T, sub: 'ds_write_b128 v%d, %s offset:%d' % (V_PW + T - 1, vr(A2(T, sub), 4), 1024 * sub)
    for st in range(12):
        tg = younger('W%d' % st, 'H%d' % st)
        fl = [r for r, at in ((1, F1AT), (2, F2AT)) if at == st]
        for r in fl: tg = younger(tg, 'hst%d' % r)
        k.wait(vm=tg)
        if fl:
            k('s_barrier')
            for r in fl: hflag(r)
        if st == 0: G.ts(6)
        if st < 10: G.pr(300, st)
        if st == 11: G.pr(303, 0)
        nxt = st + HD
        chk = nxt < 12 and nxt % 4 == 0
        if (nxt + 1) < 12 and (nxt + 1) % 4 == 0 and opt.get('hearly'): sflag_issue((nxt + 1) >> 2)
        if chk:
            if opt.get('hearly'): sflag_check(nxt >> 2); chk = False
            else: sflag_issue(nxt >> 2)
        if st == AST and not opt.get('noa'):
            L = k.newlabel('L_noa')
            k('s_waitcnt lgkmcnt(0)')
            G.s_allok(16, 24)
            k('s_cbranch_scc1 %s' % L)
            a_dma()
            k('s_mov_b32 s%d, 1' % S_AD)
            k.label(L)
        hl = hloads(nxt) if (nxt < 12 and not chk) else []
        emit_list(k, take(hl, 3))
        n = 0
        for T in ((0, 1, 2, 3) if st < 11 else (1, 2, 3, 0)):
            for sub in range(5):
                c = '0' if st == 0 else vr(A2(T, sub), 4)
                k('v_mfma_f32_16x16x32_bf16 %s, %s, %s, %s' % (vr(A2(T, sub), 4), vr(Wr(st, sub), 4), vr(Hr(st, T), 4), c))
                n += 1
                if st == 11 and n >= 6: k(pw(*wr.pop(0)))
                if st in (1, 2, 3): emit_list(k, take(su, 1))
            emit_list(k, take(hl, 1))
        if st == 3: emit_list(k, take(su, 1000))
        if chk:
            sflag_check(nxt >> 2)
            emit_list(k, hloads(nxt))
        if st == AST - 1 and not opt.get('noa'):
            a_issue()
            k('s_add_u32 s%d, s%d, %d' % (S_AC, S_AC, FA_RS))
        if st == 8:
            k('buffer_load_dwordx2 v[30:31], v%d, s[%d:%d], s%d offen sc1' % (V_G, R_WS, R_WS + 3, S_GG), tag='g')
        if st + WD < 12: emit_list(k, wload(st + WD))
    G.ts(7)
    G.pr(303, 1)
    assert not wr
    if not opt.get('noa'): G.poll(30, V_G, 's%d' % S_GG, n=2, first='g', waited=True, which=[1])
    k('v_sub_f32 v28, 1.0, v30')
    k('v_mov_b32 v31, v30')
    k('v_cvt_pk_bf16_f32 v28, v28, v28')
    k('v_lshlrev_b32 v28, 16, v28')
    k('v_mov_b32 v29, v28')
    k('s_waitcnt lgkmcnt(0)')
    k('s_barrier')
    G.pr(303, 2)
    RB = 96
    for sub in range(5):
        for p in range(3):
            k('ds_read_b128 %s, v%d offset:%d' % (vr(RB + 12 * sub + 4 * p, 4), V_PR, 5120 * p + 1024 * sub), tag='r%d' % sub)
    if not opt.get('noa'):
        def late_a():
            G.spoll_loop(a_issue, 16, 24, S_AC, S_AE, FA_RS, lambda: G.poll(8, V_FA, 's%d' % S_FA), sleep=opt.get('asleep', 4))
            a_dma()
        k('s_cmp_lg_u32 s%d, 0' % S_AD)
        G.slow('scc0', late_a)
    G.ts(8)
    fast = opt.get('fastfin')
    def rnd(x):
        k('v_cvt_pk_bf16_f32 v%d, v%d, v%d' % (x + 1, x, x + 1))
        k('v_lshlrev_b32 v%d, 16, v%d' % (x, x + 1))
        k('v_and_b32 v%d, 0xffff0000, v%d' % (x + 1, x + 1))
    def red(sub):
        a = A2(0, sub); rb = RB + 12 * sub
        k.wait(lg='r%d' % sub)
        for hf in range(2):
            x = a + 2 * hf
            k('v_pk_add_f32 %s, %s, %s' % (vr(x, 2), vr(x, 2), vr(rb + 2 * hf, 2)))
            k('v_pk_add_f32 %s, %s, %s' % (vr(rb + 4 + 2 * hf, 2), vr(rb + 4 + 2 * hf, 2), vr(rb + 8 + 2 * hf, 2)))
            k('v_pk_add_f32 %s, %s, %s' % (vr(x, 2), vr(x, 2), vr(rb + 4 + 2 * hf, 2)))
            if not fast: rnd(x)
            k('v_pk_mul_f32 %s, %s, v[28:29]' % (vr(x, 2), vr(x, 2)))
            if not fast: rnd(x)
    G.pr(303, 3)
    for sub in range(3): red(sub)
    G.pr(303, 4)
    k('s_waitcnt vmcnt(0)')
    k('s_barrier')
    G.pr(303, 5)
    AR = 160
    for sub in range(5):
        k('ds_read_b64_tr_b16 %s, v%d offset:%d' % (vr(AR + 2 * sub, 2), V_AR, 2048 * sub), tag='ar%d' % sub)
    for sub in range(3, 5): red(sub)
    for sub in range(5):
        a = A2(0, sub)
        k.wait(lg='ar%d' % sub)
        for hf in range(2):
            t = 20; x = a + 2 * hf; ar = AR + 2 * sub + hf
            k('v_lshlrev_b32 v%d, 16, v%d' % (t, ar))
            k('v_and_b32 v%d, 0xffff0000, v%d' % (t + 1, ar))
            if fast:
                k('v_pk_fma_f32 %s, %s, v[30:31], %s' % (vr(t, 2), vr(t, 2), vr(x, 2)))
            else:
                k('v_pk_mul_f32 %s, %s, v[30:31]' % (vr(t, 2), vr(t, 2)))
                rnd(t)
                k('v_pk_add_f32 %s, %s, %s' % (vr(t, 2), vr(t, 2), vr(x, 2)))
            k('v_cvt_pk_bf16_f32 v%d, v%d, v%d' % (ar, t, t + 1))
    G.pr(303, 6)
    for sub in range(5):
        k('ds_write_b64 v%d, %s offset:%d' % (V_OW, vr(AR + 2 * sub, 2), 32 * sub))
    for n in range(3):
        k('ds_read_b128 %s, v%d offset:%d' % (vr(176 + 4 * n, 4), V_OR, 1024 * n), tag='o%d' % n)
    for n in range(3):
        k.wait(lg='o%d' % n)
        if n == 2: k('s_mov_b32 exec_hi, 0')
        k('buffer_store_dwordx4 %s, v%d, s[%d:%d], s%d offen %s' % (vr(176 + 4 * n, 4), V_OS + n, R_O, R_O + 3, S_OUT, 'sc1' if opt.get('osc1') else ''))
    k('s_mov_b64 exec, -1')
    G.pr(303, 7)
    G.ts(9)
    G.ts_store()
    G.calib()
    k('s_endpgm')
```

```python
import re
TRANS = ('v_exp_f32', 'v_log_f32', 'v_rcp_f32', 'v_rsq_f32', 'v_sqrt_f32', 'v_sin_f32', 'v_cos_f32')
RE_REG = re.compile(r'(?<![\w.])(-?\|?)([vsa])(\d+|\[(\d+):(\d+)\])(?![\w])|\b(vcc|exec|m0)\b')

def regs_of(op):
    out = set()
    for m in RE_REG.finditer(op):
        if m.group(6):
            out.add(m.group(6)); continue
        t = m.group(2)
        if m.group(4) is not None:
            for i in range(int(m.group(4)), int(m.group(5)) + 1): out.add(t + str(i))
        else:
            out.add(t + m.group(3))
    return out

class Ins:
    def __init__(self, text):
        self.text = text
        t = text.split(';')[0].strip()
        parts = t.split(None, 1)
        self.mn = parts[0]
        mn = self.mn
        rest = parts[1] if len(parts) > 1 else ''
        ops = []; depth = 0; cur = ''
        for ch in rest:
            if ch == '[': depth += 1
            if ch == ']': depth -= 1
            if ch == ',' and depth == 0:
                ops.append(cur.strip()); cur = ''
            else: cur += ch
        if cur.strip(): ops.append(cur.strip())
        self.mods = ''
        if ops:
            sp = ops[-1].split(None, 1)
            if len(sp) > 1: ops[-1], self.mods = sp[0], sp[1]
        self.ops = ops
        self.wr = set(); self.rd = set()
        self.kind = 'other'
        base = re.sub(r'_(e32|e64|dpp|sdwa)$', '', mn)
        self.base = base
        R = [regs_of(o) for o in ops]
        allr = set().union(*R) if R else set()
        self.passes = 0; self.srcc = set(); self.srcab = set()
        self.dpp = mn.endswith('_dpp')
        if mn.startswith('v_mfma'):
            self.kind = 'mfma'
            self.wr = R[0]; self.srcab = R[1] | R[2]; self.srcc = R[3]; self.rd = self.srcab | self.srcc
            self.passes = 8 if '32x32' in mn else 4
        elif mn.startswith('v_'):
            self.kind = 'trans' if base in TRANS else 'valu'
            if base.startswith('v_permlane') and 'swap' in base:
                self.wr = R[0] | R[1]; self.rd = R[0] | R[1]
            elif base.startswith(('v_add_co', 'v_sub_co', 'v_addc_co', 'v_subb_co')):
                self.wr = R[0] | R[1]; self.rd = set().union(*R[2:])
            else:
                self.wr = set(R[0]); self.rd = set().union(*R[1:]) if len(R) > 1 else set()
                if base.startswith(('v_fmac', 'v_writelane', 'v_mac')) or self.dpp: self.rd |= R[0]
                if base.startswith('v_cmpx'): self.wr.add('exec')
                if base == 'v_cndmask_b32' and len(ops) == 3: self.rd.add('vcc')
        elif mn.startswith('ds_'):
            self.kind = 'ds'
            if mn.startswith(('ds_read', 'ds_bpermute', 'ds_permute', 'ds_swizzle')):
                self.wr = R[0]; self.rd = set().union(*R[1:]) if len(R) > 1 else set()
            else: self.rd = allr
            if 'addtid' in mn: self.rd.add('m0')
        elif mn.startswith(('buffer_', 'global_')):
            self.kind = 'vmem'
            self.lds = bool(re.search(r'\blds\b', self.mods))
            if 'load' in mn and not self.lds:
                self.wr = R[0]; self.rd = set().union(*R[1:])
                if 'd16' in mn: self.rd |= R[0]
            else:
                self.rd = allr
                if self.lds: self.rd.add('m0')
            self.wide_store = ('store' in mn) and mn.endswith(('x3', 'x4'))
            if self.wide_store:
                self.sdata = R[0] if mn.startswith('buffer') else R[1]
        elif mn.startswith('s_'):
            self.kind = 'salu'
            if mn.startswith(('s_load', 's_memtime', 's_memrealtime', 's_buffer_load')):
                self.kind = 'smem'; self.wr = R[0]; self.rd = set().union(*R[1:]) if len(R) > 1 else set()
            elif mn.startswith(('s_cmp', 's_cbranch', 's_branch', 's_waitcnt', 's_barrier', 's_nop', 's_endpgm', 's_sleep', 's_setprio', 's_bitcmp')):
                self.rd = allr
            else:
                self.wr = set(R[0]) if R else set(); self.rd = set().union(*R[1:]) if len(R) > 1 else set()
                if 'saveexec' in mn: self.wr.add('exec'); self.rd.add('exec')
    def states(self):
        if self.mn == 's_nop': return int(self.ops[0], 0) + 1
        return 1

def isv(r): return r[0] in 'va' and r not in ('vcc',)
def iss(r): return r[0] == 's' or r == 'vcc'

def need(p, c):
    n = 0
    pv = p.kind in ('valu', 'trans')
    cv = c.kind in ('valu', 'trans')
    if pv:
        wv = {r for r in p.wr if isv(r)}; ws = {r for r in p.wr if iss(r)}
        if c.kind == 'mfma' and (wv & c.rd): n = max(n, 2)
        if c.kind == 'mfma' and 'exec' in p.wr: n = max(n, 4)
        if c.kind == 'vmem' and (ws & c.rd): n = max(n, 5)
        if cv and (ws & c.rd):
            n = max(n, 4 if c.base in ('v_readlane_b32', 'v_writelane_b32') else 2)
        if c.kind in ('salu', 'smem') and (ws & c.rd): n = max(n, 1)
        if cv and c.dpp and (wv & c.rd): n = max(n, 2)
        if cv and c.dpp and 'exec' in p.wr: n = max(n, 5)
        if cv and c.base in ('v_readlane_b32', 'v_readfirstlane_b32') and (wv & c.rd): n = max(n, 1)
        if cv and c.base.startswith('v_permlane') and (wv & c.rd): n = max(n, 2)
        if p.kind == 'trans' and c.kind in ('valu', 'mfma') and (wv & c.rd): n = max(n, 1 if c.kind == 'valu' else 2)
        if 'exec' in p.wr and cv and c.base in ('v_readlane_b32', 'v_readfirstlane_b32', 'v_writelane_b32'): n = max(n, 4)
    if p.kind == 'salu' and 'm0' in p.wr and 'm0' in c.rd and c.kind in ('vmem', 'ds'): n = max(n, 1)
    if p.kind == 'vmem' and getattr(p, 'wide_store', False) and (p.sdata & c.wr): n = max(n, 2)
    if p.kind == 'mfma':
        tab_use = {4: 8, 8: 12}[p.passes]
        if c.kind == 'mfma':
            if p.wr & c.srcab: n = max(n, tab_use)
            if p.wr & c.srcc:
                if not (p.wr == c.srcc and p.passes == c.passes): n = max(n, {4: 6, 8: 10}[p.passes])
            elif p.wr & c.wr: n = max(n, tab_use)
        elif c.kind in ('valu', 'trans', 'vmem', 'ds'):
            if p.wr & (c.rd | c.wr): n = max(n, tab_use)
            if cv and (p.srcc & c.wr): n = max(n, {4: 3, 8: 7}[p.passes])
    return n

class K:
    def __init__(self):
        self.items = []
        self.hist = []
        self.nlab = 0
        self.vm = []
        self.lg = []
        self.nops = 0
    def raw(self, s): self.items.append(s)
    def label(self, name, flush=True):
        self.items.append(name + ':')
    def newlabel(self, base='L'):
        self.nlab += 1
        return '%s_%d' % (base, self.nlab)
    def __call__(self, text, tag=None):
        for l in text.split('\n'):
            l = l.strip()
            if not l: continue
            ins = Ins(l)
            req = 0; dist = 0
            for p in reversed(self.hist):
                r = need(p, ins) - dist
                if r > req: req = r
                dist += p.states()
                if dist >= 20: break
            if req > 0:
                nop = Ins('s_nop %d' % (req - 1))
                self.items.append(nop); self.hist.append(nop); self.nops += req
            self.items.append(ins); self.hist.append(ins)
            if len(self.hist) > 40: self.hist = self.hist[-30:]
            if ins.kind == 'vmem': self.vm.append(tag)
            if ins.kind == 'ds': self.lg.append(tag)
    def cold_begin(self):
        self._stack = getattr(self, '_stack', [])
        self.colds = getattr(self, 'colds', [])
        self._stack.append((self.items, list(self.hist), list(self.vm), list(self.lg)))
        self.items = []
    def cold_end(self):
        self.colds.append(self.items)
        self.items, self.hist, self.vm, self.lg = self._stack.pop()
    def pad(self, n):
        while n > 0:
            k = min(n, 16); self('s_nop %d' % (k - 1)); n -= k
    def _cnt(self, lst, tag):
        idx = max(i for i, t in enumerate(lst) if t == tag)
        return len(lst) - 1 - idx
    def wait(self, vm=None, lg=None):
        parts = []
        if vm is not None:
            n = 0 if vm == 'all' else min(self._cnt(self.vm, vm), 63)
            parts.append('vmcnt(%d)' % n)
        if lg is not None:
            n = 0 if lg == 'all' else min(self._cnt(self.lg, lg), 15)
            parts.append('lgkmcnt(%d)' % n)
        self('s_waitcnt ' + ' '.join(parts))
    def reset_counts(self):
        self.vm = []; self.lg = []
    def text(self):
        out = []
        for it in self.items:
            out.append(('    ' + it.text) if isinstance(it, Ins) else it)
        return '\n'.join(out) + '\n'
def vr(a, n=1):
    return 'v%d' % a if n == 1 else 'v[%d:%d]' % (a, a + n - 1)
def sr(a, n=1):
    return 's%d' % a if n == 1 else 's[%d:%d]' % (a, a + n - 1)
import struct
def f2u(x): return struct.unpack('<I', struct.pack('<f', x))[0]
def fhex(x): return '0x%08x' % f2u(x)
```

```python
import sys, math
from kgen import *
KNAME = 'gated_mix__ssm_conv_s4__dense_activation_silu__prompt_kernel'

WS_UT, WS_AT, WS_H, WS_W2P, WS_G = 0x000000, 0x300000, 0x600000, 0xC00000, 0xE00000
WS_FH, WS_FU, WS_FW, WS_FA, WS_TS = 0xE80000, 0xE10000, 0xE28000, 0xF00000, 0xE30000
import os
NREP = int([a.split('=')[1] for a in sys.argv if a.startswith('nrep=')][0]) if any(a.startswith('nrep=') for a in sys.argv) else 8
FU_RS, FA_RS, FH_RS = 0x1000, 0x4000, 0x10000
WS_SZ = 0x1000000
LOG2E = 1.4426950408889634
INV2PI = 0.15915494309189535

S_WG, S_WAVE, S_M, S_RHO, S_J, S_NONCE, S_TMO = 2, 3, 4, 5, 6, 7, 8
P_U, P_ARE, P_AIM, P_BRE, P_BIM, P_CRE, P_CIM, P_LDT = 16, 18, 20, 22, 24, 26, 28, 30
P_DSK, P_BX, P_W1, P_W2, P_GW, P_OUT, P_DBG, P_WS = 32, 34, 36, 38, 40, 42, 44, 46
R_WS, R_U, R_W, R_O = 48, 52, 56, 60
S_TS = 80
CBS = 17664
KO, UX = 4576, 9216
UY = UX + 4224

def emit_list(k, lst):
    for f in lst:
        if isinstance(f, tuple): k(f[0], tag=f[1])
        else: k(f)

class Gen:
    def __init__(self, opt):
        self.k = K()
        self.opt = opt
        self.marks = []
    def mark(self, name):
        self.marks.append((name, len(self.k.items)))
    def cut(self, name):
        self.k('s_branch L_%s' % name)
        self.mark(name)
        self.k.label('L_%s' % name)
    def slow(self, cond, body):
        k = self.k
        S = k.newlabel('L_slow'); B = k.newlabel('L_back')
        k('s_cbranch_%s %s' % (cond, S))
        k.cold_begin()
        k.label(S)
        body()
        k('s_nop 4')
        k('s_branch %s' % B)
        k.cold_end()
        k.label(B)
    def srd_tail(self, r, size):
        self.k('s_mov_b32 s%d, 0x%x' % (r + 2, size))
        self.k('s_mov_b32 s%d, 0x20000' % (r + 3))
    def srd_base(self, r, p):
        self.k('s_mov_b64 s[%d:%d], s[%d:%d]' % (r, r + 1, p, p + 1))
    def ts(self, i):
        if self.opt.get('ts') and not self.opt.get('probe') and not (self.opt.get('early') and i in (1, 3, 4)):
            self.k('%s s[%d:%d]' % ('s_memtime' if self.opt.get('cyc') else 's_memrealtime', S_TS + 2 * i, S_TS + 2 * i + 1))
    def pr(self, key, i):
        if self.opt.get('probe') == key:
            self.k('s_memtime s[%d:%d]' % (S_TS + 2 * i, S_TS + 2 * i + 1))
    def ts_init(self):
        if self.opt.get('ts'):
            for i in range(10):
                if self.opt.get('early') and i in (1, 3, 4): continue
                self.k('s_mov_b32 s%d, s%d' % (S_TS + 2 * i, 100 if self.opt.get('cyc') else 10))
    def ets(self, i):
        if self.opt.get('early'): self.k('s_memtime s[%d:%d]' % (S_TS + 2 * i, S_TS + 2 * i + 1))
    def ts_store(self):
        if not self.opt.get('ts'): return
        k = self.k
        k('s_waitcnt vmcnt(0) lgkmcnt(0)')
        k('s_xor_b32 s64, s%d, 256' % S_WG)
        k('s_lshl_b32 s64, s64, 2')
        k('s_add_u32 s64, s64, s%d' % S_WAVE)
        k('s_lshl_b32 s64, s64, 6')
        k('s_add_u32 s64, s64, 0x%x' % WS_TS)
        k('v_mov_b32 v1, 0')
        for i in range(10):
            k('v_mov_b32 v2, s%d' % (S_TS + 2 * i))
            k('buffer_store_dword v2, v1, s[%d:%d], s64 offen offset:%d' % (R_WS, R_WS + 3, 4 * i))
        k('s_waitcnt vmcnt(0)')
    def calib(self):
        if self.opt.get('calib'):
            k = self.k
            L = k.newlabel('L_cal')
            k.label(L)
            k('s_memrealtime s[64:65]')
            k('s_waitcnt lgkmcnt(0)')
            k('s_sub_u32 s64, s64, s%d' % S_NONCE)
            k('s_cmp_lt_u32 s64, %d' % self.opt['calib'])
            k('s_cbranch_scc1 %s' % L)
    def spin_tail(self, L, D):
        k = self.k
        k('s_cbranch_scc1 %s' % D)
        k('s_sleep %d' % self.opt.get('sleep', 2))
        k('s_sub_u32 s%d, s%d, 1' % (S_TMO, S_TMO))
        k('s_cmp_lg_u32 s%d, 0' % S_TMO)
        k('s_cbranch_scc1 %s' % L)
        k.label(D)
    def nonce_issue(self, vt, vz, tag):
        k = self.k
        k('v_mov_b32 %s, 0' % vr(vz))
        k('global_load_dword %s, %s, s[%d:%d] sc1' % (vr(vt), vr(vz), P_DBG, P_DBG + 1), tag=tag)
    def nonce_get(self, vt, vz, tag=None, waited=False):
        k = self.k
        L = k.newlabel('L_nonce'); D = k.newlabel('L_nonce_ok'); C = k.newlabel('L_nonce_chk')
        k('s_movk_i32 s%d, 0x4000' % S_TMO)
        if not waited: k.wait(vm=tag)
        k('s_branch %s' % C)
        k.label(L)
        k('v_mov_b32 %s, 0' % vr(vz))
        k('global_load_dword %s, %s, s[%d:%d] sc1' % (vr(vt), vr(vz), P_DBG, P_DBG + 1)); k.vm.pop()
        k('s_waitcnt vmcnt(0)')
        k.label(C)
        k('v_readfirstlane_b32 s%d, %s' % (S_NONCE, vr(vt)))
        k('s_cmp_lg_u32 s%d, 0' % S_NONCE)
        self.spin_tail(L, D)
    def poll_issue(self, vt, vaddr, soff, tag, n=1):
        self.k('buffer_load_dword%s %s, %s, s[%d:%d], %s offen sc1' % ('x2' if n == 2 else '', vr(vt, n), vr(vaddr), R_WS, R_WS + 3, soff), tag=tag)
    def poll_cmp(self, vt, which):
        k = self.k
        k('v_cmp_ne_u32 vcc, s%d, %s' % (S_NONCE, vr(vt + which[0])))
        if len(which) == 2:
            k('v_cmp_ne_u32 s[78:79], s%d, %s' % (S_NONCE, vr(vt + which[1])))
            k('s_or_b64 vcc, vcc, s[78:79]')
        k('s_cmp_eq_u64 vcc, 0')
    def poll(self, vt, vaddr, soff, n=1, first=None, waited=False, which=None):
        k = self.k
        if which is None: which = list(range(n))
        def spin():
            L = k.newlabel('L_poll'); D = k.newlabel('L_poll_ok')
            k('s_movk_i32 s%d, 0x4000' % S_TMO)
            k('s_mov_b64 vcc, -1')
            k.label(L)
            k('s_mov_b64 exec, vcc')
            self.poll_issue(vt, vaddr, soff, None, n); k.vm.pop()
            k('s_mov_b64 exec, -1')
            k('s_waitcnt vmcnt(0)')
            self.poll_cmp(vt, which)
            self.spin_tail(L, D)
        if first is not None:
            if not waited: k.wait(vm=first)
            self.poll_cmp(vt, which)
            self.slow('scc0', spin)
        else: spin()
    def snonce(self, vt, vz, first=0):
        k = self.k
        if not first: k('s_load_dword s%d, s[%d:%d], 0' % (S_NONCE, P_DBG, P_DBG + 1))
        k('s_waitcnt lgkmcnt(0)')
        k('s_cmp_lg_u32 s%d, 0' % S_NONCE)
        def more():
            D = k.newlabel('L_sn_ok')
            for i in range(1, 4):
                k('s_load_dword s%d, s[%d:%d], %d' % (S_NONCE, P_DBG, P_DBG + 1, 64 * i))
                k('s_waitcnt lgkmcnt(0)')
                k('s_cmp_lg_u32 s%d, 0' % S_NONCE)
                k('s_cbranch_scc1 %s' % D)
            k('v_mov_b32 %s, 0' % vr(vt))
            self.nonce_get(vt, vz, waited=True)
            k.label(D)
        self.slow('scc0', more)
        k('s_mov_b32 s0, s%d' % S_NONCE)
        k('s_mov_b32 s1, s%d' % S_NONCE)
    def s_allok(self, base, n):
        k = self.k
        for i in range(0, n, 2):
            k('s_xor_b64 s[%d:%d], s[%d:%d], s[0:1]' % (base + i, base + i + 1, base + i, base + i + 1))
        for i in range(2, n, 2):
            k('s_or_b64 s[%d:%d], s[%d:%d], s[%d:%d]' % (base, base + 1, base, base + 1, base + i, base + i + 1))
    def spoll_loop(self, issue, base, n, s_off, s_end, rs, fallback, sleep=0):
        k = self.k
        L = k.newlabel('L_sp'); D = k.newlabel('L_sp_ok'); F = k.newlabel('L_sp_fb')
        k.label(L)
        k('s_cmp_ge_u32 s%d, s%d' % (s_off, s_end))
        k('s_cbranch_scc1 %s' % F)
        issue()
        k('s_add_u32 s%d, s%d, %d' % (s_off, s_off, rs))
        k('s_waitcnt lgkmcnt(0)')
        self.s_allok(base, n)
        k('s_cbranch_scc0 %s' % D)
        if sleep: k('s_sleep %d' % sleep)
        k('s_branch %s' % L)
        k.label(F)
        fallback()
        k.label(D)
    def flag_store_rep(self, vt, vz, soff, rs, tag=None):
        k = self.k
        k('v_mov_b32 %s, s%d' % (vr(vt), S_NONCE))
        k('v_mul_u32_u24 %s, %d, v0' % (vr(vz), rs))
        k('s_mov_b64 exec, %d' % ((1 << NREP) - 1))
        k('buffer_store_dword %s, %s, s[%d:%d], %s offen sc1' % (vr(vt), vr(vz), R_WS, R_WS + 3, soff), tag=tag)
        k('s_mov_b64 exec, -1')
    def flag_store(self, vt, vz, soff, tag=None):
        k = self.k
        k('v_mov_b32 %s, s%d' % (vr(vt), S_NONCE))
        k('v_mov_b32 %s, 0' % vr(vz))
        k('s_mov_b64 exec, 1')
        k('buffer_store_dword %s, %s, s[%d:%d], %s offen sc1' % (vr(vt), vr(vz), R_WS, R_WS + 3, soff), tag=tag)
        k('s_mov_b64 exec, -1')

    def prologue(self):
        k = self.k
        k('s_load_dwordx16 s[16:31], s[0:1], 0')
        k('s_load_dwordx16 s[32:47], s[0:1], 64')
        k('s_memrealtime s[10:11]')
        if self.opt.get('cyc'): k('s_memtime s[100:101]')
        k('v_lshrrev_b32 v1, 6, v0')
        k('v_and_b32 v0, 63, v0')
        k('v_readfirstlane_b32 s%d, v1' % S_WAVE)
        k('s_cmp_ge_u32 s2, 512')
        k('s_cbranch_scc1 L_end')
        k('s_and_b32 s%d, s2, 255' % S_M)
        k('s_bfe_u32 s66, s2, 0x20001')
        k('s_bfe_u32 s67, s2, 0x30003')
        k('s_lshl3_add_u32 s%d, s66, s67' % S_RHO)
        k('s_and_b32 s66, s2, 1')
        k('s_bfe_u32 s67, s2, 0x20006')
        k('s_lshl2_add_u32 s%d, s66, s67' % S_J)
        self.srd_tail(R_WS, WS_SZ)
        self.srd_tail(R_U, 2048 * 640 * 2)
        if self.opt.get('ipf'):
            k('s_cmp_lg_u32 s%d, 0' % S_WAVE)
            k('s_cbranch_scc1 L_noipf')
            k('s_getpc_b64 s[64:65]')
            k('s_lshr_b32 s66, s2, 3')
            k('s_mul_i32 s66, s66, %d' % (self.opt['ipf'] * 128))
            k('v_lshlrev_b32 v1, 7, v0')
            k('v_add_u32 v1, s66, v1')
            k('s_mov_b64 exec, %d' % ((1 << self.opt['ipf']) - 1))
            k('global_load_dword v255, v1, s[64:65]')
            k('s_mov_b64 exec, -1')
            k.label('L_noipf')
        k('s_cmp_ge_u32 s2, 256')
        k('s_cbranch_scc1 L_gemm')
        if self.opt.get('nossm'):
            k('s_cmp_eq_u32 s2, 128'); k('s_cbranch_scc1 L_idle'); k('s_endpgm')
        k('s_cmp_eq_u32 s%d, 3' % S_WAVE)
        k('s_cbranch_scc1 L_misc')

    def conv_reads(self, sg, fb, va, vb, off=0):
        out = []
        for c in range(8):
            out.append('ds_read_b128 %s, v%d offset:%d' % (vr(fb + 4 * c, 4), va, off + 4032 - 512 * c - 64 * sg))
            out.append('ds_read_b64 %s, v%d offset:%d' % (vr(fb + 32 + 4 * c, 2), vb, off + 448 - 64 * sg + 512 * c))
            out.append('ds_read_b64 %s, v%d offset:%d' % (vr(fb + 34 + 4 * c, 2), vb, off + 448 - 64 * sg + 512 * c + 8))
        return out
    def conv_step(self, Y, fb, first, nx):
        k = self.k
        nx = list(nx)
        for c in range(8):
            for m in range(8 - c):
                cc = '0' if (first and c == 0) else vr(Y + 4 * (c + m), 4)
                k('v_mfma_f32_16x16x32_bf16 %s, %s, %s, %s' % (vr(Y + 4 * (c + m), 4), vr(fb + 4 * c, 4), vr(fb + 32 + 4 * m, 4), cc))
                if nx: emit_list(k, [nx.pop(0)])
        emit_list(k, nx)
    def misc(self):
        k = self.k
        k.reset_counts()
        LT = 3 * CBS; LW = LT + 10240
        self.mark('misc_head')
        k.label('L_misc')
        for i in range(5):
            k('v_add_u32 v1, %d, v0' % (64 * i))
            k('v_mul_u32_u24 v2, 205, v1')
            k('v_lshrrev_b32 v2, 11, v2')
            k('v_mul_u32_u24 v3, %d, v2' % (1280 - 160))
            k('v_lshl_add_u32 v%d, v1, 4, v3' % (10 + i))
        k('s_mul_i32 s64, s%d, %d' % (S_RHO, 64 * 1280))
        k('s_mul_i32 s65, s%d, 160' % S_J)
        k('s_add_u32 s64, s64, s65')
        k('s_add_u32 s65, s64, %d' % (32 * 1280))
        k('s_waitcnt lgkmcnt(0)')
        self.srd_base(R_U, P_U)
        for i in range(10):
            k('s_mov_b32 m0, %d' % (LT + 1024 * i))
            k('buffer_load_dwordx4 v%d, s[%d:%d], s%d offen lds' % (10 + i % 5, R_U, R_U + 3, 64 + i // 5), tag='T')
        self.cut('misc_main')
        self.ts_init()
        k('s_setprio %d' % self.opt.get('mprio', 3))
        self.srd_base(R_WS, P_WS)
        self.srd_base(R_W, P_W2)
        self.srd_tail(R_W, 1536 * 640 * 2)
        k('s_min_u32 s66, s%d, 239' % S_M)
        k('s_mul_i32 s67, s66, 205')
        k('s_lshr_b32 s67, s67, 10')
        k('s_mul_i32 s68, s67, 5')
        k('s_sub_u32 s68, s66, s68')
        k('s_mul_i32 s69, s67, %d' % (32 * 1280))
        k('s_lshl_b32 s70, s68, 8')
        k('s_add_u32 s69, s69, s70')
        k('v_lshrrev_b32 v1, 4, v0')
        k('v_and_b32 v2, 15, v0')
        k('v_mul_u32_u24 v1, 1280, v1')
        k('v_lshl_add_u32 v15, v2, 4, v1')
        def wdma():
            for i in range(8):
                k('s_mov_b32 m0, %d' % (LW + 1024 * i))
                k('buffer_load_dwordx4 v15, s[%d:%d], s69 offen lds' % (R_W, R_W + 3), tag='W')
                k('s_add_u32 s69, s69, %d' % (4 * 1280))
        WPOS = self.opt.get('wpos', 0)
        if WPOS == 0: wdma()
        k('v_lshrrev_b32 v1, 4, v0')
        k('v_bfe_u32 v2, v0, 2, 2')
        k('v_and_b32 v3, 3, v0')
        k('v_lshl_add_u32 v4, v1, 3, v2')
        k('v_mul_u32_u24 v4, 160, v4')
        k('v_lshl_add_u32 v4, v3, 3, v4')
        k('v_add_u32 v18, %d, v4' % LT)
        k('v_and_b32 v5, 15, v0')
        k('v_lshlrev_b32 v5, 12, v5')
        k('v_lshl_add_u32 v19, v1, 4, v5')
        k('v_lshrrev_b32 v5, 1, v1')
        k('v_and_b32 v6, 1, v1')
        k('v_lshlrev_b32 v5, 4, v5')
        k('v_lshl_add_u32 v5, v6, 2, v5')
        k('v_add_u32 v5, v5, v2')
        k('v_lshlrev_b32 v5, 8, v5')
        k('v_lshl_add_u32 v5, v3, 3, v5')
        k('v_add_u32 v20, %d, v5' % LW)
        k('v_lshlrev_b32 v21, 4, v0')
        k('s_mul_i32 s72, s%d, %d' % (S_J, 80 * 4096))
        k('s_lshl_b32 s73, s%d, 7' % S_RHO)
        k('s_add_u32 s72, s72, s73')
        k('s_lshr_b32 s73, s%d, 3' % S_RHO)
        k('s_lshl2_add_u32 s73, s%d, s73' % S_J)
        k('s_lshl_b32 s73, s73, 5')
        k('s_and_b32 s74, s%d, 7' % S_RHO)
        k('s_add_u32 s73, s73, s74')
        k('s_lshl_b32 s73, s73, 2')
        k('s_add_u32 s77, s73, 0x%x' % WS_FU)
        if self.opt.get('ftouch'):
            k('v_mul_u32_u24 v9, %d, v0' % FU_RS)
            k('s_mov_b64 exec, %d' % ((1 << NREP) - 1))
            k('buffer_load_dword v8, v9, s[%d:%d], s77 offen' % (R_WS, R_WS + 3))
            k('s_mov_b64 exec, -1')
        k.wait(vm='T')
        self.ts(1)
        if self.opt.get('mstop') == 1: k('s_endpgm')
        for dl in range(5):
            for z in range(2):
                b = 24 + 8 * dl + 4 * z
                for e in range(2):
                    k('ds_read_b64_tr_b16 %s, v18 offset:%d' % (vr(b + 2 * e, 2), (32 * z + 4 * e) * 160 + 32 * dl), tag='t%d' % dl)
        for dl in range(5):
            k.wait(lg='t%d' % dl)
            for z in range(2):
                k('buffer_store_dwordx4 %s, v19, s[%d:%d], s72 offen offset:%d sc1' % (vr(24 + 8 * dl + 4 * z, 4), R_WS, R_WS + 3, 64 * z), tag='Tst')
            k('s_add_u32 s72, s72, %d' % (16 * 4096))
        if WPOS == 1: wdma()
        self.snonce(8, 9)
        def uflag():
            k.wait(vm='Tst')
            self.flag_store_rep(8, 9, 's77', FU_RS)
            self.ts(2)
        uflag()
        if self.opt.get('mstop') == 2: k('s_endpgm')
        if WPOS == 2: wdma()
        k('s_waitcnt vmcnt(0)')
        for fr in range(8):
            for e in range(2):
                k('ds_read_b64_tr_b16 %s, v20 offset:%d' % (vr(64 + 4 * fr + 2 * e, 2), 8 * e * 256 + 32 * fr), tag='w%d' % fr)
        k('s_mul_i32 s76, s67, 5')
        for fr in range(8):
            k('s_lshl_b32 s73, s68, 3')
            k('s_add_u32 s73, s73, %d' % fr)
            k('s_mul_i32 s74, s73, 205')
            k('s_lshr_b32 s74, s74, 10')
            k('s_mul_i32 s75, s74, 235')
            k('s_add_u32 s75, s75, s73')
            k('s_add_u32 s75, s75, s76')
            k('s_lshl_b32 s75, s75, 10')
            k('s_add_u32 s75, s75, 0x%x' % WS_W2P)
            k.wait(lg='w%d' % fr)
            k('buffer_store_dwordx4 %s, v21, s[%d:%d], s75 offen sc1' % (vr(64 + 4 * fr, 4), R_WS, R_WS + 3), tag='Wst')
        k('s_lshl_b32 s73, s68, 6')
        k('s_add_u32 s73, s73, s67')
        k('s_lshl_b32 s73, s73, 2')
        k('s_add_u32 s73, s73, 0x%x' % WS_FW)
        k('s_mul_i32 s60, s%d, 3' % S_M)
        k('s_lshl_b32 s61, s%d, 1' % S_M)
        k('s_add_u32 s61, s61, 128')
        k('s_cmp_lt_u32 s%d, 128' % S_M)
        k('s_cselect_b32 s60, s60, s61')
        k('s_cselect_b32 s61, 3, 2')
        k('v_lshrrev_b32 v1, 4, v0')
        k('v_min_u32 v1, 2, v1')
        k('v_mul_u32_u24 v22, %d, v1' % CBS)
        k('v_and_b32 v2, 15, v0')
        k('v_lshl_add_u32 v1, v2, 2, v22')
        k('v_mov_b32 v2, 0')
        k('ds_write_b32 v1, v2 offset:%d' % UX)
        k('ds_write_b32 v1, v2 offset:%d' % UY)
        k('v_bfe_u32 v1, v0, 3, 2')
        k('v_and_b32 v23, 7, v0')
        k('v_lshlrev_b32 v23, 2, v23')
        k('v_lshl_add_u32 v23, v1, 7, v23')
        emit_list(k, ['v_and_b32 v6, 1, v0', 'v_cmp_eq_u32 vcc, 1, v6', 'v_and_b32 v6, 15, v0', 'v_lshrrev_b32 v7, 4, v0', 'v_lshlrev_b32 v7, 4, v7',
               'v_lshrrev_b32 v5, 1, v6', 'v_lshlrev_b32 v5, 6, v5', 'v_sub_u32 v5, v7, v5',
               'v_mov_b32 v2, %d' % (448 + KO), 'v_mov_b32 v3, 448', 'v_cndmask_b32 v2, v2, v3, vcc', 'v_add_u32 v2, v5, v2',
               'v_lshl_add_u32 v5, v6, 2, v7', 'v_mov_b32 v3, %d' % UY, 'v_mov_b32 v4, %d' % (UX + 4),
               'v_cndmask_b32 v3, v3, v4, vcc', 'v_add_u32 v3, v5, v3', 'v_add_u32 v4, %d, v21' % LT])
        def u_issue():
            for i in range(4):
                k('s_load_dwordx8 s[%d:%d], s[%d:%d], s62 offset:%d' % (16 + 8 * i, 23 + 8 * i, R_WS, R_WS + 1, 128 * i))
        k('s_mul_i32 s64, s60, 205')
        k('s_lshr_b32 s64, s64, 14')
        k('s_add_u32 s65, s60, s61')
        k('s_sub_u32 s65, s65, 1')
        k('s_mul_i32 s65, s65, 205')
        k('s_lshr_b32 s65, s65, 14')
        k.label('L_ugrp')
        k('s_lshl_b32 s9, s64, 9')
        k('s_add_u32 s9, s9, 0x%x' % WS_FU)
        k('s_mov_b32 s62, s9')
        k('s_add_u32 s63, s9, %d' % (NREP * FU_RS))
        self.spoll_loop(u_issue, 16, 32, 62, 63, FU_RS, lambda: self.poll(24, 23, 's9'), sleep=self.opt.get('ssleep', 2))
        k('s_add_u32 s64, s64, 1')
        k('s_cmp_le_u32 s64, s65')
        k('s_cbranch_scc1 L_ugrp')
        self.ts(5)
        k.wait(vm='Wst')
        k('s_lshl_b32 s64, s60, 12')
        for c in range(3):
            if c == 2:
                k('s_cmp_lt_u32 s61, 3')
                k('s_cbranch_scc1 L_u2')
            k('s_add_u32 s65, s64, 4')
            k('s_mov_b32 m0, %d' % (c * CBS + UX + 64))
            for i in range(4):
                k('buffer_load_dwordx4 v21, s[%d:%d], s64 offen offset:%d sc1 lds' % (R_WS, R_WS + 3, 1024 * i))
            k('s_mov_b32 m0, %d' % (c * CBS + UY + 64))
            for i in range(4):
                k('buffer_load_dwordx4 v21, s[%d:%d], s65 offen offset:%d sc1 lds' % (R_WS, R_WS + 3, 1024 * i))
            k('s_add_u32 s64, s64, 4096')
        k.label('L_u2')
        self.flag_store(8, 9, 's73')
        self.ts(7)
        k('s_waitcnt vmcnt(1)')
        k('ds_read_b32 v1, v22 offset:%d' % (UX + 64))
        k('s_waitcnt lgkmcnt(0)')
        k('ds_write_b32 v22, v1 offset:%d' % (UY + 60))
        k('s_waitcnt lgkmcnt(0)')
        self.ts(6)
        k('s_barrier')
        if self.opt.get('mstop') == 3: k('s_endpgm')
        NS = self.opt.get('ns', 6)
        if NS < 8:
            k('s_setprio %d' % self.opt.get('mvprio', 0))
            FBm = [96, 160]
            steps = [(c, sg) for c in range(3) for sg in range(NS, 8)]
            emit_list(k, self.conv_reads(NS, FBm[0], 2, 3))
            wq = []
            for i, (c, sg) in enumerate(steps):
                Ym = 32 + 32 * (c % 2)
                if c == 2 and sg == NS:
                    k('s_cmp_lt_u32 s61, 3')
                    k('s_cbranch_scc1 L_m2')
                k.wait(lg='all')
                nx = self.conv_reads(steps[i + 1][1], FBm[(i + 1) % 2], 2, 3, CBS * steps[i + 1][0]) if i + 1 < len(steps) else []
                self.conv_step(Ym, FBm[i % 2], sg == NS, nx + wq)
                wq = []
                if sg == 7:
                    wq = ['ds_write_b128 v4, %s offset:%d' % (vr(Ym + 4 * t, 4), 8192 * c + 1024 * t) for t in range(8)]
                    if c == 1: w1 = list(wq)
            emit_list(k, wq)
            k('s_branch L_m3')
            k.label('L_m2')
            k.pad(8)
            emit_list(k, w1)
            k.label('L_m3')
            k('s_waitcnt lgkmcnt(0)')
            self.ts(3)
            k('s_barrier')
        self.ts(4)
        self.ts_store()
        k('s_endpgm')
        self.mark('idle')
        k.label('L_idle')
        k('s_cmp_lg_u32 s2, 128')
        k('s_cbranch_scc1 L_end')
        k('s_cmp_lg_u32 s%d, 2' % S_WAVE)
        k('s_cbranch_scc1 L_end')
        k('v_lshlrev_b32 v2, 6, v0')
        k('s_waitcnt lgkmcnt(0)')
        k('s_or_b32 s10, s10, 1')
        k('v_mov_b32 v1, s10')
        k('s_mov_b64 exec, 15')
        k('global_store_dword v2, v1, s[%d:%d] sc1' % (P_DBG, P_DBG + 1))
        if self.opt.get('latprobe'):
            ptr = {1: P_BX, 2: P_WS, 3: P_BX}[self.opt['latprobe']]
            k.label('L_lp0')
            k('s_memrealtime s[64:65]')
            k('s_waitcnt lgkmcnt(0)')
            k('s_sub_u32 s64, s64, s10')
            k('s_cmp_lt_u32 s64, 3500')
            k('s_cbranch_scc1 L_lp0')
            k('v_mov_b32 v2, 0x%x' % (0x100000 if ptr == P_BX else 0x8000000))
            k('s_memtime s[70:71]')
            k('global_load_dword v3, v2, s[%d:%d]' % (ptr, ptr + 1))
            k('s_waitcnt vmcnt(0)')
            k('s_memtime s[66:67]')
            k('s_waitcnt lgkmcnt(0)')
            for i in range(4):
                k('v_add_u32 v2, 0x3480, v2')
                k('global_load_dword v3, v2, s[%d:%d]' % (ptr, ptr + 1))
                k('s_waitcnt vmcnt(0)')
            k('s_memtime s[68:69]')
            k('s_waitcnt lgkmcnt(0)')
            if self.opt['latprobe'] == 3:
                k('s_sub_u32 s68, s66, s70')
            else:
                k('s_sub_u32 s68, s68, s66')
                k('s_lshr_b32 s68, s68, 2')
            k('v_mov_b32 v1, s68')
            k('v_mov_b32 v2, 0')
            k('global_store_dword v2, v1, s[%d:%d] offset:16' % (P_DBG, P_DBG + 1))
            k('s_add_u32 s68, s68, 4000')
            k.label('L_lp1')
            k('s_memrealtime s[64:65]')
            k('s_waitcnt lgkmcnt(0)')
            k('s_sub_u32 s64, s64, s10')
            k('s_cmp_lt_u32 s64, s68')
            k('s_cbranch_scc1 L_lp1')
        k('s_endpgm')

    def cmul(self, d, a, b):
        if self.opt.get('nopk'):
            return ['v_mul_f32 v%d, v%d, v%d' % (d, a, b),
                    'v_mul_f32 v%d, v%d, v%d' % (d + 1, a, b + 1),
                    'v_fma_f32 v%d, -v%d, v%d, v%d' % (d, a + 1, b + 1, d),
                    'v_fmac_f32 v%d, v%d, v%d' % (d + 1, a + 1, b)]
        return ['v_pk_mul_f32 %s, %s, %s op_sel:[0,0] op_sel_hi:[0,1]' % (vr(d, 2), vr(a, 2), vr(b, 2)),
                'v_pk_fma_f32 %s, %s, %s, %s op_sel:[1,1,0] op_sel_hi:[1,0,1] neg_lo:[1,0,0]' % (vr(d, 2), vr(a, 2), vr(b, 2), vr(d, 2))]
    def chan(self):
        k = self.k; opt = self.opt
        k.reset_counts()
        self.mark('chan_head')
        self.ets(1)
        S_D, S_CB, S_DSK = 12, 13, 14
        k('s_mul_i32 s64, s%d, 3' % S_M)
        k('s_lshl_b32 s65, s%d, 1' % S_M)
        k('s_add_u32 s65, s65, 128')
        k('s_cmp_lt_u32 s%d, 128' % S_M)
        k('s_cselect_b32 s64, s64, s65')
        k('s_cselect_b32 s65, 3, 2')
        k('s_cmp_ge_u32 s%d, s65' % S_WAVE)
        k('s_cbranch_scc1 L_idle')
        if opt.get('nochan'): k('s_endpgm')
        k('s_add_u32 s%d, s64, s%d' % (S_D, S_WAVE))
        k('s_mul_i32 s%d, s%d, %d' % (S_CB, S_WAVE, CBS))
        PR = 232
        for i in range(6): k('v_mov_b32 v%d, 0' % (PR + 3 * i + 2))
        k('s_mul_i32 s64, s%d, 384' % S_D)
        k('v_lshlrev_b32 v1, 1, v0')
        k('v_add_u32 v1, s64, v1')
        k('v_lshl_add_u32 v2, v0, 2, s64')
        k('s_lshr_b32 s64, s%d, 1' % S_D)
        k('s_lshl_b32 s64, s64, 2')
        k('s_waitcnt lgkmcnt(0)')
        self.ets(3)
        for ai, p in enumerate((P_ARE, P_AIM, P_BRE, P_BIM, P_CRE, P_CIM)):
            k('global_load_dword v%d, v2, s[%d:%d]' % (PR + 3 * ai + 1, p, p + 1), tag='par0')
        k('s_load_dword s65, s[%d:%d], s64' % (P_LDT, P_LDT + 1))
        k('s_load_dword s66, s[%d:%d], s64' % (P_DSK, P_DSK + 1))
        for ai, p in enumerate((P_ARE, P_AIM, P_BRE, P_BIM, P_CRE, P_CIM)):
            k('global_load_short_d16_hi v%d, v1, s[%d:%d] offset:256' % (PR + 3 * ai + 2, p, p + 1), tag='par2')
        self.cut('chan_main')
        self.ets(4)
        self.ts_init()
        self.srd_base(R_WS, P_WS)
        if opt.get('cprio'): k('s_setprio %d' % opt['cprio'])
        V_DT = 4
        ACC, QF, DT_, VV, GG, ID = 16, 32, 64, 128, 192, 208
        k('v_and_b32 v6, 31, v0')
        k('v_lshrrev_b32 v7, 5, v0')
        k('v_lshlrev_b32 v7, 3, v7')
        k('v_sub_u32 v6, v6, v7')
        k('v_and_b32 v7, 1, v0')
        k('v_lshlrev_b32 v7, 4, v7')
        k('v_mov_b32 v8, 0x3f80')
        k('v_lshlrev_b32 v7, v7, v8')
        k('v_lshrrev_b32 v6, 1, v6')
        for d in range(8):
            k('v_cmp_eq_u32 vcc, %d, v6' % (d if d < 4 else d + 4))
            k('v_cndmask_b32 v%d, 0, v7, vcc' % (ID + d))
        for i in range(16): k('v_mov_b32 v%d, 0' % (ACC + i))
        k('s_and_b32 s64, s%d, 1' % S_D)
        k('s_lshl_b32 s64, s64, 4')
        k('s_waitcnt lgkmcnt(0)')
        k('s_lshr_b32 s65, s65, s64')
        k('s_lshl_b32 s65, s65, 16')
        k('s_lshr_b32 s66, s66, s64')
        k('s_lshl_b32 s%d, s66, 16' % S_DSK)
        k('v_mov_b32 v6, s65')
        k('v_mul_f32 v6, %s, v6' % fhex(LOG2E))
        k('v_exp_f32 v6, v6')
        k('v_cvt_pk_bf16_f32 v6, v6, v6')
        k('v_lshlrev_b32 v%d, 16, v6' % V_DT)
        X_, E1, E2, E4, E8, E256, E16, C_ = 216, 218, 220, 222, 224, 226, 228, 230
        T0 = GG
        order = [0, 1, 2, 3, 4, 5, 6, 7, 4, 256, 258, 260, 8, 260, 262, 264, 512, 516, 520, 1024, 768, 772, 776, 1536, 1032, 1280, 1288, 1288, 1544, 1792, 1800, 1800]
        pv = {}
        for i, o in enumerate(order): pv.setdefault(o, VV + 2 * i)
        pv[0] = C_
        Dt = lambda t: DT_ + 16 * t
        def kmfma(s):
            return 'v_mfma_f32_32x32x16_bf16 %s, %s, %s, %s' % (vr(ACC, 16), vr(Dt(s >> 1) + 4 * (s & 1), 4), vr(QF + 4 * s, 4), vr(ACC, 16))
        S_PS = 73
        def setup(ps):
            if ps != 1: k.wait(vm='par%d' % ps)
            if ps == 0:
                for a_ in range(6):
                    k('v_lshlrev_b32 v%d, 16, v%d' % (PR + 3 * a_, PR + 3 * a_ + 1))
                    k('v_and_b32 v%d, 0xffff0000, v%d' % (PR + 3 * a_ + 1, PR + 3 * a_ + 1))
            ar, ai, br, bi, cr, ci = [PR + 3 * a + ps for a in range(6)]
            self.pr(200 + ps, 0)
            su = []
            su.append('v_mul_f32 v%d, v%d, v%d' % (X_, V_DT, ar))
            su.append('v_mul_f32 v%d, v%d, v%d' % (X_ + 1, V_DT, ai))
            su.append('v_mul_f32 v%d, %s, v%d' % (X_, fhex(LOG2E), X_))
            su.append('v_mul_f32 v%d, %s, v%d' % (X_ + 1, fhex(INV2PI), X_ + 1))
            su.append('v_rndne_f32 v%d, v%d' % (T0 + 2, X_ + 1))
            su.append('v_mul_f32 v%d, v%d, v%d' % (T0, V_DT, br))
            su.append('v_mul_f32 v%d, v%d, v%d' % (T0 + 1, V_DT, bi))
            su.append('v_sub_f32 v%d, v%d, v%d' % (X_ + 1, X_ + 1, T0 + 2))
            su.append('v_mul_f32 v%d, v%d, v%d' % (C_, cr, T0))
            su.append('v_mul_f32 v%d, v%d, v%d' % (C_ + 1, cr, T0 + 1))
            su.append('v_fma_f32 v%d, -v%d, v%d, v%d' % (C_, ci, T0 + 1, C_))
            su.append('v_fmac_f32 v%d, v%d, v%d' % (C_ + 1, ci, T0))
            for idx, (dst, p) in enumerate(((E8, 8.0), (E1, 1.0), (E256, 256.0))):
                t = T0 + 4 + 4 * idx
                if p == 1.0: m, th = X_, X_ + 1
                else:
                    su.append('v_mul_f32 v%d, %s, v%d' % (t, fhex(p), X_))
                    su.append('v_mul_f32 v%d, %s, v%d' % (t + 1, fhex(p), X_ + 1))
                    m, th = t, t + 1
                su.append('v_exp_f32 v%d, v%d' % (t + 2, m))
                su.append('v_cos_f32 v%d, v%d' % (dst, th))
                su.append('v_sin_f32 v%d, v%d' % (dst + 1, th))
            for idx, dst in enumerate((E8, E1, E256)):
                t = T0 + 4 + 4 * idx
                su.append('v_mul_f32 v%d, v%d, v%d' % (dst, dst, t + 2))
                su.append('v_mul_f32 v%d, v%d, v%d' % (dst + 1, dst + 1, t + 2))
            if ps > 0:
                for i, l in enumerate(su):
                    if i % 6 == 0 and i // 6 < 4: k(kmfma(4 + i // 6))
                    k(l)
            else:
                emit_list(k, su)
        setup(0)
        self.ts(1)
        k('s_mov_b32 s%d, 0' % S_PS)
        k.raw('.p2align 3')
        k.label('L_kbody')
        ps = 1
        def weave(ms, fill):
            per = -(-len(fill) // len(ms))
            for m in ms:
                k(m)
                emit_list(k, fill[:per]); fill = fill[per:]
        def cvts(src, part, neg):
            out = []
            for g in range(4):
                for d in range(4):
                    dst = GG + 4 * g + d if part == 0 else VV + 16 * g + d
                    ops = []
                    for o in src[8 * g + 2 * d: 8 * g + 2 * d + 2]:
                        if o is None: ops.append('1.0' if part == 0 else '0')
                        else: ops.append('%sv%d' % ('-' if neg else '', o + part))
                    out.append('v_cvt_pk_bf16_f32 v%d, %s, %s' % (dst, ops[0], ops[1]))
            return out
        grp = lambda part, g: GG + 4 * g if part == 0 else VV + 16 * g
        def swaps(part):
            return ['v_permlane32_swap_b32 v%d, v%d' % (grp(part, g) + d, grp(part, g + 1) + d) for g in (0, 2) for d in range(4)]
        def tm(part):
            t = 2 * part
            f = lambda tl, g, c: 'v_mfma_f32_32x32x16_bf16 %s, %s, %s, %s' % (vr(Dt(tl), 16), vr(grp(part, g), 4), vr(ID + 4 * (g >> 1), 4), c)
            return [f(t, 0, '0'), f(t, 2, vr(Dt(t), 16)), f(t + 1, 1, '0'), f(t + 1, 3, vr(Dt(t + 1), 16))]
        def back(t, dst):
            return ['v_cvt_pk_bf16_f32 v%d, v%d, v%d' % (dst + d, Dt(t) + 2 * d, Dt(t) + 2 * d + 1) for d in range(8)]
        self.pr(200 + ps, 1)
        qs = [None, E8, E16] + [VV + 2 * b_ for b_ in range(3, 32)]
        emit_list(k, self.cmul(E16, E8, E8))
        for b_ in range(3, 32): emit_list(k, self.cmul(qs[b_], qs[b_ - 2], E16))
        self.pr(200 + ps, 2)
        emit_list(k, cvts(qs, 0, False) + swaps(0))
        weave(tm(0), cvts(qs, 1, True) + swaps(1))
        weave(tm(1), back(0, QF) + back(1, QF + 8))
        self.pr(200 + ps, 3)
        cm = lambda o, a_, e: emit_list(k, self.cmul(pv[o], pv[a_], e))
        emit_list(k, self.cmul(E2, E1, E1))
        emit_list(k, self.cmul(E4, E2, E2))
        for o in range(1, 9): cm(o, o - 1, E1)
        for o in (256, 512, 768, 1024, 1280, 1536, 1792): cm(o, o - 256, E256)
        for o in (258, 260, 262, 264): cm(o, o - 2, E2)
        cm(516, 512, E4); cm(520, 512, E8); cm(772, 768, E4); cm(776, 768, E8)
        for o in (1032, 1288, 1544, 1800): cm(o, o - 8, E8)
        self.pr(200 + ps, 4)
        psrc = [pv[o] for o in order]
        emit_list(k, cvts(psrc, 0, False) + swaps(0))
        weave(tm(0), back(2, QF + 16) + back(3, QF + 24) + cvts(psrc, 1, False) + swaps(1))
        self.pr(200 + ps, 5)
        weave(tm(1), back(0, Dt(0)) + back(1, Dt(1)))
        weave([kmfma(s_) for s_ in range(4)], back(2, Dt(2)) + back(3, Dt(3)))
        self.pr(200 + ps, 7)
        k('s_add_u32 s%d, s%d, 1' % (S_PS, S_PS))
        k('s_cmp_eq_u32 s%d, 3' % S_PS)
        k('s_cbranch_scc1 L_kexit')
        k('s_cmp_eq_u32 s%d, 2' % S_PS)
        k('s_cbranch_scc1 L_ks2')
        lg_save = list(k.lg)
        setup(1)
        k('s_branch L_kbody')
        k.label('L_ks2')
        k.lg = list(lg_save)
        setup(2)
        k('s_branch L_kbody')
        k.label('L_kexit')
        k.lg = list(lg_save)
        ex = []
        ex += ['v_and_b32 v6, 31, v0', 'v_lshrrev_b32 v7, 5, v0', 'v_lshlrev_b32 v8, 4, v6', 'v_sub_u32 v8, s%d, v8' % S_CB,
               'v_lshlrev_b32 v9, 3, v7', 'v_sub_u32 v9, v8, v9', 'v_add_u32 v9, 504, v9',
               'v_lshlrev_b32 v10, 9, v7', 'v_sub_u32 v10, v8, v10', 'v_add_u32 v10, 1008, v10',
               'v_lshlrev_b32 v11, 10, v7', 'v_sub_u32 v11, v8, v11', 'v_add_u32 v11, 1520, v11',
               'v_add_u32 v12, %d, v9' % (KO + 4084 - 504), 'v_add_u32 v13, %d, v9' % (KO + 4084 - 512 - 504),
               'v_and_b32 v6, 1, v0', 'v_cmp_eq_u32 vcc, 1, v6',
               'v_min_u32 v14, 27, v0', 'v_lshlrev_b32 v14, 4, v14', 'v_add_u32 v14, s%d, v14' % S_CB]
        ex += ['v_mov_b32 v%d, 0' % (96 + i) for i in range(4)]
        V_A, V_B = 2, 3
        ex += ['v_and_b32 v6, 15, v0', 'v_lshrrev_b32 v7, 4, v0', 'v_lshlrev_b32 v7, 4, v7', 'v_add_u32 v7, s%d, v7' % S_CB,
               'v_lshrrev_b32 v8, 1, v6', 'v_lshlrev_b32 v8, 6, v8', 'v_sub_u32 v8, v7, v8',
               'v_mov_b32 v102, %d' % (448 + KO), 'v_mov_b32 v103, 448', 'v_cndmask_b32 v102, v102, v103, vcc', 'v_add_u32 v%d, v8, v102' % V_A,
               'v_lshl_add_u32 v8, v6, 2, v7', 'v_mov_b32 v102, %d' % UY, 'v_mov_b32 v103, %d' % (UX + 4),
               'v_cndmask_b32 v102, v102, v103, vcc', 'v_add_u32 v%d, v8, v102' % V_B, 'v_mov_b32 v15, s%d' % S_CB]
        ex = [l.replace('v102', 'v202').replace('v103', 'v203') for l in ex]
        ex = [l.replace('v_mov_b32 v9', 'v_mov_b32 v19') if l.startswith('v_mov_b32 v9') else l for l in ex]
        for s in range(4, 8):
            k(kmfma(s))
            emit_list(k, ex[:6]); ex = ex[6:]
        emit_list(k, ex)
        k('ds_write_b128 v14, v[196:199] offset:4096')
        k('ds_write_b128 v14, v[196:199] offset:%d' % (KO + 4096))
        self.ts(3)
        V = lambda r: ACC + r
        pk = lambda d, lo, hi: k('v_cvt_pk_bf16_f32 v%d, v%d, v%d' % (d, lo, hi))
        k('s_mov_b64 exec, 1')
        k('v_add_f32 v%d, s%d, v%d' % (V(0), S_DSK, V(0)))
        k('s_mov_b64 exec, -1')
        k('v_cndmask_b32 v100, v%d, v%d, vcc' % (V(11), V(12)))
        k('v_cndmask_b32 v101, v%d, v%d, vcc' % (V(13), V(14)))
        pk(32, V(3), V(2)); pk(33, V(1), V(0))
        pk(34, V(7), V(6)); pk(35, V(5), V(5))
        pk(36, V(10), V(10)); pk(37, V(9), V(9)); pk(38, V(9), V(8)); pk(39, V(8), V(8))
        pk(40, V(10), V(9)); k('v_mov_b32 v41, v37'); k('v_mov_b32 v42, v39'); k('v_mov_b32 v43, v39')
        for (lo, hi, T, off, rb) in ((11, 12, 100, 2032, 44), (13, 14, 101, 1520, 52)):
            pk(rb, V(hi), V(hi)); pk(rb + 1, V(hi), T); pk(rb + 2, V(lo), V(lo)); k('v_mov_b32 v%d, v%d' % (rb + 3, rb + 2))
            k('v_mov_b32 v%d, v%d' % (rb + 4, rb)); pk(rb + 5, T, V(lo)); k('v_mov_b32 v%d, v%d' % (rb + 6, rb + 2)); k('v_mov_b32 v%d, v%d' % (rb + 7, rb + 2))
        pk(60, V(4), V(3)); pk(61, V(2), V(1))
        pk(62, V(7), V(7)); pk(63, V(6), V(5))
        pk(102, V(0), 196)
        k('ds_write_b64 v9, v[32:33] offset:%d' % (4088 - 504))
        k('ds_write_b64 v9, v[34:35] offset:%d' % (4088 - 512 - 504))
        k('ds_write2_b32 v12, v60, v61 offset0:0 offset1:1')
        k('ds_write2_b32 v13, v62, v63 offset0:0 offset1:1')
        k('ds_write_b128 v10, v[36:39] offset:%d' % (3056 - 1008))
        k('ds_write_b128 v10, v[40:43] offset:%d' % (KO + 3056 - 1008))
        for (off, rb) in ((2032, 44), (1520, 52)):
            k('ds_write_b128 v11, %s offset:%d' % (vr(rb, 4), off - 1520))
            k('ds_write_b128 v11, %s offset:%d' % (vr(rb + 4, 4), KO + off - 1520))
        k('s_mov_b64 exec, 1')
        k('ds_write_b32 v15, v102 offset:%d' % (KO + 4092))
        k('s_mov_b64 exec, -1')
        self.snonce(104, 105)
        self.ts(2)
        k('s_cmp_ge_u32 s%d, 2' % S_WAVE)
        k('s_cbranch_scc1 L_nogate')
        self.gate()
        k.label('L_nogate')
        k('s_waitcnt lgkmcnt(0)')
        k('s_barrier')
        if opt.get('cstop') == 3: k('s_endpgm')
        Y = 16
        FB = [64, 128]
        NS = opt.get('ns', 6)
        self.ts(4)
        k('s_setprio %d' % opt.get('vprio', 0))
        emit_list(k, self.conv_reads(0, FB[0], V_A, V_B))
        fin = ['v_and_b32 v6, 15, v0', 'v_lshrrev_b32 v7, 4, v0', 'v_lshl_add_u32 v6, v7, 5, v6', 'v_lshlrev_b32 v6, 2, v6',
               'v_add_u32 v6, s%d, v6' % S_CB, 'v_lshlrev_b32 v8, 4, v0', 'v_add_u32 v7, s%d, v8' % S_CB,
               's_lshl_b32 s64, s%d, 13' % S_WAVE, 's_add_u32 s64, s64, %d' % (3 * CBS), 'v_add_u32 v9, s64, v8',
               's_lshl_b32 s64, s%d, 12' % S_D, 's_add_u32 s64, s64, 0x%x' % WS_AT]
        for sg in range(NS):
            k.wait(lg='all')
            if opt.get('cpat'):
                k('s_setprio %d' % (3 if (opt['cpat'] >> sg) & 1 else 0))
            nx = self.conv_reads(sg + 1, FB[(sg + 1) % 2], V_A, V_B) if sg + 1 < NS else fin
            self.conv_step(Y, FB[sg % 2], sg == 0, nx)
        self.ts(5)
        k('s_setprio 3')
        if NS < 8:
            k('s_barrier')
            for t in range(8):
                k('ds_read_b128 %s, v9 offset:%d' % (vr(192 + 4 * t, 4), 1024 * t), tag='pa%d' % t)
        for i in range(8):
            if NS < 8:
                k.wait(lg='pa%d' % i)
                for e in range(4): k('v_add_f32 v%d, v%d, v%d' % (Y + 4 * i + e, Y + 4 * i + e, 192 + 4 * i + e))
            for rr in range(2):
                pk(64 + 2 * i + rr, Y + 4 * i + 2 * rr, Y + 4 * i + 2 * rr + 1)
        for i in range(8):
            k('ds_write2_b32 v6, v%d, v%d offset0:%d offset1:%d' % (64 + 2 * i, 65 + 2 * i, (128 * i) % 256, (128 * i) % 256 + 16))
            if i % 2 == 1 and i < 7: k('v_add_u32 v6, 1024, v6')
        for z in range(4):
            k('ds_read_b128 %s, v7 offset:%d' % (vr(80 + 4 * z, 4), 1024 * z), tag='fy%d' % z)
        for z in range(4):
            k.wait(lg='fy%d' % z)
            k('buffer_store_dwordx4 %s, v8, s[%d:%d], s64 offen offset:%d sc1' % (vr(80 + 4 * z, 4), R_WS, R_WS + 3, 1024 * z))
        k('s_lshr_b32 s64, s%d, 3' % S_D)
        k('s_lshl_b32 s64, s64, 5')
        k('s_and_b32 s65, s%d, 7' % S_D)
        k('s_add_u32 s64, s64, s65')
        k('s_lshl_b32 s64, s64, 2')
        k('s_add_u32 s64, s64, 0x%x' % WS_FA)
        self.ts(6)
        k.wait(vm='all')
        self.flag_store_rep(9, 10, 's64', FA_RS)
        self.ts(7)
        self.ts_store()
        k('s_endpgm')

    def gate(self):
        k = self.k
        GX, GW = 112, 132
        self.srd_base(R_U, P_U)
        k('v_and_b32 v5, 15, v0')
        k('v_lshlrev_b32 v5, 4, v5')
        k('v_lshrrev_b32 v6, 4, v0')
        k('v_mul_u32_u24 v7, 1280, v6')
        k('v_add_u32 v7, v7, v5')
        k('s_lshl3_add_u32 s70, s%d, s%d' % (S_RHO, S_J))
        k('s_lshl1_add_u32 s70, s70, s%d' % S_WAVE)
        k('s_mul_i32 s71, s70, %d' % (4 * 1280))
        for i in range(5):
            k('buffer_load_dwordx4 %s, v7, s[%d:%d], s71 offen offset:%d' % (vr(GX + 4 * i, 4), R_U, R_U + 3, 256 * i), tag='G%d' % i)
            k('global_load_dwordx4 %s, v5, s[%d:%d] offset:%d' % (vr(GW + 4 * i, 4), P_GW, P_GW + 1, 256 * i), tag='G%d' % i)
        k('v_mov_b32 v160, 0')
        k('v_mov_b32 v161, 0')
        for i in range(20):
            if i % 4 == 0: k.wait(vm='G%d' % (i // 4))
            x, w = GX + i, GW + i
            t = 164
            k('v_lshlrev_b32 v%d, 16, v%d' % (t, x))
            k('v_and_b32 v%d, 0xffff0000, v%d' % (t + 1, x))
            k('v_lshlrev_b32 v%d, 16, v%d' % (t + 2, w))
            k('v_and_b32 v%d, 0xffff0000, v%d' % (t + 3, w))
            k('v_mul_f32 v%d, v%d, v%d' % (t, t, t + 2))
            k('v_mul_f32 v%d, v%d, v%d' % (t + 1, t + 1, t + 3))
            k('v_cvt_pk_bf16_f32 v%d, v%d, v%d' % (t + 4, t, t + 1))
            k('v_lshlrev_b32 v%d, 16, v%d' % (t, t + 4))
            k('v_and_b32 v%d, 0xffff0000, v%d' % (t + 1, t + 4))
            k('v_add_f32 v160, v160, v%d' % t)
            k('v_add_f32 v161, v161, v%d' % (t + 1))
        k('v_add_f32 v160, v160, v161')
        for m in ('quad_perm:[1,0,3,2]', 'quad_perm:[2,3,0,1]', 'row_half_mirror', 'row_mirror'):
            k('v_add_f32_dpp v160, v160, v160 %s row_mask:0xf bank_mask:0xf' % m)
        k('v_cvt_pk_bf16_f32 v160, v160, v160')
        k('v_lshlrev_b32 v160, 16, v160')
        k('v_mul_f32 v160, %s, v160' % fhex(-LOG2E))
        k('v_exp_f32 v160, v160')
        k('v_add_f32 v160, 1.0, v160')
        k('v_rcp_f32 v160, v160')
        k('v_cvt_pk_bf16_f32 v160, v160, v160')
        k('v_lshlrev_b32 v160, 16, v160')
        k('v_mov_b32 v161, s%d' % S_NONCE)
        k('v_lshlrev_b32 v6, 3, v6')
        k('s_lshl_b32 s70, s70, 5')
        k('s_add_u32 s70, s70, 0x%x' % WS_G)
        k('s_mov_b32 s74, 0x00010001')
        k('s_mov_b32 s75, 0x00010001')
        k('s_mov_b64 exec, s[74:75]')
        k('buffer_store_dwordx2 v[160:161], v6, s[%d:%d], s70 offen sc1' % (R_WS, R_WS + 3))
        k('s_mov_b64 exec, -1')

    def build(self):
        import gemm10
        k = self.k
        self.prologue()
        self.misc()
        self.chan()
        k.reset_counts()
        self.mark('gemm_head')
        k.label('L_gemm')
        self.ets(1)
        if self.opt.get('nogemm'): k('s_endpgm')
        else: gemm10.emit(self)
        self.mark('end')
        k.label('L_end')
        k('s_endpgm')
        secs = {}; prev = ('pro', 0)
        for m in self.marks + [('eof', len(k.items))]:
            secs[prev[0]] = k.items[prev[1]:m[1]]; prev = m
        order = ['pro', 'chan_head', 'misc_head', 'idle', 'gemm_head', 'chan_main', 'misc_main', 'gemm_main', 'end']
        k.items = sum((secs[n] for n in order if n in secs), []) + sum(getattr(k, 'colds', []), [])
        assert set(secs) <= set(order)
        if self.opt.get('ipf'): k.raw('.fill ((%d - (. - %s)) / 4), 4, 0xbf810000' % (64 * 128 * self.opt['ipf'] + 256, KNAME))
        hdr = open('gated_mix__ssm_conv_s4__dense_activation_silu__prompt.s.ref').read().split('; Override launch')[0]
        s = hdr + '; @launch grid=(512,1,1) block=(256,1,1) lds=81920\n'
        s += '.amdgcn_target "amdgcn-amd-amdhsa--gfx950"\n.text\n.globl %s\n.p2align 8\n.type %s,@function\n%s:\n' % (KNAME, KNAME, KNAME)
        s += k.text()
        s += '.section .rodata,"a"\n.p2align 6\n.amdhsa_kernel %s\n' % KNAME
        s += '  .amdhsa_next_free_vgpr 256\n  .amdhsa_next_free_sgpr 102\n  .amdhsa_accum_offset 256\n  .amdhsa_group_segment_fixed_size 0\n'
        s += '  .amdhsa_kernarg_size 128\n  .amdhsa_user_sgpr_count 2\n  .amdhsa_user_sgpr_kernarg_segment_ptr 1\n  .amdhsa_system_sgpr_workgroup_id_x 1\n.end_amdhsa_kernel\n'
        return s

if __name__ == '__main__':
    opt = {}
    out = sys.argv[1]
    for a in sys.argv[2:]:
        if '=' in a:
            kk, v = a.split('='); opt[kk] = int(v, 0)
        else: opt[a] = 1
    g = Gen(opt)
    open(out, 'w').write(g.build())
    print('nops inserted', g.k.nops, 'lines', len(g.k.items))
```

```python
from kgen import *
from gen14 import *

def emit(G):
    k = G.k
    opt = G.opt
    S_LW, S_HS, S_WST, S_FH, S_FC, S_GR, S_AD, S_OUT, S_A3 = 9, 11, 12, 14, 15, 40, 43, 46, 47
    S_XZ, S_WZ = 68, 73
    VX, VW = 2, 6
    ROT = opt.get('krot') or opt.get('grot')
    k('v_lshrrev_b32 v10, 4, v0')
    k('v_and_b32 v11, 15, v0')
    k('v_xor_b32 v13, v11, v10')
    k('v_lshlrev_b32 v13, 4, v13')
    k('s_mul_i32 s64, s%d, %d' % (S_WAVE, 16 * 1280))
    k('v_mul_u32_u24 v12, 1280, v10')
    k('v_add_u32 v12, s64, v12')
    k('v_add_u32 v%d, v12, v13' % VX)
    for n in range(1, 4):
        k('v_xor_b32 v14, %d, v13' % (64 * n))
        k('v_add_u32 v12, 4096, v12')
        k('v_add_u32 v%d, v12, v14' % (VX + n))
    k('s_mul_i32 s64, s%d, %d' % (S_RHO, 64 * 1280))
    if opt.get('grot'):
        k('s_and_b32 s66, s%d, 7' % S_RHO)
        k('s_mul_i32 s67, s66, 43')
        k('s_lshr_b32 s67, s67, 7')
        k('s_mul_i32 s65, s67, 3')
        k('s_sub_u32 s79, s66, s65')
        k('s_and_b32 s66, s%d, 3' % S_J)
        k('s_lshl1_add_u32 s66, s67, s66')
        k('s_sub_u32 s67, s66, 5')
        k('s_cmp_ge_u32 s66, 5')
        k('s_cselect_b32 s66, s67, s66')
    elif opt.get('krot'):
        k('s_mov_b32 s79, 0')
        k('s_add_u32 s66, s%d, s%d' % (S_RHO, S_J))
        k('s_mul_i32 s67, s66, 205')
        k('s_lshr_b32 s67, s67, 10')
        k('s_mul_i32 s67, s67, 5')
        k('s_sub_u32 s66, s66, s67')
    else:
        k('s_mov_b32 s79, 0')
        k('s_mov_b32 s66, 0')
    k('s_lshl_b32 s67, s66, 8')
    k('s_add_u32 s%d, s64, s67' % S_XZ)
    k('s_lshl_b32 s%d, s%d, 12' % (S_LW, S_WAVE))
    seq = []
    pat = {0: 'XWXWXWXWXW', 1: 'XXXXXWWWWW', 2: 'XXXWXWXWWW', 3: 'XXWXWXWXWW'}[opt.get('xfirst', 0)]
    cnt = {'X': 0, 'W': 0}
    for ch in pat:
        seq.append((ch, cnt[ch], 0)); cnt[ch] += 1
    LASTX = max(i for i in range(10) if pat[i] == 'X')
    for r in (1, 2):
        for z in range(5): seq.append(('W', z, r))
    def dma(i):
        typ, z, r = seq[i]
        out = ['s_add_u32 m0, s%d, %d' % (S_LW, 16384 * (i % 5))]
        so = S_XZ + z if typ == 'X' else S_WZ + z
        if typ == 'W' and r > 0: out.append('s_add_u32 s%d, s%d, s%d' % (so, so, S_WST + r - 1))
        rr = R_U if typ == 'X' else R_W
        for n in range(4):
            out.append(('buffer_load_dwordx4 v%d, s[%d:%d], s%d offen offset:%d lds' % ((VX if typ == 'X' else VW) + n, rr, rr + 3, so, 1024 * n), 'S%d' % i))
        return out
    k('s_waitcnt lgkmcnt(0)')
    G.ets(3)
    G.srd_base(R_U, P_U)
    if opt.get('gdelay'): k('s_sleep %d' % opt['gdelay'])
    emit_list(k, dma(0))
    k('v_lshrrev_b32 v12, 3, v0')
    k('s_lshl_b32 s65, s%d, 5' % S_WAVE)
    k('v_add_u32 v12, s65, v12')
    k('v_mul_u32_u24 v12, 3072, v12')
    k('v_and_b32 v13, 7, v0')
    k('v_and_b32 v14, 1, v10')
    k('v_lshlrev_b32 v14, 2, v14')
    k('v_xor_b32 v13, v13, v14')
    k('v_lshl_add_u32 v%d, v13, 4, v12' % VW)
    for n in range(1, 4):
        k('v_add_u32 v%d, %d, v%d' % (VW + n, n * (8 * 3072 - 1024), VW))
    k('s_mul_i32 s65, s%d, 384' % S_J)
    k('s_lshl_b32 s67, s79, 7')
    k('s_add_u32 s65, s65, s67')
    G.srd_base(R_W, P_W1); G.srd_tail(R_W, 640 * 1536 * 2)
    for z in range(5):
        if z:
            k('s_lshl_b32 s67, s66, 8')
            k('s_add_u32 s%d, s64, s67' % (S_XZ + z))
        k('s_mul_i32 s67, s66, %d' % (128 * 3072))
        k('s_add_u32 s%d, s65, s67' % (S_WZ + z))
        if z < 4:
            k('s_add_u32 s66, s66, 1')
            k('s_cmp_eq_u32 s66, 5')
            k('s_cselect_b32 s66, 0, s66')
    k('s_mov_b32 s%d, s79' % S_GR)
    def touch_go():
        L = k.newlabel('L_nt')
        k('s_cmp_lg_u32 s%d, 0' % S_WAVE)
        k('s_cbranch_scc1 %s' % L)
        emit_list(k, ['v_min_u32 v30, 59, v0', 'v_mul_u32_u24 v31, 43, v30', 'v_lshrrev_b32 v31, 9, v31',
             'v_mul_u32_u24 v31, %d, v31' % (3072 - 128 * 12), 'v_lshl_add_u32 v30, v30, 7, v31',
             's_bfe_u32 s78, s2, 0x50003', 's_bfe_u32 s79, s2, 0x20001', 's_lshl_b32 s79, s79, 5', 's_add_u32 s78, s78, s79',
             's_mul_i32 s78, s78, %d' % (5 * 3072), 's_and_b32 s79, s2, 1', 's_mul_i32 s79, s79, %d' % (128 * 12), 's_add_u32 s78, s78, s79'])
        k('buffer_load_dword v31, v30, s[%d:%d], s78 offen' % (R_W, R_W + 3)); k.vm.pop()
        k.label(L)
    PF = opt.get('pf1', -1)
    LA_ = opt.get('la', 4)
    NPRE = opt.get('npre', 2)
    for i in range(1, NPRE):
        if i == PF: touch_go()
        emit_list(k, dma(i))
    G.ets(4)
    G.cut('gemm_main')
    G.ts_init()
    if opt.get('gprio'): k('s_setprio %d' % opt['gprio'])
    G.srd_base(R_WS, P_WS)
    G.srd_base(R_O, P_OUT); G.srd_tail(R_O, 2048 * 640 * 2)
    for r in (1, 2):
        k('s_add_u32 s%d, s%d, 1' % (S_GR + r, S_GR + r - 1))
        k('s_cmp_eq_u32 s%d, 3' % (S_GR + r))
        k('s_cselect_b32 s%d, 0, s%d' % (S_GR + r, S_GR + r))
        k('s_sub_u32 s%d, s%d, s%d' % (S_WST + r - 1, S_GR + r, S_GR + r - 1))
        k('s_lshl_b32 s%d, s%d, 7' % (S_WST + r - 1, S_WST + r - 1))
    k('s_and_b32 s78, s%d, 1' % S_WAVE)
    k('s_lshr_b32 s79, s%d, 1' % S_WAVE)
    XA = 16
    WA, WAH, VH = 24, 25, 26
    k('v_and_b32 v12, 31, v0')
    k('v_lshrrev_b32 v13, 5, v0')
    k('s_lshl_b32 s64, s78, 13')
    k('v_xor_b32 v14, v13, v11')
    k('v_lshlrev_b32 v14, 4, v14')
    k('v_lshl_add_u32 v14, v12, 8, v14')
    k('v_add_u32 v%d, s64, v14' % XA)
    for s in range(1, 8): k('v_xor_b32 v%d, %d, v%d' % (XA + s, 32 * s, XA))
    k('v_bfe_u32 v14, v0, 2, 2')
    k('v_lshl_add_u32 v15, v13, 3, v14')
    k('v_lshlrev_b32 v15, 7, v15')
    k('v_and_b32 v27, 1, v10')
    k('v_bfe_u32 v28, v0, 1, 1')
    k('v_lshl_add_u32 v27, v27, 1, v28')
    k('s_lshl_b32 s64, s79, 2')
    k('v_add_u32 v27, s64, v27')
    k('v_lshrrev_b32 v14, 1, v14')
    k('v_lshlrev_b32 v14, 2, v14')
    k('v_xor_b32 v27, v27, v14')
    k('v_lshl_add_u32 v15, v27, 4, v15')
    k('v_and_b32 v27, 1, v0')
    k('v_lshl_add_u32 v%d, v27, 3, v15' % WA)
    k('v_add_u32 v%d, 0x10000, v%d' % (WAH, WA))
    k('v_lshrrev_b32 v14, 4, v12')
    k('s_lshl_b32 s64, s78, 1')
    k('v_add_u32 v14, s64, v14')
    k('v_lshlrev_b32 v14, 10, v14')
    k('v_lshl_add_u32 v15, v13, 4, v11')
    k('v_lshl_add_u32 v%d, v15, 4, v14' % VH)
    k('s_mul_i32 s66, s%d, 48' % S_RHO)
    k('s_mul_i32 s67, s%d, 6' % S_J)
    k('s_add_u32 s66, s66, s67')
    k('s_add_u32 s66, s66, s79')
    k('s_lshl_b32 s66, s66, 12')
    k('s_add_u32 s%d, s66, 0x%x' % (S_HS, WS_H))
    k('s_mul_i32 s66, s%d, 1536' % S_RHO)
    k('s_add_u32 s66, s66, 0x%x' % WS_FH)
    k('s_mul_i32 s67, s%d, 384' % S_WAVE)
    k('s_add_u32 s%d, s66, s67' % S_FC)
    k('s_lshr_b32 s67, s%d, 1' % S_J)
    k('s_mul_i32 s67, s67, 384')
    k('s_add_u32 s66, s66, s67')
    k('s_and_b32 s67, s%d, 1' % S_J)
    k('s_lshl2_add_u32 s%d, s67, s66' % S_FH)
    k('s_mov_b32 s%d, 0' % S_AD)
    k('s_lshl2_add_u32 s%d, s%d, s%d' % (S_OUT, S_RHO, S_WAVE))
    k('s_mul_i32 s%d, s%d, %d' % (S_OUT, S_OUT, 16 * 1280))
    k('s_mul_i32 s66, s%d, 160' % S_J)
    k('s_add_u32 s%d, s%d, s66' % (S_OUT, S_OUT))
    k('s_cmp_lt_u32 s%d, 2' % S_WAVE)
    k('s_cselect_b32 s%d, 1024, 0' % S_A3)
    FA, FBs = 32, 48
    ACC = [64, 80, 64]
    XF = 96
    def wread(i, half, s):
        base = 16384 * (i % 5)
        reg = WAH if base >= 65536 else WA
        off = base & 0xffff
        fs = FA if half == 0 else FBs
        return [('ds_read_b64_tr_b16 %s, v%d offset:%d' % (vr(fs + 4 * s + 2 * e, 2), reg, off + (4 * half + s) * 2048 + 512 * e), 'w%d%d' % (half, s)) for e in range(2)]
    def mfma(i, half, s):
        typ, z, r = seq[i]
        fs = FA if half == 0 else FBs
        c = '0' if (z == 0 and half == 0 and s == 0) else vr(ACC[r], 16)
        return 'v_mfma_f32_32x32x16_bf16 %s, %s, %s, %s' % (vr(ACC[r], 16), vr(fs + 4 * s, 4), vr(XF + 4 * (8 * z + 4 * half + s), 4), c)
    NL2 = fhex(-LOG2E)
    def epi(r):
        a = ACC[r]
        out = []
        for p in range(8):
            t = 10 if p % 2 == 0 else 28
            if opt.get('fastsilu'):
                x0, x1 = a + 2 * p, a + 2 * p + 1
            else:
                x0, x1 = t, t + 1
                out += ['v_cvt_pk_bf16_f32 v%d, v%d, v%d' % (t + 2, a + 2 * p, a + 2 * p + 1),
                        'v_lshlrev_b32 v%d, 16, v%d' % (t, t + 2),
                        'v_and_b32 v%d, 0xffff0000, v%d' % (t + 1, t + 2)]
            out += ['v_mul_f32 v%d, %s, v%d' % (t + 2, NL2, x0),
                    'v_mul_f32 v%d, %s, v%d' % (t + 3, NL2, x1),
                    'v_exp_f32 v%d, v%d' % (t + 2, t + 2),
                    'v_exp_f32 v%d, v%d' % (t + 3, t + 3),
                    'v_add_f32 v%d, 1.0, v%d' % (t + 2, t + 2),
                    'v_add_f32 v%d, 1.0, v%d' % (t + 3, t + 3),
                    'v_rcp_f32 v%d, v%d' % (t + 2, t + 2),
                    'v_rcp_f32 v%d, v%d' % (t + 3, t + 3),
                    'v_mul_f32 v%d, v%d, v%d' % (t + 2, x0, t + 2),
                    'v_mul_f32 v%d, v%d, v%d' % (t + 3, x1, t + 3),
                    'v_cvt_pk_bf16_f32 v%d, v%d, v%d' % (a + p, t + 2, t + 3)]
        out += ['s_lshl_b32 s66, s%d, 13' % (S_GR + r), 's_add_u32 s66, s66, s%d' % S_HS]
        for s in range(2):
            out.append(('buffer_store_dwordx4 %s, v%d, s[%d:%d], s66 offen offset:%d sc1' % (vr(a + 4 * s, 4), VH, R_WS, R_WS + 3, 512 * s), 'hst%d' % r))
        return out
    def hflag(r):
        L = k.newlabel('L_nf')
        k('s_cmp_lg_u32 s%d, %d' % (S_WAVE, r))
        k('s_cbranch_scc1 %s' % L)
        k('s_add_u32 s67, s%d, %d' % (S_FH, 128 * r))
        G.flag_store_rep(14, 15, 's67', FH_RS); k.vm.pop()
        k.label(L)
    S_W0, S_H0, S_FA, S_AT, S_GG, S_PC, S_PE, S_PB, S_AC, S_AE = 68, 69, 70, 71, 72, 73, 74, 75, 76, 77
    VL, VL4, VT = 16, 17, 18
    VFH, VFW = 22, 23
    WD, HD = opt.get('wdepth', 4), opt.get('hdepth', 2)
    assert 5 * WD + 4 * HD <= 36
    WB4 = opt.get('wb4', 3)
    def Wr(st, sub):
        b = st % WD
        return XF + 4 * (5 * b + sub + (4 * HD if b >= WB4 else 0))
    Hr = lambda st, T: XF + 4 * (5 * min(WB4, WD) + 4 * (st % HD) + T)
    kap = lambda st: 6 * ((st >> 1) & 1) + (st & 1)
    def g2_setup():
        o = ['v_lshlrev_b32 v%d, 4, v0' % VL, 'v_add_u32 v%d, 0x1000, v%d' % (VL4, VL)]
        for T in range(4):
            o += ['s_xor_b32 s65, s%d, %d' % (S_WAVE, T), 's_lshl_b32 s65, s65, 10', 'v_add_u32 v%d, s65, v%d' % (VT + T, VL)]
        o += ['v_add_u32 v2, s%d, v%d' % (S_LW, VL), 'v_add_u32 v3, 0x10000, v2']
        o += ['v_and_b32 v%d, 1, v0' % VFH, 'v_lshlrev_b32 v%d, 2, v%d' % (VFH, VFH),
              's_lshl2_add_u32 s64, s%d, s%d' % (S_J, S_WAVE), 's_mul_i32 s64, s64, %d' % (12 * 5120), 's_add_u32 s%d, s64, 0x%x' % (S_W0, WS_W2P),
              's_lshl2_add_u32 s64, s%d, s%d' % (S_RHO, S_WAVE), 's_mul_i32 s65, s64, %d' % (12 * 4096), 's_add_u32 s%d, s65, 0x%x' % (S_H0, WS_H),
              's_lshl_b32 s64, s64, 7', 's_add_u32 s%d, s64, 0x%x' % (S_GG, WS_G),
              's_mul_i32 s64, s%d, %d' % (S_J, 10 * 128), 's_add_u32 s%d, s64, 0x%x' % (S_FA, WS_FA),
              's_mul_i32 s64, s%d, %d' % (S_J, 80 * 4096), 's_lshl_b32 s65, s%d, 7' % S_RHO, 's_add_u32 s64, s64, s65', 's_add_u32 s%d, s64, 0x%x' % (S_AT, WS_AT),
              's_mul_i32 s64, s%d, 5' % S_J, 's_lshr_b32 s78, s64, 3', 's_add_u32 s64, s64, 4', 's_lshr_b32 s79, s64, 3',
              's_lshl_b32 s78, s78, 8', 's_lshl_b32 s79, s79, 8', 's_mul_i32 s64, s%d, 48' % S_WAVE, 's_add_u32 s64, s64, 0x%x' % WS_FW,
              's_add_u32 s78, s78, s64', 's_add_u32 s79, s79, s64', 's_sub_u32 s64, s79, s78',
              'v_and_b32 v%d, 15, v0' % VFW, 'v_min_u32 v%d, 11, v%d' % (VFW, VFW), 'v_lshlrev_b32 v%d, 2, v%d' % (VFW, VFW),
              'v_bfe_u32 v27, v0, 4, 1', 'v_mul_u32_u24 v27, s64, v27', 'v_add_u32 v%d, v%d, v27' % (VFW, VFW)]
        return o
    NL = opt.get('nlds', 0)
    V_LB = 2
    def wlds(n):
        st, sub = WD + n // 5, n % 5
        o = []
        if sub == 0: o += ['s_mul_i32 s%d, s%d, 10240' % (S_LC, S_GR + (st >> 2)), 's_add_u32 s%d, s%d, s%d' % (S_LC, S_LC, S_W0), 's_add_u32 s%d, s%d, %d' % (S_LC, S_LC, kap(st) * 5120)]
        else: o += ['s_add_u32 s%d, s%d, 1024' % (S_LC, S_LC)]
        o += ['s_add_u32 m0, s%d, %d' % (S_LW, 16384 * (n >> 2) + 1024 * (n & 3)),
              ('buffer_load_dwordx4 v%d, s[%d:%d], s%d offen sc1 lds' % (VL, R_WS, R_WS + 3, S_LC), 'L%d' % st)]
        return o
    S_LC = 52
    def lread(st):
        o = []
        for sub in range(5):
            n = 5 * (st - WD) + sub
            off = 16384 * (n >> 2) + 1024 * (n & 3)
            o.append(('ds_read_b128 %s, v%d offset:%d' % (vr(Wr(st, sub), 4), V_LB + 1 if off >= 65536 else V_LB, off & 0xffff), 'lr%d' % st))
        return o
    nl = [0]
    def lds_upto(nslots):
        while nl[0] < min(5 * NL, 4 * nslots):
            mq.extend(wlds(nl[0])); nl[0] += 1
    def wload(st):
        o = ['s_mul_i32 s64, s%d, 10240' % (S_GR + (st >> 2)), 's_add_u32 s64, s64, s%d' % S_W0, 's_add_u32 s64, s64, %d' % (kap(st) * 5120)]
        for sub in range(5):
            o.append(('buffer_load_dwordx4 %s, v%d, s[%d:%d], s64 offen offset:%d sc1' % (vr(Wr(st, sub), 4), VL4 if sub == 4 else VL, R_WS, R_WS + 3, 1024 * (sub % 4)), 'W%d' % st))
        return o
    def hloads(st):
        o = ['s_lshl_b32 s65, s%d, 13' % (S_GR + (st >> 2)), 's_add_u32 s65, s65, s%d' % S_H0, 's_add_u32 s65, s65, %d' % (kap(st) * 4096)]
        for T in range(4):
            o.append(('buffer_load_dwordx4 %s, v%d, s[%d:%d], s65 offen sc1' % (vr(Hr(st, T), 4), VT + T, R_WS, R_WS + 3), 'H%d' % st))
        return o
    def take(q, n):
        o = q[:n]; del q[:n]; return o
    def h_issue():
        k('s_load_dwordx2 s[16:17], s[%d:%d], s18' % (R_WS, R_WS + 1))
    def sflag_issue(rank):
        if opt.get('nohchk'): return
        k('s_add_u32 s20, s%d, %d' % (S_FC, 128 * rank))
        k('s_mov_b32 s18, s20')
        h_issue()
        k('s_add_u32 s18, s18, %d' % FH_RS)
        k('s_add_u32 s19, s20, %d' % (NREP * FH_RS))
    def sflag_check(rank):
        if opt.get('nohchk'): return
        k('s_waitcnt lgkmcnt(0)')
        G.s_allok(16, 2)
        G.slow('scc1', lambda: G.spoll_loop(h_issue, 16, 2, 18, 19, FH_RS, lambda: G.poll(27, VFH, 's20')))
    def w_issue():
        k('s_load_dwordx8 s[16:23], s[%d:%d], s78' % (R_WS, R_WS + 1))
        k('s_load_dwordx4 s[24:27], s[%d:%d], s78 offset:32' % (R_WS, R_WS + 1))
        k('s_load_dwordx8 s[28:35], s[%d:%d], s79' % (R_WS, R_WS + 1))
        k('s_load_dwordx4 s[36:39], s[%d:%d], s79 offset:32' % (R_WS, R_WS + 1))
    def w_check():
        k('s_waitcnt lgkmcnt(0)')
        G.s_allok(16, 24)
        G.slow('scc1', lambda: G.poll(27, VFW, 's78'))
    epq = []; mq = []
    LA0 = opt.get('la0', LA_)
    GB = opt.get('gapb', 48)
    st8 = {'n': NPRE}
    def cost(f):
        t = f[0] if isinstance(f, tuple) else f
        return 8 if t.startswith(('v_exp', 'v_rcp')) else 4
    gcount = [0]
    VM_MASK = opt.get('vmask', 0xff)
    def gap(used, g=0):
        nv = 0
        while mq and nv < (opt.get('vper', 2) if (VM_MASK >> g) & 1 else 0):
            f = mq.pop(0); emit_list(k, [f]); used += 4
            if isinstance(f, tuple): nv += 1
        while epq and used + cost(epq[0]) <= GB:
            f = epq.pop(0); emit_list(k, [f]); used += cost(f)
    F0AT, PWAT, H0AT = opt.get('f0at', 15), opt.get('pwat', 13), opt.get('h0at', 18)
    def younger(a, b):
        ia = max(i for i, t in enumerate(k.vm) if t == a); ib = max(i for i, t in enumerate(k.vm) if t == b)
        return a if ia > ib else b
    def sync(i, lg):
        if any(isinstance(f, tuple) and f[1] == 'S%d' % i for f in mq): emit_list(k, take(mq, 1000))
        k.wait(vm=(younger('S%d' % i, 'hst0') if i == F0AT else 'S%d' % i), lg=lg)
        k('s_barrier')
        if i < 10: G.pr(301, i)
        if i >= 10: G.pr(302, i - 10)
        if i == 0: G.ts(1)
        if i == 10: G.ts(2)
        if i == 15: G.ts(3)
        if i == F0AT: hflag(0)
        la = LA0 if i < opt.get('la0end', 8) else LA_
        upto = max(min(i + la - 1, i + 3), min(4, i + la))
        while st8['n'] < 20 and st8['n'] <= upto:
            if st8['n'] == PF: touch_go()
            mq.extend(dma(st8['n'])); st8['n'] += 1
        if i == 6: k('s_load_dword s%d, s[%d:%d], 0' % (S_NONCE, P_DBG, P_DBG + 1))
        if i == 9: G.snonce(14, 15, first=1)
        if i == PWAT and not opt.get('noa'): mq.insert(0, ('buffer_load_dword v27, v%d, s[%d:%d], s78 offen sc1' % (VFW, R_WS, R_WS + 3), 'pw'))
        if i == H0AT - 1: sflag_issue(0)
        if i >= 17 and opt.get('learly', 1): lds_upto(i - 16)
    plan = []
    for b in range(WD):
        if b == WB4: plan += [('H', h) for h in range(HD)]
        plan.append(('W', b))
    if WB4 >= WD: plan += [('H', h) for h in range(HD)]
    def top(it): return ((Wr(it[1], 4) if it[0] == 'W' else Hr(it[1], 3)) - XF) // 4 + 1
    hchk = [False]
    def prefetch(free, now):
        while plan and top(plan[0]) <= free:
            it = plan[0]
            if it[0] == 'H':
                if now < H0AT:
                    nxt = [p for p in plan if p[0] == 'W' and top(p) <= free]
                    if not nxt: return
                    it = nxt[0]
                elif not hchk[0]:
                    sflag_check(0); hchk[0] = True
            plan.remove(it)
            mq.extend(wload(it[1]) if it[0] == 'W' else hloads(it[1]))
    sync(0, None)
    pend = None
    for i in range(20):
        typ, z, r = seq[i]
        base = 16384 * (i % 5)
        for s in range(4):
            used = 8
            if pend is not None:
                k.wait(lg='w1%d' % s); k(pend[s]); used += 4
            if typ == 'W': emit_list(k, wread(i, 0, s))
            else:
                for s2 in (2 * s, 2 * s + 1):
                    if base >= 65536:
                        k('v_add_u32 v%d, 0x10000, v%d' % (10 + s2 % 4, XA + s2))
                        k('ds_read_b128 %s, v%d' % (vr(XF + 4 * (8 * z + s2), 4), 10 + s2 % 4), tag='x%d' % i)
                    else:
                        k('ds_read_b128 %s, v%d offset:%d' % (vr(XF + 4 * (8 * z + s2), 4), XA + s2, base), tag='x%d' % i)
            gap(used, s)
        pend = None
        prevx = 'x%d' % (i - 1) if (i > 0 and seq[i - 1][0] == 'X') else None
        if typ == 'X':
            emit_list(k, take(mq, 1000))
            if i == LASTX: emit_list(k, g2_setup())
            sync(i + 1, prevx)
            continue
        if z == 0 and r > 0: epq.extend(epi(r - 1))
        if r == 2 and z >= 1:
            if z == 1 and not opt.get('noa'): G.poll(27, VFW, 's78', first='pw')
            prefetch(8 * z, i)
        for s in range(4):
            k.wait(lg='w0%d' % s)
            k(mfma(i, 0, s))
            if s < 2:
                emit_list(k, wread(i, 1, 2 * s) + wread(i, 1, 2 * s + 1))
                gap(20 if (z or s) else 1000, 4 + s)
            elif s == 2 and i < 19:
                if i + 1 == F0AT: emit_list(k, take(epq, 1000))
                sync(i + 1, None)
            else:
                gap(4, 4 + s)
        pend = [mfma(i, 1, s) for s in range(4)]
        if i in (14, 19): emit_list(k, take(epq, 1000))
    if not opt.get('pace'): emit_list(k, take(mq, 1000))
    F1AT = opt.get('f1at', -1)
    if F1AT == -2: k.wait(vm='hst1', lg='all')
    else: k.wait(lg='all')
    k(pend[0])
    k('s_barrier')
    if F1AT == -2: hflag(1)
    for s in range(1, 4): k(pend[s])
    G.ts(4)
    epq = epi(2)
    if H0AT >= 20:
        prefetch(40, 19); emit_list(k, take(mq, 1000))
        emit_list(k, take(epq, opt.get('e2a', 10)))
        if H0AT > 20: sflag_issue(0)
        emit_list(k, take(epq, opt.get('e2b', 40)))
    prefetch(40, 99)
    lds_upto(5)
    if opt.get('pace'):
        while mq and epq:
            while mq:
                f = mq.pop(0); emit_list(k, [f])
                if isinstance(f, tuple): break
            emit_list(k, take(epq, opt['pace']))
    emit_list(k, take(mq, 1000))
    emit_list(k, take(epq, 1000))
    if F1AT == -1:
        k.wait(vm='hst1'); k('s_barrier'); hflag(1)
    G.ts(5)
    accs = [32 + 4 * i for i in range(16)] + [240 + 4 * i for i in range(4)]
    A2 = lambda T, sub: accs[5 * T + sub]
    V_FA, V_AD, V_G, V_AR, V_OW, V_OR, V_OS = 4, 5, 6, 7, 8, 9, 10
    V_PR = 24
    LA = 65536
    su = ['v_lshrrev_b32 v10, 3, v0', 'v_min_u32 v11, 2, v10', 'v_lshlrev_b32 v11, 2, v11', 'v_add_u32 v11, s%d, v11' % S_WAVE,
          'v_min_u32 v11, 9, v11', 'v_and_b32 v12, 7, v0', 'v_lshl_add_u32 v11, v11, 5, v12', 'v_lshlrev_b32 v%d, 2, v11' % V_FA,
          's_lshl_b32 s%d, s%d, 7' % (S_AC, S_WAVE), 's_add_u32 s%d, s%d, s%d' % (S_AC, S_AC, S_FA), 's_add_u32 s%d, s%d, %d' % (S_AE, S_AC, NREP * FA_RS),
          'v_lshlrev_b32 v10, 12, v10', 'v_lshl_add_u32 v%d, v12, 4, v10' % V_AD,
          'v_and_b32 v13, 15, v0', 'v_lshlrev_b32 v%d, 3, v13' % V_G,
          'v_lshrrev_b32 v10, 5, v0', 'v_lshlrev_b32 v10, 12, v10', 'v_bfe_u32 v11, v0, 2, 3', 'v_lshl_add_u32 v10, v11, 7, v10',
          'v_and_b32 v11, 3, v0', 'v_lshl_add_u32 v10, v11, 3, v10',
          's_lshl_b32 s66, s%d, 5' % S_WAVE, 's_add_u32 s66, s66, %d' % LA, 'v_add_u32 v%d, s66, v10' % V_AR,
          's_xor_b32 s66, s%d, 0x1000' % S_LW,
          'v_mul_u32_u24 v10, 160, v13', 'v_lshrrev_b32 v11, 4, v0', 'v_lshl_add_u32 v10, v11, 3, v10', 'v_add_u32 v%d, s66, v10' % V_OW,
          'v_add_u32 v%d, s66, v%d' % (V_OR, VL)]
    for n in range(3):
        su += ['v_add_u32 v13, %d, v0' % (64 * n), 'v_mul_u32_u24 v28, 205, v13', 'v_lshrrev_b32 v28, 11, v28',
               'v_mul_u32_u24 v28, %d, v28' % (1280 - 160), 'v_lshl_add_u32 v%d, v13, 4, v28' % (V_OS + n)]
    for T in range(1, 4):
        su += ['v_xor_b32 v%d, 0x%x, v%d' % (V_PR + T - 1, 0x1000 * T, V_LB)]
    poff = lambda T, sub: 16384 * ((5 * (T - 1) + sub) >> 2) + 1024 * ((5 * (T - 1) + sub) & 3)
    def a_dma():
        for n in range(3):
            if n < 2: k('s_add_u32 s66, s%d, %d' % (S_WAVE, 4 * n))
            else:
                k('s_lshr_b32 s66, s%d, 7' % S_A3)
                k('s_add_u32 s66, s66, s%d' % S_WAVE)
            k('s_lshl_b32 s67, s66, 15')
            k('s_add_u32 s67, s67, s%d' % S_AT)
            k('s_add_u32 m0, s%d, %d' % (S_LW, LA + 1024 * n))
            k('buffer_load_dwordx4 v%d, s[%d:%d], s67 offen sc1 lds' % (V_AD, R_WS, R_WS + 3)); k.vm.pop()
    def a_issue():
        k('s_load_dwordx8 s[16:23], s[%d:%d], s%d' % (R_WS, R_WS + 1, S_AC))
        k('s_load_dwordx8 s[24:31], s[%d:%d], s%d offset:512' % (R_WS, R_WS + 1, S_AC))
        k('s_add_u32 s67, s%d, s%d' % (S_AC, S_A3))
        k('s_load_dwordx8 s[32:39], s[%d:%d], s67' % (R_WS, R_WS + 1))
    F2AT = opt.get('f2at', 2)
    AST = opt.get('ast', 9)
    AST2 = opt.get('ast2', -1)
    wr = [(T, sub) for T in range(1, 4) for sub in range(5)]
    pw = lambda T, sub: 'ds_write_b128 v%d, %s offset:%d' % (V_LB, vr(A2(T, sub), 4), poff(T, sub))
    inlds = lambda st: WD <= st < WD + NL
    assert AST >= WD + NL
    R1AT, R2AT, CHKEND = opt.get('r1at', 2), opt.get('r2at', 6), opt.get('chkend', 1)
    hn = [HD]; ok = [2 if opt.get('nohchk') else 0]
    assert HD <= 4 and R2AT < AST - 1
    LRD = opt.get('lrd', 1)
    for st in range(12):
        tg = 'H%d' % st if inlds(st) else younger('W%d' % st, 'H%d' % st)
        if inlds(st + LRD): tg = younger(tg, 'L%d' % (st + LRD))
        fl = [r for r, at in ((1, F1AT), (2, F2AT)) if at == st]
        for r in fl: tg = younger(tg, 'hst%d' % r)
        k.wait(vm=tg, lg=('lr%d' % st if inlds(st) else None))
        if inlds(st + LRD): emit_list(k, lread(st + LRD))
        if fl:
            k('s_barrier')
            for r in fl: hflag(r)
        if st == 0: G.ts(6)
        if st < 10: G.pr(300, st)
        if st == 11: G.pr(303, 0)
        for r_, at in ((1, R1AT), (2, R2AT)):
            if st == at - 1 and not CHKEND: sflag_issue(r_)
            if st == at:
                if CHKEND: sflag_issue(r_)
                else:
                    sflag_check(r_); ok[0] = r_
        while hn[0] < 12 and hn[0] < st + HD and (hn[0] >> 2) <= ok[0]:
            emit_list(k, hloads(hn[0])); hn[0] += 1
        if st in (AST, AST2) and not opt.get('noa'):
            L = k.newlabel('L_noa')
            if st == AST2:
                k('s_cmp_lg_u32 s%d, 0' % S_AD)
                k('s_cbranch_scc1 %s' % L)
            k('s_waitcnt lgkmcnt(0)')
            G.s_allok(16, 24)
            k('s_cbranch_scc1 %s' % L)
            a_dma()
            k('s_mov_b32 s%d, 1' % S_AD)
            k.label(L)
            if st == AST and AST2 > 0:
                L = k.newlabel('L_noa')
                k('s_cmp_lg_u32 s%d, 0' % S_AD)
                k('s_cbranch_scc1 %s' % L)
                a_issue()
                k('s_add_u32 s%d, s%d, %d' % (S_AC, S_AC, FA_RS))
                k.label(L)
        hl = []
        if hn[0] < 12 and hn[0] == st + HD and (hn[0] >> 2) <= ok[0]:
            hl = hloads(hn[0]); hn[0] += 1
        emit_list(k, take(hl, 3))
        n = 0
        for T in ((0, 1, 2, 3) if st < 11 else (1, 2, 3, 0)):
            for sub in range(5):
                c = '0' if st == 0 else vr(A2(T, sub), 4)
                k('v_mfma_f32_16x16x32_bf16 %s, %s, %s, %s' % (vr(A2(T, sub), 4), vr(Wr(st, sub), 4), vr(Hr(st, T), 4), c))
                n += 1
                if st == 11 and n >= 6: k(pw(*wr.pop(0)))
                if st in (1, 2, 3): emit_list(k, take(su, 1))
            emit_list(k, take(hl, 1))
        if st == 3: emit_list(k, take(su, 1000))
        if CHKEND and st in (R1AT, R2AT):
            if opt.get('wfirst') and st + WD < 12 and not inlds(st + WD): emit_list(k, wload(st + WD))
            ok[0] = max(ok[0], 1 if st == R1AT else 2)
            sflag_check(ok[0])
            while hn[0] < 12 and hn[0] <= st + HD and (hn[0] >> 2) <= ok[0]:
                emit_list(k, hloads(hn[0])); hn[0] += 1
            if opt.get('wfirst'): continue
        if st == AST - 1 and not opt.get('noa'):
            a_issue()
            k('s_add_u32 s%d, s%d, %d' % (S_AC, S_AC, FA_RS))
        if st == 5:
            k('buffer_load_dwordx2 v[30:31], v%d, s[%d:%d], s%d offen sc1' % (V_G, R_WS, R_WS + 3, S_GG), tag='g')
        if st + WD < 12 and not inlds(st + WD): emit_list(k, wload(st + WD))
    G.ts(7)
    G.pr(303, 1)
    assert not wr
    if not opt.get('noa'): G.poll(30, V_G, 's%d' % S_GG, n=2, first='g', waited=True, which=[1])
    k('v_sub_f32 v28, 1.0, v30')
    k('v_mov_b32 v31, v30')
    k('v_cvt_pk_bf16_f32 v28, v28, v28')
    k('v_lshlrev_b32 v28, 16, v28')
    k('v_mov_b32 v29, v28')
    k('s_waitcnt lgkmcnt(0)')
    k('s_barrier')
    G.pr(303, 2)
    RB = 96
    for sub in range(5):
        for p in range(3):
            k('ds_read_b128 %s, v%d offset:%d' % (vr(RB + 12 * sub + 4 * p, 4), V_PR + p, poff(p + 1, sub)), tag='r%d' % sub)
    if not opt.get('noa'):
        def late_a():
            G.spoll_loop(a_issue, 16, 24, S_AC, S_AE, FA_RS, lambda: G.poll(27, V_FA, 's%d' % S_FA), sleep=opt.get('asleep', 4))
            a_dma()
        k('s_cmp_lg_u32 s%d, 0' % S_AD)
        G.slow('scc0', late_a)
    G.ts(8)
    fast = opt.get('fastfin')
    def rnd(x):
        k('v_cvt_pk_bf16_f32 v%d, v%d, v%d' % (x + 1, x, x + 1))
        k('v_lshlrev_b32 v%d, 16, v%d' % (x, x + 1))
        k('v_and_b32 v%d, 0xffff0000, v%d' % (x + 1, x + 1))
    def red(sub):
        a = A2(0, sub); rb = RB + 12 * sub
        k.wait(lg='r%d' % sub)
        for hf in range(2):
            x = a + 2 * hf
            k('v_pk_add_f32 %s, %s, %s' % (vr(x, 2), vr(x, 2), vr(rb + 2 * hf, 2)))
            k('v_pk_add_f32 %s, %s, %s' % (vr(rb + 4 + 2 * hf, 2), vr(rb + 4 + 2 * hf, 2), vr(rb + 8 + 2 * hf, 2)))
            k('v_pk_add_f32 %s, %s, %s' % (vr(x, 2), vr(x, 2), vr(rb + 4 + 2 * hf, 2)))
            if not fast: rnd(x)
            k('v_pk_mul_f32 %s, %s, v[28:29]' % (vr(x, 2), vr(x, 2)))
            if not fast: rnd(x)
    G.pr(303, 3)
    for sub in range(3): red(sub)
    G.pr(303, 4)
    k('s_waitcnt vmcnt(0)')
    k('s_barrier')
    G.pr(303, 5)
    AR = 160
    for sub in range(5):
        k('ds_read_b64_tr_b16 %s, v%d offset:%d' % (vr(AR + 2 * sub, 2), V_AR, (sub & 1) * 8192 + (sub >> 1) * 1024), tag='ar%d' % sub)
    for sub in range(3, 5): red(sub)
    for sub in range(5):
        a = A2(0, sub)
        k.wait(lg='ar%d' % sub)
        for hf in range(2):
            t = 20; x = a + 2 * hf; ar = AR + 2 * sub + hf
            k('v_lshlrev_b32 v%d, 16, v%d' % (t, ar))
            k('v_and_b32 v%d, 0xffff0000, v%d' % (t + 1, ar))
            if fast:
                k('v_pk_fma_f32 %s, %s, v[30:31], %s' % (vr(t, 2), vr(t, 2), vr(x, 2)))
            else:
                k('v_pk_mul_f32 %s, %s, v[30:31]' % (vr(t, 2), vr(t, 2)))
                rnd(t)
                k('v_pk_add_f32 %s, %s, %s' % (vr(t, 2), vr(t, 2), vr(x, 2)))
            k('v_cvt_pk_bf16_f32 v%d, v%d, v%d' % (ar, t, t + 1))
    G.pr(303, 6)
    for sub in range(5):
        k('ds_write_b64 v%d, %s offset:%d' % (V_OW, vr(AR + 2 * sub, 2), 32 * sub))
    for n in range(3):
        k('ds_read_b128 %s, v%d offset:%d' % (vr(176 + 4 * n, 4), V_OR, 1024 * n), tag='o%d' % n)
    for n in range(3):
        k.wait(lg='o%d' % n)
        if n == 2: k('s_mov_b32 exec_hi, 0')
        k('buffer_store_dwordx4 %s, v%d, s[%d:%d], s%d offen %s' % (vr(176 + 4 * n, 4), V_OS + n, R_O, R_O + 3, S_OUT, 'sc1' if opt.get('osc1') else ''))
    k('s_mov_b64 exec, -1')
    G.pr(303, 7)
    G.ts(9)
    G.ts_store()
    G.calib()
    k('s_endpgm')
```

```python
import sys, math
from kgen import *
KNAME = 'gated_mix__ssm_conv_s4__dense_activation_silu__prompt_kernel'

WS_UT, WS_AT, WS_H, WS_W2P, WS_G = 0x000000, 0x300000, 0x600000, 0xC00000, 0xE00000
WS_FH, WS_FU, WS_FW, WS_FA, WS_TS = 0xE80000, 0xE10000, 0xE28000, 0xF00000, 0xE30000
import os
NREP = int([a.split('=')[1] for a in sys.argv if a.startswith('nrep=')][0]) if any(a.startswith('nrep=') for a in sys.argv) else 8
FU_RS, FA_RS, FH_RS = 0x1000, 0x4000, 0x10000
WS_SZ = 0x1000000
LOG2E = 1.4426950408889634
INV2PI = 0.15915494309189535

S_WG, S_WAVE, S_M, S_RHO, S_J, S_NONCE, S_TMO = 2, 3, 4, 5, 6, 7, 8
P_U, P_ARE, P_AIM, P_BRE, P_BIM, P_CRE, P_CIM, P_LDT = 16, 18, 20, 22, 24, 26, 28, 30
P_DSK, P_BX, P_W1, P_W2, P_GW, P_OUT, P_DBG, P_WS = 32, 34, 36, 38, 40, 42, 44, 46
R_WS, R_U, R_W, R_O = 48, 52, 56, 60
S_TS = 80
CBS = 17664
KO, UX = 4576, 9216
UY = UX + 4224

def emit_list(k, lst):
    for f in lst:
        if isinstance(f, tuple): k(f[0], tag=f[1])
        else: k(f)

class Gen:
    def __init__(self, opt):
        self.k = K()
        self.opt = opt
        self.marks = []
    def mark(self, name):
        self.marks.append((name, len(self.k.items)))
    def cut(self, name):
        self.k('s_branch L_%s' % name)
        self.mark(name)
        self.k.label('L_%s' % name)
    def slow(self, cond, body):
        k = self.k
        S = k.newlabel('L_slow'); B = k.newlabel('L_back')
        k('s_cbranch_%s %s' % (cond, S))
        k.cold_begin()
        k.label(S)
        body()
        k('s_nop 4')
        k('s_branch %s' % B)
        k.cold_end()
        k.label(B)
    def srd_tail(self, r, size):
        self.k('s_mov_b32 s%d, 0x%x' % (r + 2, size))
        self.k('s_mov_b32 s%d, 0x20000' % (r + 3))
    def srd_base(self, r, p):
        self.k('s_mov_b64 s[%d:%d], s[%d:%d]' % (r, r + 1, p, p + 1))
    def ts(self, i):
        if self.opt.get('ts') and not self.opt.get('probe') and not (self.opt.get('early') and i in (1, 3, 4)):
            self.k('%s s[%d:%d]' % ('s_memtime' if self.opt.get('cyc') else 's_memrealtime', S_TS + 2 * i, S_TS + 2 * i + 1))
    def pr(self, key, i):
        if self.opt.get('probe') == key:
            self.k('s_memtime s[%d:%d]' % (S_TS + 2 * i, S_TS + 2 * i + 1))
    def ts_init(self):
        if self.opt.get('ts'):
            for i in range(10):
                if self.opt.get('early') and i in (1, 3, 4): continue
                self.k('s_mov_b32 s%d, s%d' % (S_TS + 2 * i, 100 if self.opt.get('cyc') else 10))
    def ets(self, i):
        if self.opt.get('early'): self.k('s_memtime s[%d:%d]' % (S_TS + 2 * i, S_TS + 2 * i + 1))
    def ts_store(self):
        if not self.opt.get('ts'): return
        k = self.k
        k('s_waitcnt vmcnt(0) lgkmcnt(0)')
        k('s_xor_b32 s64, s%d, 256' % S_WG)
        k('s_lshl_b32 s64, s64, 2')
        k('s_add_u32 s64, s64, s%d' % S_WAVE)
        k('s_lshl_b32 s64, s64, 6')
        k('s_add_u32 s64, s64, 0x%x' % WS_TS)
        k('v_mov_b32 v1, 0')
        for i in range(10):
            k('v_mov_b32 v2, s%d' % (S_TS + 2 * i))
            k('buffer_store_dword v2, v1, s[%d:%d], s64 offen offset:%d' % (R_WS, R_WS + 3, 4 * i))
        k('s_waitcnt vmcnt(0)')
    def calib(self):
        if self.opt.get('calib'):
            k = self.k
            L = k.newlabel('L_cal')
            k.label(L)
            k('s_memrealtime s[64:65]')
            k('s_waitcnt lgkmcnt(0)')
            k('s_sub_u32 s64, s64, s%d' % S_NONCE)
            k('s_cmp_lt_u32 s64, %d' % self.opt['calib'])
            k('s_cbranch_scc1 %s' % L)
    def spin_tail(self, L, D):
        k = self.k
        k('s_cbranch_scc1 %s' % D)
        k('s_sleep %d' % self.opt.get('sleep', 2))
        k('s_sub_u32 s%d, s%d, 1' % (S_TMO, S_TMO))
        k('s_cmp_lg_u32 s%d, 0' % S_TMO)
        k('s_cbranch_scc1 %s' % L)
        k.label(D)
    def nonce_issue(self, vt, vz, tag):
        k = self.k
        k('v_mov_b32 %s, 0' % vr(vz))
        k('global_load_dword %s, %s, s[%d:%d] sc1' % (vr(vt), vr(vz), P_DBG, P_DBG + 1), tag=tag)
    def nonce_get(self, vt, vz, tag=None, waited=False):
        k = self.k
        L = k.newlabel('L_nonce'); D = k.newlabel('L_nonce_ok'); C = k.newlabel('L_nonce_chk')
        k('s_movk_i32 s%d, 0x4000' % S_TMO)
        if not waited: k.wait(vm=tag)
        k('s_branch %s' % C)
        k.label(L)
        k('v_mov_b32 %s, 0' % vr(vz))
        k('global_load_dword %s, %s, s[%d:%d] sc1' % (vr(vt), vr(vz), P_DBG, P_DBG + 1)); k.vm.pop()
        k('s_waitcnt vmcnt(0)')
        k.label(C)
        k('v_readfirstlane_b32 s%d, %s' % (S_NONCE, vr(vt)))
        k('s_cmp_lg_u32 s%d, 0' % S_NONCE)
        self.spin_tail(L, D)
    def poll_issue(self, vt, vaddr, soff, tag, n=1):
        self.k('buffer_load_dword%s %s, %s, s[%d:%d], %s offen sc1' % ('x2' if n == 2 else '', vr(vt, n), vr(vaddr), R_WS, R_WS + 3, soff), tag=tag)
    def poll_cmp(self, vt, which):
        k = self.k
        k('v_cmp_ne_u32 vcc, s%d, %s' % (S_NONCE, vr(vt + which[0])))
        if len(which) == 2:
            k('v_cmp_ne_u32 s[78:79], s%d, %s' % (S_NONCE, vr(vt + which[1])))
            k('s_or_b64 vcc, vcc, s[78:79]')
        k('s_cmp_eq_u64 vcc, 0')
    def poll(self, vt, vaddr, soff, n=1, first=None, waited=False, which=None):
        k = self.k
        if which is None: which = list(range(n))
        def spin():
            L = k.newlabel('L_poll'); D = k.newlabel('L_poll_ok')
            k('s_movk_i32 s%d, 0x4000' % S_TMO)
            k('s_mov_b64 vcc, -1')
            k.label(L)
            k('s_mov_b64 exec, vcc')
            self.poll_issue(vt, vaddr, soff, None, n); k.vm.pop()
            k('s_mov_b64 exec, -1')
            k('s_waitcnt vmcnt(0)')
            self.poll_cmp(vt, which)
            self.spin_tail(L, D)
        if first is not None:
            if not waited: k.wait(vm=first)
            self.poll_cmp(vt, which)
            self.slow('scc0', spin)
        else: spin()
    def snonce(self, vt, vz, first=0):
        k = self.k
        if not first: k('s_load_dword s%d, s[%d:%d], 0' % (S_NONCE, P_DBG, P_DBG + 1))
        k('s_waitcnt lgkmcnt(0)')
        k('s_cmp_lg_u32 s%d, 0' % S_NONCE)
        def more():
            D = k.newlabel('L_sn_ok')
            for i in range(1, 4):
                k('s_load_dword s%d, s[%d:%d], %d' % (S_NONCE, P_DBG, P_DBG + 1, 64 * i))
                k('s_waitcnt lgkmcnt(0)')
                k('s_cmp_lg_u32 s%d, 0' % S_NONCE)
                k('s_cbranch_scc1 %s' % D)
            k('v_mov_b32 %s, 0' % vr(vt))
            self.nonce_get(vt, vz, waited=True)
            k.label(D)
        self.slow('scc0', more)
        k('s_mov_b32 s0, s%d' % S_NONCE)
        k('s_mov_b32 s1, s%d' % S_NONCE)
    def s_allok(self, base, n):
        k = self.k
        for i in range(0, n, 2):
            k('s_xor_b64 s[%d:%d], s[%d:%d], s[0:1]' % (base + i, base + i + 1, base + i, base + i + 1))
        for i in range(2, n, 2):
            k('s_or_b64 s[%d:%d], s[%d:%d], s[%d:%d]' % (base, base + 1, base, base + 1, base + i, base + i + 1))
    def spoll_loop(self, issue, base, n, s_off, s_end, rs, fallback, sleep=0):
        k = self.k
        L = k.newlabel('L_sp'); D = k.newlabel('L_sp_ok'); F = k.newlabel('L_sp_fb')
        k.label(L)
        k('s_cmp_ge_u32 s%d, s%d' % (s_off, s_end))
        k('s_cbranch_scc1 %s' % F)
        issue()
        k('s_add_u32 s%d, s%d, %d' % (s_off, s_off, rs))
        k('s_waitcnt lgkmcnt(0)')
        self.s_allok(base, n)
        k('s_cbranch_scc0 %s' % D)
        if sleep: k('s_sleep %d' % sleep)
        k('s_branch %s' % L)
        k.label(F)
        fallback()
        k.label(D)
    def flag_store_rep(self, vt, vz, soff, rs, tag=None, nrep=None):
        k = self.k
        k('v_mov_b32 %s, s%d' % (vr(vt), S_NONCE))
        k('v_mul_u32_u24 %s, %d, v0' % (vr(vz), rs))
        k('s_mov_b64 exec, %d' % ((1 << (nrep or NREP)) - 1))
        k('buffer_store_dword %s, %s, s[%d:%d], %s offen sc1' % (vr(vt), vr(vz), R_WS, R_WS + 3, soff), tag=tag)
        k('s_mov_b64 exec, -1')
    def flag_store(self, vt, vz, soff, tag=None):
        k = self.k
        k('v_mov_b32 %s, s%d' % (vr(vt), S_NONCE))
        k('v_mov_b32 %s, 0' % vr(vz))
        k('s_mov_b64 exec, 1')
        k('buffer_store_dword %s, %s, s[%d:%d], %s offen sc1' % (vr(vt), vr(vz), R_WS, R_WS + 3, soff), tag=tag)
        k('s_mov_b64 exec, -1')

    def prologue(self):
        k = self.k
        k('s_load_dwordx16 s[16:31], s[0:1], 0')
        k('s_load_dwordx16 s[32:47], s[0:1], 64')
        k('s_memrealtime s[10:11]')
        if self.opt.get('cyc'): k('s_memtime s[100:101]')
        k('v_lshrrev_b32 v1, 6, v0')
        k('v_and_b32 v0, 63, v0')
        k('v_readfirstlane_b32 s%d, v1' % S_WAVE)
        k('s_cmp_ge_u32 s2, 512')
        k('s_cbranch_scc1 L_end')
        k('s_and_b32 s%d, s2, 255' % S_M)
        k('s_bfe_u32 s66, s2, 0x20001')
        k('s_bfe_u32 s67, s2, 0x30003')
        k('s_lshl3_add_u32 s%d, s66, s67' % S_RHO)
        k('s_and_b32 s66, s2, 1')
        k('s_bfe_u32 s67, s2, 0x20006')
        k('s_lshl2_add_u32 s%d, s66, s67' % S_J)
        self.srd_tail(R_WS, WS_SZ)
        self.srd_tail(R_U, 2048 * 640 * 2)
        if self.opt.get('ipf'):
            k('s_cmp_lg_u32 s%d, 0' % S_WAVE)
            k('s_cbranch_scc1 L_noipf')
            k('s_getpc_b64 s[64:65]')
            k('s_lshr_b32 s66, s2, 3')
            k('s_mul_i32 s66, s66, %d' % (self.opt['ipf'] * 128))
            k('v_lshlrev_b32 v1, 7, v0')
            k('v_add_u32 v1, s66, v1')
            k('s_mov_b64 exec, %d' % ((1 << self.opt['ipf']) - 1))
            k('global_load_dword v255, v1, s[64:65]')
            k('s_mov_b64 exec, -1')
            k.label('L_noipf')
        k('s_cmp_ge_u32 s2, 256')
        k('s_cbranch_scc1 L_gemm')
        if self.opt.get('nossm'):
            k('s_cmp_eq_u32 s2, 128'); k('s_cbranch_scc1 L_idle'); k('s_endpgm')
        k('s_cmp_eq_u32 s%d, 3' % S_WAVE)
        k('s_cbranch_scc1 L_misc')

    def conv_reads(self, sg, fb, va, vb, off=0):
        out = []
        for c in range(8):
            out.append('ds_read_b128 %s, v%d offset:%d' % (vr(fb + 4 * c, 4), va, off + 4032 - 512 * c - 64 * sg))
            out.append('ds_read_b64 %s, v%d offset:%d' % (vr(fb + 32 + 4 * c, 2), vb, off + 448 - 64 * sg + 512 * c))
            out.append('ds_read_b64 %s, v%d offset:%d' % (vr(fb + 34 + 4 * c, 2), vb, off + 448 - 64 * sg + 512 * c + 8))
        return out
    def conv_step(self, Y, fb, first, nx):
        k = self.k
        nx = list(nx)
        for c in range(8):
            for m in range(8 - c):
                cc = '0' if (first and c == 0) else vr(Y + 4 * (c + m), 4)
                k('v_mfma_f32_16x16x32_bf16 %s, %s, %s, %s' % (vr(Y + 4 * (c + m), 4), vr(fb + 4 * c, 4), vr(fb + 32 + 4 * m, 4), cc))
                if nx: emit_list(k, [nx.pop(0)])
        emit_list(k, nx)
    def misc(self):
        k = self.k
        k.reset_counts()
        LT = 3 * CBS; LW = LT + 10240
        self.mark('misc_head')
        k.label('L_misc')
        for i in range(5):
            k('v_add_u32 v1, %d, v0' % (64 * i))
            k('v_mul_u32_u24 v2, 205, v1')
            k('v_lshrrev_b32 v2, 11, v2')
            k('v_mul_u32_u24 v3, %d, v2' % (1280 - 160))
            k('v_lshl_add_u32 v%d, v1, 4, v3' % (10 + i))
        k('s_mul_i32 s64, s%d, %d' % (S_RHO, 64 * 1280))
        k('s_mul_i32 s65, s%d, 160' % S_J)
        k('s_add_u32 s64, s64, s65')
        k('s_add_u32 s65, s64, %d' % (32 * 1280))
        k('s_waitcnt lgkmcnt(0)')
        self.srd_base(R_U, P_U)
        for i in range(10):
            k('s_mov_b32 m0, %d' % (LT + 1024 * i))
            k('buffer_load_dwordx4 v%d, s[%d:%d], s%d offen lds' % (10 + i % 5, R_U, R_U + 3, 64 + i // 5), tag='T')
        self.cut('misc_main')
        self.ts_init()
        k('s_setprio %d' % self.opt.get('mprio', 3))
        self.srd_base(R_WS, P_WS)
        self.srd_base(R_W, P_W2)
        self.srd_tail(R_W, 1536 * 640 * 2)
        k('s_min_u32 s66, s%d, 239' % S_M)
        k('s_mul_i32 s67, s66, 205')
        k('s_lshr_b32 s67, s67, 10')
        k('s_mul_i32 s68, s67, 5')
        k('s_sub_u32 s68, s66, s68')
        k('s_mul_i32 s69, s67, %d' % (32 * 1280))
        k('s_lshl_b32 s70, s68, 8')
        k('s_add_u32 s69, s69, s70')
        k('v_lshrrev_b32 v1, 4, v0')
        k('v_and_b32 v2, 15, v0')
        k('v_mul_u32_u24 v1, 1280, v1')
        k('v_lshl_add_u32 v15, v2, 4, v1')
        def wdma():
            for i in range(8):
                k('s_mov_b32 m0, %d' % (LW + 1024 * i))
                k('buffer_load_dwordx4 v15, s[%d:%d], s69 offen lds' % (R_W, R_W + 3), tag='W')
                k('s_add_u32 s69, s69, %d' % (4 * 1280))
        WPOS = self.opt.get('wpos', 0)
        if WPOS == 0: wdma()
        k('v_lshrrev_b32 v1, 4, v0')
        k('v_bfe_u32 v2, v0, 2, 2')
        k('v_and_b32 v3, 3, v0')
        k('v_lshl_add_u32 v4, v1, 3, v2')
        k('v_mul_u32_u24 v4, 160, v4')
        k('v_lshl_add_u32 v4, v3, 3, v4')
        k('v_add_u32 v18, %d, v4' % LT)
        k('v_and_b32 v5, 15, v0')
        k('v_lshlrev_b32 v5, 12, v5')
        k('v_lshl_add_u32 v19, v1, 4, v5')
        k('v_lshrrev_b32 v5, 1, v1')
        k('v_and_b32 v6, 1, v1')
        k('v_lshlrev_b32 v5, 4, v5')
        k('v_lshl_add_u32 v5, v6, 2, v5')
        k('v_add_u32 v5, v5, v2')
        k('v_lshlrev_b32 v5, 8, v5')
        k('v_lshl_add_u32 v5, v3, 3, v5')
        k('v_add_u32 v20, %d, v5' % LW)
        k('v_lshlrev_b32 v21, 4, v0')
        k('s_mul_i32 s72, s%d, %d' % (S_J, 80 * 4096))
        k('s_lshl_b32 s73, s%d, 7' % S_RHO)
        k('s_add_u32 s72, s72, s73')
        k('s_lshr_b32 s73, s%d, 3' % S_RHO)
        k('s_lshl2_add_u32 s73, s%d, s73' % S_J)
        k('s_lshl_b32 s73, s73, 5')
        k('s_and_b32 s74, s%d, 7' % S_RHO)
        k('s_add_u32 s73, s73, s74')
        k('s_lshl_b32 s73, s73, 2')
        k('s_add_u32 s77, s73, 0x%x' % WS_FU)
        if self.opt.get('ftouch'):
            k('v_mul_u32_u24 v9, %d, v0' % FU_RS)
            k('s_mov_b64 exec, %d' % ((1 << NREP) - 1))
            k('buffer_load_dword v8, v9, s[%d:%d], s77 offen' % (R_WS, R_WS + 3))
            k('s_mov_b64 exec, -1')
        k.wait(vm='T')
        self.ts(1)
        if self.opt.get('mstop') == 1: k('s_endpgm')
        for dl in range(5):
            for z in range(2):
                b = 24 + 8 * dl + 4 * z
                for e in range(2):
                    k('ds_read_b64_tr_b16 %s, v18 offset:%d' % (vr(b + 2 * e, 2), (32 * z + 4 * e) * 160 + 32 * dl), tag='t%d' % dl)
        for dl in range(5):
            k.wait(lg='t%d' % dl)
            for z in range(2):
                k('buffer_store_dwordx4 %s, v19, s[%d:%d], s72 offen offset:%d sc1' % (vr(24 + 8 * dl + 4 * z, 4), R_WS, R_WS + 3, 64 * z), tag='Tst')
            k('s_add_u32 s72, s72, %d' % (16 * 4096))
        if WPOS == 1: wdma()
        self.snonce(8, 9)
        def uflag():
            k.wait(vm='Tst')
            self.flag_store_rep(8, 9, 's77', FU_RS)
            self.ts(2)
        uflag()
        if self.opt.get('mstop') == 2: k('s_endpgm')
        if WPOS == 2: wdma()
        k('s_waitcnt vmcnt(0)')
        for fr in range(8):
            for e in range(2):
                k('ds_read_b64_tr_b16 %s, v20 offset:%d' % (vr(64 + 4 * fr + 2 * e, 2), 8 * e * 256 + 32 * fr), tag='w%d' % fr)
        k('s_mul_i32 s76, s67, 5')
        for fr in range(8):
            k('s_lshl_b32 s73, s68, 3')
            k('s_add_u32 s73, s73, %d' % fr)
            k('s_mul_i32 s74, s73, 205')
            k('s_lshr_b32 s74, s74, 10')
            k('s_mul_i32 s75, s74, 235')
            k('s_add_u32 s75, s75, s73')
            k('s_add_u32 s75, s75, s76')
            k('s_lshl_b32 s75, s75, 10')
            k('s_add_u32 s75, s75, 0x%x' % WS_W2P)
            k.wait(lg='w%d' % fr)
            k('buffer_store_dwordx4 %s, v21, s[%d:%d], s75 offen sc1' % (vr(64 + 4 * fr, 4), R_WS, R_WS + 3), tag='Wst')
        k('s_lshl_b32 s73, s68, 6')
        k('s_add_u32 s73, s73, s67')
        k('s_lshl_b32 s73, s73, 2')
        k('s_add_u32 s73, s73, 0x%x' % WS_FW)
        k('s_mul_i32 s60, s%d, 3' % S_M)
        k('s_lshl_b32 s61, s%d, 1' % S_M)
        k('s_add_u32 s61, s61, 128')
        k('s_cmp_lt_u32 s%d, 128' % S_M)
        k('s_cselect_b32 s60, s60, s61')
        k('s_cselect_b32 s61, 3, 2')
        k('v_lshrrev_b32 v1, 4, v0')
        k('v_min_u32 v1, 2, v1')
        k('v_mul_u32_u24 v22, %d, v1' % CBS)
        k('v_and_b32 v2, 15, v0')
        k('v_lshl_add_u32 v1, v2, 2, v22')
        k('v_mov_b32 v2, 0')
        k('ds_write_b32 v1, v2 offset:%d' % UX)
        k('ds_write_b32 v1, v2 offset:%d' % UY)
        k('v_bfe_u32 v1, v0, 3, 2')
        k('v_and_b32 v23, 7, v0')
        k('v_lshlrev_b32 v23, 2, v23')
        k('v_lshl_add_u32 v23, v1, 7, v23')
        emit_list(k, ['v_and_b32 v6, 1, v0', 'v_cmp_eq_u32 vcc, 1, v6', 'v_and_b32 v6, 15, v0', 'v_lshrrev_b32 v7, 4, v0', 'v_lshlrev_b32 v7, 4, v7',
               'v_lshrrev_b32 v5, 1, v6', 'v_lshlrev_b32 v5, 6, v5', 'v_sub_u32 v5, v7, v5',
               'v_mov_b32 v2, %d' % (448 + KO), 'v_mov_b32 v3, 448', 'v_cndmask_b32 v2, v2, v3, vcc', 'v_add_u32 v2, v5, v2',
               'v_lshl_add_u32 v5, v6, 2, v7', 'v_mov_b32 v3, %d' % UY, 'v_mov_b32 v4, %d' % (UX + 4),
               'v_cndmask_b32 v3, v3, v4, vcc', 'v_add_u32 v3, v5, v3', 'v_add_u32 v4, %d, v21' % LT])
        def u_issue():
            for i in range(4):
                k('s_load_dwordx8 s[%d:%d], s[%d:%d], s62 offset:%d' % (16 + 8 * i, 23 + 8 * i, R_WS, R_WS + 1, 128 * i))
        k('s_mul_i32 s64, s60, 205')
        k('s_lshr_b32 s64, s64, 14')
        k('s_add_u32 s65, s60, s61')
        k('s_sub_u32 s65, s65, 1')
        k('s_mul_i32 s65, s65, 205')
        k('s_lshr_b32 s65, s65, 14')
        if self.opt.get('wflag1'):
            k.wait(vm='Wst')
            self.flag_store(8, 9, 's73')
            if self.opt['wflag1'] == 2: k('s_waitcnt vmcnt(0)')
        k.label('L_ugrp')
        k('s_lshl_b32 s9, s64, 9')
        k('s_add_u32 s9, s9, 0x%x' % WS_FU)
        k('s_mov_b32 s62, s9')
        k('s_add_u32 s63, s9, %d' % (NREP * FU_RS))
        self.spoll_loop(u_issue, 16, 32, 62, 63, FU_RS, lambda: self.poll(24, 23, 's9'), sleep=self.opt.get('ssleep', 2))
        k('s_add_u32 s64, s64, 1')
        k('s_cmp_le_u32 s64, s65')
        k('s_cbranch_scc1 L_ugrp')
        self.ts(5)
        k.wait(vm='Wst')
        k('s_lshl_b32 s64, s60, 12')
        for c in range(3):
            if c == 2:
                k('s_cmp_lt_u32 s61, 3')
                k('s_cbranch_scc1 L_u2')
            k('s_add_u32 s65, s64, 4')
            k('s_mov_b32 m0, %d' % (c * CBS + UX + 64))
            for i in range(4):
                k('buffer_load_dwordx4 v21, s[%d:%d], s64 offen offset:%d sc1 lds' % (R_WS, R_WS + 3, 1024 * i))
            k('s_mov_b32 m0, %d' % (c * CBS + UY + 64))
            for i in range(4):
                k('buffer_load_dwordx4 v21, s[%d:%d], s65 offen offset:%d sc1 lds' % (R_WS, R_WS + 3, 1024 * i))
            k('s_add_u32 s64, s64, 4096')
        k.label('L_u2')
        if not self.opt.get('wflag1'): self.flag_store(8, 9, 's73')
        self.ts(7)
        k('s_waitcnt vmcnt(%d)' % (0 if self.opt.get('wflag1') else 1))
        k('ds_read_b32 v1, v22 offset:%d' % (UX + 64))
        k('s_waitcnt lgkmcnt(0)')
        k('ds_write_b32 v22, v1 offset:%d' % (UY + 60))
        k('s_waitcnt lgkmcnt(0)')
        self.ts(6)
        k('s_barrier')
        if self.opt.get('mstop') == 3: k('s_endpgm')
        NS = self.opt.get('ns', 6)
        if NS < 8:
            k('s_setprio %d' % self.opt.get('mvprio', 0))
            FBm = [96, 160]
            steps = [(c, sg) for c in range(3) for sg in range(NS, 8)]
            emit_list(k, self.conv_reads(NS, FBm[0], 2, 3))
            wq = []
            for i, (c, sg) in enumerate(steps):
                Ym = 32 + 32 * (c % 2)
                if c == 2 and sg == NS:
                    k('s_cmp_lt_u32 s61, 3')
                    k('s_cbranch_scc1 L_m2')
                k.wait(lg='all')
                nx = self.conv_reads(steps[i + 1][1], FBm[(i + 1) % 2], 2, 3, CBS * steps[i + 1][0]) if i + 1 < len(steps) else []
                self.conv_step(Ym, FBm[i % 2], sg == NS, nx + wq)
                wq = []
                if sg == 7:
                    wq = ['ds_write_b128 v4, %s offset:%d' % (vr(Ym + 4 * t, 4), 8192 * c + 1024 * t) for t in range(8)]
                    if c == 1: w1 = list(wq)
            emit_list(k, wq)
            k('s_branch L_m3')
            k.label('L_m2')
            k.pad(8)
            emit_list(k, w1)
            k.label('L_m3')
            k('s_waitcnt lgkmcnt(0)')
            self.ts(3)
            k('s_barrier')
        self.ts(4)
        self.ts_store()
        k('s_endpgm')
        self.mark('idle')
        k.label('L_idle')
        k('s_cmp_lg_u32 s2, 128')
        k('s_cbranch_scc1 L_end')
        k('s_cmp_lg_u32 s%d, 2' % S_WAVE)
        k('s_cbranch_scc1 L_end')
        k('v_lshlrev_b32 v2, 6, v0')
        k('s_waitcnt lgkmcnt(0)')
        k('s_or_b32 s10, s10, 1')
        k('v_mov_b32 v1, s10')
        k('s_mov_b64 exec, 15')
        k('global_store_dword v2, v1, s[%d:%d] sc1' % (P_DBG, P_DBG + 1))
        if self.opt.get('latprobe'):
            ptr = {1: P_BX, 2: P_WS, 3: P_BX}[self.opt['latprobe']]
            k.label('L_lp0')
            k('s_memrealtime s[64:65]')
            k('s_waitcnt lgkmcnt(0)')
            k('s_sub_u32 s64, s64, s10')
            k('s_cmp_lt_u32 s64, 3500')
            k('s_cbranch_scc1 L_lp0')
            k('v_mov_b32 v2, 0x%x' % (0x100000 if ptr == P_BX else 0x8000000))
            k('s_memtime s[70:71]')
            k('global_load_dword v3, v2, s[%d:%d]' % (ptr, ptr + 1))
            k('s_waitcnt vmcnt(0)')
            k('s_memtime s[66:67]')
            k('s_waitcnt lgkmcnt(0)')
            for i in range(4):
                k('v_add_u32 v2, 0x3480, v2')
                k('global_load_dword v3, v2, s[%d:%d]' % (ptr, ptr + 1))
                k('s_waitcnt vmcnt(0)')
            k('s_memtime s[68:69]')
            k('s_waitcnt lgkmcnt(0)')
            if self.opt['latprobe'] == 3:
                k('s_sub_u32 s68, s66, s70')
            else:
                k('s_sub_u32 s68, s68, s66')
                k('s_lshr_b32 s68, s68, 2')
            k('v_mov_b32 v1, s68')
            k('v_mov_b32 v2, 0')
            k('global_store_dword v2, v1, s[%d:%d] offset:16' % (P_DBG, P_DBG + 1))
            k('s_add_u32 s68, s68, 4000')
            k.label('L_lp1')
            k('s_memrealtime s[64:65]')
            k('s_waitcnt lgkmcnt(0)')
            k('s_sub_u32 s64, s64, s10')
            k('s_cmp_lt_u32 s64, s68')
            k('s_cbranch_scc1 L_lp1')
        k('s_endpgm')

    def cmul(self, d, a, b):
        if self.opt.get('nopk'):
            return ['v_mul_f32 v%d, v%d, v%d' % (d, a, b),
                    'v_mul_f32 v%d, v%d, v%d' % (d + 1, a, b + 1),
                    'v_fma_f32 v%d, -v%d, v%d, v%d' % (d, a + 1, b + 1, d),
                    'v_fmac_f32 v%d, v%d, v%d' % (d + 1, a + 1, b)]
        return ['v_pk_mul_f32 %s, %s, %s op_sel:[0,0] op_sel_hi:[0,1]' % (vr(d, 2), vr(a, 2), vr(b, 2)),
                'v_pk_fma_f32 %s, %s, %s, %s op_sel:[1,1,0] op_sel_hi:[1,0,1] neg_lo:[1,0,0]' % (vr(d, 2), vr(a, 2), vr(b, 2), vr(d, 2))]
    def chan(self):
        k = self.k; opt = self.opt
        k.reset_counts()
        self.mark('chan_head')
        self.ets(1)
        S_D, S_CB, S_DSK = 12, 13, 14
        k('s_mul_i32 s64, s%d, 3' % S_M)
        k('s_lshl_b32 s65, s%d, 1' % S_M)
        k('s_add_u32 s65, s65, 128')
        k('s_cmp_lt_u32 s%d, 128' % S_M)
        k('s_cselect_b32 s64, s64, s65')
        k('s_cselect_b32 s65, 3, 2')
        k('s_cmp_ge_u32 s%d, s65' % S_WAVE)
        k('s_cbranch_scc1 L_idle')
        if opt.get('nochan'): k('s_endpgm')
        k('s_add_u32 s%d, s64, s%d' % (S_D, S_WAVE))
        k('s_mul_i32 s%d, s%d, %d' % (S_CB, S_WAVE, CBS))
        PR = 232
        for i in range(6): k('v_mov_b32 v%d, 0' % (PR + 3 * i + 2))
        k('s_mul_i32 s64, s%d, 384' % S_D)
        k('v_lshlrev_b32 v1, 1, v0')
        k('v_add_u32 v1, s64, v1')
        k('v_lshl_add_u32 v2, v0, 2, s64')
        k('s_lshr_b32 s64, s%d, 1' % S_D)
        k('s_lshl_b32 s64, s64, 2')
        k('s_waitcnt lgkmcnt(0)')
        self.ets(3)
        for ai, p in enumerate((P_ARE, P_AIM, P_BRE, P_BIM, P_CRE, P_CIM)):
            k('global_load_dword v%d, v2, s[%d:%d]' % (PR + 3 * ai + 1, p, p + 1), tag='par0')
        k('s_load_dword s65, s[%d:%d], s64' % (P_LDT, P_LDT + 1))
        k('s_load_dword s66, s[%d:%d], s64' % (P_DSK, P_DSK + 1))
        for ai, p in enumerate((P_ARE, P_AIM, P_BRE, P_BIM, P_CRE, P_CIM)):
            k('global_load_short_d16_hi v%d, v1, s[%d:%d] offset:256' % (PR + 3 * ai + 2, p, p + 1), tag='par2')
        if opt.get('gtouch'):
            k('v_min_u32 v3, 9, v0')
            k('v_lshlrev_b32 v3, 7, v3')
            k('global_load_dword v3, v3, s[%d:%d]' % (P_GW, P_GW + 1), tag='par2')
        self.cut('chan_main')
        self.ets(4)
        self.ts_init()
        self.srd_base(R_WS, P_WS)
        if opt.get('cprio'): k('s_setprio %d' % opt['cprio'])
        V_DT = 4
        ACC, QF, DT_, VV, GG, ID = 16, 32, 64, 128, 192, 208
        k('v_and_b32 v6, 31, v0')
        k('v_lshrrev_b32 v7, 5, v0')
        k('v_lshlrev_b32 v7, 3, v7')
        k('v_sub_u32 v6, v6, v7')
        k('v_and_b32 v7, 1, v0')
        k('v_lshlrev_b32 v7, 4, v7')
        k('v_mov_b32 v8, 0x3f80')
        k('v_lshlrev_b32 v7, v7, v8')
        k('v_lshrrev_b32 v6, 1, v6')
        for d in range(8):
            k('v_cmp_eq_u32 vcc, %d, v6' % (d if d < 4 else d + 4))
            k('v_cndmask_b32 v%d, 0, v7, vcc' % (ID + d))
        for i in range(16): k('v_mov_b32 v%d, 0' % (ACC + i))
        k('s_and_b32 s64, s%d, 1' % S_D)
        k('s_lshl_b32 s64, s64, 4')
        k('s_waitcnt lgkmcnt(0)')
        k('s_lshr_b32 s65, s65, s64')
        k('s_lshl_b32 s65, s65, 16')
        k('s_lshr_b32 s66, s66, s64')
        k('s_lshl_b32 s%d, s66, 16' % S_DSK)
        k('v_mov_b32 v6, s65')
        k('v_mul_f32 v6, %s, v6' % fhex(LOG2E))
        k('v_exp_f32 v6, v6')
        k('v_cvt_pk_bf16_f32 v6, v6, v6')
        k('v_lshlrev_b32 v%d, 16, v6' % V_DT)
        X_, E1, E2, E4, E8, E256, E16, C_ = 216, 218, 220, 222, 224, 226, 228, 230
        T0 = GG
        order = [0, 1, 2, 3, 4, 5, 6, 7, 4, 256, 258, 260, 8, 260, 262, 264, 512, 516, 520, 1024, 768, 772, 776, 1536, 1032, 1280, 1288, 1288, 1544, 1792, 1800, 1800]
        pv = {}
        for i, o in enumerate(order): pv.setdefault(o, VV + 2 * i)
        pv[0] = C_
        Dt = lambda t: DT_ + 16 * t
        def kmfma(s):
            return 'v_mfma_f32_32x32x16_bf16 %s, %s, %s, %s' % (vr(ACC, 16), vr(Dt(s >> 1) + 4 * (s & 1), 4), vr(QF + 4 * s, 4), vr(ACC, 16))
        S_PS = 73
        def setup(ps):
            if ps != 1: k.wait(vm='par%d' % ps)
            if ps == 0:
                for a_ in range(6):
                    k('v_lshlrev_b32 v%d, 16, v%d' % (PR + 3 * a_, PR + 3 * a_ + 1))
                    k('v_and_b32 v%d, 0xffff0000, v%d' % (PR + 3 * a_ + 1, PR + 3 * a_ + 1))
            ar, ai, br, bi, cr, ci = [PR + 3 * a + ps for a in range(6)]
            self.pr(200 + ps, 0)
            su = []
            su.append('v_mul_f32 v%d, v%d, v%d' % (X_, V_DT, ar))
            su.append('v_mul_f32 v%d, v%d, v%d' % (X_ + 1, V_DT, ai))
            su.append('v_mul_f32 v%d, %s, v%d' % (X_, fhex(LOG2E), X_))
            su.append('v_mul_f32 v%d, %s, v%d' % (X_ + 1, fhex(INV2PI), X_ + 1))
            su.append('v_rndne_f32 v%d, v%d' % (T0 + 2, X_ + 1))
            su.append('v_mul_f32 v%d, v%d, v%d' % (T0, V_DT, br))
            su.append('v_mul_f32 v%d, v%d, v%d' % (T0 + 1, V_DT, bi))
            su.append('v_sub_f32 v%d, v%d, v%d' % (X_ + 1, X_ + 1, T0 + 2))
            su.append('v_mul_f32 v%d, v%d, v%d' % (C_, cr, T0))
            su.append('v_mul_f32 v%d, v%d, v%d' % (C_ + 1, cr, T0 + 1))
            su.append('v_fma_f32 v%d, -v%d, v%d, v%d' % (C_, ci, T0 + 1, C_))
            su.append('v_fmac_f32 v%d, v%d, v%d' % (C_ + 1, ci, T0))
            for idx, (dst, p) in enumerate(((E8, 8.0), (E1, 1.0), (E256, 256.0))):
                t = T0 + 4 + 4 * idx
                if p == 1.0: m, th = X_, X_ + 1
                else:
                    su.append('v_mul_f32 v%d, %s, v%d' % (t, fhex(p), X_))
                    su.append('v_mul_f32 v%d, %s, v%d' % (t + 1, fhex(p), X_ + 1))
                    m, th = t, t + 1
                su.append('v_exp_f32 v%d, v%d' % (t + 2, m))
                su.append('v_cos_f32 v%d, v%d' % (dst, th))
                su.append('v_sin_f32 v%d, v%d' % (dst + 1, th))
            for idx, dst in enumerate((E8, E1, E256)):
                t = T0 + 4 + 4 * idx
                su.append('v_mul_f32 v%d, v%d, v%d' % (dst, dst, t + 2))
                su.append('v_mul_f32 v%d, v%d, v%d' % (dst + 1, dst + 1, t + 2))
            if ps > 0:
                for i, l in enumerate(su):
                    if i % 6 == 0 and i // 6 < 4: k(kmfma(4 + i // 6))
                    k(l)
            else:
                emit_list(k, su)
        setup(0)
        self.ts(1)
        k('s_mov_b32 s%d, 0' % S_PS)
        k.raw('.p2align 3')
        k.label('L_kbody')
        ps = 1
        def weave(ms, fill):
            per = -(-len(fill) // len(ms))
            for m in ms:
                k(m)
                emit_list(k, fill[:per]); fill = fill[per:]
        def cvts(src, part, neg):
            out = []
            for g in range(4):
                for d in range(4):
                    dst = GG + 4 * g + d if part == 0 else VV + 16 * g + d
                    ops = []
                    for o in src[8 * g + 2 * d: 8 * g + 2 * d + 2]:
                        if o is None: ops.append('1.0' if part == 0 else '0')
                        else: ops.append('%sv%d' % ('-' if neg else '', o + part))
                    out.append('v_cvt_pk_bf16_f32 v%d, %s, %s' % (dst, ops[0], ops[1]))
            return out
        grp = lambda part, g: GG + 4 * g if part == 0 else VV + 16 * g
        def swaps(part):
            return ['v_permlane32_swap_b32 v%d, v%d' % (grp(part, g) + d, grp(part, g + 1) + d) for g in (0, 2) for d in range(4)]
        def tm(part):
            t = 2 * part
            f = lambda tl, g, c: 'v_mfma_f32_32x32x16_bf16 %s, %s, %s, %s' % (vr(Dt(tl), 16), vr(grp(part, g), 4), vr(ID + 4 * (g >> 1), 4), c)
            return [f(t, 0, '0'), f(t, 2, vr(Dt(t), 16)), f(t + 1, 1, '0'), f(t + 1, 3, vr(Dt(t + 1), 16))]
        def back(t, dst):
            return ['v_cvt_pk_bf16_f32 v%d, v%d, v%d' % (dst + d, Dt(t) + 2 * d, Dt(t) + 2 * d + 1) for d in range(8)]
        self.pr(200 + ps, 1)
        qs = [None, E8, E16] + [VV + 2 * b_ for b_ in range(3, 32)]
        emit_list(k, self.cmul(E16, E8, E8))
        for b_ in range(3, 32): emit_list(k, self.cmul(qs[b_], qs[b_ - 2], E16))
        self.pr(200 + ps, 2)
        emit_list(k, cvts(qs, 0, False) + swaps(0))
        weave(tm(0), cvts(qs, 1, True) + swaps(1))
        weave(tm(1), back(0, QF) + back(1, QF + 8))
        self.pr(200 + ps, 3)
        cm = lambda o, a_, e: emit_list(k, self.cmul(pv[o], pv[a_], e))
        emit_list(k, self.cmul(E2, E1, E1))
        emit_list(k, self.cmul(E4, E2, E2))
        for o in range(1, 9): cm(o, o - 1, E1)
        for o in (256, 512, 768, 1024, 1280, 1536, 1792): cm(o, o - 256, E256)
        for o in (258, 260, 262, 264): cm(o, o - 2, E2)
        cm(516, 512, E4); cm(520, 512, E8); cm(772, 768, E4); cm(776, 768, E8)
        for o in (1032, 1288, 1544, 1800): cm(o, o - 8, E8)
        self.pr(200 + ps, 4)
        psrc = [pv[o] for o in order]
        emit_list(k, cvts(psrc, 0, False) + swaps(0))
        weave(tm(0), back(2, QF + 16) + back(3, QF + 24) + cvts(psrc, 1, False) + swaps(1))
        self.pr(200 + ps, 5)
        weave(tm(1), back(0, Dt(0)) + back(1, Dt(1)))
        weave([kmfma(s_) for s_ in range(4)], back(2, Dt(2)) + back(3, Dt(3)))
        self.pr(200 + ps, 7)
        k('s_add_u32 s%d, s%d, 1' % (S_PS, S_PS))
        k('s_cmp_eq_u32 s%d, 3' % S_PS)
        k('s_cbranch_scc1 L_kexit')
        k('s_cmp_eq_u32 s%d, 2' % S_PS)
        k('s_cbranch_scc1 L_ks2')
        lg_save = list(k.lg)
        setup(1)
        k('s_branch L_kbody')
        k.label('L_ks2')
        k.lg = list(lg_save)
        setup(2)
        k('s_branch L_kbody')
        k.label('L_kexit')
        k.lg = list(lg_save)
        ex = []
        ex += ['v_and_b32 v6, 31, v0', 'v_lshrrev_b32 v7, 5, v0', 'v_lshlrev_b32 v8, 4, v6', 'v_sub_u32 v8, s%d, v8' % S_CB,
               'v_lshlrev_b32 v9, 3, v7', 'v_sub_u32 v9, v8, v9', 'v_add_u32 v9, 504, v9',
               'v_lshlrev_b32 v10, 9, v7', 'v_sub_u32 v10, v8, v10', 'v_add_u32 v10, 1008, v10',
               'v_lshlrev_b32 v11, 10, v7', 'v_sub_u32 v11, v8, v11', 'v_add_u32 v11, 1520, v11',
               'v_add_u32 v12, %d, v9' % (KO + 4084 - 504), 'v_add_u32 v13, %d, v9' % (KO + 4084 - 512 - 504),
               'v_and_b32 v6, 1, v0', 'v_cmp_eq_u32 vcc, 1, v6',
               'v_min_u32 v14, 27, v0', 'v_lshlrev_b32 v14, 4, v14', 'v_add_u32 v14, s%d, v14' % S_CB]
        ex += ['v_mov_b32 v%d, 0' % (96 + i) for i in range(4)]
        V_A, V_B = 2, 3
        ex += ['v_and_b32 v6, 15, v0', 'v_lshrrev_b32 v7, 4, v0', 'v_lshlrev_b32 v7, 4, v7', 'v_add_u32 v7, s%d, v7' % S_CB,
               'v_lshrrev_b32 v8, 1, v6', 'v_lshlrev_b32 v8, 6, v8', 'v_sub_u32 v8, v7, v8',
               'v_mov_b32 v102, %d' % (448 + KO), 'v_mov_b32 v103, 448', 'v_cndmask_b32 v102, v102, v103, vcc', 'v_add_u32 v%d, v8, v102' % V_A,
               'v_lshl_add_u32 v8, v6, 2, v7', 'v_mov_b32 v102, %d' % UY, 'v_mov_b32 v103, %d' % (UX + 4),
               'v_cndmask_b32 v102, v102, v103, vcc', 'v_add_u32 v%d, v8, v102' % V_B, 'v_mov_b32 v15, s%d' % S_CB]
        ex = [l.replace('v102', 'v202').replace('v103', 'v203') for l in ex]
        ex = [l.replace('v_mov_b32 v9', 'v_mov_b32 v19') if l.startswith('v_mov_b32 v9') else l for l in ex]
        for s in range(4, 8):
            k(kmfma(s))
            emit_list(k, ex[:6]); ex = ex[6:]
        emit_list(k, ex)
        k('ds_write_b128 v14, v[196:199] offset:4096')
        k('ds_write_b128 v14, v[196:199] offset:%d' % (KO + 4096))
        self.ts(3)
        V = lambda r: ACC + r
        pk = lambda d, lo, hi: k('v_cvt_pk_bf16_f32 v%d, v%d, v%d' % (d, lo, hi))
        k('s_mov_b64 exec, 1')
        k('v_add_f32 v%d, s%d, v%d' % (V(0), S_DSK, V(0)))
        k('s_mov_b64 exec, -1')
        k('v_cndmask_b32 v100, v%d, v%d, vcc' % (V(11), V(12)))
        k('v_cndmask_b32 v101, v%d, v%d, vcc' % (V(13), V(14)))
        pk(32, V(3), V(2)); pk(33, V(1), V(0))
        pk(34, V(7), V(6)); pk(35, V(5), V(5))
        pk(36, V(10), V(10)); pk(37, V(9), V(9)); pk(38, V(9), V(8)); pk(39, V(8), V(8))
        pk(40, V(10), V(9)); k('v_mov_b32 v41, v37'); k('v_mov_b32 v42, v39'); k('v_mov_b32 v43, v39')
        for (lo, hi, T, off, rb) in ((11, 12, 100, 2032, 44), (13, 14, 101, 1520, 52)):
            pk(rb, V(hi), V(hi)); pk(rb + 1, V(hi), T); pk(rb + 2, V(lo), V(lo)); k('v_mov_b32 v%d, v%d' % (rb + 3, rb + 2))
            k('v_mov_b32 v%d, v%d' % (rb + 4, rb)); pk(rb + 5, T, V(lo)); k('v_mov_b32 v%d, v%d' % (rb + 6, rb + 2)); k('v_mov_b32 v%d, v%d' % (rb + 7, rb + 2))
        pk(60, V(4), V(3)); pk(61, V(2), V(1))
        pk(62, V(7), V(7)); pk(63, V(6), V(5))
        pk(102, V(0), 196)
        k('ds_write_b64 v9, v[32:33] offset:%d' % (4088 - 504))
        k('ds_write_b64 v9, v[34:35] offset:%d' % (4088 - 512 - 504))
        k('ds_write2_b32 v12, v60, v61 offset0:0 offset1:1')
        k('ds_write2_b32 v13, v62, v63 offset0:0 offset1:1')
        k('ds_write_b128 v10, v[36:39] offset:%d' % (3056 - 1008))
        k('ds_write_b128 v10, v[40:43] offset:%d' % (KO + 3056 - 1008))
        for (off, rb) in ((2032, 44), (1520, 52)):
            k('ds_write_b128 v11, %s offset:%d' % (vr(rb, 4), off - 1520))
            k('ds_write_b128 v11, %s offset:%d' % (vr(rb + 4, 4), KO + off - 1520))
        k('s_mov_b64 exec, 1')
        k('ds_write_b32 v15, v102 offset:%d' % (KO + 4092))
        k('s_mov_b64 exec, -1')
        self.snonce(104, 105)
        self.ts(2)
        k('s_cmp_ge_u32 s%d, 2' % S_WAVE)
        k('s_cbranch_scc1 L_nogate')
        self.gate()
        k.label('L_nogate')
        k('s_waitcnt lgkmcnt(0)')
        k('s_barrier')
        if opt.get('cstop') == 3: k('s_endpgm')
        Y = 16
        FB = [64, 128]
        NS = opt.get('ns', 6)
        self.ts(4)
        k('s_setprio %d' % opt.get('vprio', 0))
        emit_list(k, self.conv_reads(0, FB[0], V_A, V_B))
        fin = ['v_and_b32 v6, 15, v0', 'v_lshrrev_b32 v7, 4, v0', 'v_lshl_add_u32 v6, v7, 5, v6', 'v_lshlrev_b32 v6, 2, v6',
               'v_add_u32 v6, s%d, v6' % S_CB, 'v_lshlrev_b32 v8, 4, v0', 'v_add_u32 v7, s%d, v8' % S_CB,
               's_lshl_b32 s64, s%d, 13' % S_WAVE, 's_add_u32 s64, s64, %d' % (3 * CBS), 'v_add_u32 v9, s64, v8',
               's_lshl_b32 s64, s%d, 12' % S_D, 's_add_u32 s64, s64, 0x%x' % WS_AT]
        for sg in range(NS):
            k.wait(lg='all')
            if opt.get('cpat'):
                k('s_setprio %d' % (3 if (opt['cpat'] >> sg) & 1 else 0))
            nx = self.conv_reads(sg + 1, FB[(sg + 1) % 2], V_A, V_B) if sg + 1 < NS else fin
            self.conv_step(Y, FB[sg % 2], sg == 0, nx)
        self.ts(5)
        k('s_setprio 3')
        if NS < 8:
            k('s_barrier')
            for t in range(8):
                k('ds_read_b128 %s, v9 offset:%d' % (vr(192 + 4 * t, 4), 1024 * t), tag='pa%d' % t)
        for i in range(8):
            if NS < 8:
                k.wait(lg='pa%d' % i)
                for e in range(4): k('v_add_f32 v%d, v%d, v%d' % (Y + 4 * i + e, Y + 4 * i + e, 192 + 4 * i + e))
            for rr in range(2):
                pk(64 + 2 * i + rr, Y + 4 * i + 2 * rr, Y + 4 * i + 2 * rr + 1)
        for i in range(8):
            k('ds_write2_b32 v6, v%d, v%d offset0:%d offset1:%d' % (64 + 2 * i, 65 + 2 * i, (128 * i) % 256, (128 * i) % 256 + 16))
            if i % 2 == 1 and i < 7: k('v_add_u32 v6, 1024, v6')
        for z in range(4):
            k('ds_read_b128 %s, v7 offset:%d' % (vr(80 + 4 * z, 4), 1024 * z), tag='fy%d' % z)
        for z in range(4):
            k.wait(lg='fy%d' % z)
            k('buffer_store_dwordx4 %s, v8, s[%d:%d], s64 offen offset:%d sc1' % (vr(80 + 4 * z, 4), R_WS, R_WS + 3, 1024 * z))
        k('s_lshr_b32 s64, s%d, 3' % S_D)
        k('s_lshl_b32 s64, s64, 5')
        k('s_and_b32 s65, s%d, 7' % S_D)
        k('s_add_u32 s64, s64, s65')
        k('s_lshl_b32 s64, s64, 2')
        k('s_add_u32 s64, s64, 0x%x' % WS_FA)
        self.ts(6)
        k.wait(vm='all')
        self.flag_store_rep(9, 10, 's64', FA_RS)
        self.ts(7)
        self.ts_store()
        k('s_endpgm')

    def gate(self):
        k = self.k
        GX, GW = 112, 132
        if self.opt.get('gateprio'): k('s_setprio %d' % self.opt['gateprio'])
        self.srd_base(R_U, P_U)
        k('v_and_b32 v5, 15, v0')
        k('v_lshlrev_b32 v5, 4, v5')
        k('v_lshrrev_b32 v6, 4, v0')
        k('v_mul_u32_u24 v7, 1280, v6')
        k('v_add_u32 v7, v7, v5')
        k('s_lshl3_add_u32 s70, s%d, s%d' % (S_RHO, S_J))
        k('s_lshl1_add_u32 s70, s70, s%d' % S_WAVE)
        k('s_mul_i32 s71, s70, %d' % (4 * 1280))
        for i in range(5):
            k('buffer_load_dwordx4 %s, v7, s[%d:%d], s71 offen offset:%d' % (vr(GX + 4 * i, 4), R_U, R_U + 3, 256 * i), tag='G%d' % i)
            k('global_load_dwordx4 %s, v5, s[%d:%d] offset:%d' % (vr(GW + 4 * i, 4), P_GW, P_GW + 1, 256 * i), tag='G%d' % i)
        k('v_mov_b32 v160, 0')
        k('v_mov_b32 v161, 0')
        for i in range(20):
            if i % 4 == 0: k.wait(vm='G%d' % (i // 4))
            x, w = GX + i, GW + i
            t = 164
            if self.opt.get('dotgate'):
                k('v_dot2_f32_bf16 v%d, v%d, v%d, v%d' % (160 + i % 2, x, w, 160 + i % 2))
                continue
            k('v_lshlrev_b32 v%d, 16, v%d' % (t, x))
            k('v_and_b32 v%d, 0xffff0000, v%d' % (t + 1, x))
            k('v_lshlrev_b32 v%d, 16, v%d' % (t + 2, w))
            k('v_and_b32 v%d, 0xffff0000, v%d' % (t + 3, w))
            k('v_mul_f32 v%d, v%d, v%d' % (t, t, t + 2))
            k('v_mul_f32 v%d, v%d, v%d' % (t + 1, t + 1, t + 3))
            k('v_cvt_pk_bf16_f32 v%d, v%d, v%d' % (t + 4, t, t + 1))
            k('v_lshlrev_b32 v%d, 16, v%d' % (t, t + 4))
            k('v_and_b32 v%d, 0xffff0000, v%d' % (t + 1, t + 4))
            k('v_add_f32 v160, v160, v%d' % t)
            k('v_add_f32 v161, v161, v%d' % (t + 1))
        if self.opt.get('dotgate'): k('s_nop 3')
        k('v_add_f32 v160, v160, v161')
        for m in ('quad_perm:[1,0,3,2]', 'quad_perm:[2,3,0,1]', 'row_half_mirror', 'row_mirror'):
            k('v_add_f32_dpp v160, v160, v160 %s row_mask:0xf bank_mask:0xf' % m)
        k('v_cvt_pk_bf16_f32 v160, v160, v160')
        k('v_lshlrev_b32 v160, 16, v160')
        k('v_mul_f32 v160, %s, v160' % fhex(-LOG2E))
        k('v_exp_f32 v160, v160')
        k('v_add_f32 v160, 1.0, v160')
        k('v_rcp_f32 v160, v160')
        k('v_cvt_pk_bf16_f32 v160, v160, v160')
        k('v_lshlrev_b32 v160, 16, v160')
        k('v_mov_b32 v161, s%d' % S_NONCE)
        k('v_lshlrev_b32 v6, 3, v6')
        k('s_lshl_b32 s70, s70, 5')
        k('s_add_u32 s70, s70, 0x%x' % WS_G)
        k('s_mov_b32 s74, 0x00010001')
        k('s_mov_b32 s75, 0x00010001')
        k('s_mov_b64 exec, s[74:75]')
        k('buffer_store_dwordx2 v[160:161], v6, s[%d:%d], s70 offen sc1' % (R_WS, R_WS + 3))
        k('s_mov_b64 exec, -1')

    def build(self):
        import gemm14
        k = self.k
        self.prologue()
        self.misc()
        self.chan()
        k.reset_counts()
        self.mark('gemm_head')
        k.label('L_gemm')
        self.ets(1)
        if self.opt.get('nogemm'): k('s_endpgm')
        else: gemm14.emit(self)
        self.mark('end')
        k.label('L_end')
        k('s_endpgm')
        secs = {}; prev = ('pro', 0)
        for m in self.marks + [('eof', len(k.items))]:
            secs[prev[0]] = k.items[prev[1]:m[1]]; prev = m
        order = ['pro', 'chan_head', 'misc_head', 'idle', 'gemm_head', 'chan_main', 'misc_main', 'gemm_main', 'end']
        k.items = sum((secs[n] for n in order if n in secs), []) + sum(getattr(k, 'colds', []), [])
        assert set(secs) <= set(order)
        if self.opt.get('ipf'): k.raw('.fill ((%d - (. - %s)) / 4), 4, 0xbf810000' % (64 * 128 * self.opt['ipf'] + 256, KNAME))
        hdr = open('gated_mix__ssm_conv_s4__dense_activation_silu__prompt.s.ref').read().split('; Override launch')[0]
        s = hdr + '; @launch grid=(512,1,1) block=(256,1,1) lds=81920\n'
        s += '.amdgcn_target "amdgcn-amd-amdhsa--gfx950"\n.text\n.globl %s\n.p2align 8\n.type %s,@function\n%s:\n' % (KNAME, KNAME, KNAME)
        s += k.text()
        s += '.section .rodata,"a"\n.p2align 6\n.amdhsa_kernel %s\n' % KNAME
        s += '  .amdhsa_next_free_vgpr 256\n  .amdhsa_next_free_sgpr 102\n  .amdhsa_accum_offset 256\n  .amdhsa_group_segment_fixed_size 0\n'
        s += '  .amdhsa_kernarg_size 128\n  .amdhsa_user_sgpr_count 2\n  .amdhsa_user_sgpr_kernarg_segment_ptr 1\n  .amdhsa_system_sgpr_workgroup_id_x 1\n.end_amdhsa_kernel\n'
        return s

if __name__ == '__main__':
    opt = {}
    out = sys.argv[1]
    for a in sys.argv[2:]:
        if '=' in a:
            kk, v = a.split('='); opt[kk] = int(v, 0)
        else: opt[a] = 1
    g = Gen(opt)
    open(out, 'w').write(g.build())
    print('nops inserted', g.k.nops, 'lines', len(g.k.items))
```

```python
from kgen import *
from gen15 import *

def emit(G):
    k = G.k
    opt = G.opt
    S_LW, S_HS, S_WST, S_FH, S_FC, S_GR, S_AD, S_OUT, S_A3 = 9, 11, 12, 14, 15, 40, 43, 46, 47
    S_XZ, S_WZ = 68, 73
    VX, VW = 2, 6
    ROT = opt.get('krot') or opt.get('grot')
    k('v_lshrrev_b32 v10, 4, v0')
    k('v_and_b32 v11, 15, v0')
    k('v_xor_b32 v13, v11, v10')
    k('v_lshlrev_b32 v13, 4, v13')
    k('s_mul_i32 s64, s%d, %d' % (S_WAVE, 16 * 1280))
    k('v_mul_u32_u24 v12, 1280, v10')
    k('v_add_u32 v12, s64, v12')
    k('v_add_u32 v%d, v12, v13' % VX)
    for n in range(1, 4):
        k('v_xor_b32 v14, %d, v13' % (64 * n))
        k('v_add_u32 v12, 4096, v12')
        k('v_add_u32 v%d, v12, v14' % (VX + n))
    k('s_mul_i32 s64, s%d, %d' % (S_RHO, 64 * 1280))
    if opt.get('grot'):
        k('s_and_b32 s66, s%d, 7' % S_RHO)
        k('s_mul_i32 s67, s66, 43')
        k('s_lshr_b32 s67, s67, 7')
        k('s_mul_i32 s65, s67, 3')
        k('s_sub_u32 s79, s66, s65')
        k('s_and_b32 s66, s%d, 3' % S_J)
        k('s_lshl1_add_u32 s66, s67, s66')
        k('s_sub_u32 s67, s66, 5')
        k('s_cmp_ge_u32 s66, 5')
        k('s_cselect_b32 s66, s67, s66')
    elif opt.get('krot'):
        k('s_mov_b32 s79, 0')
        k('s_add_u32 s66, s%d, s%d' % (S_RHO, S_J))
        k('s_mul_i32 s67, s66, 205')
        k('s_lshr_b32 s67, s67, 10')
        k('s_mul_i32 s67, s67, 5')
        k('s_sub_u32 s66, s66, s67')
    else:
        k('s_mov_b32 s79, 0')
        k('s_mov_b32 s66, 0')
    k('s_lshl_b32 s67, s66, 8')
    k('s_add_u32 s%d, s64, s67' % S_XZ)
    k('s_lshl_b32 s%d, s%d, 12' % (S_LW, S_WAVE))
    seq = []
    pat = {0: 'XWXWXWXWXW', 1: 'XXXXXWWWWW', 2: 'XXXWXWXWWW', 3: 'XXWXWXWXWW'}[opt.get('xfirst', 0)]
    cnt = {'X': 0, 'W': 0}
    for ch in pat:
        seq.append((ch, cnt[ch], 0)); cnt[ch] += 1
    LASTX = max(i for i in range(10) if pat[i] == 'X')
    for r in (1, 2):
        for z in range(5): seq.append(('W', z, r))
    for z in range(15): seq.append(('V', z, 0))
    assert not opt.get('grot')
    S_V, VV = 68, 2
    def dma(i):
        typ, z, r = seq[i]
        out = ['s_add_u32 m0, s%d, %d' % (S_LW, 16384 * (i % 5))]
        if typ == 'V':
            if z: out.append('s_add_u32 s%d, s%d, 16384' % (S_V, S_V))
            return out + [('buffer_load_dwordx4 v%d, s[%d:%d], s%d offen offset:%d sc1 lds' % (VV, R_WS, R_WS + 3, S_V, 1024 * n), 'S%d' % i) for n in range(4)]
        so = S_XZ + z if typ == 'X' else S_WZ + z
        if typ == 'W' and r > 0: out.append('s_add_u32 s%d, s%d, 128' % (so, so))
        rr = R_U if typ == 'X' else R_W
        for n in range(4):
            out.append(('buffer_load_dwordx4 v%d, s[%d:%d], s%d offen offset:%d lds' % ((VX if typ == 'X' else VW) + n, rr, rr + 3, so, 1024 * n), 'S%d' % i))
        return out
    k('s_waitcnt lgkmcnt(0)')
    G.ets(3)
    G.srd_base(R_U, P_U)
    if opt.get('gdelay'): k('s_sleep %d' % opt['gdelay'])
    emit_list(k, dma(0))
    k('v_lshrrev_b32 v12, 3, v0')
    k('s_lshl_b32 s65, s%d, 5' % S_WAVE)
    k('v_add_u32 v12, s65, v12')
    k('v_mul_u32_u24 v12, 3072, v12')
    k('v_and_b32 v13, 7, v0')
    k('v_and_b32 v14, 1, v10')
    k('v_lshlrev_b32 v14, 2, v14')
    k('v_xor_b32 v13, v13, v14')
    k('v_lshl_add_u32 v%d, v13, 4, v12' % VW)
    for n in range(1, 4):
        k('v_add_u32 v%d, %d, v%d' % (VW + n, n * (8 * 3072 - 1024), VW))
    k('s_mul_i32 s65, s%d, 384' % S_J)
    k('s_lshl_b32 s67, s79, 7')
    k('s_add_u32 s65, s65, s67')
    G.srd_base(R_W, P_W1); G.srd_tail(R_W, 640 * 1536 * 2)
    for z in range(5):
        if z:
            k('s_lshl_b32 s67, s66, 8')
            k('s_add_u32 s%d, s64, s67' % (S_XZ + z))
        k('s_mul_i32 s67, s66, %d' % (128 * 3072))
        k('s_add_u32 s%d, s65, s67' % (S_WZ + z))
        if z < 4:
            k('s_add_u32 s66, s66, 1')
            k('s_cmp_eq_u32 s66, 5')
            k('s_cselect_b32 s66, 0, s66')
    def touch_go():
        L = k.newlabel('L_nt')
        k('s_cmp_lg_u32 s%d, 0' % S_WAVE)
        k('s_cbranch_scc1 %s' % L)
        emit_list(k, ['v_min_u32 v30, 59, v0', 'v_mul_u32_u24 v31, 43, v30', 'v_lshrrev_b32 v31, 9, v31',
             'v_mul_u32_u24 v31, %d, v31' % (3072 - 128 * 12), 'v_lshl_add_u32 v30, v30, 7, v31',
             's_bfe_u32 s78, s2, 0x50003', 's_bfe_u32 s79, s2, 0x20001', 's_lshl_b32 s79, s79, 5', 's_add_u32 s78, s78, s79',
             's_mul_i32 s78, s78, %d' % (5 * 3072), 's_and_b32 s79, s2, 1', 's_mul_i32 s79, s79, %d' % (128 * 12), 's_add_u32 s78, s78, s79'])
        k('buffer_load_dword v31, v30, s[%d:%d], s78 offen' % (R_W, R_W + 3)); k.vm.pop()
        k.label(L)
    PF = opt.get('pf1', -1)
    LA_ = opt.get('la', 4)
    NPRE = opt.get('npre', 2)
    for i in range(1, NPRE):
        if i == PF: touch_go()
        emit_list(k, dma(i))
    G.ets(4)
    G.cut('gemm_main')
    G.ts_init()
    if opt.get('gprio'): k('s_setprio %d' % opt['gprio'])
    G.srd_base(R_WS, P_WS)
    G.srd_base(R_O, P_OUT); G.srd_tail(R_O, 2048 * 640 * 2)
    k('s_and_b32 s78, s%d, 1' % S_WAVE)
    k('s_lshr_b32 s79, s%d, 1' % S_WAVE)
    XA = 16
    WA, WAH, VH = 24, 25, 26
    k('v_and_b32 v12, 31, v0')
    k('v_lshrrev_b32 v13, 5, v0')
    k('s_lshl_b32 s64, s78, 13')
    k('v_xor_b32 v14, v13, v11')
    k('v_lshlrev_b32 v14, 4, v14')
    k('v_lshl_add_u32 v14, v12, 8, v14')
    k('v_add_u32 v%d, s64, v14' % XA)
    for s in range(1, 8): k('v_xor_b32 v%d, %d, v%d' % (XA + s, 32 * s, XA))
    k('v_bfe_u32 v14, v0, 2, 2')
    k('v_lshl_add_u32 v15, v13, 3, v14')
    k('v_lshlrev_b32 v15, 7, v15')
    k('v_and_b32 v27, 1, v10')
    k('v_bfe_u32 v28, v0, 1, 1')
    k('v_lshl_add_u32 v27, v27, 1, v28')
    k('s_lshl_b32 s64, s79, 2')
    k('v_add_u32 v27, s64, v27')
    k('v_lshrrev_b32 v14, 1, v14')
    k('v_lshlrev_b32 v14, 2, v14')
    k('v_xor_b32 v27, v27, v14')
    k('v_lshl_add_u32 v15, v27, 4, v15')
    k('v_and_b32 v27, 1, v0')
    k('v_lshl_add_u32 v%d, v27, 3, v15' % WA)
    k('v_add_u32 v%d, 0x10000, v%d' % (WAH, WA))
    k('v_lshrrev_b32 v14, 4, v12')
    k('s_lshl_b32 s64, s78, 1')
    k('v_add_u32 v14, s64, v14')
    k('v_mul_u32_u24 v14, 49152, v14')
    k('v_lshl_add_u32 v15, v13, 4, v11')
    k('v_lshl_add_u32 v%d, v15, 4, v14' % VH)
    k('s_mul_i32 s66, s%d, 192' % S_RHO)
    k('s_lshl1_add_u32 s66, s%d, s66' % S_J)
    k('s_add_u32 s66, s66, s79')
    k('s_lshl_b32 s66, s66, 10')
    k('s_add_u32 s%d, s66, 0x%x' % (S_HS, WS_H))
    k('s_mul_i32 s66, s%d, 384' % S_RHO)
    k('s_add_u32 s%d, s66, 0x%x' % (S_FC, WS_FH))
    k('s_lshl2_add_u32 s%d, s%d, s%d' % (S_FH, S_J, S_FC))
    k('s_mov_b32 s%d, 0' % S_AD)
    k('s_lshl2_add_u32 s%d, s%d, s%d' % (S_OUT, S_RHO, S_WAVE))
    k('s_mul_i32 s%d, s%d, %d' % (S_OUT, S_OUT, 16 * 1280))
    k('s_mul_i32 s66, s%d, 160' % S_J)
    k('s_add_u32 s%d, s%d, s66' % (S_OUT, S_OUT))
    k('s_cmp_lt_u32 s%d, 2' % S_WAVE)
    k('s_cselect_b32 s%d, 1024, 0' % S_A3)
    FA, FBs = 32, 48
    ACC = [64, 80, 64]
    XF = 96
    def wread(i, half, s):
        base = 16384 * (i % 5)
        reg = WAH if base >= 65536 else WA
        off = base & 0xffff
        fs = FA if half == 0 else FBs
        return [('ds_read_b64_tr_b16 %s, v%d offset:%d' % (vr(fs + 4 * s + 2 * e, 2), reg, off + (4 * half + s) * 2048 + 512 * e), 'w%d%d' % (half, s)) for e in range(2)]
    def mfma(i, half, s):
        typ, z, r = seq[i]
        fs = FA if half == 0 else FBs
        c = '0' if (z == 0 and half == 0 and s == 0) else vr(ACC[r], 16)
        return 'v_mfma_f32_32x32x16_bf16 %s, %s, %s, %s' % (vr(ACC[r], 16), vr(fs + 4 * s, 4), vr(XF + 4 * (8 * z + 4 * half + s), 4), c)
    NL2 = fhex(-LOG2E)
    def epi(r):
        a = ACC[r]
        out = []
        for p in range(8):
            t = 10 if p % 2 == 0 else 28
            if opt.get('fastsilu'):
                x0, x1 = a + 2 * p, a + 2 * p + 1
            else:
                x0, x1 = t, t + 1
                out += ['v_cvt_pk_bf16_f32 v%d, v%d, v%d' % (t + 2, a + 2 * p, a + 2 * p + 1),
                        'v_lshlrev_b32 v%d, 16, v%d' % (t, t + 2),
                        'v_and_b32 v%d, 0xffff0000, v%d' % (t + 1, t + 2)]
            out += ['v_mul_f32 v%d, %s, v%d' % (t + 2, NL2, x0),
                    'v_mul_f32 v%d, %s, v%d' % (t + 3, NL2, x1),
                    'v_exp_f32 v%d, v%d' % (t + 2, t + 2),
                    'v_exp_f32 v%d, v%d' % (t + 3, t + 3),
                    'v_add_f32 v%d, 1.0, v%d' % (t + 2, t + 2),
                    'v_add_f32 v%d, 1.0, v%d' % (t + 3, t + 3),
                    'v_rcp_f32 v%d, v%d' % (t + 2, t + 2),
                    'v_rcp_f32 v%d, v%d' % (t + 3, t + 3),
                    'v_mul_f32 v%d, v%d, v%d' % (t + 2, x0, t + 2),
                    'v_mul_f32 v%d, v%d, v%d' % (t + 3, x1, t + 3),
                    'v_cvt_pk_bf16_f32 v%d, v%d, v%d' % (a + p, t + 2, t + 3)]
        out += ['s_add_u32 s66, s%d, %d' % (S_HS, 16384 * r)]
        for s in range(2):
            out.append(('buffer_store_dwordx4 %s, v%d, s[%d:%d], s66 offen offset:%d sc1' % (vr(a + 4 * s, 4), VH, R_WS, R_WS + 3, 512 * s), 'hst%d' % r))
        if opt.get('hdup'):
            for s in range(2):
                out.append(('buffer_store_dwordx4 %s, v%d, s[%d:%d], s66 offen offset:%d' % (vr(a + 4 * s, 4), VH, R_WS, R_WS + 3, 512 * s), 'hst%d' % r))
        return out
    def hflag(r):
        L = k.newlabel('L_nf')
        k('s_cmp_lg_u32 s%d, %d' % (S_WAVE, r))
        k('s_cbranch_scc1 %s' % L)
        k('s_add_u32 s67, s%d, %d' % (S_FH, 128 * r))
        G.flag_store_rep(14, 15, 's67', FH_RS); k.vm.pop()
        k.label(L)
    S_H0, S_FA, S_AT, S_GG, S_AC, S_AE = 69, 70, 71, 72, 52, 53
    VL, VLH, VFH, VFW = 16, 17, 18, 19
    V_FA, V_AD, V_G, V_AR, V_OW, V_OR, V_OS = 3, 4, 5, 20, 21, 6, 80
    A2 = lambda sub: 96 + 4 * sub
    HN = 20
    WBUF = [32, 36, 40, 44] + [196 + 4 * i for i in range(8)] + [48, 52, 56, 60]
    Hr = lambda pi: 116 + 4 * (pi % HN)
    def g2_setup():
        o = ['v_lshlrev_b32 v%d, 4, v0' % VL, 'v_add_u32 v%d, 0x10000, v%d' % (VLH, VL), 'v_add_u32 v%d, s%d, v%d' % (VV, S_LW, VL),
              'v_and_b32 v22, 7, v0', 'v_lshlrev_b32 v%d, 2, v22' % VFH,
              's_mul_i32 s64, s%d, %d' % (S_J, 48 * 5120), 's_add_u32 s%d, s64, 0x%x' % (S_V, WS_W2P),
              's_lshl2_add_u32 s64, s%d, s%d' % (S_RHO, S_WAVE), 's_mul_i32 s65, s64, 49152', 's_add_u32 s%d, s65, 0x%x' % (S_H0, WS_H),
              's_lshl_b32 s64, s64, 7', 's_add_u32 s%d, s64, 0x%x' % (S_GG, WS_G),
              's_mul_i32 s64, s%d, %d' % (S_J, 10 * 128), 's_add_u32 s%d, s64, 0x%x' % (S_FA, WS_FA),
              's_mul_i32 s64, s%d, %d' % (S_J, 80 * 4096), 's_lshl_b32 s65, s%d, 7' % S_RHO, 's_add_u32 s64, s64, s65', 's_add_u32 s%d, s64, 0x%x' % (S_AT, WS_AT),
              's_mul_i32 s64, s%d, 5' % S_J, 's_lshr_b32 s78, s64, 3', 's_add_u32 s64, s64, 4', 's_lshr_b32 s79, s64, 3',
              's_lshl_b32 s78, s78, 8', 's_lshl_b32 s79, s79, 8', 's_mul_i32 s64, s%d, 48' % S_WAVE, 's_add_u32 s64, s64, 0x%x' % WS_FW,
              's_add_u32 s78, s78, s64', 's_add_u32 s79, s79, s64', 's_sub_u32 s64, s79, s78',
              'v_and_b32 v23, 15, v0', 'v_min_u32 v%d, 11, v23' % VFW, 'v_lshlrev_b32 v%d, 2, v%d' % (VFW, VFW),
              'v_bfe_u32 v27, v0, 4, 1', 'v_mul_u32_u24 v27, s64, v27', 'v_add_u32 v%d, v%d, v27' % (VFW, VFW),
              'v_lshrrev_b32 v27, 3, v0', 'v_min_u32 v%d, 2, v27' % V_FA, 'v_lshlrev_b32 v%d, 2, v%d' % (V_FA, V_FA), 'v_add_u32 v%d, s%d, v%d' % (V_FA, S_WAVE, V_FA),
              'v_min_u32 v%d, 9, v%d' % (V_FA, V_FA), 'v_lshl_add_u32 v%d, v%d, 5, v22' % (V_FA, V_FA), 'v_lshlrev_b32 v%d, 2, v%d' % (V_FA, V_FA),
              's_lshl_b32 s%d, s%d, 7' % (S_AC, S_WAVE), 's_add_u32 s%d, s%d, s%d' % (S_AC, S_AC, S_FA), 's_add_u32 s%d, s%d, %d' % (S_AE, S_AC, NREP * FA_RS),
              'v_lshlrev_b32 v27, 12, v27', 'v_lshl_add_u32 v%d, v22, 4, v27' % V_AD,
              'v_lshlrev_b32 v%d, 3, v23' % V_G,
              'v_lshrrev_b32 v27, 5, v0', 'v_lshlrev_b32 v27, 12, v27', 'v_bfe_u32 v22, v0, 2, 3', 'v_lshl_add_u32 v27, v22, 7, v27',
              'v_and_b32 v22, 3, v0', 'v_lshl_add_u32 v27, v22, 3, v27', 's_lshl_b32 s64, s%d, 5' % S_WAVE, 'v_add_u32 v%d, s64, v27' % V_AR,
              'v_mul_u32_u24 v27, %d, v23' % OSTR, 'v_lshrrev_b32 v22, 4, v0', 'v_lshl_add_u32 v27, v22, 3, v27', 'v_add_u32 v%d, s%d, v27' % (V_OW, S_LW)]
        return o
    OSTR = opt.get('ostr', 176)
    def late_setup():
        o = []
        for n in range(3):
            o += ['v_add_u32 v22, %d, v0' % (64 * n), 'v_mul_u32_u24 v23, 205, v22', 'v_lshrrev_b32 v23, 11, v23',
                  'v_mul_u32_u24 v27, %d, v23' % (1280 - 160), 'v_lshl_add_u32 v%d, v22, 4, v27' % (V_OS + n),
                  'v_mul_u32_u24 v27, %d, v23' % (OSTR - 160), 'v_lshl_add_u32 v27, v22, 4, v27', 'v_add_u32 v%d, s%d, v27' % (V_OR + n, S_LW)]
        return o
    def hload(pi):
        o = []
        if pi % 4 == 0: o.append('s_add_u32 s65, s%d, %d' % (S_H0, 1024 * pi))
        o.append(('buffer_load_dwordx4 %s, v%d, s[%d:%d], s65 offen offset:%d sc1' % (vr(Hr(pi), 4), VL, R_WS, R_WS + 3, 1024 * (pi % 4)), 'H%d' % pi))
        return o
    def take(q, n):
        o = q[:n]; del q[:n]; return o
    def h_issue():
        k('s_load_dwordx8 s[16:23], s[%d:%d], s24' % (R_WS, R_WS + 1))
    def sflag_issue(rank):
        if opt.get('nohchk'): return
        k('s_add_u32 s26, s%d, %d' % (S_FC, 128 * rank))
        k('s_mov_b32 s24, s26')
        h_issue()
        k('s_add_u32 s24, s24, %d' % FH_RS)
        k('s_add_u32 s25, s26, %d' % (NREP * FH_RS))
    def sflag_check(rank):
        if opt.get('nohchk'): return
        k('s_waitcnt lgkmcnt(0)')
        G.s_allok(16, 8)
        G.slow('scc1', lambda: G.spoll_loop(h_issue, 16, 8, 24, 25, FH_RS, lambda: G.poll(27, VFH, 's26')))
    def a_dma():
        for n in range(3):
            if n < 2: k('s_add_u32 s66, s%d, %d' % (S_WAVE, 4 * n))
            else:
                k('s_lshr_b32 s66, s%d, 7' % S_A3)
                k('s_add_u32 s66, s66, s%d' % S_WAVE)
            k('s_lshl_b32 s67, s66, 15')
            k('s_add_u32 s67, s67, s%d' % S_AT)
            k('s_add_u32 m0, s%d, %d' % (S_LW, 1024 * n))
            k('buffer_load_dwordx4 v%d, s[%d:%d], s67 offen sc1 lds' % (V_AD, R_WS, R_WS + 3)); k.vm.pop()
    def a_issue():
        k('s_load_dwordx8 s[16:23], s[%d:%d], s%d' % (R_WS, R_WS + 1, S_AC))
        k('s_load_dwordx8 s[24:31], s[%d:%d], s%d offset:512' % (R_WS, R_WS + 1, S_AC))
        k('s_add_u32 s67, s%d, s%d' % (S_AC, S_A3))
        k('s_load_dwordx8 s[32:39], s[%d:%d], s67' % (R_WS, R_WS + 1))
    epq = []; mq = []
    LA0 = opt.get('la0', LA_)
    GB = opt.get('gapb', 48)
    st8 = {'n': NPRE, 'h': 0, 'ok': 2 if opt.get('nohchk') else -1}
    def cost(f):
        t = f[0] if isinstance(f, tuple) else f
        return 8 if t.startswith(('v_exp', 'v_rcp')) else 4
    def vm1(n):
        nv = 0; used = 0
        while mq and nv < n:
            f = mq.pop(0); emit_list(k, [f]); used += 4
            if isinstance(f, tuple): nv += 1
        return used
    def gap(used, g=0):
        used += vm1(opt.get('vper', 1))
        while epq and used + cost(epq[0]) <= GB:
            f = epq.pop(0); emit_list(k, [f]); used += cost(f)
    FAT = [opt.get('f0at', 15), opt.get('f1at', 20), opt.get('f2at', 25)]
    RAT = [opt.get('r0at', 19), opt.get('r1at', 23), opt.get('r2at', 28)]
    PWAT, AAT = opt.get('pwat', 13), opt.get('aat', 32)
    HL = opt.get('hl', 12)
    def younger(a, b):
        ia = max(i for i, t in enumerate(k.vm) if t == a); ib = max(i for i, t in enumerate(k.vm) if t == b)
        return a if ia > ib else b
    def flush_for(tag):
        while any(isinstance(f, tuple) and f[1] == tag for f in mq): vm1(1)
    def hq(upto, free=99):
        while st8['h'] < min(48, upto) and (st8['h'] >> 4) <= st8['ok'] and 5 + st8['h'] < free:
            mq.extend(hload(st8['h'])); st8['h'] += 1
    def late_a():
        G.spoll_loop(a_issue, 16, 24, S_AC, S_AE, FA_RS, lambda: G.poll(27, V_FA, 's%d' % S_FA), sleep=opt.get('asleep', 4))
        a_dma()
    def sync(i, lg):
        flush_for('S%d' % i)
        tg = 'S%d' % i
        for r in range(3):
            if FAT[r] == i:
                while any(isinstance(f, tuple) and f[1] == 'hst%d' % r for f in epq): emit_list(k, take(epq, 1))
                tg = younger(tg, 'hst%d' % r)
        if i == 17 and not opt.get('noa'): G.poll(27, VFW, 's78', first='pw')
        if i == 34:
            emit_list(k, take(mq, 1000))
            if not opt.get('noa'):
                k('s_cmp_lg_u32 s%d, 0' % S_AD)
                G.slow('scc0', late_a)
            tg = 'all'
        k.wait(vm=tg, lg=lg)
        k('s_barrier')
        if i < 10: G.pr(301, i)
        elif i < 20: G.pr(302, i - 10)
        elif i < 30: G.pr(300, i - 20)
        if i >= 30: G.pr(303, i - 30)
        for n_, at in ((1, 0), (2, 10), (3, 15), (4, 20), (5, 25), (6, 30), (7, 34)):
            if i == at: G.ts(n_)
        for r in range(3):
            if FAT[r] == i: hflag(r)
        la = LA0 if i < opt.get('la0end', 8) else LA_
        upto = max(min(i + la - 1, i + 3), min(4, i + la))
        while st8['n'] < 35 and st8['n'] <= upto:
            if st8['n'] == PF: touch_go()
            mq.extend(dma(st8['n'])); st8['n'] += 1
        if i == 6: k('s_load_dword s%d, s[%d:%d], 0' % (S_NONCE, P_DBG, P_DBG + 1))
        if i == 9: G.snonce(14, 15, first=1)
        if i == PWAT and not opt.get('noa'): mq.insert(0, ('buffer_load_dword v27, v%d, s[%d:%d], s78 offen sc1' % (VFW, R_WS, R_WS + 3), 'pw'))
        for r in range(3):
            if RAT[r] == i:
                sflag_check(r); st8['ok'] = max(st8['ok'], r)
            if RAT[r] - 1 == i: sflag_issue(r)
        if i == 29: mq.insert(0, ('buffer_load_dwordx2 v[30:31], v%d, s[%d:%d], s%d offen sc1' % (V_G, R_WS, R_WS + 3, S_GG), 'g'))
        if i == AAT - 2 and not opt.get('noa'): mq.insert(0, ('buffer_load_dword v9, v%d, s[%d:%d], s%d offen sc1' % (V_FA, R_WS, R_WS + 3, S_FA), 'fa'))
        if i == AAT and not opt.get('noa'):
            assert st8['n'] == 35
            flush_for('S34')
            L = k.newlabel('L_noa')
            k.wait(vm='fa')
            G.poll_cmp(9, [0])
            k('s_cbranch_scc0 %s' % L)
            a_dma()
            k('s_mov_b32 s%d, 1' % S_AD)
            k.label(L)
    sync(0, None)
    pend = None
    for i in range(20):
        typ, z, r = seq[i]
        base = 16384 * (i % 5)
        for s in range(4):
            used = 8
            if pend is not None:
                k.wait(lg='w1%d' % s); k(pend[s]); used += 4
            if typ == 'W': emit_list(k, wread(i, 0, s))
            else:
                for s2 in (2 * s, 2 * s + 1):
                    if base >= 65536:
                        k('v_add_u32 v%d, 0x10000, v%d' % (10 + s2 % 4, XA + s2))
                        k('ds_read_b128 %s, v%d' % (vr(XF + 4 * (8 * z + s2), 4), 10 + s2 % 4), tag='x%d' % i)
                    else:
                        k('ds_read_b128 %s, v%d offset:%d' % (vr(XF + 4 * (8 * z + s2), 4), XA + s2, base), tag='x%d' % i)
            gap(used, s)
        pend = None
        prevx = 'x%d' % (i - 1) if (i > 0 and seq[i - 1][0] == 'X') else None
        if typ == 'X':
            emit_list(k, take(mq, 1000))
            if i == LASTX: emit_list(k, g2_setup())
            sync(i + 1, prevx)
            continue
        if z == 0 and r > 0: epq.extend(epi(r - 1))
        for s in range(4):
            k.wait(lg='w0%d' % s)
            k(mfma(i, 0, s))
            if s < 2:
                emit_list(k, wread(i, 1, 2 * s) + wread(i, 1, 2 * s + 1))
                gap(20 if (z or s) else 1000, 4 + s)
            elif s == 2:
                sync(i + 1, None)
                if r == 2: hq(HL, 8 * z)
            else:
                gap(4, 4 + s)
        pend = [mfma(i, 1, s) for s in range(4)]
        if i in (14, 19): emit_list(k, take(epq, 1000))
    D = opt.get('vd', 12)
    assert D <= 12 and HL <= HN
    WP = opt.get('wp', 2)
    def vread(f):
        off = 16384 * ((20 + f // 16) % 5) + 1024 * (f % 16)
        return ('ds_read_b128 %s, v%d offset:%d' % (vr(WBUF[f % 16], 4), VLH if off >= 65536 else VL, off & 0xffff), 'v%d' % f)
    for s in range(4):
        k.wait(lg='w1%d' % s); k(pend[s])
        emit_list(k, [vread(f) for f in range(D * s // 4, D * (s + 1) // 4)])
        vm1(2)
    epq.extend(epi(2))
    EP2 = opt.get('ep2', 3)
    fast = opt.get('fastfin')
    AR, GA = 64, 10
    ga = [244 + 2 * i for i in range(6)] + [84 + 2 * i for i in range(4)]
    def rnd(x):
        return ['v_cvt_pk_bf16_f32 v%d, v%d, v%d' % (x + 1, x, x + 1), 'v_lshlrev_b32 v%d, 16, v%d' % (x, x + 1), 'v_and_b32 v%d, 0xffff0000, v%d' % (x + 1, x + 1)]
    for m in range(240):
        pi, sub = m // 5, m % 5
        if (m + D) % 16 == 0 and m + D < 240:
            i = 20 + (m + D) // 16
            sync(i, None)
            if i == 26: epq.extend(late_setup())
            if i == 34:
                if not opt.get('noa'): G.poll(30, V_G, 's%d' % S_GG, n=2, first='g', waited=True, which=[1])
                for sb in range(5):
                    k('ds_read_b64_tr_b16 %s, v%d offset:%d' % (vr(AR + 2 * sb, 2), V_AR, (sb & 1) * 8192 + (sb >> 1) * 1024), tag='ar')
                epq.extend(['v_sub_f32 v28, 1.0, v30', 'v_cvt_pk_bf16_f32 v28, v28, v28', 'v_lshlrev_b32 v28, 16, v28', 'v_mov_b32 v29, v28'])
        if m == 224:
            for q in range(10):
                t = ga[q]
                epq.extend(['v_lshlrev_b32 v%d, 16, v%d' % (t, AR + q), 'v_and_b32 v%d, 0xffff0000, v%d' % (t + 1, AR + q),
                            'v_mul_f32 v%d, v30, v%d' % (t, t), 'v_mul_f32 v%d, v30, v%d' % (t + 1, t + 1)] + ([] if fast else rnd(t)))
        hq(pi + HL)
        lgt = 'v%d' % min(m + WP - 1, 239) if m % WP == 0 else None
        if sub == 0:
            flush_for('H%d' % pi)
            k.wait(vm='H%d' % pi, lg=lgt)
        elif lgt: k.wait(lg=lgt)
        c = '0' if pi == 0 else vr(A2(sub), 4)
        k('v_mfma_f32_16x16x32_bf16 %s, %s, %s, %s' % (vr(A2(sub), 4), vr(WBUF[m % 16], 4), vr(Hr(pi), 4), c))
        if m + D < 240: emit_list(k, [vread(m + D)])
        if m % 2 == 0: vm1(1)
        if m >= 2: emit_list(k, take(epq, EP2))
    emit_list(k, take(epq, 1000))
    G.ts(8)
    G.pr(303, 5)
    for sub in range(5):
        for hf in range(2):
            x = A2(sub) + 2 * hf; t = ga[2 * sub + hf]
            if fast:
                k('v_pk_fma_f32 %s, %s, v[28:29], %s' % (vr(x, 2), vr(x, 2), vr(t, 2)))
            else:
                emit_list(k, rnd(x))
                k('v_pk_mul_f32 %s, %s, v[28:29]' % (vr(x, 2), vr(x, 2)))
                emit_list(k, rnd(x))
                k('v_pk_add_f32 %s, %s, %s' % (vr(x, 2), vr(x, 2), vr(t, 2)))
            k('v_cvt_pk_bf16_f32 v%d, v%d, v%d' % (AR + 2 * sub + hf, x, x + 1))
        k('ds_write_b64 v%d, %s offset:%d' % (V_OW, vr(AR + 2 * sub, 2), 16384 + 32 * sub))
    G.pr(303, 6)
    for n in range(3):
        k('ds_read_b128 %s, v%d offset:16384' % (vr(116 + 4 * n, 4), V_OR + n), tag='o%d' % n)
    for n in range(3):
        k.wait(lg='o%d' % n)
        if n == 2: k('s_mov_b32 exec_hi, 0')
        k('buffer_store_dwordx4 %s, v%d, s[%d:%d], s%d offen %s' % (vr(116 + 4 * n, 4), V_OS + n, R_O, R_O + 3, S_OUT, 'sc1' if opt.get('osc1') else ''))
    k('s_mov_b64 exec, -1')
    G.pr(303, 7)
    G.ts(9)
    G.ts_store()
    G.calib()
    k('s_endpgm')
```

```python
import sys, math
from kgen import *
KNAME = 'gated_mix__ssm_conv_s4__dense_activation_silu__prompt_kernel'

WS_UT, WS_AT, WS_H, WS_W2P, WS_G = 0x000000, 0x300000, 0x600000, 0xC00000, 0xE00000
WS_FH, WS_FU, WS_FW, WS_FA, WS_TS = 0xE80000, 0xE10000, 0xE28000, 0xF00000, 0xE30000
import os
NREP = int([a.split('=')[1] for a in sys.argv if a.startswith('nrep=')][0]) if any(a.startswith('nrep=') for a in sys.argv) else 8
FU_RS, FA_RS, FH_RS = 0x1000, 0x4000, 0x10000
WS_SZ = 0x1000000
LOG2E = 1.4426950408889634
INV2PI = 0.15915494309189535

S_WG, S_WAVE, S_M, S_RHO, S_J, S_NONCE, S_TMO = 2, 3, 4, 5, 6, 7, 8
P_U, P_ARE, P_AIM, P_BRE, P_BIM, P_CRE, P_CIM, P_LDT = 16, 18, 20, 22, 24, 26, 28, 30
P_DSK, P_BX, P_W1, P_W2, P_GW, P_OUT, P_DBG, P_WS = 32, 34, 36, 38, 40, 42, 44, 46
R_WS, R_U, R_W, R_O = 48, 52, 56, 60
S_TS = 80
CBS = 17664
KO, UX = 4576, 9216
UY = UX + 4224

def emit_list(k, lst):
    for f in lst:
        if isinstance(f, tuple): k(f[0], tag=f[1])
        else: k(f)

class Gen:
    def __init__(self, opt):
        self.k = K()
        self.opt = opt
        self.marks = []
    def mark(self, name):
        self.marks.append((name, len(self.k.items)))
    def cut(self, name):
        self.k('s_branch L_%s' % name)
        self.mark(name)
        self.k.label('L_%s' % name)
    def slow(self, cond, body):
        k = self.k
        S = k.newlabel('L_slow'); B = k.newlabel('L_back')
        k('s_cbranch_%s %s' % (cond, S))
        k.cold_begin()
        k.label(S)
        body()
        k('s_nop 4')
        k('s_branch %s' % B)
        k.cold_end()
        k.label(B)
    def srd_tail(self, r, size):
        self.k('s_mov_b32 s%d, 0x%x' % (r + 2, size))
        self.k('s_mov_b32 s%d, 0x20000' % (r + 3))
    def srd_base(self, r, p):
        self.k('s_mov_b64 s[%d:%d], s[%d:%d]' % (r, r + 1, p, p + 1))
    def ts(self, i):
        if self.opt.get('ts') and not self.opt.get('probe') and not (self.opt.get('early') and i in (1, 3, 4)):
            self.k('%s s[%d:%d]' % ('s_memtime' if self.opt.get('cyc') else 's_memrealtime', S_TS + 2 * i, S_TS + 2 * i + 1))
    def pr(self, key, i):
        if self.opt.get('probe') == key:
            self.k('s_memtime s[%d:%d]' % (S_TS + 2 * i, S_TS + 2 * i + 1))
    def ts_init(self):
        if self.opt.get('ts'):
            for i in range(10):
                if self.opt.get('early') and i in (1, 3, 4): continue
                self.k('s_mov_b32 s%d, s%d' % (S_TS + 2 * i, 100 if self.opt.get('cyc') else 10))
    def ets(self, i):
        if self.opt.get('early'): self.k('s_memtime s[%d:%d]' % (S_TS + 2 * i, S_TS + 2 * i + 1))
    def ts_store(self):
        if not self.opt.get('ts'): return
        k = self.k
        k('s_waitcnt vmcnt(0) lgkmcnt(0)')
        k('s_xor_b32 s64, s%d, 256' % S_WG)
        k('s_lshl_b32 s64, s64, 2')
        k('s_add_u32 s64, s64, s%d' % S_WAVE)
        k('s_lshl_b32 s64, s64, 6')
        k('s_add_u32 s64, s64, 0x%x' % WS_TS)
        k('v_mov_b32 v1, 0')
        for i in range(10):
            k('v_mov_b32 v2, s%d' % (S_TS + 2 * i))
            k('buffer_store_dword v2, v1, s[%d:%d], s64 offen offset:%d' % (R_WS, R_WS + 3, 4 * i))
        k('s_waitcnt vmcnt(0)')
    def calib(self):
        if self.opt.get('calib'):
            k = self.k
            L = k.newlabel('L_cal')
            k.label(L)
            k('s_memrealtime s[64:65]')
            k('s_waitcnt lgkmcnt(0)')
            k('s_sub_u32 s64, s64, s%d' % S_NONCE)
            k('s_cmp_lt_u32 s64, %d' % self.opt['calib'])
            k('s_cbranch_scc1 %s' % L)
    def spin_tail(self, L, D):
        k = self.k
        k('s_cbranch_scc1 %s' % D)
        k('s_sleep %d' % self.opt.get('sleep', 2))
        k('s_sub_u32 s%d, s%d, 1' % (S_TMO, S_TMO))
        k('s_cmp_lg_u32 s%d, 0' % S_TMO)
        k('s_cbranch_scc1 %s' % L)
        k.label(D)
    def nonce_issue(self, vt, vz, tag):
        k = self.k
        k('v_mov_b32 %s, 0' % vr(vz))
        k('global_load_dword %s, %s, s[%d:%d] sc1' % (vr(vt), vr(vz), P_DBG, P_DBG + 1), tag=tag)
    def nonce_get(self, vt, vz, tag=None, waited=False):
        k = self.k
        L = k.newlabel('L_nonce'); D = k.newlabel('L_nonce_ok'); C = k.newlabel('L_nonce_chk')
        k('s_mov_b32 s%d, 0x%x' % (S_TMO, self.opt.get('tmo', 0x4000)))
        if not waited: k.wait(vm=tag)
        k('s_branch %s' % C)
        k.label(L)
        k('v_mov_b32 %s, 0' % vr(vz))
        k('global_load_dword %s, %s, s[%d:%d] sc1' % (vr(vt), vr(vz), P_DBG, P_DBG + 1)); k.vm.pop()
        k('s_waitcnt vmcnt(0)')
        k.label(C)
        k('v_readfirstlane_b32 s%d, %s' % (S_NONCE, vr(vt)))
        k('s_cmp_lg_u32 s%d, 0' % S_NONCE)
        self.spin_tail(L, D)
    def poll_issue(self, vt, vaddr, soff, tag, n=1):
        self.k('buffer_load_dword%s %s, %s, s[%d:%d], %s offen sc1' % ('x2' if n == 2 else '', vr(vt, n), vr(vaddr), R_WS, R_WS + 3, soff), tag=tag)
    def poll_cmp(self, vt, which):
        k = self.k
        k('v_cmp_ne_u32 vcc, s%d, %s' % (S_NONCE, vr(vt + which[0])))
        if len(which) == 2:
            k('v_cmp_ne_u32 s[78:79], s%d, %s' % (S_NONCE, vr(vt + which[1])))
            k('s_or_b64 vcc, vcc, s[78:79]')
        k('s_cmp_eq_u64 vcc, 0')
    def poll(self, vt, vaddr, soff, n=1, first=None, waited=False, which=None):
        k = self.k
        if which is None: which = list(range(n))
        def spin():
            L = k.newlabel('L_poll'); D = k.newlabel('L_poll_ok')
            k('s_mov_b32 s%d, 0x%x' % (S_TMO, self.opt.get('tmo', 0x4000)))
            k('s_mov_b64 vcc, -1')
            k.label(L)
            k('s_mov_b64 exec, vcc')
            self.poll_issue(vt, vaddr, soff, None, n); k.vm.pop()
            k('s_mov_b64 exec, -1')
            k('s_waitcnt vmcnt(0)')
            self.poll_cmp(vt, which)
            self.spin_tail(L, D)
        if first is not None:
            if not waited: k.wait(vm=first)
            self.poll_cmp(vt, which)
            self.slow('scc0', spin)
        else: spin()
    def snonce(self, vt, vz, first=0):
        k = self.k
        if not first: k('s_load_dword s%d, s[%d:%d], 0' % (S_NONCE, P_DBG, P_DBG + 1))
        k('s_waitcnt lgkmcnt(0)')
        k('s_cmp_lg_u32 s%d, 0' % S_NONCE)
        def more():
            D = k.newlabel('L_sn_ok')
            for i in range(1, 4):
                k('s_load_dword s%d, s[%d:%d], %d' % (S_NONCE, P_DBG, P_DBG + 1, 64 * i))
                k('s_waitcnt lgkmcnt(0)')
                k('s_cmp_lg_u32 s%d, 0' % S_NONCE)
                k('s_cbranch_scc1 %s' % D)
            k('v_mov_b32 %s, 0' % vr(vt))
            self.nonce_get(vt, vz, waited=True)
            k.label(D)
        self.slow('scc0', more)
        k('s_mov_b32 s0, s%d' % S_NONCE)
        k('s_mov_b32 s1, s%d' % S_NONCE)
    def s_allok(self, base, n):
        k = self.k
        for i in range(0, n, 2):
            k('s_xor_b64 s[%d:%d], s[%d:%d], s[0:1]' % (base + i, base + i + 1, base + i, base + i + 1))
        for i in range(2, n, 2):
            k('s_or_b64 s[%d:%d], s[%d:%d], s[%d:%d]' % (base, base + 1, base, base + 1, base + i, base + i + 1))
    def spoll_loop(self, issue, base, n, s_off, s_end, rs, fallback, sleep=0):
        k = self.k
        L = k.newlabel('L_sp'); D = k.newlabel('L_sp_ok'); F = k.newlabel('L_sp_fb')
        k.label(L)
        k('s_cmp_ge_u32 s%d, s%d' % (s_off, s_end))
        k('s_cbranch_scc1 %s' % F)
        issue()
        k('s_add_u32 s%d, s%d, %d' % (s_off, s_off, rs))
        k('s_waitcnt lgkmcnt(0)')
        self.s_allok(base, n)
        k('s_cbranch_scc0 %s' % D)
        if sleep: k('s_sleep %d' % sleep)
        k('s_branch %s' % L)
        k.label(F)
        fallback()
        k.label(D)
    def flag_store_rep(self, vt, vz, soff, rs, tag=None, nrep=None):
        k = self.k
        k('v_mov_b32 %s, s%d' % (vr(vt), S_NONCE))
        k('v_mul_u32_u24 %s, %d, v0' % (vr(vz), rs))
        k('s_mov_b64 exec, %d' % ((1 << (nrep or NREP)) - 1))
        k('buffer_store_dword %s, %s, s[%d:%d], %s offen sc1' % (vr(vt), vr(vz), R_WS, R_WS + 3, soff), tag=tag)
        k('s_mov_b64 exec, -1')
    def flag_store(self, vt, vz, soff, tag=None):
        k = self.k
        k('v_mov_b32 %s, s%d' % (vr(vt), S_NONCE))
        k('v_mov_b32 %s, 0' % vr(vz))
        k('s_mov_b64 exec, 1')
        k('buffer_store_dword %s, %s, s[%d:%d], %s offen sc1' % (vr(vt), vr(vz), R_WS, R_WS + 3, soff), tag=tag)
        k('s_mov_b64 exec, -1')

    def prologue(self):
        k = self.k
        k('s_load_dwordx16 s[16:31], s[0:1], 0')
        k('s_load_dwordx16 s[32:47], s[0:1], 64')
        k('s_memrealtime s[10:11]')
        if self.opt.get('cyc'): k('s_memtime s[100:101]')
        k('v_lshrrev_b32 v1, 6, v0')
        k('v_and_b32 v0, 63, v0')
        k('v_readfirstlane_b32 s%d, v1' % S_WAVE)
        k('s_cmp_ge_u32 s2, 512')
        k('s_cbranch_scc1 L_end')
        k('s_and_b32 s%d, s2, 255' % S_M)
        k('s_bfe_u32 s66, s2, 0x20001')
        k('s_bfe_u32 s67, s2, 0x30003')
        k('s_lshl3_add_u32 s%d, s66, s67' % S_RHO)
        k('s_and_b32 s66, s2, 1')
        k('s_bfe_u32 s67, s2, 0x20006')
        k('s_lshl2_add_u32 s%d, s66, s67' % S_J)
        self.srd_tail(R_WS, WS_SZ)
        self.srd_tail(R_U, 2048 * 640 * 2)
        if self.opt.get('ipf'):
            k('s_cmp_lg_u32 s%d, 0' % S_WAVE)
            k('s_cbranch_scc1 L_noipf')
            k('s_getpc_b64 s[64:65]')
            k('s_lshr_b32 s66, s2, 3')
            k('s_mul_i32 s66, s66, %d' % (self.opt['ipf'] * 128))
            k('v_lshlrev_b32 v1, 7, v0')
            k('v_add_u32 v1, s66, v1')
            k('s_mov_b64 exec, %d' % ((1 << self.opt['ipf']) - 1))
            k('global_load_dword v255, v1, s[64:65]')
            k('s_mov_b64 exec, -1')
            k.label('L_noipf')
        k('s_cmp_ge_u32 s2, 256')
        k('s_cbranch_scc1 L_gemm')
        if self.opt.get('nossm'):
            k('s_cmp_eq_u32 s2, 128'); k('s_cbranch_scc1 L_idle'); k('s_endpgm')
        k('s_cmp_eq_u32 s%d, 3' % S_WAVE)
        k('s_cbranch_scc1 L_misc')

    def conv_reads(self, sg, fb, va, vb, off=0):
        out = []
        for c in range(8):
            out.append('ds_read_b128 %s, v%d offset:%d' % (vr(fb + 4 * c, 4), va, off + 4032 - 512 * c - 64 * sg))
            out.append('ds_read_b64 %s, v%d offset:%d' % (vr(fb + 32 + 4 * c, 2), vb, off + 448 - 64 * sg + 512 * c))
            out.append('ds_read_b64 %s, v%d offset:%d' % (vr(fb + 34 + 4 * c, 2), vb, off + 448 - 64 * sg + 512 * c + 8))
        return out
    def conv_step(self, Y, fb, first, nx):
        k = self.k
        nx = list(nx)
        for c in range(8):
            for m in range(8 - c):
                cc = '0' if (first and c == 0) else vr(Y + 4 * (c + m), 4)
                k('v_mfma_f32_16x16x32_bf16 %s, %s, %s, %s' % (vr(Y + 4 * (c + m), 4), vr(fb + 4 * c, 4), vr(fb + 32 + 4 * m, 4), cc))
                if nx: emit_list(k, [nx.pop(0)])
        emit_list(k, nx)
    def misc(self):
        k = self.k
        k.reset_counts()
        LT = 3 * CBS; LW = LT + 10240
        self.mark('misc_head')
        k.label('L_misc')
        for i in range(5):
            k('v_add_u32 v1, %d, v0' % (64 * i))
            k('v_mul_u32_u24 v2, 205, v1')
            k('v_lshrrev_b32 v2, 11, v2')
            k('v_mul_u32_u24 v3, %d, v2' % (1280 - 160))
            k('v_lshl_add_u32 v%d, v1, 4, v3' % (10 + i))
        k('s_mul_i32 s64, s%d, %d' % (S_RHO, 64 * 1280))
        k('s_mul_i32 s65, s%d, 160' % S_J)
        k('s_add_u32 s64, s64, s65')
        k('s_add_u32 s65, s64, %d' % (32 * 1280))
        k('s_waitcnt lgkmcnt(0)')
        self.srd_base(R_U, P_U)
        for i in range(10):
            k('s_mov_b32 m0, %d' % (LT + 1024 * i))
            k('buffer_load_dwordx4 v%d, s[%d:%d], s%d offen lds' % (10 + i % 5, R_U, R_U + 3, 64 + i // 5), tag='T')
        self.cut('misc_main')
        self.ts_init()
        k('s_setprio %d' % self.opt.get('mprio', 3))
        self.srd_base(R_WS, P_WS)
        self.srd_base(R_W, P_W2)
        self.srd_tail(R_W, 1536 * 640 * 2)
        k('s_min_u32 s66, s%d, 239' % S_M)
        k('s_mul_i32 s67, s66, 205')
        k('s_lshr_b32 s67, s67, 10')
        k('s_mul_i32 s68, s67, 5')
        k('s_sub_u32 s68, s66, s68')
        k('s_mul_i32 s69, s67, %d' % (32 * 1280))
        k('s_lshl_b32 s70, s68, 8')
        k('s_add_u32 s69, s69, s70')
        k('v_lshrrev_b32 v1, 4, v0')
        k('v_and_b32 v2, 15, v0')
        k('v_mul_u32_u24 v1, 1280, v1')
        k('v_lshl_add_u32 v15, v2, 4, v1')
        def wdma():
            for i in range(8):
                k('s_mov_b32 m0, %d' % (LW + 1024 * i))
                k('buffer_load_dwordx4 v15, s[%d:%d], s69 offen lds' % (R_W, R_W + 3), tag='W')
                k('s_add_u32 s69, s69, %d' % (4 * 1280))
        WPOS = self.opt.get('wpos', 0)
        if WPOS == 0: wdma()
        k('v_lshrrev_b32 v1, 4, v0')
        k('v_bfe_u32 v2, v0, 2, 2')
        k('v_and_b32 v3, 3, v0')
        k('v_lshl_add_u32 v4, v1, 3, v2')
        k('v_mul_u32_u24 v4, 160, v4')
        k('v_lshl_add_u32 v4, v3, 3, v4')
        k('v_add_u32 v18, %d, v4' % LT)
        k('v_and_b32 v5, 15, v0')
        k('v_lshlrev_b32 v5, 12, v5')
        k('v_lshl_add_u32 v19, v1, 4, v5')
        k('v_lshrrev_b32 v5, 1, v1')
        k('v_and_b32 v6, 1, v1')
        k('v_lshlrev_b32 v5, 4, v5')
        k('v_lshl_add_u32 v5, v6, 2, v5')
        k('v_add_u32 v5, v5, v2')
        k('v_lshlrev_b32 v5, 8, v5')
        k('v_lshl_add_u32 v5, v3, 3, v5')
        k('v_add_u32 v20, %d, v5' % LW)
        k('v_lshlrev_b32 v21, 4, v0')
        k('s_mul_i32 s72, s%d, %d' % (S_J, 80 * 4096))
        k('s_lshl_b32 s73, s%d, 7' % S_RHO)
        k('s_add_u32 s72, s72, s73')
        k('s_lshr_b32 s73, s%d, 3' % S_RHO)
        k('s_lshl2_add_u32 s73, s%d, s73' % S_J)
        k('s_lshl_b32 s73, s73, 5')
        k('s_and_b32 s74, s%d, 7' % S_RHO)
        k('s_add_u32 s73, s73, s74')
        k('s_lshl_b32 s73, s73, 2')
        k('s_add_u32 s77, s73, 0x%x' % WS_FU)
        if self.opt.get('ftouch'):
            k('v_mul_u32_u24 v9, %d, v0' % FU_RS)
            k('s_mov_b64 exec, %d' % ((1 << NREP) - 1))
            k('buffer_load_dword v8, v9, s[%d:%d], s77 offen' % (R_WS, R_WS + 3))
            k('s_mov_b64 exec, -1')
        k.wait(vm='T')
        self.ts(1)
        if self.opt.get('mstop') == 1: k('s_endpgm')
        for dl in range(5):
            for z in range(2):
                b = 24 + 8 * dl + 4 * z
                for e in range(2):
                    k('ds_read_b64_tr_b16 %s, v18 offset:%d' % (vr(b + 2 * e, 2), (32 * z + 4 * e) * 160 + 32 * dl), tag='t%d' % dl)
        for dl in range(5):
            k.wait(lg='t%d' % dl)
            for z in range(2):
                k('buffer_store_dwordx4 %s, v19, s[%d:%d], s72 offen offset:%d sc1' % (vr(24 + 8 * dl + 4 * z, 4), R_WS, R_WS + 3, 64 * z), tag='Tst')
            k('s_add_u32 s72, s72, %d' % (16 * 4096))
        if WPOS == 1: wdma()
        self.snonce(8, 9)
        def uflag():
            k.wait(vm='Tst')
            self.flag_store_rep(8, 9, 's77', FU_RS)
            self.ts(2)
        uflag()
        if self.opt.get('mstop') == 2: k('s_endpgm')
        if WPOS == 2: wdma()
        k('s_waitcnt vmcnt(0)')
        for fr in range(8):
            for e in range(2):
                k('ds_read_b64_tr_b16 %s, v20 offset:%d' % (vr(64 + 4 * fr + 2 * e, 2), 8 * e * 256 + 32 * fr), tag='w%d' % fr)
        k('s_mul_i32 s74, s67, 43')
        k('s_lshr_b32 s74, s74, 8')
        k('s_mul_i32 s75, s74, 6')
        k('s_sub_u32 s75, s67, s75')
        k('s_lshr_b32 s76, s75, 1')
        k('s_mul_i32 s76, s76, 14')
        k('s_add_u32 s76, s76, s75')
        k('s_lshl1_add_u32 s76, s74, s76')
        k('s_mul_i32 s76, s76, 5')
        for fr in range(8):
            k('s_lshl_b32 s73, s68, 3')
            k('s_add_u32 s73, s73, %d' % fr)
            k('s_mul_i32 s74, s73, 205')
            k('s_lshr_b32 s74, s74, 10')
            k('s_mul_i32 s75, s74, 235')
            k('s_add_u32 s75, s75, s73')
            k('s_add_u32 s75, s75, s76')
            k('s_lshl_b32 s75, s75, 10')
            k('s_add_u32 s75, s75, 0x%x' % WS_W2P)
            k.wait(lg='w%d' % fr)
            k('buffer_store_dwordx4 %s, v21, s[%d:%d], s75 offen sc1' % (vr(64 + 4 * fr, 4), R_WS, R_WS + 3), tag='Wst')
        k('s_lshl_b32 s73, s68, 6')
        k('s_add_u32 s73, s73, s67')
        k('s_lshl_b32 s73, s73, 2')
        k('s_add_u32 s73, s73, 0x%x' % WS_FW)
        k('s_mul_i32 s60, s%d, 3' % S_M)
        k('s_lshl_b32 s61, s%d, 1' % S_M)
        k('s_add_u32 s61, s61, 128')
        k('s_cmp_lt_u32 s%d, 128' % S_M)
        k('s_cselect_b32 s60, s60, s61')
        k('s_cselect_b32 s61, 3, 2')
        k('v_lshrrev_b32 v1, 4, v0')
        k('v_min_u32 v1, 2, v1')
        k('v_mul_u32_u24 v22, %d, v1' % CBS)
        k('v_and_b32 v2, 15, v0')
        k('v_lshl_add_u32 v1, v2, 2, v22')
        k('v_mov_b32 v2, 0')
        k('ds_write_b32 v1, v2 offset:%d' % UX)
        k('ds_write_b32 v1, v2 offset:%d' % UY)
        k('v_bfe_u32 v1, v0, 3, 2')
        k('v_and_b32 v23, 7, v0')
        k('v_lshlrev_b32 v23, 2, v23')
        k('v_lshl_add_u32 v23, v1, 7, v23')
        emit_list(k, ['v_and_b32 v6, 1, v0', 'v_cmp_eq_u32 vcc, 1, v6', 'v_and_b32 v6, 15, v0', 'v_lshrrev_b32 v7, 4, v0', 'v_lshlrev_b32 v7, 4, v7',
               'v_lshrrev_b32 v5, 1, v6', 'v_lshlrev_b32 v5, 6, v5', 'v_sub_u32 v5, v7, v5',
               'v_mov_b32 v2, %d' % (448 + KO), 'v_mov_b32 v3, 448', 'v_cndmask_b32 v2, v2, v3, vcc', 'v_add_u32 v2, v5, v2',
               'v_lshl_add_u32 v5, v6, 2, v7', 'v_mov_b32 v3, %d' % UY, 'v_mov_b32 v4, %d' % (UX + 4),
               'v_cndmask_b32 v3, v3, v4, vcc', 'v_add_u32 v3, v5, v3', 'v_add_u32 v4, %d, v21' % LT])
        def u_issue():
            for i in range(4):
                k('s_load_dwordx8 s[%d:%d], s[%d:%d], s62 offset:%d' % (16 + 8 * i, 23 + 8 * i, R_WS, R_WS + 1, 128 * i))
        k('s_mul_i32 s64, s60, 205')
        k('s_lshr_b32 s64, s64, 14')
        k('s_add_u32 s65, s60, s61')
        k('s_sub_u32 s65, s65, 1')
        k('s_mul_i32 s65, s65, 205')
        k('s_lshr_b32 s65, s65, 14')
        if self.opt.get('wflag1'):
            k.wait(vm='Wst')
            self.flag_store(8, 9, 's73')
            if self.opt['wflag1'] == 2: k('s_waitcnt vmcnt(0)')
        k.label('L_ugrp')
        k('s_lshl_b32 s9, s64, 9')
        k('s_add_u32 s9, s9, 0x%x' % WS_FU)
        k('s_mov_b32 s62, s9')
        k('s_add_u32 s63, s9, %d' % (NREP * FU_RS))
        self.spoll_loop(u_issue, 16, 32, 62, 63, FU_RS, lambda: self.poll(24, 23, 's9'), sleep=self.opt.get('ssleep', 2))
        k('s_add_u32 s64, s64, 1')
        k('s_cmp_le_u32 s64, s65')
        k('s_cbranch_scc1 L_ugrp')
        self.ts(5)
        k.wait(vm='Wst')
        k('s_lshl_b32 s64, s60, 12')
        for c in range(3):
            if c == 2:
                k('s_cmp_lt_u32 s61, 3')
                k('s_cbranch_scc1 L_u2')
            k('s_add_u32 s65, s64, 4')
            k('s_mov_b32 m0, %d' % (c * CBS + UX + 64))
            for i in range(4):
                k('buffer_load_dwordx4 v21, s[%d:%d], s64 offen offset:%d sc1 lds' % (R_WS, R_WS + 3, 1024 * i))
            k('s_mov_b32 m0, %d' % (c * CBS + UY + 64))
            for i in range(4):
                k('buffer_load_dwordx4 v21, s[%d:%d], s65 offen offset:%d sc1 lds' % (R_WS, R_WS + 3, 1024 * i))
            k('s_add_u32 s64, s64, 4096')
        k.label('L_u2')
        if not self.opt.get('wflag1'): self.flag_store(8, 9, 's73')
        self.ts(7)
        k('s_waitcnt vmcnt(%d)' % (0 if self.opt.get('wflag1') else 1))
        k('ds_read_b32 v1, v22 offset:%d' % (UX + 64))
        k('s_waitcnt lgkmcnt(0)')
        k('ds_write_b32 v22, v1 offset:%d' % (UY + 60))
        k('s_waitcnt lgkmcnt(0)')
        self.ts(6)
        k('s_barrier')
        if self.opt.get('mstop') == 3: k('s_endpgm')
        NS = self.opt.get('ns', 6)
        if NS < 8:
            k('s_setprio %d' % self.opt.get('mvprio', 0))
            FBm = [96, 160]
            steps = [(c, sg) for c in range(3) for sg in range(NS, 8)]
            emit_list(k, self.conv_reads(NS, FBm[0], 2, 3))
            wq = []
            for i, (c, sg) in enumerate(steps):
                Ym = 32 + 32 * (c % 2)
                if c == 2 and sg == NS:
                    k('s_cmp_lt_u32 s61, 3')
                    k('s_cbranch_scc1 L_m2')
                k.wait(lg='all')
                nx = self.conv_reads(steps[i + 1][1], FBm[(i + 1) % 2], 2, 3, CBS * steps[i + 1][0]) if i + 1 < len(steps) else []
                self.conv_step(Ym, FBm[i % 2], sg == NS, nx + wq)
                wq = []
                if sg == 7:
                    wq = ['ds_write_b128 v4, %s offset:%d' % (vr(Ym + 4 * t, 4), 8192 * c + 1024 * t) for t in range(8)]
                    if c == 1: w1 = list(wq)
            emit_list(k, wq)
            k('s_branch L_m3')
            k.label('L_m2')
            k.pad(8)
            emit_list(k, w1)
            k.label('L_m3')
            k('s_waitcnt lgkmcnt(0)')
            self.ts(3)
            k('s_barrier')
        self.ts(4)
        self.ts_store()
        k('s_endpgm')
        self.mark('idle')
        k.label('L_idle')
        k('s_cmp_lg_u32 s2, 128')
        k('s_cbranch_scc1 L_end')
        k('s_cmp_lg_u32 s%d, 2' % S_WAVE)
        k('s_cbranch_scc1 L_end')
        k('v_lshlrev_b32 v2, 6, v0')
        k('s_waitcnt lgkmcnt(0)')
        k('s_or_b32 s10, s10, 1')
        k('v_mov_b32 v1, s10')
        k('s_mov_b64 exec, 15')
        k('global_store_dword v2, v1, s[%d:%d] sc1' % (P_DBG, P_DBG + 1))
        if self.opt.get('latprobe'):
            ptr = {1: P_BX, 2: P_WS, 3: P_BX}[self.opt['latprobe']]
            k.label('L_lp0')
            k('s_memrealtime s[64:65]')
            k('s_waitcnt lgkmcnt(0)')
            k('s_sub_u32 s64, s64, s10')
            k('s_cmp_lt_u32 s64, 3500')
            k('s_cbranch_scc1 L_lp0')
            k('v_mov_b32 v2, 0x%x' % (0x100000 if ptr == P_BX else 0x8000000))
            k('s_memtime s[70:71]')
            k('global_load_dword v3, v2, s[%d:%d]' % (ptr, ptr + 1))
            k('s_waitcnt vmcnt(0)')
            k('s_memtime s[66:67]')
            k('s_waitcnt lgkmcnt(0)')
            for i in range(4):
                k('v_add_u32 v2, 0x3480, v2')
                k('global_load_dword v3, v2, s[%d:%d]' % (ptr, ptr + 1))
                k('s_waitcnt vmcnt(0)')
            k('s_memtime s[68:69]')
            k('s_waitcnt lgkmcnt(0)')
            if self.opt['latprobe'] == 3:
                k('s_sub_u32 s68, s66, s70')
            else:
                k('s_sub_u32 s68, s68, s66')
                k('s_lshr_b32 s68, s68, 2')
            k('v_mov_b32 v1, s68')
            k('v_mov_b32 v2, 0')
            k('global_store_dword v2, v1, s[%d:%d] offset:16' % (P_DBG, P_DBG + 1))
            k('s_add_u32 s68, s68, 4000')
            k.label('L_lp1')
            k('s_memrealtime s[64:65]')
            k('s_waitcnt lgkmcnt(0)')
            k('s_sub_u32 s64, s64, s10')
            k('s_cmp_lt_u32 s64, s68')
            k('s_cbranch_scc1 L_lp1')
        k('s_endpgm')

    def cmul(self, d, a, b):
        if self.opt.get('nopk'):
            return ['v_mul_f32 v%d, v%d, v%d' % (d, a, b),
                    'v_mul_f32 v%d, v%d, v%d' % (d + 1, a, b + 1),
                    'v_fma_f32 v%d, -v%d, v%d, v%d' % (d, a + 1, b + 1, d),
                    'v_fmac_f32 v%d, v%d, v%d' % (d + 1, a + 1, b)]
        return ['v_pk_mul_f32 %s, %s, %s op_sel:[0,0] op_sel_hi:[0,1]' % (vr(d, 2), vr(a, 2), vr(b, 2)),
                'v_pk_fma_f32 %s, %s, %s, %s op_sel:[1,1,0] op_sel_hi:[1,0,1] neg_lo:[1,0,0]' % (vr(d, 2), vr(a, 2), vr(b, 2), vr(d, 2))]
    def chan(self):
        k = self.k; opt = self.opt
        k.reset_counts()
        self.mark('chan_head')
        self.ets(1)
        S_D, S_CB, S_DSK = 12, 13, 14
        k('s_mul_i32 s64, s%d, 3' % S_M)
        k('s_lshl_b32 s65, s%d, 1' % S_M)
        k('s_add_u32 s65, s65, 128')
        k('s_cmp_lt_u32 s%d, 128' % S_M)
        k('s_cselect_b32 s64, s64, s65')
        k('s_cselect_b32 s65, 3, 2')
        k('s_cmp_ge_u32 s%d, s65' % S_WAVE)
        k('s_cbranch_scc1 L_idle')
        if opt.get('nochan'): k('s_endpgm')
        k('s_add_u32 s%d, s64, s%d' % (S_D, S_WAVE))
        k('s_mul_i32 s%d, s%d, %d' % (S_CB, S_WAVE, CBS))
        PR = 232
        for i in range(6): k('v_mov_b32 v%d, 0' % (PR + 3 * i + 2))
        k('s_mul_i32 s64, s%d, 384' % S_D)
        k('v_lshlrev_b32 v1, 1, v0')
        k('v_add_u32 v1, s64, v1')
        k('v_lshl_add_u32 v2, v0, 2, s64')
        k('s_lshr_b32 s64, s%d, 1' % S_D)
        k('s_lshl_b32 s64, s64, 2')
        k('s_waitcnt lgkmcnt(0)')
        self.ets(3)
        for ai, p in enumerate((P_ARE, P_AIM, P_BRE, P_BIM, P_CRE, P_CIM)):
            k('global_load_dword v%d, v2, s[%d:%d]' % (PR + 3 * ai + 1, p, p + 1), tag='par0')
        k('s_load_dword s65, s[%d:%d], s64' % (P_LDT, P_LDT + 1))
        k('s_load_dword s66, s[%d:%d], s64' % (P_DSK, P_DSK + 1))
        for ai, p in enumerate((P_ARE, P_AIM, P_BRE, P_BIM, P_CRE, P_CIM)):
            k('global_load_short_d16_hi v%d, v1, s[%d:%d] offset:256' % (PR + 3 * ai + 2, p, p + 1), tag='par2')
        if opt.get('gtouch'):
            k('v_min_u32 v3, 9, v0')
            k('v_lshlrev_b32 v3, 7, v3')
            k('global_load_dword v3, v3, s[%d:%d]' % (P_GW, P_GW + 1), tag='par2')
        self.cut('chan_main')
        self.ets(4)
        self.ts_init()
        self.srd_base(R_WS, P_WS)
        if opt.get('cprio'): k('s_setprio %d' % opt['cprio'])
        V_DT = 4
        ACC, QF, DT_, VV, GG, ID = 16, 32, 64, 128, 192, 208
        k('v_and_b32 v6, 31, v0')
        k('v_lshrrev_b32 v7, 5, v0')
        k('v_lshlrev_b32 v7, 3, v7')
        k('v_sub_u32 v6, v6, v7')
        k('v_and_b32 v7, 1, v0')
        k('v_lshlrev_b32 v7, 4, v7')
        k('v_mov_b32 v8, 0x3f80')
        k('v_lshlrev_b32 v7, v7, v8')
        k('v_lshrrev_b32 v6, 1, v6')
        for d in range(8):
            k('v_cmp_eq_u32 vcc, %d, v6' % (d if d < 4 else d + 4))
            k('v_cndmask_b32 v%d, 0, v7, vcc' % (ID + d))
        for i in range(16): k('v_mov_b32 v%d, 0' % (ACC + i))
        k('s_and_b32 s64, s%d, 1' % S_D)
        k('s_lshl_b32 s64, s64, 4')
        k('s_waitcnt lgkmcnt(0)')
        k('s_lshr_b32 s65, s65, s64')
        k('s_lshl_b32 s65, s65, 16')
        k('s_lshr_b32 s66, s66, s64')
        k('s_lshl_b32 s%d, s66, 16' % S_DSK)
        k('v_mov_b32 v6, s65')
        k('v_mul_f32 v6, %s, v6' % fhex(LOG2E))
        k('v_exp_f32 v6, v6')
        k('v_cvt_pk_bf16_f32 v6, v6, v6')
        k('v_lshlrev_b32 v%d, 16, v6' % V_DT)
        X_, E1, E2, E4, E8, E256, E16, C_ = 216, 218, 220, 222, 224, 226, 228, 230
        T0 = GG
        order = [0, 1, 2, 3, 4, 5, 6, 7, 4, 256, 258, 260, 8, 260, 262, 264, 512, 516, 520, 1024, 768, 772, 776, 1536, 1032, 1280, 1288, 1288, 1544, 1792, 1800, 1800]
        pv = {}
        for i, o in enumerate(order): pv.setdefault(o, VV + 2 * i)
        pv[0] = C_
        Dt = lambda t: DT_ + 16 * t
        def kmfma(s):
            return 'v_mfma_f32_32x32x16_bf16 %s, %s, %s, %s' % (vr(ACC, 16), vr(Dt(s >> 1) + 4 * (s & 1), 4), vr(QF + 4 * s, 4), vr(ACC, 16))
        S_PS = 73
        def setup(ps):
            if ps != 1: k.wait(vm='par%d' % ps)
            if ps == 0:
                for a_ in range(6):
                    k('v_lshlrev_b32 v%d, 16, v%d' % (PR + 3 * a_, PR + 3 * a_ + 1))
                    k('v_and_b32 v%d, 0xffff0000, v%d' % (PR + 3 * a_ + 1, PR + 3 * a_ + 1))
            ar, ai, br, bi, cr, ci = [PR + 3 * a + ps for a in range(6)]
            self.pr(200 + ps, 0)
            su = []
            su.append('v_mul_f32 v%d, v%d, v%d' % (X_, V_DT, ar))
            su.append('v_mul_f32 v%d, v%d, v%d' % (X_ + 1, V_DT, ai))
            su.append('v_mul_f32 v%d, %s, v%d' % (X_, fhex(LOG2E), X_))
            su.append('v_mul_f32 v%d, %s, v%d' % (X_ + 1, fhex(INV2PI), X_ + 1))
            su.append('v_rndne_f32 v%d, v%d' % (T0 + 2, X_ + 1))
            su.append('v_mul_f32 v%d, v%d, v%d' % (T0, V_DT, br))
            su.append('v_mul_f32 v%d, v%d, v%d' % (T0 + 1, V_DT, bi))
            su.append('v_sub_f32 v%d, v%d, v%d' % (X_ + 1, X_ + 1, T0 + 2))
            su.append('v_mul_f32 v%d, v%d, v%d' % (C_, cr, T0))
            su.append('v_mul_f32 v%d, v%d, v%d' % (C_ + 1, cr, T0 + 1))
            su.append('v_fma_f32 v%d, -v%d, v%d, v%d' % (C_, ci, T0 + 1, C_))
            su.append('v_fmac_f32 v%d, v%d, v%d' % (C_ + 1, ci, T0))
            for idx, (dst, p) in enumerate(((E8, 8.0), (E1, 1.0), (E256, 256.0))):
                t = T0 + 4 + 4 * idx
                if p == 1.0: m, th = X_, X_ + 1
                else:
                    su.append('v_mul_f32 v%d, %s, v%d' % (t, fhex(p), X_))
                    su.append('v_mul_f32 v%d, %s, v%d' % (t + 1, fhex(p), X_ + 1))
                    m, th = t, t + 1
                su.append('v_exp_f32 v%d, v%d' % (t + 2, m))
                su.append('v_cos_f32 v%d, v%d' % (dst, th))
                su.append('v_sin_f32 v%d, v%d' % (dst + 1, th))
            for idx, dst in enumerate((E8, E1, E256)):
                t = T0 + 4 + 4 * idx
                su.append('v_mul_f32 v%d, v%d, v%d' % (dst, dst, t + 2))
                su.append('v_mul_f32 v%d, v%d, v%d' % (dst + 1, dst + 1, t + 2))
            if ps > 0:
                for i, l in enumerate(su):
                    if i % 6 == 0 and i // 6 < 4: k(kmfma(4 + i // 6))
                    k(l)
            else:
                emit_list(k, su)
        setup(0)
        self.ts(1)
        k('s_mov_b32 s%d, 0' % S_PS)
        k.raw('.p2align 3')
        k.label('L_kbody')
        ps = 1
        def weave(ms, fill):
            per = -(-len(fill) // len(ms))
            for m in ms:
                k(m)
                emit_list(k, fill[:per]); fill = fill[per:]
        def cvts(src, part, neg):
            out = []
            for g in range(4):
                for d in range(4):
                    dst = GG + 4 * g + d if part == 0 else VV + 16 * g + d
                    ops = []
                    for o in src[8 * g + 2 * d: 8 * g + 2 * d + 2]:
                        if o is None: ops.append('1.0' if part == 0 else '0')
                        else: ops.append('%sv%d' % ('-' if neg else '', o + part))
                    out.append('v_cvt_pk_bf16_f32 v%d, %s, %s' % (dst, ops[0], ops[1]))
            return out
        grp = lambda part, g: GG + 4 * g if part == 0 else VV + 16 * g
        def swaps(part):
            return ['v_permlane32_swap_b32 v%d, v%d' % (grp(part, g) + d, grp(part, g + 1) + d) for g in (0, 2) for d in range(4)]
        def tm(part):
            t = 2 * part
            f = lambda tl, g, c: 'v_mfma_f32_32x32x16_bf16 %s, %s, %s, %s' % (vr(Dt(tl), 16), vr(grp(part, g), 4), vr(ID + 4 * (g >> 1), 4), c)
            return [f(t, 0, '0'), f(t, 2, vr(Dt(t), 16)), f(t + 1, 1, '0'), f(t + 1, 3, vr(Dt(t + 1), 16))]
        def back(t, dst):
            return ['v_cvt_pk_bf16_f32 v%d, v%d, v%d' % (dst + d, Dt(t) + 2 * d, Dt(t) + 2 * d + 1) for d in range(8)]
        self.pr(200 + ps, 1)
        qs = [None, E8, E16] + [VV + 2 * b_ for b_ in range(3, 32)]
        emit_list(k, self.cmul(E16, E8, E8))
        for b_ in range(3, 32): emit_list(k, self.cmul(qs[b_], qs[b_ - 2], E16))
        self.pr(200 + ps, 2)
        emit_list(k, cvts(qs, 0, False) + swaps(0))
        weave(tm(0), cvts(qs, 1, True) + swaps(1))
        weave(tm(1), back(0, QF) + back(1, QF + 8))
        self.pr(200 + ps, 3)
        cm = lambda o, a_, e: emit_list(k, self.cmul(pv[o], pv[a_], e))
        emit_list(k, self.cmul(E2, E1, E1))
        emit_list(k, self.cmul(E4, E2, E2))
        for o in range(1, 9): cm(o, o - 1, E1)
        for o in (256, 512, 768, 1024, 1280, 1536, 1792): cm(o, o - 256, E256)
        for o in (258, 260, 262, 264): cm(o, o - 2, E2)
        cm(516, 512, E4); cm(520, 512, E8); cm(772, 768, E4); cm(776, 768, E8)
        for o in (1032, 1288, 1544, 1800): cm(o, o - 8, E8)
        self.pr(200 + ps, 4)
        psrc = [pv[o] for o in order]
        emit_list(k, cvts(psrc, 0, False) + swaps(0))
        weave(tm(0), back(2, QF + 16) + back(3, QF + 24) + cvts(psrc, 1, False) + swaps(1))
        self.pr(200 + ps, 5)
        weave(tm(1), back(0, Dt(0)) + back(1, Dt(1)))
        weave([kmfma(s_) for s_ in range(4)], back(2, Dt(2)) + back(3, Dt(3)))
        self.pr(200 + ps, 7)
        k('s_add_u32 s%d, s%d, 1' % (S_PS, S_PS))
        k('s_cmp_eq_u32 s%d, 3' % S_PS)
        k('s_cbranch_scc1 L_kexit')
        k('s_cmp_eq_u32 s%d, 2' % S_PS)
        k('s_cbranch_scc1 L_ks2')
        lg_save = list(k.lg)
        setup(1)
        k('s_branch L_kbody')
        k.label('L_ks2')
        k.lg = list(lg_save)
        setup(2)
        k('s_branch L_kbody')
        k.label('L_kexit')
        k.lg = list(lg_save)
        ex = []
        ex += ['v_and_b32 v6, 31, v0', 'v_lshrrev_b32 v7, 5, v0', 'v_lshlrev_b32 v8, 4, v6', 'v_sub_u32 v8, s%d, v8' % S_CB,
               'v_lshlrev_b32 v9, 3, v7', 'v_sub_u32 v9, v8, v9', 'v_add_u32 v9, 504, v9',
               'v_lshlrev_b32 v10, 9, v7', 'v_sub_u32 v10, v8, v10', 'v_add_u32 v10, 1008, v10',
               'v_lshlrev_b32 v11, 10, v7', 'v_sub_u32 v11, v8, v11', 'v_add_u32 v11, 1520, v11',
               'v_add_u32 v12, %d, v9' % (KO + 4084 - 504), 'v_add_u32 v13, %d, v9' % (KO + 4084 - 512 - 504),
               'v_and_b32 v6, 1, v0', 'v_cmp_eq_u32 vcc, 1, v6',
               'v_min_u32 v14, 27, v0', 'v_lshlrev_b32 v14, 4, v14', 'v_add_u32 v14, s%d, v14' % S_CB]
        ex += ['v_mov_b32 v%d, 0' % (96 + i) for i in range(4)]
        V_A, V_B = 2, 3
        ex += ['v_and_b32 v6, 15, v0', 'v_lshrrev_b32 v7, 4, v0', 'v_lshlrev_b32 v7, 4, v7', 'v_add_u32 v7, s%d, v7' % S_CB,
               'v_lshrrev_b32 v8, 1, v6', 'v_lshlrev_b32 v8, 6, v8', 'v_sub_u32 v8, v7, v8',
               'v_mov_b32 v102, %d' % (448 + KO), 'v_mov_b32 v103, 448', 'v_cndmask_b32 v102, v102, v103, vcc', 'v_add_u32 v%d, v8, v102' % V_A,
               'v_lshl_add_u32 v8, v6, 2, v7', 'v_mov_b32 v102, %d' % UY, 'v_mov_b32 v103, %d' % (UX + 4),
               'v_cndmask_b32 v102, v102, v103, vcc', 'v_add_u32 v%d, v8, v102' % V_B, 'v_mov_b32 v15, s%d' % S_CB]
        ex = [l.replace('v102', 'v202').replace('v103', 'v203') for l in ex]
        ex = [l.replace('v_mov_b32 v9', 'v_mov_b32 v19') if l.startswith('v_mov_b32 v9') else l for l in ex]
        for s in range(4, 8):
            k(kmfma(s))
            emit_list(k, ex[:6]); ex = ex[6:]
        emit_list(k, ex)
        k('ds_write_b128 v14, v[196:199] offset:4096')
        k('ds_write_b128 v14, v[196:199] offset:%d' % (KO + 4096))
        self.ts(3)
        V = lambda r: ACC + r
        pk = lambda d, lo, hi: k('v_cvt_pk_bf16_f32 v%d, v%d, v%d' % (d, lo, hi))
        k('s_mov_b64 exec, 1')
        k('v_add_f32 v%d, s%d, v%d' % (V(0), S_DSK, V(0)))
        k('s_mov_b64 exec, -1')
        k('v_cndmask_b32 v100, v%d, v%d, vcc' % (V(11), V(12)))
        k('v_cndmask_b32 v101, v%d, v%d, vcc' % (V(13), V(14)))
        pk(32, V(3), V(2)); pk(33, V(1), V(0))
        pk(34, V(7), V(6)); pk(35, V(5), V(5))
        pk(36, V(10), V(10)); pk(37, V(9), V(9)); pk(38, V(9), V(8)); pk(39, V(8), V(8))
        pk(40, V(10), V(9)); k('v_mov_b32 v41, v37'); k('v_mov_b32 v42, v39'); k('v_mov_b32 v43, v39')
        for (lo, hi, T, off, rb) in ((11, 12, 100, 2032, 44), (13, 14, 101, 1520, 52)):
            pk(rb, V(hi), V(hi)); pk(rb + 1, V(hi), T); pk(rb + 2, V(lo), V(lo)); k('v_mov_b32 v%d, v%d' % (rb + 3, rb + 2))
            k('v_mov_b32 v%d, v%d' % (rb + 4, rb)); pk(rb + 5, T, V(lo)); k('v_mov_b32 v%d, v%d' % (rb + 6, rb + 2)); k('v_mov_b32 v%d, v%d' % (rb + 7, rb + 2))
        pk(60, V(4), V(3)); pk(61, V(2), V(1))
        pk(62, V(7), V(7)); pk(63, V(6), V(5))
        pk(102, V(0), 196)
        k('ds_write_b64 v9, v[32:33] offset:%d' % (4088 - 504))
        k('ds_write_b64 v9, v[34:35] offset:%d' % (4088 - 512 - 504))
        k('ds_write2_b32 v12, v60, v61 offset0:0 offset1:1')
        k('ds_write2_b32 v13, v62, v63 offset0:0 offset1:1')
        k('ds_write_b128 v10, v[36:39] offset:%d' % (3056 - 1008))
        k('ds_write_b128 v10, v[40:43] offset:%d' % (KO + 3056 - 1008))
        for (off, rb) in ((2032, 44), (1520, 52)):
            k('ds_write_b128 v11, %s offset:%d' % (vr(rb, 4), off - 1520))
            k('ds_write_b128 v11, %s offset:%d' % (vr(rb + 4, 4), KO + off - 1520))
        k('s_mov_b64 exec, 1')
        k('ds_write_b32 v15, v102 offset:%d' % (KO + 4092))
        k('s_mov_b64 exec, -1')
        self.snonce(104, 105)
        self.ts(2)
        k('s_cmp_ge_u32 s%d, 2' % S_WAVE)
        k('s_cbranch_scc1 L_nogate')
        self.gate()
        k.label('L_nogate')
        k('s_waitcnt lgkmcnt(0)')
        k('s_barrier')
        if opt.get('cstop') == 3: k('s_endpgm')
        Y = 16
        FB = [64, 128]
        NS = opt.get('ns', 6)
        self.ts(4)
        k('s_setprio %d' % opt.get('vprio', 0))
        emit_list(k, self.conv_reads(0, FB[0], V_A, V_B))
        fin = ['v_and_b32 v6, 15, v0', 'v_lshrrev_b32 v7, 4, v0', 'v_lshl_add_u32 v6, v7, 5, v6', 'v_lshlrev_b32 v6, 2, v6',
               'v_add_u32 v6, s%d, v6' % S_CB, 'v_lshlrev_b32 v8, 4, v0', 'v_add_u32 v7, s%d, v8' % S_CB,
               's_lshl_b32 s64, s%d, 13' % S_WAVE, 's_add_u32 s64, s64, %d' % (3 * CBS), 'v_add_u32 v9, s64, v8',
               's_lshl_b32 s64, s%d, 12' % S_D, 's_add_u32 s64, s64, 0x%x' % WS_AT]
        for sg in range(NS):
            k.wait(lg='all')
            if opt.get('cpat'):
                k('s_setprio %d' % (3 if (opt['cpat'] >> sg) & 1 else 0))
            nx = self.conv_reads(sg + 1, FB[(sg + 1) % 2], V_A, V_B) if sg + 1 < NS else fin
            self.conv_step(Y, FB[sg % 2], sg == 0, nx)
        self.ts(5)
        k('s_setprio 3')
        if NS < 8:
            k('s_barrier')
            for t in range(8):
                k('ds_read_b128 %s, v9 offset:%d' % (vr(192 + 4 * t, 4), 1024 * t), tag='pa%d' % t)
        for i in range(8):
            if NS < 8:
                k.wait(lg='pa%d' % i)
                for e in range(4): k('v_add_f32 v%d, v%d, v%d' % (Y + 4 * i + e, Y + 4 * i + e, 192 + 4 * i + e))
            for rr in range(2):
                pk(64 + 2 * i + rr, Y + 4 * i + 2 * rr, Y + 4 * i + 2 * rr + 1)
        for i in range(8):
            k('ds_write2_b32 v6, v%d, v%d offset0:%d offset1:%d' % (64 + 2 * i, 65 + 2 * i, (128 * i) % 256, (128 * i) % 256 + 16))
            if i % 2 == 1 and i < 7: k('v_add_u32 v6, 1024, v6')
        for z in range(4):
            k('ds_read_b128 %s, v7 offset:%d' % (vr(80 + 4 * z, 4), 1024 * z), tag='fy%d' % z)
        for z in range(4):
            k.wait(lg='fy%d' % z)
            k('buffer_store_dwordx4 %s, v8, s[%d:%d], s64 offen offset:%d sc1' % (vr(80 + 4 * z, 4), R_WS, R_WS + 3, 1024 * z))
        k('s_lshr_b32 s64, s%d, 3' % S_D)
        k('s_lshl_b32 s64, s64, 5')
        k('s_and_b32 s65, s%d, 7' % S_D)
        k('s_add_u32 s64, s64, s65')
        k('s_lshl_b32 s64, s64, 2')
        k('s_add_u32 s64, s64, 0x%x' % WS_FA)
        self.ts(6)
        k.wait(vm='all')
        self.flag_store_rep(9, 10, 's64', FA_RS)
        self.ts(7)
        self.ts_store()
        k('s_endpgm')

    def gate(self):
        k = self.k
        GX, GW = 112, 132
        if self.opt.get('gateprio'): k('s_setprio %d' % self.opt['gateprio'])
        self.srd_base(R_U, P_U)
        k('v_and_b32 v5, 15, v0')
        k('v_lshlrev_b32 v5, 4, v5')
        k('v_lshrrev_b32 v6, 4, v0')
        k('v_mul_u32_u24 v7, 1280, v6')
        k('v_add_u32 v7, v7, v5')
        k('s_lshl3_add_u32 s70, s%d, s%d' % (S_RHO, S_J))
        k('s_lshl1_add_u32 s70, s70, s%d' % S_WAVE)
        k('s_mul_i32 s71, s70, %d' % (4 * 1280))
        for i in range(5):
            k('buffer_load_dwordx4 %s, v7, s[%d:%d], s71 offen offset:%d' % (vr(GX + 4 * i, 4), R_U, R_U + 3, 256 * i), tag='G%d' % i)
            k('global_load_dwordx4 %s, v5, s[%d:%d] offset:%d' % (vr(GW + 4 * i, 4), P_GW, P_GW + 1, 256 * i), tag='G%d' % i)
        k('v_mov_b32 v160, 0')
        k('v_mov_b32 v161, 0')
        for i in range(20):
            if i % 4 == 0: k.wait(vm='G%d' % (i // 4))
            x, w = GX + i, GW + i
            t = 164
            if self.opt.get('dotgate'):
                k('v_dot2_f32_bf16 v%d, v%d, v%d, v%d' % (160 + i % 2, x, w, 160 + i % 2))
                continue
            k('v_lshlrev_b32 v%d, 16, v%d' % (t, x))
            k('v_and_b32 v%d, 0xffff0000, v%d' % (t + 1, x))
            k('v_lshlrev_b32 v%d, 16, v%d' % (t + 2, w))
            k('v_and_b32 v%d, 0xffff0000, v%d' % (t + 3, w))
            k('v_mul_f32 v%d, v%d, v%d' % (t, t, t + 2))
            k('v_mul_f32 v%d, v%d, v%d' % (t + 1, t + 1, t + 3))
            k('v_cvt_pk_bf16_f32 v%d, v%d, v%d' % (t + 4, t, t + 1))
            k('v_lshlrev_b32 v%d, 16, v%d' % (t, t + 4))
            k('v_and_b32 v%d, 0xffff0000, v%d' % (t + 1, t + 4))
            k('v_add_f32 v160, v160, v%d' % t)
            k('v_add_f32 v161, v161, v%d' % (t + 1))
        if self.opt.get('dotgate'): k('s_nop 3')
        k('v_add_f32 v160, v160, v161')
        for m in ('quad_perm:[1,0,3,2]', 'quad_perm:[2,3,0,1]', 'row_half_mirror', 'row_mirror'):
            k('v_add_f32_dpp v160, v160, v160 %s row_mask:0xf bank_mask:0xf' % m)
        k('v_cvt_pk_bf16_f32 v160, v160, v160')
        k('v_lshlrev_b32 v160, 16, v160')
        k('v_mul_f32 v160, %s, v160' % fhex(-LOG2E))
        k('v_exp_f32 v160, v160')
        k('v_add_f32 v160, 1.0, v160')
        k('v_rcp_f32 v160, v160')
        k('v_cvt_pk_bf16_f32 v160, v160, v160')
        k('v_lshlrev_b32 v160, 16, v160')
        k('v_mov_b32 v161, s%d' % S_NONCE)
        k('v_lshlrev_b32 v6, 3, v6')
        k('s_lshl_b32 s70, s70, 5')
        k('s_add_u32 s70, s70, 0x%x' % WS_G)
        k('s_mov_b32 s74, 0x00010001')
        k('s_mov_b32 s75, 0x00010001')
        k('s_mov_b64 exec, s[74:75]')
        k('buffer_store_dwordx2 v[160:161], v6, s[%d:%d], s70 offen sc1' % (R_WS, R_WS + 3))
        k('s_mov_b64 exec, -1')

    def build(self):
        import gemm15
        k = self.k
        self.prologue()
        self.misc()
        self.chan()
        k.reset_counts()
        self.mark('gemm_head')
        k.label('L_gemm')
        self.ets(1)
        if self.opt.get('nogemm'): k('s_endpgm')
        else: gemm15.emit(self)
        self.mark('end')
        k.label('L_end')
        k('s_endpgm')
        secs = {}; prev = ('pro', 0)
        for m in self.marks + [('eof', len(k.items))]:
            secs[prev[0]] = k.items[prev[1]:m[1]]; prev = m
        order = ['pro', 'chan_head', 'misc_head', 'idle', 'gemm_head', 'chan_main', 'misc_main', 'gemm_main', 'end']
        k.items = sum((secs[n] for n in order if n in secs), []) + sum(getattr(k, 'colds', []), [])
        assert set(secs) <= set(order)
        if self.opt.get('ipf'): k.raw('.fill ((%d - (. - %s)) / 4), 4, 0xbf810000' % (64 * 128 * self.opt['ipf'] + 256, KNAME))
        hdr = open('gated_mix__ssm_conv_s4__dense_activation_silu__prompt.s.ref').read().split('; Override launch')[0]
        s = hdr + '; @launch grid=(512,1,1) block=(256,1,1) lds=81920\n'
        s += '.amdgcn_target "amdgcn-amd-amdhsa--gfx950"\n.text\n.globl %s\n.p2align 8\n.type %s,@function\n%s:\n' % (KNAME, KNAME, KNAME)
        s += k.text()
        s += '.section .rodata,"a"\n.p2align 6\n.amdhsa_kernel %s\n' % KNAME
        s += '  .amdhsa_next_free_vgpr 256\n  .amdhsa_next_free_sgpr 102\n  .amdhsa_accum_offset 256\n  .amdhsa_group_segment_fixed_size 0\n'
        s += '  .amdhsa_kernarg_size 128\n  .amdhsa_user_sgpr_count 2\n  .amdhsa_user_sgpr_kernarg_segment_ptr 1\n  .amdhsa_system_sgpr_workgroup_id_x 1\n.end_amdhsa_kernel\n'
        return s

if __name__ == '__main__':
    opt = {}
    out = sys.argv[1]
    for a in sys.argv[2:]:
        if '=' in a:
            kk, v = a.split('='); opt[kk] = int(v, 0)
        else: opt[a] = 1
    g = Gen(opt)
    open(out, 'w').write(g.build())
    print('nops inserted', g.k.nops, 'lines', len(g.k.items))
```

```python
from kgen import *
from gen17 import *

def emit(G):
    k = G.k
    opt = G.opt
    S_LW, S_HS, S_WST, S_FH, S_FC, S_GR, S_AD, S_OUT, S_A3 = 9, 11, 12, 14, 15, 40, 43, 46, 47
    S_XZ, S_WZ = 68, 73
    VX, VW = 2, 6
    ROT = opt.get('krot') or opt.get('grot')
    k('v_lshrrev_b32 v10, 4, v0')
    k('v_and_b32 v11, 15, v0')
    k('v_and_b32 v13, 2, v10')
    k('v_add_u32 v13, v13, v10')
    k('s_and_b32 s64, s%d, 2' % S_WAVE)
    k('v_xor_b32 v13, v11, v13')
    k('v_xor_b32 v13, s64, v13')
    k('v_lshlrev_b32 v13, 4, v13')
    k('s_mul_i32 s64, s%d, %d' % (S_WAVE, 16 * 1280))
    k('v_mul_u32_u24 v12, 1280, v10')
    k('v_add_u32 v12, s64, v12')
    k('v_add_u32 v%d, v12, v13' % VX)
    k('v_xor_b32 v14, 128, v13')
    k('v_add_u32 v14, 4096, v14')
    k('v_add_u32 v%d, v12, v14' % (VX + 1))
    k('v_add_u32 v%d, 8192, v%d' % (VX + 2, VX))
    k('v_add_u32 v%d, 8192, v%d' % (VX + 3, VX + 1))
    k('s_mul_i32 s64, s%d, %d' % (S_RHO, 64 * 1280))
    if opt.get('grot'):
        k('s_and_b32 s66, s%d, 7' % S_RHO)
        k('s_mul_i32 s67, s66, 43')
        k('s_lshr_b32 s67, s67, 7')
        k('s_mul_i32 s65, s67, 3')
        k('s_sub_u32 s79, s66, s65')
        k('s_and_b32 s66, s%d, 3' % S_J)
        k('s_lshl1_add_u32 s66, s67, s66')
        k('s_sub_u32 s67, s66, 5')
        k('s_cmp_ge_u32 s66, 5')
        k('s_cselect_b32 s66, s67, s66')
    elif opt.get('krot'):
        k('s_mov_b32 s79, 0')
        k('s_add_u32 s66, s%d, s%d' % (S_RHO, S_J))
        k('s_mul_i32 s67, s66, 205')
        k('s_lshr_b32 s67, s67, 10')
        k('s_mul_i32 s67, s67, 5')
        k('s_sub_u32 s66, s66, s67')
    else:
        k('s_mov_b32 s79, 0')
        k('s_mov_b32 s66, 0')
    k('s_lshl_b32 s67, s66, 8')
    k('s_add_u32 s%d, s64, s67' % S_XZ)
    k('s_lshl_b32 s%d, s%d, 12' % (S_LW, S_WAVE))
    seq = []
    pat = {0: 'XWXWXWXWXW', 1: 'XXXXXWWWWW', 2: 'XXXWXWXWWW', 3: 'XXWXWXWXWW'}[opt.get('xfirst', 0)]
    cnt = {'X': 0, 'W': 0}
    for ch in pat:
        seq.append((ch, cnt[ch], 0)); cnt[ch] += 1
    LASTX = max(i for i in range(10) if pat[i] == 'X')
    for r in (1, 2):
        for z in range(5): seq.append(('W', z, r))
    for z in range(15): seq.append(('V', z, 0))
    assert not opt.get('grot')
    S_V, VV = 68, 2
    def dma(i):
        typ, z, r = seq[i]
        out = ['s_add_u32 m0, s%d, %d' % (S_LW, 16384 * (i % 5))]
        if typ == 'V':
            if z: out.append('s_add_u32 s%d, s%d, 16384' % (S_V, S_V))
            return out + [('buffer_load_dwordx4 v%d, s[%d:%d], s%d offen offset:%d sc1 lds' % (VV, R_WS, R_WS + 3, S_V, 1024 * n), 'S%d' % i) for n in range(4)]
        so = S_XZ + z if typ == 'X' else S_WZ + z
        if typ == 'W' and r > 0: out.append('s_add_u32 s%d, s%d, 128' % (so, so))
        rr = R_U if typ == 'X' else R_W
        for n in range(4):
            out.append(('buffer_load_dwordx4 v%d, s[%d:%d], s%d offen offset:%d lds' % ((VX if typ == 'X' else VW) + n, rr, rr + 3, so, 1024 * n), 'S%d' % i))
        return out
    k('s_waitcnt lgkmcnt(0)')
    G.ets(3)
    G.srd_base(R_U, P_U)
    if opt.get('gdelay'): k('s_sleep %d' % opt['gdelay'])
    emit_list(k, dma(0))
    k('v_lshrrev_b32 v12, 3, v0')
    k('s_lshl_b32 s65, s%d, 5' % S_WAVE)
    k('v_add_u32 v12, s65, v12')
    k('v_mul_u32_u24 v12, 3072, v12')
    k('v_and_b32 v13, 7, v0')
    k('v_and_b32 v14, 1, v10')
    k('v_lshlrev_b32 v14, 2, v14')
    k('v_xor_b32 v13, v13, v14')
    k('v_lshl_add_u32 v%d, v13, 4, v12' % VW)
    for n in range(1, 4):
        k('v_add_u32 v%d, %d, v%d' % (VW + n, n * (8 * 3072 - 1024), VW))
    k('s_mul_i32 s65, s%d, 384' % S_J)
    k('s_lshl_b32 s67, s79, 7')
    k('s_add_u32 s65, s65, s67')
    G.srd_base(R_W, P_W1); G.srd_tail(R_W, 640 * 1536 * 2)
    for z in range(5):
        if z:
            k('s_lshl_b32 s67, s66, 8')
            k('s_add_u32 s%d, s64, s67' % (S_XZ + z))
        k('s_mul_i32 s67, s66, %d' % (128 * 3072))
        k('s_add_u32 s%d, s65, s67' % (S_WZ + z))
        if z < 4:
            k('s_add_u32 s66, s66, 1')
            k('s_cmp_eq_u32 s66, 5')
            k('s_cselect_b32 s66, 0, s66')
    def touch_go():
        L = k.newlabel('L_nt')
        k('s_cmp_lg_u32 s%d, 0' % S_WAVE)
        k('s_cbranch_scc1 %s' % L)
        emit_list(k, ['v_min_u32 v30, 59, v0', 'v_mul_u32_u24 v31, 43, v30', 'v_lshrrev_b32 v31, 9, v31',
             'v_mul_u32_u24 v31, %d, v31' % (3072 - 128 * 12), 'v_lshl_add_u32 v30, v30, 7, v31',
             's_bfe_u32 s78, s2, 0x50003', 's_bfe_u32 s79, s2, 0x20001', 's_lshl_b32 s79, s79, 5', 's_add_u32 s78, s78, s79',
             's_mul_i32 s78, s78, %d' % (5 * 3072), 's_and_b32 s79, s2, 1', 's_mul_i32 s79, s79, %d' % (128 * 12), 's_add_u32 s78, s78, s79'])
        k('buffer_load_dword v31, v30, s[%d:%d], s78 offen' % (R_W, R_W + 3)); k.vm.pop()
        k.label(L)
    PF = opt.get('pf1', -1)
    LA_ = opt.get('la', 4)
    NPRE = opt.get('npre', 2)
    for i in range(1, NPRE):
        if i == PF: touch_go()
        emit_list(k, dma(i))
    G.ets(4)
    G.cut('gemm_main')
    G.ts_init()
    if opt.get('gprio'): k('s_setprio %d' % opt['gprio'])
    G.srd_base(R_WS, P_WS)
    G.srd_base(R_O, P_OUT); G.srd_tail(R_O, 2048 * 640 * 2)
    k('s_and_b32 s78, s%d, 1' % S_WAVE)
    k('s_lshr_b32 s79, s%d, 1' % S_WAVE)
    XA = 16
    WA, WAH, VH = 24, 25, 26
    k('v_and_b32 v12, 31, v0')
    k('v_lshrrev_b32 v13, 5, v0')
    rowoff = lambda d, j, t: ['v_lshrrev_b32 v%d, 2, v%d' % (d, j), 'v_lshlrev_b32 v%d, 1, v%d' % (d, d), 'v_and_b32 v%d, 1, v%d' % (t, j), 'v_add_u32 v%d, v%d, v%d' % (d, d, t),
                              'v_and_b32 v%d, 2, v%d' % (t, j), 'v_lshl_add_u32 v%d, v%d, 4, v%d' % (d, t, d)]
    emit_list(k, rowoff(15, 11, 14))
    k('v_and_b32 v14, 1, v10')
    k('v_lshl_add_u32 v15, v14, 3, v15')
    k('s_lshl_b32 s64, s78, 12')
    k('v_xor_b32 v14, v13, v11')
    k('v_lshlrev_b32 v14, 4, v14')
    k('v_lshl_add_u32 v14, v15, 8, v14')
    k('v_add_u32 v%d, s64, v14' % XA)
    for s in range(1, 8): k('v_xor_b32 v%d, %d, v%d' % (XA + s, 32 * s, XA))
    k('v_bfe_u32 v14, v0, 2, 2')
    k('v_lshl_add_u32 v15, v13, 3, v14')
    k('v_lshlrev_b32 v15, 7, v15')
    k('v_and_b32 v27, 1, v10')
    k('v_bfe_u32 v28, v0, 1, 1')
    k('v_lshl_add_u32 v27, v27, 1, v28')
    k('s_lshl_b32 s64, s79, 2')
    k('v_add_u32 v27, s64, v27')
    k('v_lshrrev_b32 v14, 1, v14')
    k('v_lshlrev_b32 v14, 2, v14')
    k('v_xor_b32 v27, v27, v14')
    k('v_lshl_add_u32 v15, v27, 4, v15')
    k('v_and_b32 v27, 1, v0')
    k('v_lshl_add_u32 v%d, v27, 3, v15' % WA)
    k('v_add_u32 v%d, 0x10000, v%d' % (WAH, WA))
    k('v_lshrrev_b32 v14, 4, v12')
    k('s_lshl_b32 s64, s78, 1')
    k('v_add_u32 v14, s64, v14')
    k('v_mul_u32_u24 v14, 49152, v14')
    k('v_lshl_add_u32 v15, v13, 4, v11')
    k('v_lshl_add_u32 v%d, v15, 4, v14' % VH)
    k('s_mul_i32 s66, s%d, 192' % S_RHO)
    k('s_lshl1_add_u32 s66, s%d, s66' % S_J)
    k('s_add_u32 s66, s66, s79')
    k('s_lshl_b32 s66, s66, 10')
    k('s_add_u32 s%d, s66, 0x%x' % (S_HS, WS_H))
    k('s_mul_i32 s66, s%d, 768' % S_RHO)
    k('s_lshr_b32 s67, s%d, 2' % S_J)
    k('s_lshl_b32 s67, s67, 7')
    k('s_add_u32 s66, s66, s67')
    k('s_add_u32 s%d, s66, 0x%x' % (S_FC, WS_FH))
    k('s_and_b32 s67, s%d, 3' % S_J)
    k('s_lshl2_add_u32 s%d, s67, s%d' % (S_FH, S_FC))
    k('s_mov_b32 s%d, 0' % S_AD)
    k('s_lshl3_add_u32 s%d, s%d, s%d' % (S_OUT, S_RHO, S_WAVE))
    k('s_mul_i32 s%d, s%d, %d' % (S_OUT, S_OUT, 8 * 1280))
    k('s_mul_i32 s66, s%d, 160' % S_J)
    k('s_add_u32 s%d, s%d, s66' % (S_OUT, S_OUT))
    k('s_cmp_lt_u32 s%d, 2' % S_WAVE)
    k('s_cselect_b32 s%d, 1024, 0' % S_A3)
    FA, FBs = 32, 48
    NRH = opt.get('nrh', 4)
    ACC = [64, 80, 64]
    XF = 96
    def wread(i, half, s):
        base = 16384 * (i % 5)
        reg = WAH if base >= 65536 else WA
        off = base & 0xffff
        fs = FA if half == 0 else FBs
        return [('ds_read_b64_tr_b16 %s, v%d offset:%d' % (vr(fs + 4 * s + 2 * e, 2), reg, off + (4 * half + s) * 2048 + 512 * e), 'w%d%d' % (half, s)) for e in range(2)]
    def mfma(i, half, s):
        typ, z, r = seq[i]
        fs = FA if half == 0 else FBs
        c = '0' if (z == 0 and half == 0 and s == 0) else vr(ACC[r], 16)
        return 'v_mfma_f32_32x32x16_bf16 %s, %s, %s, %s' % (vr(ACC[r], 16), vr(fs + 4 * s, 4), vr(XF + 4 * (8 * z + 4 * half + s), 4), c)
    NL2 = fhex(-LOG2E)
    def epi(r):
        a = ACC[r]
        out = []
        for p in range(8):
            t = 10 if p % 2 == 0 else 28
            if opt.get('fastsilu'):
                x0, x1 = a + 2 * p, a + 2 * p + 1
            else:
                x0, x1 = t, t + 1
                out += ['v_cvt_pk_bf16_f32 v%d, v%d, v%d' % (t + 2, a + 2 * p, a + 2 * p + 1),
                        'v_lshlrev_b32 v%d, 16, v%d' % (t, t + 2),
                        'v_and_b32 v%d, 0xffff0000, v%d' % (t + 1, t + 2)]
            out += ['v_mul_f32 v%d, %s, v%d' % (t + 2, NL2, x0),
                    'v_mul_f32 v%d, %s, v%d' % (t + 3, NL2, x1),
                    'v_exp_f32 v%d, v%d' % (t + 2, t + 2),
                    'v_exp_f32 v%d, v%d' % (t + 3, t + 3),
                    'v_add_f32 v%d, 1.0, v%d' % (t + 2, t + 2),
                    'v_add_f32 v%d, 1.0, v%d' % (t + 3, t + 3),
                    'v_rcp_f32 v%d, v%d' % (t + 2, t + 2),
                    'v_rcp_f32 v%d, v%d' % (t + 3, t + 3),
                    'v_mul_f32 v%d, v%d, v%d' % (t + 2, x0, t + 2),
                    'v_mul_f32 v%d, v%d, v%d' % (t + 3, x1, t + 3),
                    'v_cvt_pk_bf16_f32 v%d, v%d, v%d' % (a + p, t + 2, t + 3)]
        out += ['s_add_u32 s66, s%d, %d' % (S_HS, 16384 * r)]
        for s in range(2):
            out.append(('buffer_store_dwordx4 %s, v%d, s[%d:%d], s66 offen offset:%d sc1' % (vr(a + 4 * s, 4), VH, R_WS, R_WS + 3, 512 * s), 'hst%d' % r))
        if opt.get('hdup'):
            for s in range(2):
                out.append(('buffer_store_dwordx4 %s, v%d, s[%d:%d], s66 offen offset:%d' % (vr(a + 4 * s, 4), VH, R_WS, R_WS + 3, 512 * s), 'hst%d' % r))
        return out
    def hflag(r):
        L = k.newlabel('L_nf')
        k('s_cmp_lg_u32 s%d, %d' % (S_WAVE, r))
        k('s_cbranch_scc1 %s' % L)
        k('s_add_u32 s67, s%d, %d' % (S_FH, 256 * r))
        G.flag_store_rep(14, 15, 's67', FH_RS, nrep=NRH); k.vm.pop()
        k.label(L)
    S_H0, S_FA, S_AT, S_GG, S_AC, S_AE = 69, 70, 71, 72, 52, 53
    VL, VLH, VFH, VFW = 16, 17, 18, 19
    V_FA, V_AD, V_G, V_AR, V_OW, V_OR, V_OS = 3, 4, 5, 20, 21, 6, 80
    A2 = lambda sub: 96 + 4 * sub
    HN = 20
    WBUF = [32, 36, 40, 44] + [196 + 4 * i for i in range(8)] + [48, 52, 56, 60]
    Hr = lambda pi: 116 + 4 * (pi % HN)
    def g2_setup():
        o = ['v_lshlrev_b32 v%d, 4, v0' % VL, 'v_add_u32 v%d, 0x10000, v%d' % (VLH, VL), 'v_add_u32 v%d, s%d, v%d' % (VV, S_LW, VL),
              'v_and_b32 v22, 3, v0', 'v_lshlrev_b32 v%d, 2, v22' % VFH, 'v_and_b32 v22, 7, v0',
              's_mul_i32 s64, s%d, %d' % (S_J, 48 * 5120), 's_add_u32 s%d, s64, 0x%x' % (S_V, WS_W2P),
              's_and_b32 s64, s%d, 7' % S_RHO, 's_mul_i32 s64, s64, %d' % (60 * 128), 's_add_u32 s55, s64, s%d' % S_V,
              's_lshl2_add_u32 s64, s%d, s%d' % (S_RHO, S_WAVE), 's_mul_i32 s65, s64, 49152', 's_add_u32 s65, s65, 0x%x' % WS_H,
              's_lshr_b32 s54, s%d, 2' % S_J, 's_lshl_b32 s54, s54, 13', 's_add_u32 s%d, s65, s54' % S_H0, 's_sub_u32 s54, s65, s54',
              's_lshl3_add_u32 s64, s%d, s%d' % (S_RHO, S_WAVE), 's_lshl_b32 s64, s64, 6', 's_add_u32 s%d, s64, 0x%x' % (S_GG, WS_G),
              's_mul_i32 s64, s%d, %d' % (S_J, 10 * 128), 's_add_u32 s%d, s64, 0x%x' % (S_FA, WS_FA),
              's_mul_i32 s64, s%d, %d' % (S_J, 80 * 4096), 's_lshl_b32 s65, s%d, 7' % S_RHO, 's_add_u32 s64, s64, s65', 's_add_u32 s%d, s64, 0x%x' % (S_AT, WS_AT),
              's_mul_i32 s64, s%d, 5' % S_J, 's_lshr_b32 s78, s64, 3', 's_add_u32 s64, s64, 4', 's_lshr_b32 s79, s64, 3',
              's_lshl_b32 s78, s78, 8', 's_lshl_b32 s79, s79, 8', 's_mul_i32 s64, s%d, 48' % S_WAVE, 's_add_u32 s64, s64, 0x%x' % WS_FW,
              's_add_u32 s78, s78, s64', 's_add_u32 s79, s79, s64', 's_sub_u32 s64, s79, s78',
              'v_and_b32 v23, 15, v0', 'v_min_u32 v%d, 11, v23' % VFW, 'v_lshlrev_b32 v%d, 2, v%d' % (VFW, VFW),
              'v_bfe_u32 v27, v0, 4, 1', 'v_mul_u32_u24 v27, s64, v27', 'v_add_u32 v%d, v%d, v27' % (VFW, VFW),
              'v_lshrrev_b32 v27, 3, v0', 'v_min_u32 v%d, 2, v27' % V_FA, 'v_lshlrev_b32 v%d, 2, v%d' % (V_FA, V_FA), 'v_add_u32 v%d, s%d, v%d' % (V_FA, S_WAVE, V_FA),
              'v_min_u32 v%d, 9, v%d' % (V_FA, V_FA), 'v_lshl_add_u32 v%d, v%d, 5, v22' % (V_FA, V_FA), 'v_lshlrev_b32 v%d, 2, v%d' % (V_FA, V_FA),
              's_lshl_b32 s%d, s%d, 7' % (S_AC, S_WAVE), 's_add_u32 s%d, s%d, s%d' % (S_AC, S_AC, S_FA), 's_add_u32 s%d, s%d, %d' % (S_AE, S_AC, NREP * FA_RS),
              'v_lshlrev_b32 v27, 12, v27', 'v_lshl_add_u32 v%d, v22, 4, v27' % V_AD,
              ] + rowoff(V_G, 23, 27) + ['v_lshlrev_b32 v%d, 3, v%d' % (V_G, V_G),
              'v_lshrrev_b32 v27, 5, v0', 'v_lshlrev_b32 v27, 12, v27', 'v_bfe_u32 v22, v0, 2, 3', 'v_lshl_add_u32 v27, v22, 7, v27',
              'v_and_b32 v22, 3, v0', 'v_lshl_add_u32 v27, v22, 3, v27', 's_lshl_b32 s64, s%d, 5' % S_WAVE, 'v_add_u32 v%d, s64, v27' % V_AR,
              'v_mul_u32_u24 v27, %d, v23' % OSTR, 'v_lshrrev_b32 v22, 4, v0', 'v_lshl_add_u32 v27, v22, 3, v27', 'v_add_u32 v%d, s%d, v27' % (V_OW, S_LW)]
        return o
    OSTR = opt.get('ostr', 176)
    def late_setup():
        o = []
        for n in range(3):
            o += ['v_add_u32 v22, %d, v0' % (64 * n), 'v_mul_u32_u24 v23, 205, v22', 'v_lshrrev_b32 v23, 11, v23',
                  ] + rowoff(V_OS + n, 23, 27) + ['v_mul_u32_u24 v%d, 1280, v%d' % (V_OS + n, V_OS + n), 'v_lshl_add_u32 v%d, v22, 4, v%d' % (V_OS + n, V_OS + n),
                  'v_mul_u32_u24 v27, 160, v23', 'v_sub_u32 v%d, v%d, v27' % (V_OS + n, V_OS + n),
                  'v_mul_u32_u24 v27, %d, v23' % (OSTR - 160), 'v_lshl_add_u32 v27, v22, 4, v27', 'v_add_u32 v%d, s%d, v27' % (V_OR + n, S_LW)]
        return o
    def hload(pi):
        o = []
        if pi % 4 == 0: o.append('s_add_u32 s65, s%d, %d' % (54 if pi & 8 else S_H0, 1024 * pi))
        o.append(('buffer_load_dwordx4 %s, v%d, s[%d:%d], s65 offen offset:%d sc1' % (vr(Hr(pi), 4), VL, R_WS, R_WS + 3, 1024 * (pi % 4)), 'H%d' % pi))
        return o
    def take(q, n):
        o = q[:n]; del q[:n]; return o
    def h_issue():
        k('s_load_dwordx4 s[16:19], s[%d:%d], s24' % (R_WS, R_WS + 1))
    def sflag_issue(q):
        if opt.get('nohchk'): return
        if q & 1:
            k('s_xor_b32 s26, s%d, 128' % S_FC)
            k('s_add_u32 s26, s26, %d' % (256 * (q >> 1)))
        else: k('s_add_u32 s26, s%d, %d' % (S_FC, 256 * (q >> 1)))
        k('s_mov_b32 s24, s26')
        h_issue()
        k('s_add_u32 s24, s24, %d' % FH_RS)
        k('s_add_u32 s25, s26, %d' % (NRH * FH_RS))
    def sflag_check(q):
        if opt.get('nohchk'): return
        k('s_waitcnt lgkmcnt(0)')
        G.s_allok(16, 4)
        G.slow('scc1', lambda: G.spoll_loop(h_issue, 16, 4, 24, 25, FH_RS, lambda: G.poll(27, VFH, 's26')))
    def a_dma(base=None, count=False):
        for n in range(3):
            if n < 2: k('s_add_u32 s66, s%d, %d' % (S_WAVE, 4 * n))
            else:
                k('s_lshr_b32 s66, s%d, 7' % S_A3)
                k('s_add_u32 s66, s66, s%d' % S_WAVE)
            k('s_lshl_b32 s67, s66, 15')
            k('s_add_u32 s67, s67, s%d' % (base or S_AT))
            k('s_add_u32 m0, s%d, %d' % (S_LW, 1024 * n))
            k('buffer_load_dwordx4 v%d, s[%d:%d], s67 offen sc1 lds' % (V_AD, R_WS, R_WS + 3), tag='a')
            if not count: k.vm.pop()
    def a_issue():
        k('s_load_dwordx8 s[16:23], s[%d:%d], s%d' % (R_WS, R_WS + 1, S_AC))
        k('s_load_dwordx8 s[24:31], s[%d:%d], s%d offset:512' % (R_WS, R_WS + 1, S_AC))
        k('s_add_u32 s67, s%d, s%d' % (S_AC, S_A3))
        k('s_load_dwordx8 s[32:39], s[%d:%d], s67' % (R_WS, R_WS + 1))
    epq = []; mq = []
    LA0 = opt.get('la0', LA_)
    GB = opt.get('gapb', 48)
    st8 = {'n': NPRE, 'h': 0, 'ok': 5 if opt.get('nohchk') else -1}
    def cost(f):
        t = f[0] if isinstance(f, tuple) else f
        return 8 if t.startswith(('v_exp', 'v_rcp')) else 4
    def vm1(n):
        nv = 0; used = 0
        while mq and nv < n:
            f = mq.pop(0); emit_list(k, [f]); used += 4
            if isinstance(f, tuple): nv += 1
        return used
    def gap(used, g=0):
        used += vm1(opt.get('vper', 1))
        while epq and used + cost(epq[0]) <= GB:
            f = epq.pop(0); emit_list(k, [f]); used += cost(f)
    FAT = [opt.get('f0at', 15), opt.get('f1at', 20), opt.get('f2at', 25)]
    RB_ = opt.get('rb', 2)
    RAT = []
    for a_ in (opt.get('r0at', 19), opt.get('r1at', 23), opt.get('r2at', 28)): RAT += [a_, a_ + RB_]
    PWAT, AAT = opt.get('pwat', 13), opt.get('aat', 32)
    HL = opt.get('hl', 12)
    WCK = opt.get('wck', 17)
    WT = opt.get('wt', 0)
    assert WCK <= 17 and (not WT or WT >= WCK)
    def younger(a, b):
        ia = max(i for i, t in enumerate(k.vm) if t == a); ib = max(i for i, t in enumerate(k.vm) if t == b)
        return a if ia > ib else b
    def flush_for(tag):
        while any(isinstance(f, tuple) and f[1] == tag for f in mq): vm1(1)
    def hq(upto, free=99):
        while st8['h'] < min(48, upto) and (st8['h'] >> 3) <= st8['ok'] and 5 + st8['h'] < free:
            mq.extend(hload(st8['h'])); st8['h'] += 1
    def late_a():
        G.spoll_loop(a_issue, 16, 24, S_AC, S_AE, FA_RS, lambda: G.poll(27, V_FA, 's%d' % S_FA), sleep=opt.get('asleep', 4))
        k('s_waitcnt vmcnt(0)')
        a_dma()
    def sync(i, lg):
        flush_for('S%d' % i)
        tg = 'S%d' % i
        for r in range(3):
            if FAT[r] == i:
                while any(isinstance(f, tuple) and f[1] == 'hst%d' % r for f in epq): emit_list(k, take(epq, 1))
                tg = younger(tg, 'hst%d' % r)
        if i == WCK and not opt.get('noa'): G.poll(27, VFW, 's78', first='pw')
        k.wait(vm=tg, lg=lg)
        k('s_barrier')
        if i < 10: G.pr(301, i)
        elif i < 20: G.pr(302, i - 10)
        elif i < 30: G.pr(300, i - 20)
        if i >= 30: G.pr(303, i - 30)
        for n_, at in ((1, 0), (2, 10), (3, 15), (4, 20), (5, 25), (6, 30), (7, 34)):
            if i == at: G.ts(n_)
        for r in range(3):
            if FAT[r] == i: hflag(r)
        la = LA0 if i < opt.get('la0end', 8) else LA_
        upto = max(min(i + la - 1, i + 3), min(4, i + la))
        while st8['n'] < 35 and st8['n'] <= upto:
            if st8['n'] == PF: touch_go()
            mq.extend(dma(st8['n'])); st8['n'] += 1
        WS_ = opt.get('wts', 1)
        if WT and i >= WT and (i - WT) % WS_ == 0 and (i - WT) // WS_ < 4:
            q = (i - WT) // WS_
            L = k.newlabel('L_wt')
            k('s_cmp_lg_u32 s%d, %d' % (S_WAVE, 3 - q))
            k('s_cbranch_scc1 %s' % L)
            k('v_min_u32 v22, 59, v0')
            k('v_lshlrev_b32 v22, 7, v22')
            k('s_add_u32 s67, s55, %d' % (q * 480 * 128))
            k('buffer_load_dword v23, v22, s[%d:%d], s67 offen sc1' % (R_WS, R_WS + 3)); k.vm.pop()
            k.label(L)
        if i == 6: k('s_load_dword s%d, s[%d:%d], 0' % (S_NONCE, P_DBG, P_DBG + 1))
        if i == 9: G.snonce(14, 15, first=1)
        if i == PWAT and not opt.get('noa'): mq.insert(0, ('buffer_load_dword v27, v%d, s[%d:%d], s78 offen sc1' % (VFW, R_WS, R_WS + 3), 'pw'))
        for r in range(6):
            if RAT[r] == i:
                sflag_check(r); st8['ok'] = max(st8['ok'], r)
        for r in range(6):
            if RAT[r] - 1 == i: sflag_issue(r)
        if i == 29: mq.insert(0, ('buffer_load_dwordx2 v[30:31], v%d, s[%d:%d], s%d offen sc1' % (V_G, R_WS, R_WS + 3, S_GG), 'g'))
        if i == AAT - opt.get('alead', 2) and not opt.get('noa'): mq.insert(0, ('buffer_load_dword v9, v%d, s[%d:%d], s%d offen sc1' % (V_FA, R_WS, R_WS + 3, S_FA), 'fa'))
        if i == AAT and not opt.get('noa'):
            assert st8['n'] == 35
            flush_for('S34')
            k.wait(vm='fa')
            G.poll_cmp(9, [0])
            k('s_cselect_b32 s%d, 1, 0' % S_AD)
            k('s_cselect_b32 s64, s%d, s%d' % (S_AT, S_V))
            a_dma(64, True)
    sync(0, None)
    pend = None
    for i in range(20):
        typ, z, r = seq[i]
        base = 16384 * (i % 5)
        for s in range(4):
            used = 8
            if pend is not None:
                if not opt.get('hw'): k.wait(lg='w1%d' % s); used += 4
                elif s % 2 == 0: k.wait(lg='w1%d' % (s + 1)); used += 4
                k(pend[s])
            if typ == 'W': emit_list(k, wread(i, 0, s))
            else:
                for s2 in (2 * s, 2 * s + 1):
                    if base >= 65536:
                        k('v_add_u32 v%d, 0x10000, v%d' % (10 + s2 % 4, XA + s2))
                        k('ds_read_b128 %s, v%d' % (vr(XF + 4 * (8 * z + s2), 4), 10 + s2 % 4), tag='x%d' % i)
                    else:
                        k('ds_read_b128 %s, v%d offset:%d' % (vr(XF + 4 * (8 * z + s2), 4), XA + s2, base), tag='x%d' % i)
            gap(used, s)
        pend = None
        prevx = 'x%d' % (i - 1) if (i > 0 and seq[i - 1][0] == 'X') else None
        if typ == 'X':
            emit_list(k, take(mq, 1000))
            if i == LASTX: emit_list(k, g2_setup())
            sync(i + 1, prevx)
            continue
        if z == 0 and r > 0: epq.extend(epi(r - 1))
        for s in range(4):
            if not opt.get('hw'): k.wait(lg='w0%d' % s)
            elif s % 2 == 0: k.wait(lg='w0%d' % (s + 1))
            k(mfma(i, 0, s))
            if s < 2:
                emit_list(k, wread(i, 1, 2 * s) + wread(i, 1, 2 * s + 1))
                gap(20 if (z or s) else 1000, 4 + s)
            elif s == 2:
                sync(i + 1, None)
                if r == 2: hq(HL, 8 * z)
            else:
                gap(4, 4 + s)
        pend = [mfma(i, 1, s) for s in range(4)]
        if i in (14, 19): emit_list(k, take(epq, 1000))
    D = opt.get('vd', 12)
    assert D <= 12 and HL <= HN
    WP = opt.get('wp', 2)
    def vread(f):
        off = 16384 * ((20 + f // 16) % 5) + 1024 * (f % 16)
        return ('ds_read_b128 %s, v%d offset:%d' % (vr(WBUF[f % 16], 4), VLH if off >= 65536 else VL, off & 0xffff), 'v%d' % f)
    for s in range(4):
        k.wait(lg='w1%d' % s); k(pend[s])
        emit_list(k, [vread(f) for f in range(D * s // 4, D * (s + 1) // 4)])
        vm1(2)
    epq.extend(epi(2))
    EP2 = opt.get('ep2', 3)
    AM = opt.get('am', 228)
    fast = opt.get('fastfin')
    AR, GA = 64, 10
    ga = [244 + 2 * i for i in range(6)] + [84 + 2 * i for i in range(4)]
    def rnd(x):
        return ['v_cvt_pk_bf16_f32 v%d, v%d, v%d' % (x + 1, x, x + 1), 'v_lshlrev_b32 v%d, 16, v%d' % (x, x + 1), 'v_and_b32 v%d, 0xffff0000, v%d' % (x + 1, x + 1)]
    for m in range(240):
        pi, sub = m // 5, m % 5
        if (m + D) % 16 == 0 and m + D < 240:
            i = 20 + (m + D) // 16
            sync(i, None)
            if i == 31: epq.extend(late_setup())
            if i == 33:
                if not opt.get('noa'): G.poll(30, V_G, 's%d' % S_GG, n=2, first='g', which=[1])
                epq.extend(['v_sub_f32 v28, 1.0, v30', 'v_cvt_pk_bf16_f32 v28, v28, v28', 'v_lshlrev_b32 v28, 16, v28', 'v_mov_b32 v29, v28', 'v_mov_b32 v31, v30'])
        if m == AM:
            hq(48); emit_list(k, take(mq, 1000))
            if not opt.get('noa'):
                k('s_cmp_lg_u32 s%d, 0' % S_AD)
                G.slow('scc0', late_a)
            k.wait(vm='all')
            k('s_barrier')
            G.pr(303, 8)
            for sb in range(5):
                k('ds_read_b64_tr_b16 %s, v%d offset:%d' % (vr(AR + 2 * sb, 2), V_AR, (sb & 1) * 8192 + (sb >> 1) * 1024), tag='ar')
        if m == min(AM + 5, 239):
            k.wait(lg='ar')
            for q in range(10):
                t = ga[q]
                epq.extend(['v_lshlrev_b32 v%d, 16, v%d' % (t, AR + q), 'v_and_b32 v%d, 0xffff0000, v%d' % (t + 1, AR + q)])
                if not fast: epq.extend(['v_mul_f32 v%d, v30, v%d' % (t, t), 'v_mul_f32 v%d, v30, v%d' % (t + 1, t + 1)] + rnd(t))
        hq(pi + HL)
        lgt = 'v%d' % min(m + WP - 1, 239) if m % WP == 0 else None
        if sub == 0:
            flush_for('H%d' % pi)
            k.wait(vm='H%d' % pi, lg=lgt)
        elif lgt: k.wait(lg=lgt)
        c = '0' if pi == 0 else vr(A2(sub), 4)
        k('v_mfma_f32_16x16x32_bf16 %s, %s, %s, %s' % (vr(A2(sub), 4), vr(WBUF[m % 16], 4), vr(Hr(pi), 4), c))
        if m + D < 240: emit_list(k, [vread(m + D)])
        if m % 2 == 0: vm1(1)
        if m >= 2: emit_list(k, take(epq, EP2))
    emit_list(k, take(epq, 1000))
    G.ts(8)
    G.pr(303, 5)
    for sub in range(5):
        for hf in range(2):
            x = A2(sub) + 2 * hf; t = ga[2 * sub + hf]
            if fast:
                k('v_pk_mul_f32 %s, %s, v[28:29]' % (vr(x, 2), vr(x, 2)))
                k('v_pk_fma_f32 %s, %s, v[30:31], %s' % (vr(x, 2), vr(t, 2), vr(x, 2)))
            else:
                emit_list(k, rnd(x))
                k('v_pk_mul_f32 %s, %s, v[28:29]' % (vr(x, 2), vr(x, 2)))
                emit_list(k, rnd(x))
                k('v_pk_add_f32 %s, %s, %s' % (vr(x, 2), vr(x, 2), vr(t, 2)))
            k('v_cvt_pk_bf16_f32 v%d, v%d, v%d' % (AR + 2 * sub + hf, x, x + 1))
        k('ds_write_b64 v%d, %s offset:%d' % (V_OW, vr(AR + 2 * sub, 2), 16384 + 32 * sub))
    G.pr(303, 6)
    for n in range(3):
        k('ds_read_b128 %s, v%d offset:16384' % (vr(116 + 4 * n, 4), V_OR + n), tag='o%d' % n)
    for n in range(3):
        k.wait(lg='o%d' % n)
        if n == 2: k('s_mov_b32 exec_hi, 0')
        k('buffer_store_dwordx4 %s, v%d, s[%d:%d], s%d offen %s' % (vr(116 + 4 * n, 4), V_OS + n, R_O, R_O + 3, S_OUT, 'sc1' if opt.get('osc1') else ''))
    k('s_mov_b64 exec, -1')
    G.pr(303, 7)
    G.ts(9)
    G.ts_store()
    G.calib()
    k('s_endpgm')
```

```python
import sys, math
from kgen import *
KNAME = 'gated_mix__ssm_conv_s4__dense_activation_silu__prompt_kernel'

WS_UT, WS_AT, WS_H, WS_W2P, WS_G = 0x000000, 0x300000, 0x600000, 0xC00000, 0xE00000
WS_FH, WS_FU, WS_FW, WS_FA, WS_TS = 0xE80000, 0xE10000, 0xE28000, 0xF00000, 0xE30000
import os
NREP = int([a.split('=')[1] for a in sys.argv if a.startswith('nrep=')][0]) if any(a.startswith('nrep=') for a in sys.argv) else 8
FU_RS, FA_RS, FH_RS = 0x1000, 0x4000, 0x10000
WS_SZ = 0x1000000
LOG2E = 1.4426950408889634
INV2PI = 0.15915494309189535

S_WG, S_WAVE, S_M, S_RHO, S_J, S_NONCE, S_TMO = 2, 3, 4, 5, 6, 7, 8
P_U, P_ARE, P_AIM, P_BRE, P_BIM, P_CRE, P_CIM, P_LDT = 16, 18, 20, 22, 24, 26, 28, 30
P_DSK, P_BX, P_W1, P_W2, P_GW, P_OUT, P_DBG, P_WS = 32, 34, 36, 38, 40, 42, 44, 46
R_WS, R_U, R_W, R_O = 48, 52, 56, 60
S_TS = 80
CBS = 17664
KO, UX = 4576, 9216
UY = UX + 4224

def emit_list(k, lst):
    for f in lst:
        if isinstance(f, tuple): k(f[0], tag=f[1])
        else: k(f)

class Gen:
    def __init__(self, opt):
        self.k = K()
        self.opt = opt
        self.marks = []
    def mark(self, name):
        self.marks.append((name, len(self.k.items)))
    def cut(self, name):
        self.k('s_branch L_%s' % name)
        self.mark(name)
        self.k.label('L_%s' % name)
    def slow(self, cond, body):
        k = self.k
        S = k.newlabel('L_slow'); B = k.newlabel('L_back')
        k('s_cbranch_%s %s' % (cond, S))
        k.cold_begin()
        k.label(S)
        body()
        k('s_nop 4')
        k('s_branch %s' % B)
        k.cold_end()
        k.label(B)
    def srd_tail(self, r, size):
        self.k('s_mov_b32 s%d, 0x%x' % (r + 2, size))
        self.k('s_mov_b32 s%d, 0x20000' % (r + 3))
    def srd_base(self, r, p):
        self.k('s_mov_b64 s[%d:%d], s[%d:%d]' % (r, r + 1, p, p + 1))
    def ts(self, i):
        if self.opt.get('ts') and not self.opt.get('probe') and not (self.opt.get('early') and i in (1, 3, 4)):
            self.k('%s s[%d:%d]' % ('s_memtime' if self.opt.get('cyc') else 's_memrealtime', S_TS + 2 * i, S_TS + 2 * i + 1))
    def pr(self, key, i):
        if self.opt.get('probe') == key:
            self.k('s_memtime s[%d:%d]' % (S_TS + 2 * i, S_TS + 2 * i + 1))
    def ts_init(self):
        if self.opt.get('ts'):
            for i in range(10):
                if self.opt.get('early') and i in (1, 3, 4): continue
                self.k('s_mov_b32 s%d, s%d' % (S_TS + 2 * i, 100 if self.opt.get('cyc') else 10))
    def ets(self, i):
        if self.opt.get('early'): self.k('s_memtime s[%d:%d]' % (S_TS + 2 * i, S_TS + 2 * i + 1))
    def ts_store(self):
        if not self.opt.get('ts'): return
        k = self.k
        k('s_waitcnt vmcnt(0) lgkmcnt(0)')
        k('s_xor_b32 s64, s%d, 256' % S_WG)
        k('s_lshl_b32 s64, s64, 2')
        k('s_add_u32 s64, s64, s%d' % S_WAVE)
        k('s_lshl_b32 s64, s64, 6')
        k('s_add_u32 s64, s64, 0x%x' % WS_TS)
        k('v_mov_b32 v1, 0')
        for i in range(10):
            k('v_mov_b32 v2, s%d' % (S_TS + 2 * i))
            k('buffer_store_dword v2, v1, s[%d:%d], s64 offen offset:%d' % (R_WS, R_WS + 3, 4 * i))
        k('s_waitcnt vmcnt(0)')
    def calib(self):
        if self.opt.get('calib'):
            k = self.k
            L = k.newlabel('L_cal')
            k.label(L)
            k('s_memrealtime s[64:65]')
            k('s_waitcnt lgkmcnt(0)')
            k('s_sub_u32 s64, s64, s%d' % S_NONCE)
            k('s_cmp_lt_u32 s64, %d' % self.opt['calib'])
            k('s_cbranch_scc1 %s' % L)
    def spin_tail(self, L, D):
        k = self.k
        k('s_cbranch_scc1 %s' % D)
        k('s_sleep %d' % self.opt.get('sleep', 2))
        k('s_sub_u32 s%d, s%d, 1' % (S_TMO, S_TMO))
        k('s_cmp_lg_u32 s%d, 0' % S_TMO)
        k('s_cbranch_scc1 %s' % L)
        k.label(D)
    def nonce_issue(self, vt, vz, tag):
        k = self.k
        k('v_mov_b32 %s, 0' % vr(vz))
        k('global_load_dword %s, %s, s[%d:%d] sc1' % (vr(vt), vr(vz), P_DBG, P_DBG + 1), tag=tag)
    def nonce_get(self, vt, vz, tag=None, waited=False):
        k = self.k
        L = k.newlabel('L_nonce'); D = k.newlabel('L_nonce_ok'); C = k.newlabel('L_nonce_chk')
        k('s_mov_b32 s%d, 0x%x' % (S_TMO, self.opt.get('tmo', 0x4000)))
        if not waited: k.wait(vm=tag)
        k('s_branch %s' % C)
        k.label(L)
        k('v_mov_b32 %s, 0' % vr(vz))
        k('global_load_dword %s, %s, s[%d:%d] sc1' % (vr(vt), vr(vz), P_DBG, P_DBG + 1)); k.vm.pop()
        k('s_waitcnt vmcnt(0)')
        k.label(C)
        k('v_readfirstlane_b32 s%d, %s' % (S_NONCE, vr(vt)))
        k('s_cmp_lg_u32 s%d, 0' % S_NONCE)
        self.spin_tail(L, D)
    def poll_issue(self, vt, vaddr, soff, tag, n=1):
        self.k('buffer_load_dword%s %s, %s, s[%d:%d], %s offen sc1' % ('x2' if n == 2 else '', vr(vt, n), vr(vaddr), R_WS, R_WS + 3, soff), tag=tag)
    def poll_cmp(self, vt, which):
        k = self.k
        k('v_cmp_ne_u32 vcc, s%d, %s' % (S_NONCE, vr(vt + which[0])))
        if len(which) == 2:
            k('v_cmp_ne_u32 s[78:79], s%d, %s' % (S_NONCE, vr(vt + which[1])))
            k('s_or_b64 vcc, vcc, s[78:79]')
        k('s_cmp_eq_u64 vcc, 0')
    def poll(self, vt, vaddr, soff, n=1, first=None, waited=False, which=None):
        k = self.k
        if which is None: which = list(range(n))
        def spin():
            L = k.newlabel('L_poll'); D = k.newlabel('L_poll_ok')
            k('s_mov_b32 s%d, 0x%x' % (S_TMO, self.opt.get('tmo', 0x4000)))
            k('s_mov_b64 vcc, -1')
            k.label(L)
            k('s_mov_b64 exec, vcc')
            self.poll_issue(vt, vaddr, soff, None, n); k.vm.pop()
            k('s_mov_b64 exec, -1')
            k('s_waitcnt vmcnt(0)')
            self.poll_cmp(vt, which)
            self.spin_tail(L, D)
        if first is not None:
            if not waited: k.wait(vm=first)
            self.poll_cmp(vt, which)
            self.slow('scc0', spin)
        else: spin()
    def snonce(self, vt, vz, first=0):
        k = self.k
        if not first: k('s_load_dword s%d, s[%d:%d], 0' % (S_NONCE, P_DBG, P_DBG + 1))
        k('s_waitcnt lgkmcnt(0)')
        k('s_cmp_lg_u32 s%d, 0' % S_NONCE)
        def more():
            D = k.newlabel('L_sn_ok')
            for i in range(1, 4):
                k('s_load_dword s%d, s[%d:%d], %d' % (S_NONCE, P_DBG, P_DBG + 1, 64 * i))
                k('s_waitcnt lgkmcnt(0)')
                k('s_cmp_lg_u32 s%d, 0' % S_NONCE)
                k('s_cbranch_scc1 %s' % D)
            k('v_mov_b32 %s, 0' % vr(vt))
            self.nonce_get(vt, vz, waited=True)
            k.label(D)
        self.slow('scc0', more)
        k('s_mov_b32 s0, s%d' % S_NONCE)
        k('s_mov_b32 s1, s%d' % S_NONCE)
    def s_allok(self, base, n):
        k = self.k
        for i in range(0, n, 2):
            k('s_xor_b64 s[%d:%d], s[%d:%d], s[0:1]' % (base + i, base + i + 1, base + i, base + i + 1))
        for i in range(2, n, 2):
            k('s_or_b64 s[%d:%d], s[%d:%d], s[%d:%d]' % (base, base + 1, base, base + 1, base + i, base + i + 1))
    def spoll_loop(self, issue, base, n, s_off, s_end, rs, fallback, sleep=0):
        k = self.k
        L = k.newlabel('L_sp'); D = k.newlabel('L_sp_ok'); F = k.newlabel('L_sp_fb')
        k.label(L)
        k('s_cmp_ge_u32 s%d, s%d' % (s_off, s_end))
        k('s_cbranch_scc1 %s' % F)
        issue()
        k('s_add_u32 s%d, s%d, %d' % (s_off, s_off, rs))
        k('s_waitcnt lgkmcnt(0)')
        self.s_allok(base, n)
        k('s_cbranch_scc0 %s' % D)
        if sleep: k('s_sleep %d' % sleep)
        k('s_branch %s' % L)
        k.label(F)
        fallback()
        k.label(D)
    def flag_store_rep(self, vt, vz, soff, rs, tag=None, nrep=None):
        k = self.k
        k('v_mov_b32 %s, s%d' % (vr(vt), S_NONCE))
        k('v_mul_u32_u24 %s, %d, v0' % (vr(vz), rs))
        k('s_mov_b64 exec, %d' % ((1 << (nrep or NREP)) - 1))
        k('buffer_store_dword %s, %s, s[%d:%d], %s offen sc1' % (vr(vt), vr(vz), R_WS, R_WS + 3, soff), tag=tag)
        k('s_mov_b64 exec, -1')
    def flag_store(self, vt, vz, soff, tag=None):
        k = self.k
        k('v_mov_b32 %s, s%d' % (vr(vt), S_NONCE))
        k('v_mov_b32 %s, 0' % vr(vz))
        k('s_mov_b64 exec, 1')
        k('buffer_store_dword %s, %s, s[%d:%d], %s offen sc1' % (vr(vt), vr(vz), R_WS, R_WS + 3, soff), tag=tag)
        k('s_mov_b64 exec, -1')

    def prologue(self):
        k = self.k
        k('s_load_dwordx16 s[16:31], s[0:1], 0')
        k('s_load_dwordx16 s[32:47], s[0:1], 64')
        k('s_memrealtime s[10:11]')
        if self.opt.get('cyc'): k('s_memtime s[100:101]')
        k('v_lshrrev_b32 v1, 6, v0')
        k('v_and_b32 v0, 63, v0')
        k('v_readfirstlane_b32 s%d, v1' % S_WAVE)
        k('s_cmp_ge_u32 s2, 512')
        k('s_cbranch_scc1 L_end')
        k('s_and_b32 s%d, s2, 255' % S_M)
        k('s_bfe_u32 s66, s2, 0x20001')
        k('s_bfe_u32 s67, s2, 0x30003')
        k('s_lshl3_add_u32 s%d, s66, s67' % S_RHO)
        k('s_and_b32 s66, s2, 1')
        k('s_bfe_u32 s67, s2, 0x20006')
        k('s_lshl2_add_u32 s%d, s66, s67' % S_J)
        self.srd_tail(R_WS, WS_SZ)
        self.srd_tail(R_U, 2048 * 640 * 2)
        if self.opt.get('ipf'):
            k('s_cmp_lg_u32 s%d, 0' % S_WAVE)
            k('s_cbranch_scc1 L_noipf')
            k('s_getpc_b64 s[64:65]')
            k('s_lshr_b32 s66, s2, 3')
            k('s_mul_i32 s66, s66, %d' % (self.opt['ipf'] * 128))
            k('v_lshlrev_b32 v1, 7, v0')
            k('v_add_u32 v1, s66, v1')
            k('s_mov_b64 exec, %d' % ((1 << self.opt['ipf']) - 1))
            k('global_load_dword v255, v1, s[64:65]')
            k('s_mov_b64 exec, -1')
            k.label('L_noipf')
        k('s_cmp_ge_u32 s2, 256')
        k('s_cbranch_scc1 L_gemm')
        if self.opt.get('nossm'):
            k('s_cmp_eq_u32 s2, 128'); k('s_cbranch_scc1 L_idle'); k('s_endpgm')
        k('s_cmp_eq_u32 s%d, 3' % S_WAVE)
        k('s_cbranch_scc1 L_misc')
        if self.opt.get('hord'): k('s_branch L_chanh')

    def mtiles(self):
        return {0: [], 6: [0, 1, 2], 7: [0, 1, 3], 8: [0, 2, 3], 9: [1, 2, 3], 10: [0, 1, 2, 3]}[self.opt.get('mt', 8)]
    def conv_reads(self, sg, fb, va, vb, off=0, n=8):
        out = []
        for c in range(n):
            out.append('ds_read_b128 %s, v%d offset:%d' % (vr(fb + 4 * c, 4), va, off + 4032 - 512 * c - 64 * sg))
            out.append('ds_read_b64 %s, v%d offset:%d' % (vr(fb + 4 * n + 4 * c, 2), vb, off + 448 - 64 * sg + 512 * c))
            out.append('ds_read_b64 %s, v%d offset:%d' % (vr(fb + 4 * n + 2 + 4 * c, 2), vb, off + 448 - 64 * sg + 512 * c + 8))
        return out
    def conv_step(self, Y, fb, first, nx, tiles, n=8, per=1):
        k = self.k
        nx = list(nx)
        for c in range(8):
            for m in range(8 - c):
                if c + m not in tiles: continue
                cc = '0' if (first and c == 0) else vr(Y + 4 * (c + m), 4)
                k('v_mfma_f32_16x16x32_bf16 %s, %s, %s, %s' % (vr(Y + 4 * (c + m), 4), vr(fb + 4 * c, 4), vr(fb + 4 * n + 4 * m, 4), cc))
                emit_list(k, nx[:per]); nx = nx[per:]
        emit_list(k, nx)
    def tile_out(self, Y, tiles, tmp, vaddr, soff):
        o = []
        for i in tiles:
            o += ['v_cvt_pk_bf16_f32 v%d, v%d, v%d' % (tmp + 2 * i + rr, Y + 4 * i + 2 * rr, Y + 4 * i + 2 * rr + 1) for rr in range(2)]
            o.append('buffer_store_dwordx2 %s, v%d, s[%d:%d], %s offen offset:%d sc1' % (vr(tmp + 2 * i, 2), vaddr, R_WS, R_WS + 3, soff, 512 * i))
        return o
    def misc(self):
        k = self.k
        k.reset_counts()
        LT = 3 * CBS; LW = LT + 10240
        self.mark('misc_head')
        k.label('L_misc')
        self.ets(1)
        for i in range(5):
            k('v_add_u32 v1, %d, v0' % (64 * i))
            k('v_mul_u32_u24 v2, 205, v1')
            k('v_lshrrev_b32 v2, 11, v2')
            k('v_mul_u32_u24 v3, %d, v2' % (1280 - 160))
            k('v_lshl_add_u32 v%d, v1, 4, v3' % (10 + i))
        k('s_mul_i32 s64, s%d, %d' % (S_RHO, 64 * 1280))
        k('s_mul_i32 s65, s%d, 160' % S_J)
        k('s_add_u32 s64, s64, s65')
        k('s_add_u32 s65, s64, %d' % (32 * 1280))
        k('s_waitcnt lgkmcnt(0)')
        self.srd_base(R_U, P_U)
        for i in range(10):
            k('s_mov_b32 m0, %d' % (LT + 1024 * i))
            k('buffer_load_dwordx4 v%d, s[%d:%d], s%d offen lds' % (10 + i % 5, R_U, R_U + 3, 64 + i // 5), tag='T')
        self.ets(3)
        self.cut('misc_main')
        self.ts_init()
        k('s_setprio %d' % self.opt.get('mprio', 3))
        self.srd_base(R_WS, P_WS)
        self.srd_base(R_W, P_W2)
        self.srd_tail(R_W, 1536 * 640 * 2)
        k('s_min_u32 s66, s%d, 239' % S_M)
        k('s_mul_i32 s67, s66, 205')
        k('s_lshr_b32 s67, s67, 10')
        k('s_mul_i32 s68, s67, 5')
        k('s_sub_u32 s68, s66, s68')
        k('s_mul_i32 s69, s67, %d' % (32 * 1280))
        k('s_lshl_b32 s70, s68, 8')
        k('s_add_u32 s69, s69, s70')
        k('v_lshrrev_b32 v1, 4, v0')
        k('v_and_b32 v2, 15, v0')
        k('v_mul_u32_u24 v1, 1280, v1')
        k('v_lshl_add_u32 v15, v2, 4, v1')
        def wdma():
            for i in range(8):
                k('s_mov_b32 m0, %d' % (LW + 1024 * i))
                k('buffer_load_dwordx4 v15, s[%d:%d], s69 offen lds' % (R_W, R_W + 3), tag='W')
                k('s_add_u32 s69, s69, %d' % (4 * 1280))
        WPOS = self.opt.get('wpos', 0)
        if WPOS == 0: wdma()
        k('v_lshrrev_b32 v1, 4, v0')
        k('v_bfe_u32 v2, v0, 2, 2')
        k('v_and_b32 v3, 3, v0')
        k('v_lshl_add_u32 v4, v1, 3, v2')
        k('v_mul_u32_u24 v4, 160, v4')
        k('v_lshl_add_u32 v4, v3, 3, v4')
        k('v_add_u32 v18, %d, v4' % LT)
        k('v_and_b32 v5, 15, v0')
        k('v_lshlrev_b32 v5, 12, v5')
        k('v_lshl_add_u32 v19, v1, 4, v5')
        k('v_lshrrev_b32 v5, 1, v1')
        k('v_and_b32 v6, 1, v1')
        k('v_lshlrev_b32 v5, 4, v5')
        k('v_lshl_add_u32 v5, v6, 2, v5')
        k('v_add_u32 v5, v5, v2')
        k('v_lshlrev_b32 v5, 8, v5')
        k('v_lshl_add_u32 v5, v3, 3, v5')
        k('v_add_u32 v20, %d, v5' % LW)
        k('v_lshlrev_b32 v21, 4, v0')
        k('s_mul_i32 s72, s%d, %d' % (S_J, 80 * 4096))
        k('s_lshl_b32 s73, s%d, 7' % S_RHO)
        k('s_add_u32 s72, s72, s73')
        k('s_lshr_b32 s73, s%d, 3' % S_RHO)
        k('s_lshl2_add_u32 s73, s%d, s73' % S_J)
        k('s_lshl_b32 s73, s73, 5')
        k('s_and_b32 s74, s%d, 7' % S_RHO)
        k('s_add_u32 s73, s73, s74')
        k('s_lshl_b32 s73, s73, 2')
        k('s_add_u32 s77, s73, 0x%x' % WS_FU)
        if self.opt.get('ftouch'):
            k('v_mul_u32_u24 v9, %d, v0' % FU_RS)
            k('s_mov_b64 exec, %d' % ((1 << NREP) - 1))
            k('buffer_load_dword v8, v9, s[%d:%d], s77 offen' % (R_WS, R_WS + 3))
            k('s_mov_b64 exec, -1')
        k.wait(vm='T')
        self.ts(1)
        if self.opt.get('mstop') == 1: k('s_endpgm')
        for dl in range(5):
            for z in range(2):
                b = 24 + 8 * dl + 4 * z
                for e in range(2):
                    k('ds_read_b64_tr_b16 %s, v18 offset:%d' % (vr(b + 2 * e, 2), (32 * z + 4 * e) * 160 + 32 * dl), tag='t%d' % dl)
        for dl in range(5):
            k.wait(lg='t%d' % dl)
            for z in range(2):
                k('buffer_store_dwordx4 %s, v19, s[%d:%d], s72 offen offset:%d sc1' % (vr(24 + 8 * dl + 4 * z, 4), R_WS, R_WS + 3, 64 * z), tag='Tst')
            k('s_add_u32 s72, s72, %d' % (16 * 4096))
        if WPOS == 1: wdma()
        self.snonce(8, 9)
        def uflag():
            k.wait(vm='Tst')
            self.flag_store_rep(8, 9, 's77', FU_RS)
            self.ts(2)
        uflag()
        if self.opt.get('mstop') == 2: k('s_endpgm')
        if WPOS == 2: wdma()
        k('s_waitcnt vmcnt(0)')
        for fr in range(8):
            for e in range(2):
                k('ds_read_b64_tr_b16 %s, v20 offset:%d' % (vr(64 + 4 * fr + 2 * e, 2), 8 * e * 256 + 32 * fr), tag='w%d' % fr)
        k('s_mul_i32 s74, s67, 43')
        k('s_lshr_b32 s74, s74, 8')
        k('s_mul_i32 s75, s74, 6')
        k('s_sub_u32 s75, s67, s75')
        k('s_lshr_b32 s76, s75, 1')
        k('s_mul_i32 s76, s76, 14')
        k('s_add_u32 s76, s76, s75')
        k('s_lshl1_add_u32 s76, s74, s76')
        k('s_xor_b32 s72, s76, 8')
        k('s_mul_i32 s72, s72, 5')
        k('s_mul_i32 s76, s76, 5')
        for fr in range(8):
            k('s_lshl_b32 s73, s68, 3')
            k('s_add_u32 s73, s73, %d' % fr)
            k('s_mul_i32 s74, s73, 205')
            k('s_lshr_b32 s74, s74, 10')
            k('s_mul_i32 s75, s74, 235')
            k('s_add_u32 s75, s75, s73')
            k('s_cmp_ge_u32 s74, 4')
            k('s_cselect_b32 s74, s72, s76')
            k('s_add_u32 s75, s75, s74')
            k('s_lshl_b32 s75, s75, 10')
            k('s_add_u32 s75, s75, 0x%x' % WS_W2P)
            k.wait(lg='w%d' % fr)
            k('buffer_store_dwordx4 %s, v21, s[%d:%d], s75 offen sc1' % (vr(64 + 4 * fr, 4), R_WS, R_WS + 3), tag='Wst')
        k('s_lshl_b32 s73, s68, 6')
        k('s_add_u32 s73, s73, s67')
        k('s_lshl_b32 s73, s73, 2')
        k('s_add_u32 s73, s73, 0x%x' % WS_FW)
        k('s_mul_i32 s60, s%d, 3' % S_M)
        k('s_lshl_b32 s61, s%d, 1' % S_M)
        k('s_add_u32 s61, s61, 128')
        k('s_cmp_lt_u32 s%d, 128' % S_M)
        k('s_cselect_b32 s60, s60, s61')
        k('s_cselect_b32 s61, 3, 2')
        k('v_lshrrev_b32 v1, 4, v0')
        k('v_min_u32 v1, 2, v1')
        k('v_mul_u32_u24 v22, %d, v1' % CBS)
        k('v_and_b32 v2, 15, v0')
        k('v_lshl_add_u32 v1, v2, 2, v22')
        k('v_mov_b32 v2, 0')
        k('ds_write_b32 v1, v2 offset:%d' % UX)
        k('ds_write_b32 v1, v2 offset:%d' % UY)
        k('v_bfe_u32 v1, v0, 3, 2')
        k('v_and_b32 v23, 7, v0')
        k('v_lshlrev_b32 v23, 2, v23')
        k('v_lshl_add_u32 v23, v1, 7, v23')
        emit_list(k, ['v_and_b32 v6, 1, v0', 'v_cmp_eq_u32 vcc, 1, v6', 'v_and_b32 v6, 15, v0', 'v_lshrrev_b32 v7, 4, v0', 'v_lshlrev_b32 v7, 4, v7',
               'v_lshrrev_b32 v5, 1, v6', 'v_lshlrev_b32 v5, 6, v5', 'v_sub_u32 v5, v7, v5',
               'v_mov_b32 v2, %d' % (448 + KO), 'v_mov_b32 v3, 448', 'v_cndmask_b32 v2, v2, v3, vcc', 'v_add_u32 v2, v5, v2',
               'v_lshl_add_u32 v5, v6, 2, v7', 'v_mov_b32 v3, %d' % UY, 'v_mov_b32 v4, %d' % (UX + 4),
               'v_cndmask_b32 v3, v3, v4, vcc', 'v_add_u32 v3, v5, v3', 'v_lshlrev_b32 v4, 3, v0'])
        def u_issue():
            for i in range(4):
                k('s_load_dwordx8 s[%d:%d], s[%d:%d], s62 offset:%d' % (16 + 8 * i, 23 + 8 * i, R_WS, R_WS + 1, 128 * i))
        k('s_mul_i32 s64, s60, 205')
        k('s_lshr_b32 s64, s64, 14')
        k('s_add_u32 s65, s60, s61')
        k('s_sub_u32 s65, s65, 1')
        k('s_mul_i32 s65, s65, 205')
        k('s_lshr_b32 s65, s65, 14')
        if self.opt.get('wflag1'):
            k.wait(vm='Wst')
            self.flag_store(8, 9, 's73')
            if self.opt['wflag1'] == 2: k('s_waitcnt vmcnt(0)')
        k.label('L_ugrp')
        k('s_lshl_b32 s9, s64, 9')
        k('s_add_u32 s9, s9, 0x%x' % WS_FU)
        k('s_mov_b32 s62, s9')
        k('s_add_u32 s63, s9, %d' % (NREP * FU_RS))
        self.spoll_loop(u_issue, 16, 32, 62, 63, FU_RS, lambda: self.poll(24, 23, 's9'), sleep=self.opt.get('ssleep', 2))
        k('s_add_u32 s64, s64, 1')
        k('s_cmp_le_u32 s64, s65')
        k('s_cbranch_scc1 L_ugrp')
        self.ts(5)
        k.wait(vm='Wst')
        k('s_lshl_b32 s64, s60, 12')
        for c in range(3):
            if c == 2:
                k('s_cmp_lt_u32 s61, 3')
                k('s_cbranch_scc1 L_u2')
            k('s_add_u32 s65, s64, 4')
            k('s_mov_b32 m0, %d' % (c * CBS + UX + 64))
            for i in range(4):
                k('buffer_load_dwordx4 v21, s[%d:%d], s64 offen offset:%d sc1 lds' % (R_WS, R_WS + 3, 1024 * i))
            k('s_mov_b32 m0, %d' % (c * CBS + UY + 64))
            for i in range(4):
                k('buffer_load_dwordx4 v21, s[%d:%d], s65 offen offset:%d sc1 lds' % (R_WS, R_WS + 3, 1024 * i))
            k('s_add_u32 s64, s64, 4096')
        k.label('L_u2')
        if not self.opt.get('wflag1'): self.flag_store(8, 9, 's73')
        self.ts(7)
        k('s_waitcnt vmcnt(%d)' % (0 if self.opt.get('wflag1') else 1))
        k('ds_read_b32 v1, v22 offset:%d' % (UX + 64))
        k('s_waitcnt lgkmcnt(0)')
        k('ds_write_b32 v22, v1 offset:%d' % (UY + 60))
        k('s_waitcnt lgkmcnt(0)')
        self.ts(6)
        k('s_barrier')
        if self.opt.get('mstop') == 3: k('s_endpgm')
        MT = self.mtiles()
        k('s_setprio %d' % self.opt.get('mvprio', 0))
        k('s_lshl_b32 s64, s60, 12')
        k('s_add_u32 s64, s64, 0x%x' % WS_AT)
        if MT:
            FBm = [96, 128, 160]
            steps = [(c, sg) for c in range(3) for sg in range(8)]
            tagged = lambda i: [(l, 'cs%d' % i) for l in self.conv_reads(steps[i][1], FBm[i % 3], 2, 3, CBS * steps[i][0], 4)]
            emit_list(k, tagged(0) + tagged(1))
            wq = []
            for i, (c, sg) in enumerate(steps):
                Ym = 32 + 16 * (c % 2)
                if c == 2 and sg == 0:
                    k('s_cmp_lt_u32 s61, 3')
                    k('s_cbranch_scc1 L_m2')
                k.wait(lg='cs%d' % i)
                nx = tagged(i + 2) if i + 2 < len(steps) else []
                if sg == 1: nx = nx + wq; wq = []
                self.conv_step(Ym, FBm[i % 3], sg == 0, nx, MT, 4, 2)
                if sg == 7:
                    wq = self.tile_out(Ym, MT, 64 + 8 * c, 4, 's64') + ['s_add_u32 s64, s64, 4096']
                    if c == 1: w1 = list(wq)
            k('s_setprio 3')
            emit_list(k, wq)
            k('s_branch L_m3')
            k.label('L_m2')
            k.pad(8)
            emit_list(k, w1)
            k.label('L_m3')
        self.ts(3)
        k('v_and_b32 v8, 3, v0')
        k('v_cmp_gt_u32 vcc, s61, v8')
        k('v_add_u32 v8, s60, v8')
        k('v_lshrrev_b32 v9, 3, v8')
        k('v_and_b32 v8, 7, v8')
        k('v_lshlrev_b32 v8, 2, v8')
        k('v_lshl_add_u32 v8, v9, 7, v8')
        k('v_lshrrev_b32 v9, 2, v0')
        k('v_mul_u32_u24 v9, %d, v9' % FA_RS)
        k('v_add_u32 v8, v8, v9')
        k('v_mov_b32 v9, s%d' % S_NONCE)
        k('s_and_b32 s66, vcc_lo, 0x%x' % ((1 << (4 * NREP)) - 1))
        k('s_mov_b32 s67, 0')
        k('s_mov_b32 s65, 0x%x' % WS_FA)
        k('s_waitcnt vmcnt(0) lgkmcnt(0)')
        k('s_barrier')
        k('s_mov_b64 exec, s[66:67]')
        k('buffer_store_dword v9, v8, s[%d:%d], s65 offen sc1' % (R_WS, R_WS + 3))
        k('s_mov_b64 exec, -1')
        self.ts(4)
        self.ts_store()
        k('s_endpgm')
        self.mark('idle')
        k.label('L_idle')
        k('s_cmp_lg_u32 s2, 128')
        k('s_cbranch_scc1 L_end')
        k('s_cmp_lg_u32 s%d, 2' % S_WAVE)
        k('s_cbranch_scc1 L_end')
        k('v_lshlrev_b32 v2, 6, v0')
        k('s_waitcnt lgkmcnt(0)')
        k('s_or_b32 s10, s10, 1')
        k('v_mov_b32 v1, s10')
        k('s_mov_b64 exec, 15')
        k('global_store_dword v2, v1, s[%d:%d] sc1' % (P_DBG, P_DBG + 1))
        if self.opt.get('latprobe'):
            ptr = {1: P_BX, 2: P_WS, 3: P_BX}[self.opt['latprobe']]
            k.label('L_lp0')
            k('s_memrealtime s[64:65]')
            k('s_waitcnt lgkmcnt(0)')
            k('s_sub_u32 s64, s64, s10')
            k('s_cmp_lt_u32 s64, 3500')
            k('s_cbranch_scc1 L_lp0')
            k('v_mov_b32 v2, 0x%x' % (0x100000 if ptr == P_BX else 0x8000000))
            k('s_memtime s[70:71]')
            k('global_load_dword v3, v2, s[%d:%d]' % (ptr, ptr + 1))
            k('s_waitcnt vmcnt(0)')
            k('s_memtime s[66:67]')
            k('s_waitcnt lgkmcnt(0)')
            for i in range(4):
                k('v_add_u32 v2, 0x3480, v2')
                k('global_load_dword v3, v2, s[%d:%d]' % (ptr, ptr + 1))
                k('s_waitcnt vmcnt(0)')
            k('s_memtime s[68:69]')
            k('s_waitcnt lgkmcnt(0)')
            if self.opt['latprobe'] == 3:
                k('s_sub_u32 s68, s66, s70')
            else:
                k('s_sub_u32 s68, s68, s66')
                k('s_lshr_b32 s68, s68, 2')
            k('v_mov_b32 v1, s68')
            k('v_mov_b32 v2, 0')
            k('global_store_dword v2, v1, s[%d:%d] offset:16' % (P_DBG, P_DBG + 1))
            k('s_add_u32 s68, s68, 4000')
            k.label('L_lp1')
            k('s_memrealtime s[64:65]')
            k('s_waitcnt lgkmcnt(0)')
            k('s_sub_u32 s64, s64, s10')
            k('s_cmp_lt_u32 s64, s68')
            k('s_cbranch_scc1 L_lp1')
        k('s_endpgm')

    def cmul(self, d, a, b):
        if self.opt.get('nopk'):
            return ['v_mul_f32 v%d, v%d, v%d' % (d, a, b),
                    'v_mul_f32 v%d, v%d, v%d' % (d + 1, a, b + 1),
                    'v_fma_f32 v%d, -v%d, v%d, v%d' % (d, a + 1, b + 1, d),
                    'v_fmac_f32 v%d, v%d, v%d' % (d + 1, a + 1, b)]
        return ['v_pk_mul_f32 %s, %s, %s op_sel:[0,0] op_sel_hi:[0,1]' % (vr(d, 2), vr(a, 2), vr(b, 2)),
                'v_pk_fma_f32 %s, %s, %s, %s op_sel:[1,1,0] op_sel_hi:[1,0,1] neg_lo:[1,0,0]' % (vr(d, 2), vr(a, 2), vr(b, 2), vr(d, 2))]
    def chan(self):
        k = self.k; opt = self.opt
        k.reset_counts()
        self.mark('chan_head')
        k.label('L_chanh')
        self.ets(1)
        S_D, S_CB, S_DSK = 12, 13, 14
        k('s_mul_i32 s64, s%d, 3' % S_M)
        k('s_lshl_b32 s65, s%d, 1' % S_M)
        k('s_add_u32 s65, s65, 128')
        k('s_cmp_lt_u32 s%d, 128' % S_M)
        k('s_cselect_b32 s64, s64, s65')
        k('s_cselect_b32 s65, 3, 2')
        k('s_cmp_ge_u32 s%d, s65' % S_WAVE)
        k('s_cbranch_scc1 L_idle')
        if opt.get('nochan'): k('s_endpgm')
        k('s_add_u32 s%d, s64, s%d' % (S_D, S_WAVE))
        k('s_mul_i32 s%d, s%d, %d' % (S_CB, S_WAVE, CBS))
        PR = 232
        for i in range(6): k('v_mov_b32 v%d, 0' % (PR + 3 * i + 2))
        k('s_mul_i32 s64, s%d, 384' % S_D)
        k('v_lshlrev_b32 v1, 1, v0')
        k('v_add_u32 v1, s64, v1')
        k('v_lshl_add_u32 v2, v0, 2, s64')
        k('s_lshr_b32 s64, s%d, 1' % S_D)
        k('s_lshl_b32 s64, s64, 2')
        k('s_waitcnt lgkmcnt(0)')
        self.ets(3)
        for ai, p in enumerate((P_ARE, P_AIM, P_BRE, P_BIM, P_CRE, P_CIM)):
            k('global_load_dword v%d, v2, s[%d:%d]' % (PR + 3 * ai + 1, p, p + 1), tag='par0')
        k('s_load_dword s65, s[%d:%d], s64' % (P_LDT, P_LDT + 1))
        k('s_load_dword s66, s[%d:%d], s64' % (P_DSK, P_DSK + 1))
        for ai, p in enumerate((P_ARE, P_AIM, P_BRE, P_BIM, P_CRE, P_CIM)):
            k('global_load_short_d16_hi v%d, v1, s[%d:%d] offset:256' % (PR + 3 * ai + 2, p, p + 1), tag='par2')
        if opt.get('gtouch'):
            k('v_min_u32 v3, 9, v0')
            k('v_lshlrev_b32 v3, 7, v3')
            k('global_load_dword v3, v3, s[%d:%d]' % (P_GW, P_GW + 1), tag='par2')
        self.cut('chan_main')
        self.ets(4)
        self.ts_init()
        self.srd_base(R_WS, P_WS)
        if opt.get('cprio'): k('s_setprio %d' % opt['cprio'])
        V_DT = 4
        ACC, QF, DT_, VV, GG, ID = 16, 32, 64, 128, 192, 208
        k('v_and_b32 v6, 31, v0')
        k('v_lshrrev_b32 v7, 5, v0')
        k('v_lshlrev_b32 v7, 3, v7')
        k('v_sub_u32 v6, v6, v7')
        k('v_and_b32 v7, 1, v0')
        k('v_lshlrev_b32 v7, 4, v7')
        k('v_mov_b32 v8, 0x3f80')
        k('v_lshlrev_b32 v7, v7, v8')
        k('v_lshrrev_b32 v6, 1, v6')
        for d in range(8):
            k('v_cmp_eq_u32 vcc, %d, v6' % (d if d < 4 else d + 4))
            k('v_cndmask_b32 v%d, 0, v7, vcc' % (ID + d))
        for i in range(16): k('v_mov_b32 v%d, 0' % (ACC + i))
        k('s_and_b32 s64, s%d, 1' % S_D)
        k('s_lshl_b32 s64, s64, 4')
        k('s_waitcnt lgkmcnt(0)')
        k('s_lshr_b32 s65, s65, s64')
        k('s_lshl_b32 s65, s65, 16')
        k('s_lshr_b32 s66, s66, s64')
        k('s_lshl_b32 s%d, s66, 16' % S_DSK)
        k('v_mov_b32 v6, s65')
        k('v_mul_f32 v6, %s, v6' % fhex(LOG2E))
        k('v_exp_f32 v6, v6')
        k('v_cvt_pk_bf16_f32 v6, v6, v6')
        k('v_lshlrev_b32 v%d, 16, v6' % V_DT)
        X_, E1, E2, E4, E8, E256, E16, C_ = 216, 218, 220, 222, 224, 226, 228, 230
        T0 = GG
        order = [0, 1, 2, 3, 4, 5, 6, 7, 4, 256, 258, 260, 8, 260, 262, 264, 512, 516, 520, 1024, 768, 772, 776, 1536, 1032, 1280, 1288, 1288, 1544, 1792, 1800, 1800]
        pv = {}
        for i, o in enumerate(order): pv.setdefault(o, VV + 2 * i)
        pv[0] = C_
        Dt = lambda t: DT_ + 16 * t
        def kmfma(s):
            return 'v_mfma_f32_32x32x16_bf16 %s, %s, %s, %s' % (vr(ACC, 16), vr(Dt(s >> 1) + 4 * (s & 1), 4), vr(QF + 4 * s, 4), vr(ACC, 16))
        S_PS = 73
        def setup(ps):
            if ps != 1: k.wait(vm='par%d' % ps)
            if ps == 0:
                for a_ in range(6):
                    k('v_lshlrev_b32 v%d, 16, v%d' % (PR + 3 * a_, PR + 3 * a_ + 1))
                    k('v_and_b32 v%d, 0xffff0000, v%d' % (PR + 3 * a_ + 1, PR + 3 * a_ + 1))
            ar, ai, br, bi, cr, ci = [PR + 3 * a + ps for a in range(6)]
            self.pr(200 + ps, 0)
            su = []
            su.append('v_mul_f32 v%d, v%d, v%d' % (X_, V_DT, ar))
            su.append('v_mul_f32 v%d, v%d, v%d' % (X_ + 1, V_DT, ai))
            su.append('v_mul_f32 v%d, %s, v%d' % (X_, fhex(LOG2E), X_))
            su.append('v_mul_f32 v%d, %s, v%d' % (X_ + 1, fhex(INV2PI), X_ + 1))
            su.append('v_rndne_f32 v%d, v%d' % (T0 + 2, X_ + 1))
            su.append('v_mul_f32 v%d, v%d, v%d' % (T0, V_DT, br))
            su.append('v_mul_f32 v%d, v%d, v%d' % (T0 + 1, V_DT, bi))
            su.append('v_sub_f32 v%d, v%d, v%d' % (X_ + 1, X_ + 1, T0 + 2))
            su.append('v_mul_f32 v%d, v%d, v%d' % (C_, cr, T0))
            su.append('v_mul_f32 v%d, v%d, v%d' % (C_ + 1, cr, T0 + 1))
            su.append('v_fma_f32 v%d, -v%d, v%d, v%d' % (C_, ci, T0 + 1, C_))
            su.append('v_fmac_f32 v%d, v%d, v%d' % (C_ + 1, ci, T0))
            for idx, (dst, p) in enumerate(((E8, 8.0), (E1, 1.0), (E256, 256.0))):
                t = T0 + 4 + 4 * idx
                if p == 1.0: m, th = X_, X_ + 1
                else:
                    su.append('v_mul_f32 v%d, %s, v%d' % (t, fhex(p), X_))
                    su.append('v_mul_f32 v%d, %s, v%d' % (t + 1, fhex(p), X_ + 1))
                    m, th = t, t + 1
                su.append('v_exp_f32 v%d, v%d' % (t + 2, m))
                su.append('v_cos_f32 v%d, v%d' % (dst, th))
                su.append('v_sin_f32 v%d, v%d' % (dst + 1, th))
            for idx, dst in enumerate((E8, E1, E256)):
                t = T0 + 4 + 4 * idx
                su.append('v_mul_f32 v%d, v%d, v%d' % (dst, dst, t + 2))
                su.append('v_mul_f32 v%d, v%d, v%d' % (dst + 1, dst + 1, t + 2))
            if ps > 0:
                for i, l in enumerate(su):
                    if i % 6 == 0 and i // 6 < 4: k(kmfma(4 + i // 6))
                    k(l)
            else:
                emit_list(k, su)
        setup(0)
        self.ts(1)
        k('s_mov_b32 s%d, 0' % S_PS)
        k.raw('.p2align 3')
        k.label('L_kbody')
        ps = 1
        def weave(ms, fill):
            per = -(-len(fill) // len(ms))
            for m in ms:
                k(m)
                emit_list(k, fill[:per]); fill = fill[per:]
        def cvts(src, part, neg):
            out = []
            for g in range(4):
                for d in range(4):
                    dst = GG + 4 * g + d if part == 0 else VV + 16 * g + d
                    ops = []
                    for o in src[8 * g + 2 * d: 8 * g + 2 * d + 2]:
                        if o is None: ops.append('1.0' if part == 0 else '0')
                        else: ops.append('%sv%d' % ('-' if neg else '', o + part))
                    out.append('v_cvt_pk_bf16_f32 v%d, %s, %s' % (dst, ops[0], ops[1]))
            return out
        grp = lambda part, g: GG + 4 * g if part == 0 else VV + 16 * g
        def swaps(part):
            return ['v_permlane32_swap_b32 v%d, v%d' % (grp(part, g) + d, grp(part, g + 1) + d) for g in (0, 2) for d in range(4)]
        def tm(part):
            t = 2 * part
            f = lambda tl, g, c: 'v_mfma_f32_32x32x16_bf16 %s, %s, %s, %s' % (vr(Dt(tl), 16), vr(grp(part, g), 4), vr(ID + 4 * (g >> 1), 4), c)
            return [f(t, 0, '0'), f(t, 2, vr(Dt(t), 16)), f(t + 1, 1, '0'), f(t + 1, 3, vr(Dt(t + 1), 16))]
        def back(t, dst):
            return ['v_cvt_pk_bf16_f32 v%d, v%d, v%d' % (dst + d, Dt(t) + 2 * d, Dt(t) + 2 * d + 1) for d in range(8)]
        self.pr(200 + ps, 1)
        qs = [None, E8, E16] + [VV + 2 * b_ for b_ in range(3, 32)]
        emit_list(k, self.cmul(E16, E8, E8))
        for b_ in range(3, 32): emit_list(k, self.cmul(qs[b_], qs[b_ - 2], E16))
        self.pr(200 + ps, 2)
        emit_list(k, cvts(qs, 0, False) + swaps(0))
        weave(tm(0), cvts(qs, 1, True) + swaps(1))
        weave(tm(1), back(0, QF) + back(1, QF + 8))
        self.pr(200 + ps, 3)
        cm = lambda o, a_, e: emit_list(k, self.cmul(pv[o], pv[a_], e))
        emit_list(k, self.cmul(E2, E1, E1))
        emit_list(k, self.cmul(E4, E2, E2))
        for o in range(1, 9): cm(o, o - 1, E1)
        for o in (256, 512, 768, 1024, 1280, 1536, 1792): cm(o, o - 256, E256)
        for o in (258, 260, 262, 264): cm(o, o - 2, E2)
        cm(516, 512, E4); cm(520, 512, E8); cm(772, 768, E4); cm(776, 768, E8)
        for o in (1032, 1288, 1544, 1800): cm(o, o - 8, E8)
        self.pr(200 + ps, 4)
        psrc = [pv[o] for o in order]
        emit_list(k, cvts(psrc, 0, False) + swaps(0))
        weave(tm(0), back(2, QF + 16) + back(3, QF + 24) + cvts(psrc, 1, False) + swaps(1))
        self.pr(200 + ps, 5)
        weave(tm(1), back(0, Dt(0)) + back(1, Dt(1)))
        weave([kmfma(s_) for s_ in range(4)], back(2, Dt(2)) + back(3, Dt(3)))
        self.pr(200 + ps, 7)
        k('s_add_u32 s%d, s%d, 1' % (S_PS, S_PS))
        k('s_cmp_eq_u32 s%d, 3' % S_PS)
        k('s_cbranch_scc1 L_kexit')
        k('s_cmp_eq_u32 s%d, 2' % S_PS)
        k('s_cbranch_scc1 L_ks2')
        lg_save = list(k.lg)
        setup(1)
        k('s_branch L_kbody')
        k.label('L_ks2')
        k.lg = list(lg_save)
        setup(2)
        k('s_branch L_kbody')
        k.label('L_kexit')
        if opt.get('xprio'): k('s_setprio %d' % opt['xprio'])
        k.lg = list(lg_save)
        ex = []
        ex += ['v_and_b32 v6, 31, v0', 'v_lshrrev_b32 v7, 5, v0', 'v_lshlrev_b32 v8, 4, v6', 'v_sub_u32 v8, s%d, v8' % S_CB,
               'v_lshlrev_b32 v9, 3, v7', 'v_sub_u32 v9, v8, v9', 'v_add_u32 v9, 504, v9',
               'v_lshlrev_b32 v10, 9, v7', 'v_sub_u32 v10, v8, v10', 'v_add_u32 v10, 1008, v10',
               'v_lshlrev_b32 v11, 10, v7', 'v_sub_u32 v11, v8, v11', 'v_add_u32 v11, 1520, v11',
               'v_add_u32 v12, %d, v9' % (KO + 4084 - 504), 'v_add_u32 v13, %d, v9' % (KO + 4084 - 512 - 504),
               'v_and_b32 v6, 1, v0', 'v_cmp_eq_u32 vcc, 1, v6',
               'v_min_u32 v14, 27, v0', 'v_lshlrev_b32 v14, 4, v14', 'v_add_u32 v14, s%d, v14' % S_CB]
        ex += ['v_mov_b32 v%d, 0' % (96 + i) for i in range(4)]
        V_A, V_B = 2, 3
        ex += ['v_and_b32 v6, 15, v0', 'v_lshrrev_b32 v7, 4, v0', 'v_lshlrev_b32 v7, 4, v7', 'v_add_u32 v7, s%d, v7' % S_CB,
               'v_lshrrev_b32 v8, 1, v6', 'v_lshlrev_b32 v8, 6, v8', 'v_sub_u32 v8, v7, v8',
               'v_mov_b32 v102, %d' % (448 + KO), 'v_mov_b32 v103, 448', 'v_cndmask_b32 v102, v102, v103, vcc', 'v_add_u32 v%d, v8, v102' % V_A,
               'v_lshl_add_u32 v8, v6, 2, v7', 'v_mov_b32 v102, %d' % UY, 'v_mov_b32 v103, %d' % (UX + 4),
               'v_cndmask_b32 v102, v102, v103, vcc', 'v_add_u32 v%d, v8, v102' % V_B, 'v_mov_b32 v15, s%d' % S_CB]
        ex = [l.replace('v102', 'v202').replace('v103', 'v203') for l in ex]
        ex = [l.replace('v_mov_b32 v9', 'v_mov_b32 v19') if l.startswith('v_mov_b32 v9') else l for l in ex]
        for s in range(4, 8):
            k(kmfma(s))
            emit_list(k, ex[:6]); ex = ex[6:]
        emit_list(k, ex)
        k('ds_write_b128 v14, v[196:199] offset:4096')
        k('ds_write_b128 v14, v[196:199] offset:%d' % (KO + 4096))
        self.ts(3)
        V = lambda r: ACC + r
        pk = lambda d, lo, hi: k('v_cvt_pk_bf16_f32 v%d, v%d, v%d' % (d, lo, hi))
        k('s_mov_b64 exec, 1')
        k('v_add_f32 v%d, s%d, v%d' % (V(0), S_DSK, V(0)))
        k('s_mov_b64 exec, -1')
        k('v_cndmask_b32 v100, v%d, v%d, vcc' % (V(11), V(12)))
        k('v_cndmask_b32 v101, v%d, v%d, vcc' % (V(13), V(14)))
        pk(32, V(3), V(2)); pk(33, V(1), V(0))
        pk(34, V(7), V(6)); pk(35, V(5), V(5))
        pk(36, V(10), V(10)); pk(37, V(9), V(9)); pk(38, V(9), V(8)); pk(39, V(8), V(8))
        pk(40, V(10), V(9)); k('v_mov_b32 v41, v37'); k('v_mov_b32 v42, v39'); k('v_mov_b32 v43, v39')
        for (lo, hi, T, off, rb) in ((11, 12, 100, 2032, 44), (13, 14, 101, 1520, 52)):
            pk(rb, V(hi), V(hi)); pk(rb + 1, V(hi), T); pk(rb + 2, V(lo), V(lo)); k('v_mov_b32 v%d, v%d' % (rb + 3, rb + 2))
            k('v_mov_b32 v%d, v%d' % (rb + 4, rb)); pk(rb + 5, T, V(lo)); k('v_mov_b32 v%d, v%d' % (rb + 6, rb + 2)); k('v_mov_b32 v%d, v%d' % (rb + 7, rb + 2))
        pk(60, V(4), V(3)); pk(61, V(2), V(1))
        pk(62, V(7), V(7)); pk(63, V(6), V(5))
        pk(102, V(0), 196)
        k('ds_write_b64 v9, v[32:33] offset:%d' % (4088 - 504))
        k('ds_write_b64 v9, v[34:35] offset:%d' % (4088 - 512 - 504))
        k('ds_write2_b32 v12, v60, v61 offset0:0 offset1:1')
        k('ds_write2_b32 v13, v62, v63 offset0:0 offset1:1')
        k('ds_write_b128 v10, v[36:39] offset:%d' % (3056 - 1008))
        k('ds_write_b128 v10, v[40:43] offset:%d' % (KO + 3056 - 1008))
        for (off, rb) in ((2032, 44), (1520, 52)):
            k('ds_write_b128 v11, %s offset:%d' % (vr(rb, 4), off - 1520))
            k('ds_write_b128 v11, %s offset:%d' % (vr(rb + 4, 4), KO + off - 1520))
        k('s_mov_b64 exec, 1')
        k('ds_write_b32 v15, v102 offset:%d' % (KO + 4092))
        k('s_mov_b64 exec, -1')
        self.snonce(104, 105)
        self.ts(2)
        k('s_cmp_ge_u32 s%d, 2' % S_WAVE)
        k('s_cbranch_scc1 L_nogate')
        self.gate()
        k.label('L_nogate')
        k('s_waitcnt lgkmcnt(0)')
        k('s_barrier')
        if opt.get('cstop') == 3: k('s_endpgm')
        Y = 16
        FB = [64, 128]
        CT = [i for i in range(8) if i not in self.mtiles()]
        self.ts(4)
        k('s_setprio %d' % opt.get('vprio', 0))
        emit_list(k, self.conv_reads(0, FB[0], V_A, V_B))
        fin = ['v_lshlrev_b32 v8, 3, v0', 's_lshl_b32 s64, s%d, 12' % S_D, 's_add_u32 s64, s64, 0x%x' % WS_AT]
        for sg in range(8):
            k.wait(lg='all')
            if opt.get('cpat'):
                k('s_setprio %d' % (3 if (opt['cpat'] >> sg) & 1 else 0))
            nx = self.conv_reads(sg + 1, FB[(sg + 1) % 2], V_A, V_B) if sg + 1 < 8 else fin
            self.conv_step(Y, FB[sg % 2], sg == 0, nx, CT)
        self.ts(5)
        k('s_setprio 3')
        emit_list(k, self.tile_out(Y, CT, 64, 8, 's64'))
        self.ts(6)
        k.wait(vm='all')
        k('s_barrier')
        self.ts(7)
        self.ts_store()
        k('s_endpgm')

    def gate(self):
        k = self.k
        GX, GW = 112, 132
        if self.opt.get('gateprio'): k('s_setprio %d' % self.opt['gateprio'])
        self.srd_base(R_U, P_U)
        k('v_and_b32 v5, 15, v0')
        k('v_lshlrev_b32 v5, 4, v5')
        k('v_lshrrev_b32 v6, 4, v0')
        k('v_mul_u32_u24 v7, 1280, v6')
        k('v_add_u32 v7, v7, v5')
        k('s_lshl3_add_u32 s70, s%d, s%d' % (S_RHO, S_J))
        k('s_lshl1_add_u32 s70, s70, s%d' % S_WAVE)
        k('s_mul_i32 s71, s70, %d' % (4 * 1280))
        for i in range(5):
            k('buffer_load_dwordx4 %s, v7, s[%d:%d], s71 offen offset:%d' % (vr(GX + 4 * i, 4), R_U, R_U + 3, 256 * i), tag='G%d' % i)
            k('global_load_dwordx4 %s, v5, s[%d:%d] offset:%d' % (vr(GW + 4 * i, 4), P_GW, P_GW + 1, 256 * i), tag='G%d' % i)
        k('v_mov_b32 v160, 0')
        k('v_mov_b32 v161, 0')
        for i in range(20):
            if i % 4 == 0: k.wait(vm='G%d' % (i // 4))
            x, w = GX + i, GW + i
            t = 164
            if self.opt.get('dotgate'):
                k('v_dot2_f32_bf16 v%d, v%d, v%d, v%d' % (160 + i % 2, x, w, 160 + i % 2))
                continue
            k('v_lshlrev_b32 v%d, 16, v%d' % (t, x))
            k('v_and_b32 v%d, 0xffff0000, v%d' % (t + 1, x))
            k('v_lshlrev_b32 v%d, 16, v%d' % (t + 2, w))
            k('v_and_b32 v%d, 0xffff0000, v%d' % (t + 3, w))
            k('v_mul_f32 v%d, v%d, v%d' % (t, t, t + 2))
            k('v_mul_f32 v%d, v%d, v%d' % (t + 1, t + 1, t + 3))
            k('v_cvt_pk_bf16_f32 v%d, v%d, v%d' % (t + 4, t, t + 1))
            k('v_lshlrev_b32 v%d, 16, v%d' % (t, t + 4))
            k('v_and_b32 v%d, 0xffff0000, v%d' % (t + 1, t + 4))
            k('v_add_f32 v160, v160, v%d' % t)
            k('v_add_f32 v161, v161, v%d' % (t + 1))
        if self.opt.get('dotgate'): k('s_nop 3')
        k('v_add_f32 v160, v160, v161')
        for m in ('quad_perm:[1,0,3,2]', 'quad_perm:[2,3,0,1]', 'row_half_mirror', 'row_mirror'):
            k('v_add_f32_dpp v160, v160, v160 %s row_mask:0xf bank_mask:0xf' % m)
        k('v_cvt_pk_bf16_f32 v160, v160, v160')
        k('v_lshlrev_b32 v160, 16, v160')
        k('v_mul_f32 v160, %s, v160' % fhex(-LOG2E))
        k('v_exp_f32 v160, v160')
        k('v_add_f32 v160, 1.0, v160')
        k('v_rcp_f32 v160, v160')
        k('v_cvt_pk_bf16_f32 v160, v160, v160')
        k('v_lshlrev_b32 v160, 16, v160')
        k('v_mov_b32 v161, s%d' % S_NONCE)
        k('v_lshlrev_b32 v6, 3, v6')
        k('s_lshl_b32 s70, s70, 5')
        k('s_add_u32 s70, s70, 0x%x' % WS_G)
        k('s_mov_b32 s74, 0x00010001')
        k('s_mov_b32 s75, 0x00010001')
        k('s_mov_b64 exec, s[74:75]')
        k('buffer_store_dwordx2 v[160:161], v6, s[%d:%d], s70 offen sc1' % (R_WS, R_WS + 3))
        k('s_mov_b64 exec, -1')

    def build(self):
        import gemm17
        k = self.k
        self.prologue()
        self.misc()
        self.chan()
        k.reset_counts()
        self.mark('gemm_head')
        k.label('L_gemm')
        self.ets(1)
        if self.opt.get('nogemm'): k('s_endpgm')
        else: gemm17.emit(self)
        self.mark('end')
        k.label('L_end')
        k('s_endpgm')
        secs = {}; prev = ('pro', 0)
        for m in self.marks + [('eof', len(k.items))]:
            secs[prev[0]] = k.items[prev[1]:m[1]]; prev = m
        order = ['pro'] + {0: ['chan_head', 'misc_head', 'idle', 'gemm_head'], 1: ['misc_head', 'chan_head', 'idle', 'gemm_head'], 2: ['gemm_head', 'chan_head', 'misc_head', 'idle'], 3: ['misc_head', 'gemm_head', 'chan_head', 'idle']}[self.opt.get('hord', 0)] + [ 'chan_main', 'misc_main', 'gemm_main', 'end']
        k.items = sum((secs[n] for n in order if n in secs), []) + sum(getattr(k, 'colds', []), [])
        assert set(secs) <= set(order)
        if self.opt.get('ipf'): k.raw('.fill ((%d - (. - %s)) / 4), 4, 0xbf810000' % (64 * 128 * self.opt['ipf'] + 256, KNAME))
        hdr = open('gated_mix__ssm_conv_s4__dense_activation_silu__prompt.s.ref').read().split('; Override launch')[0]
        s = hdr + '; @launch grid=(512,1,1) block=(256,1,1) lds=81920\n'
        s += '.amdgcn_target "amdgcn-amd-amdhsa--gfx950"\n.text\n.globl %s\n.p2align 8\n.type %s,@function\n%s:\n' % (KNAME, KNAME, KNAME)
        s += k.text()
        s += '.section .rodata,"a"\n.p2align 6\n.amdhsa_kernel %s\n' % KNAME
        s += '  .amdhsa_next_free_vgpr 256\n  .amdhsa_next_free_sgpr 102\n  .amdhsa_accum_offset 256\n  .amdhsa_group_segment_fixed_size 0\n'
        s += '  .amdhsa_kernarg_size 128\n  .amdhsa_user_sgpr_count 2\n  .amdhsa_user_sgpr_kernarg_segment_ptr 1\n  .amdhsa_system_sgpr_workgroup_id_x 1\n.end_amdhsa_kernel\n'
        return s

if __name__ == '__main__':
    opt = {}
    out = sys.argv[1]
    for a in sys.argv[2:]:
        if '=' in a:
            kk, v = a.split('='); opt[kk] = int(v, 0)
        else: opt[a] = 1
    g = Gen(opt)
    open(out, 'w').write(g.build())
    print('nops inserted', g.k.nops, 'lines', len(g.k.items))
```

```python
import sys, math
from kgen import *
KNAME = 'gated_mix__ssm_conv_s4__dense_activation_silu__prompt_kernel'

WS_UT, WS_AT, WS_H, WS_W2P, WS_G = 0x000000, 0x300000, 0x600000, 0xC00000, 0xE00000
WS_FH, WS_FU, WS_FW, WS_FA, WS_TS = 0xE80000, 0xE10000, 0xE28000, 0xF00000, 0xE30000
import os
NREP = int([a.split('=')[1] for a in sys.argv if a.startswith('nrep=')][0]) if any(a.startswith('nrep=') for a in sys.argv) else 8
FU_RS, FA_RS, FH_RS = 0x1000, 0x4000, 0x10000
WS_SZ = 0x1000000
LOG2E = 1.4426950408889634
INV2PI = 0.15915494309189535

S_WG, S_WAVE, S_M, S_RHO, S_J, S_NONCE, S_TMO = 2, 3, 4, 5, 6, 7, 8
P_U, P_ARE, P_AIM, P_BRE, P_BIM, P_CRE, P_CIM, P_LDT = 16, 18, 20, 22, 24, 26, 28, 30
P_DSK, P_BX, P_W1, P_W2, P_GW, P_OUT, P_DBG, P_WS = 32, 34, 36, 38, 40, 42, 44, 46
R_WS, R_U, R_W, R_O = 48, 52, 56, 60
S_TS = 80
CBS = 17664
KO, UX = 4576, 9216
UY = UX + 4224

def emit_list(k, lst):
    for f in lst:
        if isinstance(f, tuple): k(f[0], tag=f[1])
        else: k(f)

class Gen:
    def __init__(self, opt):
        self.k = K()
        self.opt = opt
        self.marks = []
        self.role = 0
    def mark(self, name):
        self.marks.append((name, len(self.k.items)))
    def cut(self, name):
        self.k('s_branch L_%s' % name)
        self.mark(name)
        self.k.label('L_%s' % name)
    def slow(self, cond, body):
        k = self.k
        S = k.newlabel('L_slow'); B = k.newlabel('L_back')
        k('s_cbranch_%s %s' % (cond, S))
        k.cold_begin()
        k.label(S)
        body()
        k('s_nop 4')
        k('s_branch %s' % B)
        k.cold_end()
        k.label(B)
    def srd_tail(self, r, size):
        self.k('s_mov_b32 s%d, 0x%x' % (r + 2, size))
        self.k('s_mov_b32 s%d, 0x20000' % (r + 3))
    def srd_base(self, r, p):
        self.k('s_mov_b64 s[%d:%d], s[%d:%d]' % (r, r + 1, p, p + 1))
    def ts(self, i):
        if self.opt.get('hp') == 100 * self.role + i: self.k('s_memrealtime s[96:97]')
        if self.opt.get('ts') and not self.opt.get('probe') and not (self.opt.get('early') and i in (1, 3, 4)):
            self.k('%s s[%d:%d]' % ('s_memtime' if self.opt.get('cyc') else 's_memrealtime', S_TS + 2 * i, S_TS + 2 * i + 1))
    def pr(self, key, i):
        if self.opt.get('probe') == key:
            self.k('s_memtime s[%d:%d]' % (S_TS + 2 * i, S_TS + 2 * i + 1))
    def ts_init(self):
        if self.opt.get('hp') == 100 * self.role: self.k('s_mov_b32 s96, s10')
        if self.opt.get('hp') == 100 * self.role + 50: self.k('s_memrealtime s[96:97]')
        if self.opt.get('ts'):
            for i in range(10):
                if self.opt.get('early') and i in (1, 3, 4): continue
                self.k('s_mov_b32 s%d, s%d' % (S_TS + 2 * i, 100 if self.opt.get('cyc') else 10))
    def ets(self, i):
        if self.opt.get('early'): self.k('s_memtime s[%d:%d]' % (S_TS + 2 * i, S_TS + 2 * i + 1))
    def ts_store(self):
        if self.opt.get('hp', 0) // 100 == self.role:
            k = self.k
            L = k.newlabel('L_hp')
            k('s_waitcnt vmcnt(0) lgkmcnt(0)')
            k('s_sub_u32 s96, s96, s%d' % S_NONCE)
            k('s_add_u32 s96, s96, 4000')
            k.label(L)
            k('s_memrealtime s[64:65]')
            k('s_waitcnt lgkmcnt(0)')
            k('s_sub_u32 s64, s64, s%d' % S_NONCE)
            k('s_cmp_lt_u32 s64, s96')
            k('s_cbranch_scc1 %s' % L)
        if not self.opt.get('ts'): return
        k = self.k
        k('s_waitcnt vmcnt(0) lgkmcnt(0)')
        k('s_xor_b32 s64, s%d, 256' % S_WG)
        k('s_lshl_b32 s64, s64, 2')
        k('s_add_u32 s64, s64, s%d' % S_WAVE)
        k('s_lshl_b32 s64, s64, 6')
        k('s_add_u32 s64, s64, 0x%x' % WS_TS)
        k('v_mov_b32 v1, 0')
        for i in range(10):
            k('v_mov_b32 v2, s%d' % (S_TS + 2 * i))
            k('buffer_store_dword v2, v1, s[%d:%d], s64 offen offset:%d' % (R_WS, R_WS + 3, 4 * i))
        k('s_waitcnt vmcnt(0)')
    def calib(self):
        if self.opt.get('calib'):
            k = self.k
            L = k.newlabel('L_cal')
            k.label(L)
            k('s_memrealtime s[64:65]')
            k('s_waitcnt lgkmcnt(0)')
            k('s_sub_u32 s64, s64, s%d' % S_NONCE)
            k('s_cmp_lt_u32 s64, %d' % self.opt['calib'])
            k('s_cbranch_scc1 %s' % L)
    def spin_tail(self, L, D):
        k = self.k
        k('s_cbranch_scc1 %s' % D)
        k('s_sleep %d' % self.opt.get('sleep', 2))
        k('s_sub_u32 s%d, s%d, 1' % (S_TMO, S_TMO))
        k('s_cmp_lg_u32 s%d, 0' % S_TMO)
        k('s_cbranch_scc1 %s' % L)
        k.label(D)
    def nonce_issue(self, vt, vz, tag):
        k = self.k
        k('v_mov_b32 %s, 0' % vr(vz))
        k('global_load_dword %s, %s, s[%d:%d] sc1' % (vr(vt), vr(vz), P_DBG, P_DBG + 1), tag=tag)
    def nonce_get(self, vt, vz, tag=None, waited=False):
        k = self.k
        L = k.newlabel('L_nonce'); D = k.newlabel('L_nonce_ok'); C = k.newlabel('L_nonce_chk')
        k('s_mov_b32 s%d, 0x%x' % (S_TMO, self.opt.get('tmo', 0x4000)))
        if not waited: k.wait(vm=tag)
        k('s_branch %s' % C)
        k.label(L)
        k('v_mov_b32 %s, 0' % vr(vz))
        k('global_load_dword %s, %s, s[%d:%d] sc1' % (vr(vt), vr(vz), P_DBG, P_DBG + 1)); k.vm.pop()
        k('s_waitcnt vmcnt(0)')
        k.label(C)
        k('v_readfirstlane_b32 s%d, %s' % (S_NONCE, vr(vt)))
        k('s_cmp_lg_u32 s%d, 0' % S_NONCE)
        self.spin_tail(L, D)
    def poll_issue(self, vt, vaddr, soff, tag, n=1):
        self.k('buffer_load_dword%s %s, %s, s[%d:%d], %s offen sc1' % ('x2' if n == 2 else '', vr(vt, n), vr(vaddr), R_WS, R_WS + 3, soff), tag=tag)
    def poll_cmp(self, vt, which):
        k = self.k
        k('v_cmp_ne_u32 vcc, s%d, %s' % (S_NONCE, vr(vt + which[0])))
        if len(which) == 2:
            k('v_cmp_ne_u32 s[78:79], s%d, %s' % (S_NONCE, vr(vt + which[1])))
            k('s_or_b64 vcc, vcc, s[78:79]')
        k('s_cmp_eq_u64 vcc, 0')
    def poll(self, vt, vaddr, soff, n=1, first=None, waited=False, which=None):
        k = self.k
        if which is None: which = list(range(n))
        def spin():
            L = k.newlabel('L_poll'); D = k.newlabel('L_poll_ok')
            k('s_mov_b32 s%d, 0x%x' % (S_TMO, self.opt.get('tmo', 0x4000)))
            k('s_mov_b64 vcc, -1')
            k.label(L)
            k('s_mov_b64 exec, vcc')
            self.poll_issue(vt, vaddr, soff, None, n); k.vm.pop()
            k('s_mov_b64 exec, -1')
            k('s_waitcnt vmcnt(0)')
            self.poll_cmp(vt, which)
            self.spin_tail(L, D)
        if first is not None:
            if not waited: k.wait(vm=first)
            self.poll_cmp(vt, which)
            self.slow('scc0', spin)
        else: spin()
    def snonce(self, vt, vz, first=0):
        k = self.k
        if not first: k('s_load_dword s%d, s[%d:%d], 0' % (S_NONCE, P_DBG, P_DBG + 1))
        k('s_waitcnt lgkmcnt(0)')
        k('s_cmp_lg_u32 s%d, 0' % S_NONCE)
        def more():
            D = k.newlabel('L_sn_ok')
            for i in range(1, 4):
                k('s_load_dword s%d, s[%d:%d], %d' % (S_NONCE, P_DBG, P_DBG + 1, 64 * i))
                k('s_waitcnt lgkmcnt(0)')
                k('s_cmp_lg_u32 s%d, 0' % S_NONCE)
                k('s_cbranch_scc1 %s' % D)
            k('v_mov_b32 %s, 0' % vr(vt))
            self.nonce_get(vt, vz, waited=True)
            k.label(D)
        self.slow('scc0', more)
        k('s_mov_b32 s0, s%d' % S_NONCE)
        k('s_mov_b32 s1, s%d' % S_NONCE)
    def s_allok(self, base, n):
        k = self.k
        for i in range(0, n, 2):
            k('s_xor_b64 s[%d:%d], s[%d:%d], s[0:1]' % (base + i, base + i + 1, base + i, base + i + 1))
        for i in range(2, n, 2):
            k('s_or_b64 s[%d:%d], s[%d:%d], s[%d:%d]' % (base, base + 1, base, base + 1, base + i, base + i + 1))
    def spoll_loop(self, issue, base, n, s_off, s_end, rs, fallback, sleep=0):
        k = self.k
        L = k.newlabel('L_sp'); D = k.newlabel('L_sp_ok'); F = k.newlabel('L_sp_fb')
        k.label(L)
        k('s_cmp_ge_u32 s%d, s%d' % (s_off, s_end))
        k('s_cbranch_scc1 %s' % F)
        issue()
        k('s_add_u32 s%d, s%d, %d' % (s_off, s_off, rs))
        k('s_waitcnt lgkmcnt(0)')
        self.s_allok(base, n)
        k('s_cbranch_scc0 %s' % D)
        if sleep: k('s_sleep %d' % sleep)
        k('s_branch %s' % L)
        k.label(F)
        fallback()
        k.label(D)
    def flag_store_rep(self, vt, vz, soff, rs, tag=None, nrep=None):
        k = self.k
        k('v_mov_b32 %s, s%d' % (vr(vt), S_NONCE))
        k('v_mul_u32_u24 %s, %d, v0' % (vr(vz), rs))
        k('s_mov_b64 exec, %d' % ((1 << (nrep or NREP)) - 1))
        k('buffer_store_dword %s, %s, s[%d:%d], %s offen sc1' % (vr(vt), vr(vz), R_WS, R_WS + 3, soff), tag=tag)
        k('s_mov_b64 exec, -1')
    def flag_store(self, vt, vz, soff, tag=None):
        k = self.k
        k('v_mov_b32 %s, s%d' % (vr(vt), S_NONCE))
        k('v_mov_b32 %s, 0' % vr(vz))
        k('s_mov_b64 exec, 1')
        k('buffer_store_dword %s, %s, s[%d:%d], %s offen sc1' % (vr(vt), vr(vz), R_WS, R_WS + 3, soff), tag=tag)
        k('s_mov_b64 exec, -1')

    def prologue(self):
        k = self.k
        k('s_load_dwordx16 s[16:31], s[0:1], 0')
        k('s_load_dwordx16 s[32:47], s[0:1], 64')
        k('s_memrealtime s[10:11]')
        if self.opt.get('cyc'): k('s_memtime s[100:101]')
        k('v_lshrrev_b32 v1, 6, v0')
        k('v_and_b32 v0, 63, v0')
        k('v_readfirstlane_b32 s%d, v1' % S_WAVE)
        k('s_cmp_ge_u32 s2, 512')
        k('s_cbranch_scc1 L_end')
        k('s_and_b32 s%d, s2, 255' % S_M)
        k('s_bfe_u32 s66, s2, 0x20001')
        k('s_bfe_u32 s67, s2, 0x30003')
        k('s_lshl3_add_u32 s%d, s66, s67' % S_RHO)
        k('s_and_b32 s66, s2, 1')
        k('s_bfe_u32 s67, s2, 0x20006')
        k('s_lshl2_add_u32 s%d, s66, s67' % S_J)
        self.srd_tail(R_WS, WS_SZ)
        self.srd_tail(R_U, 2048 * 640 * 2)
        if self.opt.get('ipf'):
            k('s_cmp_lg_u32 s%d, 0' % S_WAVE)
            k('s_cbranch_scc1 L_noipf')
            k('s_getpc_b64 s[64:65]')
            k('s_lshr_b32 s66, s2, 3')
            k('s_mul_i32 s66, s66, %d' % (self.opt['ipf'] * 128))
            k('v_lshlrev_b32 v1, 7, v0')
            k('v_add_u32 v1, s66, v1')
            k('s_mov_b64 exec, %d' % ((1 << self.opt['ipf']) - 1))
            k('global_load_dword v255, v1, s[64:65]')
            k('s_mov_b64 exec, -1')
            k.label('L_noipf')
        k('s_cmp_ge_u32 s2, 256')
        k('s_cbranch_scc1 L_gemm')
        if self.opt.get('nossm'):
            k('s_cmp_eq_u32 s2, 128'); k('s_cbranch_scc1 L_idle'); k('s_endpgm')
        k('s_cmp_eq_u32 s%d, 3' % S_WAVE)
        k('s_cbranch_scc1 L_misc')
        if self.opt.get('hord'): k('s_branch L_chanh')

    def mtiles(self):
        return {0: [], 6: [0, 1, 2], 7: [0, 1, 3], 8: [0, 2, 3], 9: [1, 2, 3], 10: [0, 1, 2, 3]}[self.opt.get('mt', 8)]
    def conv_reads(self, sg, fb, va, vb, off=0, n=8):
        out = []
        for c in range(n):
            out.append('ds_read_b128 %s, v%d offset:%d' % (vr(fb + 4 * c, 4), va, off + 4032 - 512 * c - 64 * sg))
            out.append('ds_read_b64 %s, v%d offset:%d' % (vr(fb + 4 * n + 4 * c, 2), vb, off + 448 - 64 * sg + 512 * c))
            out.append('ds_read_b64 %s, v%d offset:%d' % (vr(fb + 4 * n + 2 + 4 * c, 2), vb, off + 448 - 64 * sg + 512 * c + 8))
        return out
    def conv_step(self, Y, fb, first, nx, tiles, n=8, per=1):
        k = self.k
        nx = list(nx)
        for c in range(8):
            for m in range(8 - c):
                if c + m not in tiles: continue
                cc = '0' if (first and c == 0) else vr(Y + 4 * (c + m), 4)
                k('v_mfma_f32_16x16x32_bf16 %s, %s, %s, %s' % (vr(Y + 4 * (c + m), 4), vr(fb + 4 * c, 4), vr(fb + 4 * n + 4 * m, 4), cc))
                emit_list(k, nx[:per]); nx = nx[per:]
        emit_list(k, nx)
    def tile_out(self, Y, tiles, tmp, vaddr, soff):
        o = []
        for i in tiles:
            o += ['v_cvt_pk_bf16_f32 v%d, v%d, v%d' % (tmp + 2 * i + rr, Y + 4 * i + 2 * rr, Y + 4 * i + 2 * rr + 1) for rr in range(2)]
            o.append('buffer_store_dwordx2 %s, v%d, s[%d:%d], %s offen offset:%d sc1' % (vr(tmp + 2 * i, 2), vaddr, R_WS, R_WS + 3, soff, 512 * i))
        return o
    def misc(self):
        k = self.k
        k.reset_counts()
        LT = 3 * CBS; LW = LT + 10240
        self.mark('misc_head')
        self.role = 3
        k.label('L_misc')
        self.ets(1)
        for i in range(5):
            k('v_add_u32 v1, %d, v0' % (64 * i))
            k('v_mul_u32_u24 v2, 205, v1')
            k('v_lshrrev_b32 v2, 11, v2')
            k('v_mul_u32_u24 v3, %d, v2' % (1280 - 160))
            k('v_lshl_add_u32 v%d, v1, 4, v3' % (10 + i))
        k('s_mul_i32 s64, s%d, %d' % (S_RHO, 64 * 1280))
        k('s_mul_i32 s65, s%d, 160' % S_J)
        k('s_add_u32 s64, s64, s65')
        k('s_add_u32 s65, s64, %d' % (32 * 1280))
        k('s_waitcnt lgkmcnt(0)')
        self.srd_base(R_U, P_U)
        for i in range(10):
            k('s_mov_b32 m0, %d' % (LT + 1024 * i))
            k('buffer_load_dwordx4 v%d, s[%d:%d], s%d offen lds' % (10 + i % 5, R_U, R_U + 3, 64 + i // 5), tag='T')
        self.ets(3)
        self.cut('misc_main')
        self.ts_init()
        k('s_setprio %d' % self.opt.get('mprio', 3))
        self.srd_base(R_WS, P_WS)
        self.srd_base(R_W, P_W2)
        self.srd_tail(R_W, 1536 * 640 * 2)
        k('s_min_u32 s66, s%d, 239' % S_M)
        k('s_mul_i32 s67, s66, 205')
        k('s_lshr_b32 s67, s67, 10')
        k('s_mul_i32 s68, s67, 5')
        k('s_sub_u32 s68, s66, s68')
        k('s_mul_i32 s69, s67, %d' % (32 * 1280))
        k('s_lshl_b32 s70, s68, 8')
        k('s_add_u32 s69, s69, s70')
        k('v_lshrrev_b32 v1, 4, v0')
        k('v_and_b32 v2, 15, v0')
        k('v_mul_u32_u24 v1, 1280, v1')
        k('v_lshl_add_u32 v15, v2, 4, v1')
        def wdma():
            for i in range(8):
                k('s_mov_b32 m0, %d' % (LW + 1024 * i))
                k('buffer_load_dwordx4 v15, s[%d:%d], s69 offen lds' % (R_W, R_W + 3), tag='W')
                k('s_add_u32 s69, s69, %d' % (4 * 1280))
        WPOS = self.opt.get('wpos', 0)
        if WPOS == 0: wdma()
        k('v_lshrrev_b32 v1, 4, v0')
        k('v_bfe_u32 v2, v0, 2, 2')
        k('v_and_b32 v3, 3, v0')
        k('v_lshl_add_u32 v4, v1, 3, v2')
        k('v_mul_u32_u24 v4, 160, v4')
        k('v_lshl_add_u32 v4, v3, 3, v4')
        k('v_add_u32 v18, %d, v4' % LT)
        k('v_and_b32 v5, 15, v0')
        k('v_lshlrev_b32 v5, 12, v5')
        k('v_lshl_add_u32 v19, v1, 4, v5')
        k('v_lshrrev_b32 v5, 1, v1')
        k('v_and_b32 v6, 1, v1')
        k('v_lshlrev_b32 v5, 4, v5')
        k('v_lshl_add_u32 v5, v6, 2, v5')
        k('v_add_u32 v5, v5, v2')
        k('v_lshlrev_b32 v5, 8, v5')
        k('v_lshl_add_u32 v5, v3, 3, v5')
        k('v_add_u32 v20, %d, v5' % LW)
        k('v_lshlrev_b32 v21, 4, v0')
        k('s_mul_i32 s72, s%d, %d' % (S_J, 80 * 4096))
        k('s_lshl_b32 s73, s%d, 7' % S_RHO)
        k('s_add_u32 s72, s72, s73')
        k('s_lshr_b32 s73, s%d, 3' % S_RHO)
        k('s_lshl2_add_u32 s73, s%d, s73' % S_J)
        k('s_lshl_b32 s73, s73, 5')
        k('s_and_b32 s74, s%d, 7' % S_RHO)
        k('s_add_u32 s73, s73, s74')
        k('s_lshl_b32 s73, s73, 2')
        k('s_add_u32 s77, s73, 0x%x' % WS_FU)
        if self.opt.get('ftouch'):
            k('v_mul_u32_u24 v9, %d, v0' % FU_RS)
            k('s_mov_b64 exec, %d' % ((1 << NREP) - 1))
            k('buffer_load_dword v8, v9, s[%d:%d], s77 offen' % (R_WS, R_WS + 3))
            k('s_mov_b64 exec, -1')
        k.wait(vm='T')
        self.ts(1)
        if self.opt.get('mstop') == 1: k('s_endpgm')
        for dl in range(5):
            for z in range(2):
                b = 24 + 8 * dl + 4 * z
                for e in range(2):
                    k('ds_read_b64_tr_b16 %s, v18 offset:%d' % (vr(b + 2 * e, 2), (32 * z + 4 * e) * 160 + 32 * dl), tag='t%d' % dl)
        for dl in range(5):
            k.wait(lg='t%d' % dl)
            for z in range(2):
                k('buffer_store_dwordx4 %s, v19, s[%d:%d], s72 offen offset:%d sc1' % (vr(24 + 8 * dl + 4 * z, 4), R_WS, R_WS + 3, 64 * z), tag='Tst')
            k('s_add_u32 s72, s72, %d' % (16 * 4096))
        if WPOS == 1: wdma()
        self.snonce(8, 9)
        def uflag():
            k.wait(vm='Tst')
            self.flag_store_rep(8, 9, 's77', FU_RS)
            self.ts(2)
        uflag()
        if self.opt.get('mstop') == 2: k('s_endpgm')
        if WPOS == 2: wdma()
        k('s_waitcnt vmcnt(0)')
        for fr in range(8):
            for e in range(2):
                k('ds_read_b64_tr_b16 %s, v20 offset:%d' % (vr(64 + 4 * fr + 2 * e, 2), 8 * e * 256 + 32 * fr), tag='w%d' % fr)
        k('s_mul_i32 s74, s67, 43')
        k('s_lshr_b32 s74, s74, 8')
        k('s_mul_i32 s75, s74, 6')
        k('s_sub_u32 s75, s67, s75')
        k('s_lshr_b32 s76, s75, 1')
        k('s_mul_i32 s76, s76, 14')
        k('s_add_u32 s76, s76, s75')
        k('s_lshl1_add_u32 s76, s74, s76')
        k('s_xor_b32 s72, s76, 8')
        k('s_mul_i32 s72, s72, 5')
        k('s_mul_i32 s76, s76, 5')
        for fr in range(8):
            k('s_lshl_b32 s73, s68, 3')
            k('s_add_u32 s73, s73, %d' % fr)
            k('s_mul_i32 s74, s73, 205')
            k('s_lshr_b32 s74, s74, 10')
            k('s_mul_i32 s75, s74, 235')
            k('s_add_u32 s75, s75, s73')
            k('s_cmp_ge_u32 s74, 4')
            k('s_cselect_b32 s74, s72, s76')
            k('s_add_u32 s75, s75, s74')
            k('s_lshl_b32 s75, s75, 10')
            k('s_add_u32 s75, s75, 0x%x' % WS_W2P)
            k.wait(lg='w%d' % fr)
            k('buffer_store_dwordx4 %s, v21, s[%d:%d], s75 offen sc1' % (vr(64 + 4 * fr, 4), R_WS, R_WS + 3), tag='Wst')
        k('s_lshl_b32 s73, s68, 6')
        k('s_add_u32 s73, s73, s67')
        k('s_lshl_b32 s73, s73, 2')
        k('s_add_u32 s73, s73, 0x%x' % WS_FW)
        k('s_mul_i32 s60, s%d, 3' % S_M)
        k('s_lshl_b32 s61, s%d, 1' % S_M)
        k('s_add_u32 s61, s61, 128')
        k('s_cmp_lt_u32 s%d, 128' % S_M)
        k('s_cselect_b32 s60, s60, s61')
        k('s_cselect_b32 s61, 3, 2')
        k('v_lshrrev_b32 v1, 4, v0')
        k('v_min_u32 v1, 2, v1')
        k('v_mul_u32_u24 v22, %d, v1' % CBS)
        k('v_and_b32 v2, 15, v0')
        k('v_lshl_add_u32 v1, v2, 2, v22')
        k('v_mov_b32 v2, 0')
        k('ds_write_b32 v1, v2 offset:%d' % UX)
        k('ds_write_b32 v1, v2 offset:%d' % UY)
        k('v_bfe_u32 v1, v0, 3, 2')
        k('v_and_b32 v23, 7, v0')
        k('v_lshlrev_b32 v23, 2, v23')
        k('v_lshl_add_u32 v23, v1, 7, v23')
        emit_list(k, ['v_and_b32 v6, 1, v0', 'v_cmp_eq_u32 vcc, 1, v6', 'v_and_b32 v6, 15, v0', 'v_lshrrev_b32 v7, 4, v0', 'v_lshlrev_b32 v7, 4, v7',
               'v_lshrrev_b32 v5, 1, v6', 'v_lshlrev_b32 v5, 6, v5', 'v_sub_u32 v5, v7, v5',
               'v_mov_b32 v2, %d' % (448 + KO), 'v_mov_b32 v3, 448', 'v_cndmask_b32 v2, v2, v3, vcc', 'v_add_u32 v2, v5, v2',
               'v_lshl_add_u32 v5, v6, 2, v7', 'v_mov_b32 v3, %d' % UY, 'v_mov_b32 v4, %d' % (UX + 4),
               'v_cndmask_b32 v3, v3, v4, vcc', 'v_add_u32 v3, v5, v3', 'v_lshlrev_b32 v4, 3, v0'])
        def u_issue():
            for i in range(4):
                k('s_load_dwordx8 s[%d:%d], s[%d:%d], s62 offset:%d' % (16 + 8 * i, 23 + 8 * i, R_WS, R_WS + 1, 128 * i))
        k('s_mul_i32 s64, s60, 205')
        k('s_lshr_b32 s64, s64, 14')
        k('s_add_u32 s65, s60, s61')
        k('s_sub_u32 s65, s65, 1')
        k('s_mul_i32 s65, s65, 205')
        k('s_lshr_b32 s65, s65, 14')
        if self.opt.get('wflag1'):
            k.wait(vm='Wst')
            self.flag_store(8, 9, 's73')
            if self.opt['wflag1'] == 2: k('s_waitcnt vmcnt(0)')
        k.label('L_ugrp')
        k('s_lshl_b32 s9, s64, 9')
        k('s_add_u32 s9, s9, 0x%x' % WS_FU)
        k('s_mov_b32 s62, s9')
        k('s_add_u32 s63, s9, %d' % (NREP * FU_RS))
        self.spoll_loop(u_issue, 16, 32, 62, 63, FU_RS, lambda: self.poll(24, 23, 's9'), sleep=self.opt.get('ssleep', 2))
        k('s_add_u32 s64, s64, 1')
        k('s_cmp_le_u32 s64, s65')
        k('s_cbranch_scc1 L_ugrp')
        self.ts(5)
        k.wait(vm='Wst')
        k('s_lshl_b32 s64, s60, 12')
        for c in range(3):
            if c == 2:
                k('s_cmp_lt_u32 s61, 3')
                k('s_cbranch_scc1 L_u2')
            k('s_add_u32 s65, s64, 4')
            k('s_mov_b32 m0, %d' % (c * CBS + UX + 64))
            for i in range(4):
                k('buffer_load_dwordx4 v21, s[%d:%d], s64 offen offset:%d sc1 lds' % (R_WS, R_WS + 3, 1024 * i))
            k('s_mov_b32 m0, %d' % (c * CBS + UY + 64))
            for i in range(4):
                k('buffer_load_dwordx4 v21, s[%d:%d], s65 offen offset:%d sc1 lds' % (R_WS, R_WS + 3, 1024 * i))
            k('s_add_u32 s64, s64, 4096')
        k.label('L_u2')
        if not self.opt.get('wflag1'): self.flag_store(8, 9, 's73')
        self.ts(7)
        k('s_waitcnt vmcnt(%d)' % (0 if self.opt.get('wflag1') else 1))
        k('ds_read_b32 v1, v22 offset:%d' % (UX + 64))
        k('s_waitcnt lgkmcnt(0)')
        k('ds_write_b32 v22, v1 offset:%d' % (UY + 60))
        k('s_waitcnt lgkmcnt(0)')
        self.ts(6)
        k('s_barrier')
        if self.opt.get('mstop') == 3: k('s_endpgm')
        MT = self.mtiles()
        k('s_setprio %d' % self.opt.get('mvprio', 0))
        k('s_lshl_b32 s64, s60, 12')
        k('s_add_u32 s64, s64, 0x%x' % WS_AT)
        if MT:
            FBm = [96, 128, 160]
            steps = [(c, sg) for c in range(3) for sg in range(8)]
            tagged = lambda i: [(l, 'cs%d' % i) for l in self.conv_reads(steps[i][1], FBm[i % 3], 2, 3, CBS * steps[i][0], 4)]
            emit_list(k, tagged(0) + tagged(1))
            wq = []
            for i, (c, sg) in enumerate(steps):
                Ym = 32 + 16 * (c % 2)
                if c == 2 and sg == 0:
                    k('s_cmp_lt_u32 s61, 3')
                    k('s_cbranch_scc1 L_m2')
                k.wait(lg='cs%d' % i)
                nx = tagged(i + 2) if i + 2 < len(steps) else []
                if sg == 1: nx = nx + wq; wq = []
                self.conv_step(Ym, FBm[i % 3], sg == 0, nx, MT, 4, 2)
                if sg == 7:
                    wq = self.tile_out(Ym, MT, 64 + 8 * c, 4, 's64') + ['s_add_u32 s64, s64, 4096']
                    if c == 1: w1 = list(wq)
            k('s_setprio 3')
            emit_list(k, wq)
            k('s_branch L_m3')
            k.label('L_m2')
            k.pad(8)
            emit_list(k, w1)
            k.label('L_m3')
        self.ts(3)
        k('v_and_b32 v8, 3, v0')
        k('v_cmp_gt_u32 vcc, s61, v8')
        k('v_add_u32 v8, s60, v8')
        k('v_lshrrev_b32 v9, 3, v8')
        k('v_and_b32 v8, 7, v8')
        k('v_lshlrev_b32 v8, 2, v8')
        k('v_lshl_add_u32 v8, v9, 7, v8')
        k('v_lshrrev_b32 v9, 2, v0')
        k('v_mul_u32_u24 v9, %d, v9' % FA_RS)
        k('v_add_u32 v8, v8, v9')
        k('v_mov_b32 v9, s%d' % S_NONCE)
        k('s_and_b32 s66, vcc_lo, 0x%x' % ((1 << (4 * NREP)) - 1))
        k('s_mov_b32 s67, 0')
        k('s_mov_b32 s65, 0x%x' % WS_FA)
        k('s_waitcnt vmcnt(0) lgkmcnt(0)')
        k('s_barrier')
        k('s_mov_b64 exec, s[66:67]')
        k('buffer_store_dword v9, v8, s[%d:%d], s65 offen sc1' % (R_WS, R_WS + 3))
        k('s_mov_b64 exec, -1')
        self.ts(4)
        self.ts_store()
        k('s_endpgm')
        self.mark('idle')
        k.label('L_idle')
        k('s_cmp_lg_u32 s2, 128')
        k('s_cbranch_scc1 L_end')
        k('s_cmp_lg_u32 s%d, 2' % S_WAVE)
        k('s_cbranch_scc1 L_end')
        k('v_lshlrev_b32 v2, 6, v0')
        k('s_waitcnt lgkmcnt(0)')
        k('s_or_b32 s10, s10, 1')
        k('v_mov_b32 v1, s10')
        k('s_mov_b64 exec, 15')
        k('global_store_dword v2, v1, s[%d:%d] sc1' % (P_DBG, P_DBG + 1))
        if self.opt.get('latprobe'):
            ptr = {1: P_BX, 2: P_WS, 3: P_BX}[self.opt['latprobe']]
            k.label('L_lp0')
            k('s_memrealtime s[64:65]')
            k('s_waitcnt lgkmcnt(0)')
            k('s_sub_u32 s64, s64, s10')
            k('s_cmp_lt_u32 s64, 3500')
            k('s_cbranch_scc1 L_lp0')
            k('v_mov_b32 v2, 0x%x' % (0x100000 if ptr == P_BX else 0x8000000))
            k('s_memtime s[70:71]')
            k('global_load_dword v3, v2, s[%d:%d]' % (ptr, ptr + 1))
            k('s_waitcnt vmcnt(0)')
            k('s_memtime s[66:67]')
            k('s_waitcnt lgkmcnt(0)')
            for i in range(4):
                k('v_add_u32 v2, 0x3480, v2')
                k('global_load_dword v3, v2, s[%d:%d]' % (ptr, ptr + 1))
                k('s_waitcnt vmcnt(0)')
            k('s_memtime s[68:69]')
            k('s_waitcnt lgkmcnt(0)')
            if self.opt['latprobe'] == 3:
                k('s_sub_u32 s68, s66, s70')
            else:
                k('s_sub_u32 s68, s68, s66')
                k('s_lshr_b32 s68, s68, 2')
            k('v_mov_b32 v1, s68')
            k('v_mov_b32 v2, 0')
            k('global_store_dword v2, v1, s[%d:%d] offset:16' % (P_DBG, P_DBG + 1))
            k('s_add_u32 s68, s68, 4000')
            k.label('L_lp1')
            k('s_memrealtime s[64:65]')
            k('s_waitcnt lgkmcnt(0)')
            k('s_sub_u32 s64, s64, s10')
            k('s_cmp_lt_u32 s64, s68')
            k('s_cbranch_scc1 L_lp1')
        k('s_endpgm')

    def cmul(self, d, a, b):
        if self.opt.get('nopk'):
            return ['v_mul_f32 v%d, v%d, v%d' % (d, a, b),
                    'v_mul_f32 v%d, v%d, v%d' % (d + 1, a, b + 1),
                    'v_fma_f32 v%d, -v%d, v%d, v%d' % (d, a + 1, b + 1, d),
                    'v_fmac_f32 v%d, v%d, v%d' % (d + 1, a + 1, b)]
        return ['v_pk_mul_f32 %s, %s, %s op_sel:[0,0] op_sel_hi:[0,1]' % (vr(d, 2), vr(a, 2), vr(b, 2)),
                'v_pk_fma_f32 %s, %s, %s, %s op_sel:[1,1,0] op_sel_hi:[1,0,1] neg_lo:[1,0,0]' % (vr(d, 2), vr(a, 2), vr(b, 2), vr(d, 2))]
    def chan(self):
        k = self.k; opt = self.opt
        k.reset_counts()
        self.mark('chan_head')
        self.role = 2
        k.label('L_chanh')
        self.ets(1)
        S_D, S_CB, S_DSK = 12, 13, 14
        k('s_mul_i32 s64, s%d, 3' % S_M)
        k('s_lshl_b32 s65, s%d, 1' % S_M)
        k('s_add_u32 s65, s65, 128')
        k('s_cmp_lt_u32 s%d, 128' % S_M)
        k('s_cselect_b32 s64, s64, s65')
        k('s_cselect_b32 s65, 3, 2')
        k('s_cmp_ge_u32 s%d, s65' % S_WAVE)
        k('s_cbranch_scc1 L_idle')
        if opt.get('nochan'): k('s_endpgm')
        k('s_add_u32 s%d, s64, s%d' % (S_D, S_WAVE))
        k('s_mul_i32 s%d, s%d, %d' % (S_CB, S_WAVE, CBS))
        PR = 232
        for i in range(6): k('v_mov_b32 v%d, 0' % (PR + 3 * i + 2))
        k('s_mul_i32 s64, s%d, 384' % S_D)
        k('v_lshlrev_b32 v1, 1, v0')
        k('v_add_u32 v1, s64, v1')
        k('v_lshl_add_u32 v2, v0, 2, s64')
        k('s_lshr_b32 s64, s%d, 1' % S_D)
        k('s_lshl_b32 s64, s64, 2')
        k('s_waitcnt lgkmcnt(0)')
        self.ets(3)
        for ai, p in enumerate((P_ARE, P_AIM, P_BRE, P_BIM, P_CRE, P_CIM)):
            k('global_load_dword v%d, v2, s[%d:%d]' % (PR + 3 * ai + 1, p, p + 1), tag='par0')
        k('s_load_dword s65, s[%d:%d], s64' % (P_LDT, P_LDT + 1))
        k('s_load_dword s66, s[%d:%d], s64' % (P_DSK, P_DSK + 1))
        for ai, p in enumerate((P_ARE, P_AIM, P_BRE, P_BIM, P_CRE, P_CIM)):
            k('global_load_short_d16_hi v%d, v1, s[%d:%d] offset:256' % (PR + 3 * ai + 2, p, p + 1), tag='par2')
        if opt.get('gtouch'):
            k('v_min_u32 v3, 9, v0')
            k('v_lshlrev_b32 v3, 7, v3')
            k('global_load_dword v3, v3, s[%d:%d]' % (P_GW, P_GW + 1), tag='par2')
        self.cut('chan_main')
        self.ets(4)
        self.ts_init()
        self.srd_base(R_WS, P_WS)
        if opt.get('cprio'): k('s_setprio %d' % opt['cprio'])
        V_DT = 4
        ACC, QF, DT_, VV, GG, ID = 16, 32, 64, 128, 192, 208
        k('v_and_b32 v6, 31, v0')
        k('v_lshrrev_b32 v7, 5, v0')
        k('v_lshlrev_b32 v7, 3, v7')
        k('v_sub_u32 v6, v6, v7')
        k('v_and_b32 v7, 1, v0')
        k('v_lshlrev_b32 v7, 4, v7')
        k('v_mov_b32 v8, 0x3f80')
        k('v_lshlrev_b32 v7, v7, v8')
        k('v_lshrrev_b32 v6, 1, v6')
        for d in range(8):
            k('v_cmp_eq_u32 vcc, %d, v6' % (d if d < 4 else d + 4))
            k('v_cndmask_b32 v%d, 0, v7, vcc' % (ID + d))
        for i in range(16): k('v_mov_b32 v%d, 0' % (ACC + i))
        k('s_and_b32 s64, s%d, 1' % S_D)
        k('s_lshl_b32 s64, s64, 4')
        k('s_waitcnt lgkmcnt(0)')
        k('s_lshr_b32 s65, s65, s64')
        k('s_lshl_b32 s65, s65, 16')
        k('s_lshr_b32 s66, s66, s64')
        k('s_lshl_b32 s%d, s66, 16' % S_DSK)
        k('v_mov_b32 v6, s65')
        k('v_mul_f32 v6, %s, v6' % fhex(LOG2E))
        k('v_exp_f32 v6, v6')
        k('v_cvt_pk_bf16_f32 v6, v6, v6')
        k('v_lshlrev_b32 v%d, 16, v6' % V_DT)
        X_, E1, E2, E4, E8, E256, E16, C_ = 216, 218, 220, 222, 224, 226, 228, 230
        T0 = GG
        order = [0, 1, 2, 3, 4, 5, 6, 7, 4, 256, 258, 260, 8, 260, 262, 264, 512, 516, 520, 1024, 768, 772, 776, 1536, 1032, 1280, 1288, 1288, 1544, 1792, 1800, 1800]
        pv = {}
        for i, o in enumerate(order): pv.setdefault(o, VV + 2 * i)
        pv[0] = C_
        Dt = lambda t: DT_ + 16 * t
        def kmfma(s):
            return 'v_mfma_f32_32x32x16_bf16 %s, %s, %s, %s' % (vr(ACC, 16), vr(Dt(s >> 1) + 4 * (s & 1), 4), vr(QF + 4 * s, 4), vr(ACC, 16))
        S_PS = 73
        def setup(ps):
            if ps != 1: k.wait(vm='par%d' % ps)
            if ps == 0:
                for a_ in range(6):
                    k('v_lshlrev_b32 v%d, 16, v%d' % (PR + 3 * a_, PR + 3 * a_ + 1))
                    k('v_and_b32 v%d, 0xffff0000, v%d' % (PR + 3 * a_ + 1, PR + 3 * a_ + 1))
            ar, ai, br, bi, cr, ci = [PR + 3 * a + ps for a in range(6)]
            self.pr(200 + ps, 0)
            su = []
            su.append('v_mul_f32 v%d, v%d, v%d' % (X_, V_DT, ar))
            su.append('v_mul_f32 v%d, v%d, v%d' % (X_ + 1, V_DT, ai))
            su.append('v_mul_f32 v%d, %s, v%d' % (X_, fhex(LOG2E), X_))
            su.append('v_mul_f32 v%d, %s, v%d' % (X_ + 1, fhex(INV2PI), X_ + 1))
            su.append('v_rndne_f32 v%d, v%d' % (T0 + 2, X_ + 1))
            su.append('v_mul_f32 v%d, v%d, v%d' % (T0, V_DT, br))
            su.append('v_mul_f32 v%d, v%d, v%d' % (T0 + 1, V_DT, bi))
            su.append('v_sub_f32 v%d, v%d, v%d' % (X_ + 1, X_ + 1, T0 + 2))
            su.append('v_mul_f32 v%d, v%d, v%d' % (C_, cr, T0))
            su.append('v_mul_f32 v%d, v%d, v%d' % (C_ + 1, cr, T0 + 1))
            su.append('v_fma_f32 v%d, -v%d, v%d, v%d' % (C_, ci, T0 + 1, C_))
            su.append('v_fmac_f32 v%d, v%d, v%d' % (C_ + 1, ci, T0))
            for idx, (dst, p) in enumerate(((E8, 8.0), (E1, 1.0), (E256, 256.0))):
                t = T0 + 4 + 4 * idx
                if p == 1.0: m, th = X_, X_ + 1
                else:
                    su.append('v_mul_f32 v%d, %s, v%d' % (t, fhex(p), X_))
                    su.append('v_mul_f32 v%d, %s, v%d' % (t + 1, fhex(p), X_ + 1))
                    m, th = t, t + 1
                su.append('v_exp_f32 v%d, v%d' % (t + 2, m))
                su.append('v_cos_f32 v%d, v%d' % (dst, th))
                su.append('v_sin_f32 v%d, v%d' % (dst + 1, th))
            for idx, dst in enumerate((E8, E1, E256)):
                t = T0 + 4 + 4 * idx
                su.append('v_mul_f32 v%d, v%d, v%d' % (dst, dst, t + 2))
                su.append('v_mul_f32 v%d, v%d, v%d' % (dst + 1, dst + 1, t + 2))
            if ps > 0:
                for i, l in enumerate(su):
                    if i % 6 == 0 and i // 6 < 4: k(kmfma(4 + i // 6))
                    k(l)
            else:
                emit_list(k, su)
        setup(0)
        self.ts(1)
        k('s_mov_b32 s%d, 0' % S_PS)
        k.raw('.p2align 3')
        k.label('L_kbody')
        ps = 1
        def weave(ms, fill):
            per = -(-len(fill) // len(ms))
            for m in ms:
                k(m)
                emit_list(k, fill[:per]); fill = fill[per:]
        def cvts(src, part, neg):
            out = []
            for g in range(4):
                for d in range(4):
                    dst = GG + 4 * g + d if part == 0 else VV + 16 * g + d
                    ops = []
                    for o in src[8 * g + 2 * d: 8 * g + 2 * d + 2]:
                        if o is None: ops.append('1.0' if part == 0 else '0')
                        else: ops.append('%sv%d' % ('-' if neg else '', o + part))
                    out.append('v_cvt_pk_bf16_f32 v%d, %s, %s' % (dst, ops[0], ops[1]))
            return out
        grp = lambda part, g: GG + 4 * g if part == 0 else VV + 16 * g
        def swaps(part):
            return ['v_permlane32_swap_b32 v%d, v%d' % (grp(part, g) + d, grp(part, g + 1) + d) for g in (0, 2) for d in range(4)]
        def tm(part):
            t = 2 * part
            f = lambda tl, g, c: 'v_mfma_f32_32x32x16_bf16 %s, %s, %s, %s' % (vr(Dt(tl), 16), vr(grp(part, g), 4), vr(ID + 4 * (g >> 1), 4), c)
            return [f(t, 0, '0'), f(t, 2, vr(Dt(t), 16)), f(t + 1, 1, '0'), f(t + 1, 3, vr(Dt(t + 1), 16))]
        def back(t, dst):
            return ['v_cvt_pk_bf16_f32 v%d, v%d, v%d' % (dst + d, Dt(t) + 2 * d, Dt(t) + 2 * d + 1) for d in range(8)]
        self.pr(200 + ps, 1)
        qs = [None, E8, E16] + [VV + 2 * b_ for b_ in range(3, 32)]
        emit_list(k, self.cmul(E16, E8, E8))
        for b_ in range(3, 32): emit_list(k, self.cmul(qs[b_], qs[b_ - 2], E16))
        self.pr(200 + ps, 2)
        emit_list(k, cvts(qs, 0, False) + swaps(0))
        weave(tm(0), cvts(qs, 1, True) + swaps(1))
        weave(tm(1), back(0, QF) + back(1, QF + 8))
        self.pr(200 + ps, 3)
        cm = lambda o, a_, e: emit_list(k, self.cmul(pv[o], pv[a_], e))
        emit_list(k, self.cmul(E2, E1, E1))
        emit_list(k, self.cmul(E4, E2, E2))
        for o in range(1, 9): cm(o, o - 1, E1)
        for o in (256, 512, 768, 1024, 1280, 1536, 1792): cm(o, o - 256, E256)
        for o in (258, 260, 262, 264): cm(o, o - 2, E2)
        cm(516, 512, E4); cm(520, 512, E8); cm(772, 768, E4); cm(776, 768, E8)
        for o in (1032, 1288, 1544, 1800): cm(o, o - 8, E8)
        self.pr(200 + ps, 4)
        psrc = [pv[o] for o in order]
        emit_list(k, cvts(psrc, 0, False) + swaps(0))
        weave(tm(0), back(2, QF + 16) + back(3, QF + 24) + cvts(psrc, 1, False) + swaps(1))
        self.pr(200 + ps, 5)
        weave(tm(1), back(0, Dt(0)) + back(1, Dt(1)))
        weave([kmfma(s_) for s_ in range(4)], back(2, Dt(2)) + back(3, Dt(3)))
        self.pr(200 + ps, 7)
        k('s_add_u32 s%d, s%d, 1' % (S_PS, S_PS))
        k('s_cmp_eq_u32 s%d, 3' % S_PS)
        k('s_cbranch_scc1 L_kexit')
        k('s_cmp_eq_u32 s%d, 2' % S_PS)
        k('s_cbranch_scc1 L_ks2')
        lg_save = list(k.lg)
        setup(1)
        k('s_branch L_kbody')
        k.label('L_ks2')
        k.lg = list(lg_save)
        setup(2)
        k('s_branch L_kbody')
        k.label('L_kexit')
        if opt.get('xprio'): k('s_setprio %d' % opt['xprio'])
        k.lg = list(lg_save)
        ex = []
        ex += ['v_and_b32 v6, 31, v0', 'v_lshrrev_b32 v7, 5, v0', 'v_lshlrev_b32 v8, 4, v6', 'v_sub_u32 v8, s%d, v8' % S_CB,
               'v_lshlrev_b32 v9, 3, v7', 'v_sub_u32 v9, v8, v9', 'v_add_u32 v9, 504, v9',
               'v_lshlrev_b32 v10, 9, v7', 'v_sub_u32 v10, v8, v10', 'v_add_u32 v10, 1008, v10',
               'v_lshlrev_b32 v11, 10, v7', 'v_sub_u32 v11, v8, v11', 'v_add_u32 v11, 1520, v11',
               'v_add_u32 v12, %d, v9' % (KO + 4084 - 504), 'v_add_u32 v13, %d, v9' % (KO + 4084 - 512 - 504),
               'v_and_b32 v6, 1, v0', 'v_cmp_eq_u32 vcc, 1, v6',
               'v_min_u32 v14, 27, v0', 'v_lshlrev_b32 v14, 4, v14', 'v_add_u32 v14, s%d, v14' % S_CB]
        ex += ['v_mov_b32 v%d, 0' % (96 + i) for i in range(4)]
        V_A, V_B = 2, 3
        ex += ['v_and_b32 v6, 15, v0', 'v_lshrrev_b32 v7, 4, v0', 'v_lshlrev_b32 v7, 4, v7', 'v_add_u32 v7, s%d, v7' % S_CB,
               'v_lshrrev_b32 v8, 1, v6', 'v_lshlrev_b32 v8, 6, v8', 'v_sub_u32 v8, v7, v8',
               'v_mov_b32 v102, %d' % (448 + KO), 'v_mov_b32 v103, 448', 'v_cndmask_b32 v102, v102, v103, vcc', 'v_add_u32 v%d, v8, v102' % V_A,
               'v_lshl_add_u32 v8, v6, 2, v7', 'v_mov_b32 v102, %d' % UY, 'v_mov_b32 v103, %d' % (UX + 4),
               'v_cndmask_b32 v102, v102, v103, vcc', 'v_add_u32 v%d, v8, v102' % V_B, 'v_mov_b32 v15, s%d' % S_CB]
        ex = [l.replace('v102', 'v202').replace('v103', 'v203') for l in ex]
        ex = [l.replace('v_mov_b32 v9', 'v_mov_b32 v19') if l.startswith('v_mov_b32 v9') else l for l in ex]
        for s in range(4, 8):
            k(kmfma(s))
            emit_list(k, ex[:6]); ex = ex[6:]
        emit_list(k, ex)
        k('ds_write_b128 v14, v[196:199] offset:4096')
        k('ds_write_b128 v14, v[196:199] offset:%d' % (KO + 4096))
        self.ts(3)
        V = lambda r: ACC + r
        pk = lambda d, lo, hi: k('v_cvt_pk_bf16_f32 v%d, v%d, v%d' % (d, lo, hi))
        k('s_mov_b64 exec, 1')
        k('v_add_f32 v%d, s%d, v%d' % (V(0), S_DSK, V(0)))
        k('s_mov_b64 exec, -1')
        k('v_cndmask_b32 v100, v%d, v%d, vcc' % (V(11), V(12)))
        k('v_cndmask_b32 v101, v%d, v%d, vcc' % (V(13), V(14)))
        pk(32, V(3), V(2)); pk(33, V(1), V(0))
        pk(34, V(7), V(6)); pk(35, V(5), V(5))
        pk(36, V(10), V(10)); pk(37, V(9), V(9)); pk(38, V(9), V(8)); pk(39, V(8), V(8))
        pk(40, V(10), V(9)); k('v_mov_b32 v41, v37'); k('v_mov_b32 v42, v39'); k('v_mov_b32 v43, v39')
        for (lo, hi, T, off, rb) in ((11, 12, 100, 2032, 44), (13, 14, 101, 1520, 52)):
            pk(rb, V(hi), V(hi)); pk(rb + 1, V(hi), T); pk(rb + 2, V(lo), V(lo)); k('v_mov_b32 v%d, v%d' % (rb + 3, rb + 2))
            k('v_mov_b32 v%d, v%d' % (rb + 4, rb)); pk(rb + 5, T, V(lo)); k('v_mov_b32 v%d, v%d' % (rb + 6, rb + 2)); k('v_mov_b32 v%d, v%d' % (rb + 7, rb + 2))
        pk(60, V(4), V(3)); pk(61, V(2), V(1))
        pk(62, V(7), V(7)); pk(63, V(6), V(5))
        pk(102, V(0), 196)
        k('ds_write_b64 v9, v[32:33] offset:%d' % (4088 - 504))
        k('ds_write_b64 v9, v[34:35] offset:%d' % (4088 - 512 - 504))
        k('ds_write2_b32 v12, v60, v61 offset0:0 offset1:1')
        k('ds_write2_b32 v13, v62, v63 offset0:0 offset1:1')
        k('ds_write_b128 v10, v[36:39] offset:%d' % (3056 - 1008))
        k('ds_write_b128 v10, v[40:43] offset:%d' % (KO + 3056 - 1008))
        for (off, rb) in ((2032, 44), (1520, 52)):
            k('ds_write_b128 v11, %s offset:%d' % (vr(rb, 4), off - 1520))
            k('ds_write_b128 v11, %s offset:%d' % (vr(rb + 4, 4), KO + off - 1520))
        k('s_mov_b64 exec, 1')
        k('ds_write_b32 v15, v102 offset:%d' % (KO + 4092))
        k('s_mov_b64 exec, -1')
        self.snonce(104, 105)
        self.ts(2)
        k('s_cmp_ge_u32 s%d, 2' % S_WAVE)
        k('s_cbranch_scc1 L_nogate')
        self.gate()
        k.label('L_nogate')
        k('s_waitcnt lgkmcnt(0)')
        k('s_barrier')
        if opt.get('cstop') == 3: k('s_endpgm')
        Y = 16
        FB = [64, 128]
        CT = [i for i in range(8) if i not in self.mtiles()]
        self.ts(4)
        k('s_setprio %d' % opt.get('vprio', 0))
        emit_list(k, self.conv_reads(0, FB[0], V_A, V_B))
        fin = ['v_lshlrev_b32 v8, 3, v0', 's_lshl_b32 s64, s%d, 12' % S_D, 's_add_u32 s64, s64, 0x%x' % WS_AT]
        for sg in range(8):
            k.wait(lg='all')
            if opt.get('cpat'):
                k('s_setprio %d' % (3 if (opt['cpat'] >> sg) & 1 else 0))
            nx = self.conv_reads(sg + 1, FB[(sg + 1) % 2], V_A, V_B) if sg + 1 < 8 else fin
            self.conv_step(Y, FB[sg % 2], sg == 0, nx, CT)
        self.ts(5)
        k('s_setprio 3')
        emit_list(k, self.tile_out(Y, CT, 64, 8, 's64'))
        self.ts(6)
        k.wait(vm='all')
        k('s_barrier')
        self.ts(7)
        self.ts_store()
        k('s_endpgm')

    def gate(self):
        k = self.k
        GX, GW = 112, 132
        if self.opt.get('gateprio'): k('s_setprio %d' % self.opt['gateprio'])
        self.srd_base(R_U, P_U)
        k('v_and_b32 v5, 15, v0')
        k('v_lshlrev_b32 v5, 4, v5')
        k('v_lshrrev_b32 v6, 4, v0')
        k('v_mul_u32_u24 v7, 1280, v6')
        k('v_add_u32 v7, v7, v5')
        k('s_lshl3_add_u32 s70, s%d, s%d' % (S_RHO, S_J))
        k('s_lshl1_add_u32 s70, s70, s%d' % S_WAVE)
        k('s_mul_i32 s71, s70, %d' % (4 * 1280))
        for i in range(5):
            k('buffer_load_dwordx4 %s, v7, s[%d:%d], s71 offen offset:%d' % (vr(GX + 4 * i, 4), R_U, R_U + 3, 256 * i), tag='G%d' % i)
            k('global_load_dwordx4 %s, v5, s[%d:%d] offset:%d' % (vr(GW + 4 * i, 4), P_GW, P_GW + 1, 256 * i), tag='G%d' % i)
        k('v_mov_b32 v160, 0')
        k('v_mov_b32 v161, 0')
        for i in range(20):
            if i % 4 == 0: k.wait(vm='G%d' % (i // 4))
            x, w = GX + i, GW + i
            t = 164
            if self.opt.get('dotgate'):
                k('v_dot2_f32_bf16 v%d, v%d, v%d, v%d' % (160 + i % 2, x, w, 160 + i % 2))
                continue
            k('v_lshlrev_b32 v%d, 16, v%d' % (t, x))
            k('v_and_b32 v%d, 0xffff0000, v%d' % (t + 1, x))
            k('v_lshlrev_b32 v%d, 16, v%d' % (t + 2, w))
            k('v_and_b32 v%d, 0xffff0000, v%d' % (t + 3, w))
            k('v_mul_f32 v%d, v%d, v%d' % (t, t, t + 2))
            k('v_mul_f32 v%d, v%d, v%d' % (t + 1, t + 1, t + 3))
            k('v_cvt_pk_bf16_f32 v%d, v%d, v%d' % (t + 4, t, t + 1))
            k('v_lshlrev_b32 v%d, 16, v%d' % (t, t + 4))
            k('v_and_b32 v%d, 0xffff0000, v%d' % (t + 1, t + 4))
            k('v_add_f32 v160, v160, v%d' % t)
            k('v_add_f32 v161, v161, v%d' % (t + 1))
        if self.opt.get('dotgate'): k('s_nop 3')
        k('v_add_f32 v160, v160, v161')
        for m in ('quad_perm:[1,0,3,2]', 'quad_perm:[2,3,0,1]', 'row_half_mirror', 'row_mirror'):
            k('v_add_f32_dpp v160, v160, v160 %s row_mask:0xf bank_mask:0xf' % m)
        k('v_cvt_pk_bf16_f32 v160, v160, v160')
        k('v_lshlrev_b32 v160, 16, v160')
        k('v_mul_f32 v160, %s, v160' % fhex(-LOG2E))
        k('v_exp_f32 v160, v160')
        k('v_add_f32 v160, 1.0, v160')
        k('v_rcp_f32 v160, v160')
        k('v_cvt_pk_bf16_f32 v160, v160, v160')
        k('v_lshlrev_b32 v160, 16, v160')
        k('v_mov_b32 v161, s%d' % S_NONCE)
        k('v_lshlrev_b32 v6, 3, v6')
        k('s_lshl_b32 s70, s70, 5')
        k('s_add_u32 s70, s70, 0x%x' % WS_G)
        k('s_mov_b32 s74, 0x00010001')
        k('s_mov_b32 s75, 0x00010001')
        k('s_mov_b64 exec, s[74:75]')
        k('buffer_store_dwordx2 v[160:161], v6, s[%d:%d], s70 offen sc1' % (R_WS, R_WS + 3))
        k('s_mov_b64 exec, -1')

    def build(self):
        import gemm17
        k = self.k
        self.prologue()
        self.misc()
        self.chan()
        k.reset_counts()
        self.mark('gemm_head')
        self.role = 1
        k.label('L_gemm')
        self.ets(1)
        if self.opt.get('nogemm'): k('s_endpgm')
        else: gemm17.emit(self)
        self.mark('end')
        k.label('L_end')
        k('s_endpgm')
        secs = {}; prev = ('pro', 0)
        for m in self.marks + [('eof', len(k.items))]:
            secs[prev[0]] = k.items[prev[1]:m[1]]; prev = m
        order = ['pro'] + {0: ['chan_head', 'misc_head', 'idle', 'gemm_head'], 1: ['misc_head', 'chan_head', 'idle', 'gemm_head'], 2: ['gemm_head', 'chan_head', 'misc_head', 'idle'], 3: ['misc_head', 'gemm_head', 'chan_head', 'idle']}[self.opt.get('hord', 0)] + [ 'chan_main', 'misc_main', 'gemm_main', 'end']
        k.items = sum((secs[n] for n in order if n in secs), []) + sum(getattr(k, 'colds', []), [])
        assert set(secs) <= set(order)
        if self.opt.get('ipf'): k.raw('.fill ((%d - (. - %s)) / 4), 4, 0xbf810000' % (64 * 128 * self.opt['ipf'] + 256, KNAME))
        hdr = open('gated_mix__ssm_conv_s4__dense_activation_silu__prompt.s.ref').read().split('; Override launch')[0]
        s = hdr + '; @launch grid=(512,1,1) block=(256,1,1) lds=81920\n'
        s += '.amdgcn_target "amdgcn-amd-amdhsa--gfx950"\n.text\n.globl %s\n.p2align 8\n.type %s,@function\n%s:\n' % (KNAME, KNAME, KNAME)
        s += k.text()
        s += '.section .rodata,"a"\n.p2align 6\n.amdhsa_kernel %s\n' % KNAME
        s += '  .amdhsa_next_free_vgpr 256\n  .amdhsa_next_free_sgpr 102\n  .amdhsa_accum_offset 256\n  .amdhsa_group_segment_fixed_size 0\n'
        s += '  .amdhsa_kernarg_size 128\n  .amdhsa_user_sgpr_count 2\n  .amdhsa_user_sgpr_kernarg_segment_ptr 1\n  .amdhsa_system_sgpr_workgroup_id_x 1\n.end_amdhsa_kernel\n'
        return s

if __name__ == '__main__':
    opt = {}
    out = sys.argv[1]
    for a in sys.argv[2:]:
        if '=' in a:
            kk, v = a.split('='); opt[kk] = int(v, 0)
        else: opt[a] = 1
    g = Gen(opt)
    open(out, 'w').write(g.build())
    print('nops inserted', g.k.nops, 'lines', len(g.k.items))
```

```python
from kgen import *
from gen18 import *

def emit(G):
    k = G.k
    opt = G.opt
    KS = opt.get('ks', 2)
    S_FA, S_LW, S_GG, S_HS, S_V, S_H0, S_FH, S_FC = 4, 9, 10, 11, 12, 13, 14, 15
    S_H1, S_FW, S_AT, S_AD, S_OUT, S_A3, S_AC, S_AE, S_FC2 = 40, 41, 42, 43, 46, 47, 78, 79, 8 + 92
    S_XZ, S_WZ = 68, 73
    VV, VR, VRH, VHL, VFH, VFW, V_FA, V_AD, V_G, V_AR, V_OW, V_OS = 2, 3, 4, 5, 7, 8, 9, 10, 11, 12, 13, 14
    VW, WA, WAH, VH, V_NON, V_REP, ET = 17, 21, 22, 23, 24, 25, 26
    VX, XA, XT = 80, 84, 92
    g_, c_ = 30, 31
    k('v_lshrrev_b32 v30, 4, v0')
    k('v_and_b32 v31, 15, v0')
    k('v_and_b32 v27, 2, v30')
    k('v_add_u32 v27, v27, v30')
    k('s_and_b32 s64, s%d, 2' % S_WAVE)
    k('v_xor_b32 v27, v31, v27')
    k('v_xor_b32 v27, s64, v27')
    k('v_lshlrev_b32 v27, 4, v27')
    k('s_mul_i32 s64, s%d, %d' % (S_WAVE, 16 * 1280))
    k('v_mul_u32_u24 v26, 1280, v30')
    k('v_add_u32 v26, s64, v26')
    k('v_add_u32 v%d, v26, v27' % VX)
    k('v_xor_b32 v28, 128, v27')
    k('v_add_u32 v28, 4096, v28')
    k('v_add_u32 v%d, v26, v28' % (VX + 1))
    k('v_add_u32 v%d, 8192, v%d' % (VX + 2, VX))
    k('v_add_u32 v%d, 8192, v%d' % (VX + 3, VX + 1))
    k('s_mul_i32 s%d, s%d, %d' % (S_XZ, S_RHO, 64 * 1280))
    k('s_lshl_b32 s%d, s%d, 12' % (S_LW, S_WAVE))
    seq = []
    pat = {0: 'XWXWXWXWXW', 1: 'XXXXXWWWWW', 2: 'XXXWXWXWWW', 3: 'XXWXWXWXWW'}[opt.get('xfirst', 3)]
    cnt = {'X': 0, 'W': 0}
    for ch in pat:
        seq.append((ch, cnt[ch], 0)); cnt[ch] += 1
    for r in (1, 2):
        for z in range(5): seq.append(('W', z, r))
    for z in range(15): seq.append(('V', z, 0))
    def dma(i):
        typ, z, r = seq[i]
        out = ['s_add_u32 m0, s%d, %d' % (S_LW, 16384 * (i % 5))]
        if typ == 'V':
            if z: out.append('s_add_u32 s%d, s%d, 16384' % (S_V, S_V))
            return out + [('buffer_load_dwordx4 v%d, s[%d:%d], s%d offen offset:%d sc1 lds' % (VV, R_WS, R_WS + 3, S_V, 1024 * n), 'S%d' % i) for n in range(4)]
        if typ == 'X':
            if z: out.append('s_add_u32 s%d, s%d, 256' % (S_XZ, S_XZ))
        elif z: out.append('s_add_u32 s%d, s%d, %d' % (S_WZ, S_WZ, 128 * 3072))
        elif r: out.append('s_sub_u32 s%d, s%d, %d' % (S_WZ, S_WZ, 4 * 128 * 3072 - 128))
        so, rr, vo = (S_XZ, R_U, VX) if typ == 'X' else (S_WZ, R_W, VW)
        for n in range(4):
            out.append(('buffer_load_dwordx4 v%d, s[%d:%d], s%d offen offset:%d lds' % (vo + n, rr, rr + 3, so, 1024 * n), 'S%d' % i))
        return out
    k('s_waitcnt lgkmcnt(0)')
    G.ets(3)
    G.srd_base(R_U, P_U)
    emit_list(k, dma(0))
    G.srd_base(R_W, P_W1); G.srd_tail(R_W, 640 * 1536 * 2)
    def touch():
        L = k.newlabel('L_nt')
        k('s_cmp_lg_u32 s%d, 0' % S_WAVE)
        k('s_cbranch_scc1 %s' % L)
        emit_list(k, ['v_min_u32 v26, 59, v0', 'v_mul_u32_u24 v27, 43, v26', 'v_lshrrev_b32 v27, 9, v27',
             'v_mul_u32_u24 v27, %d, v27' % (3072 - 128 * 12), 'v_lshl_add_u32 v26, v26, 7, v27',
             's_bfe_u32 s64, s2, 0x50003', 's_bfe_u32 s65, s2, 0x20001', 's_lshl_b32 s65, s65, 5', 's_add_u32 s64, s64, s65',
             's_mul_i32 s64, s64, %d' % (5 * 3072), 's_and_b32 s65, s2, 1', 's_mul_i32 s65, s65, %d' % (128 * 12), 's_add_u32 s64, s64, s65'])
        k('buffer_load_dword v254, v26, s[%d:%d], s64 offen' % (R_W, R_W + 3)); k.vm.pop()
        k.label(L)
    PF = opt.get('pf1', 1)
    if PF == 1: touch()
    k('v_lshrrev_b32 v26, 3, v0')
    k('s_lshl_b32 s65, s%d, 5' % S_WAVE)
    k('v_add_u32 v26, s65, v26')
    k('v_mul_u32_u24 v26, 3072, v26')
    k('v_and_b32 v27, 7, v0')
    k('v_and_b32 v28, 1, v30')
    k('v_lshlrev_b32 v28, 2, v28')
    k('v_xor_b32 v27, v27, v28')
    k('v_lshl_add_u32 v%d, v27, 4, v26' % VW)
    for n in range(1, 4):
        k('v_add_u32 v%d, %d, v%d' % (VW + n, n * (8 * 3072 - 1024), VW))
    k('s_mul_i32 s%d, s%d, 384' % (S_WZ, S_J))
    LA_ = opt.get('la', 4)
    NPRE = opt.get('npre', 2)
    if PF == 2: touch()
    if not opt.get('late1'):
        for i in range(1, NPRE): emit_list(k, dma(i))
    G.ets(4)
    G.cut('gemm_main')
    G.ts_init()
    if PF == 3: touch()
    if opt.get('late1'):
        for i in range(1, NPRE): emit_list(k, dma(i))
    k('s_setprio %d' % opt.get('gprio', 2))
    G.srd_base(R_WS, P_WS)
    G.srd_base(R_O, P_OUT); G.srd_tail(R_O, 2048 * 640 * 2)
    S_TAU, S_PHI, S_T = 69, 70, 71
    k('s_and_b32 s%d, s%d, 1' % (S_TAU, S_WAVE))
    k('s_lshr_b32 s%d, s%d, 1' % (S_PHI, S_WAVE))
    if KS == 2: k('s_lshl1_add_u32 s%d, s%d, s%d' % (S_T, S_TAU, S_PHI))
    else: k('s_mov_b32 s%d, s%d' % (S_T, S_WAVE))
    rowoff = lambda d, j, t: ['v_lshrrev_b32 v%d, 2, v%d' % (d, j), 'v_lshlrev_b32 v%d, 1, v%d' % (d, d), 'v_and_b32 v%d, 1, v%d' % (t, j), 'v_add_u32 v%d, v%d, v%d' % (d, d, t),
                              'v_and_b32 v%d, 2, v%d' % (t, j), 'v_lshl_add_u32 v%d, v%d, 4, v%d' % (d, t, d)]
    k('v_lshrrev_b32 v29, 5, v0')
    emit_list(k, rowoff(27, 31, 26))
    k('v_lshlrev_b32 v%d, 3, v27' % V_G)
    k('v_and_b32 v26, 1, v30')
    k('v_lshl_add_u32 v27, v26, 3, v27')
    k('s_lshl_b32 s64, s%d, 12' % S_TAU)
    k('v_xor_b32 v28, v29, v31')
    k('v_lshlrev_b32 v28, 4, v28')
    k('v_lshl_add_u32 v28, v27, 8, v28')
    k('v_add_u32 v%d, s64, v28' % XA)
    for s in range(1, 8): k('v_xor_b32 v%d, %d, v%d' % (XA + s, 32 * s, XA))
    k('s_lshl_b32 s64, s%d, 1' % S_TAU)
    k('v_add_u32 v27, s64, v26')
    k('v_mul_u32_u24 v27, 49152, v27')
    k('v_lshl_add_u32 v28, v29, 4, v31')
    k('v_lshl_add_u32 v%d, v28, 4, v27' % VH)
    k('v_bfe_u32 v28, v0, 1, 1')
    k('v_lshl_add_u32 v26, v26, 1, v28')
    k('s_lshl_b32 s64, s%d, 2' % S_PHI)
    k('v_add_u32 v26, s64, v26')
    k('v_bfe_u32 v28, v0, 3, 1')
    k('v_lshlrev_b32 v28, 2, v28')
    k('v_xor_b32 v26, v26, v28')
    k('v_bfe_u32 v28, v0, 2, 2')
    k('v_lshl_add_u32 v27, v29, 3, v28')
    k('v_lshlrev_b32 v27, 7, v27')
    k('v_lshl_add_u32 v27, v26, 4, v27')
    k('v_and_b32 v26, 1, v0')
    k('v_lshl_add_u32 v%d, v26, 3, v27' % WA)
    k('v_add_u32 v%d, 0x10000, v%d' % (WAH, WA))
    k('s_mul_i32 s66, s%d, 192' % S_RHO)
    k('s_lshl1_add_u32 s67, s%d, s66' % S_J)
    k('s_add_u32 s67, s67, s%d' % S_PHI)
    k('s_lshl_b32 s67, s67, 10')
    k('s_add_u32 s%d, s67, 0x%x' % (S_HS, WS_H))
    k('s_lshl_b32 s66, s66, 10')
    k('s_add_u32 s66, s66, 0x%x' % WS_H)
    k('s_lshr_b32 s67, s%d, 2' % S_J)
    k('s_lshl_b32 s65, s67, 13')
    k('s_add_u32 s%d, s66, s65' % S_H0)
    k('s_sub_u32 s%d, s66, s65' % S_H1)
    k('s_mul_i32 s66, s%d, 768' % S_RHO)
    k('s_lshl_b32 s67, s67, 7')
    k('s_add_u32 s66, s66, s67')
    k('s_add_u32 s%d, s66, 0x%x' % (S_FC, WS_FH))
    k('s_xor_b32 s%d, s%d, 128' % (S_FC2, S_FC))
    k('s_and_b32 s67, s%d, 3' % S_J)
    k('s_lshl2_add_u32 s%d, s67, s%d' % (S_FH, S_FC))
    k('s_mov_b32 s%d, 0' % S_AD)
    k('s_lshl3_add_u32 s64, s%d, s%d' % (S_RHO, S_T))
    k('s_mul_i32 s%d, s64, %d' % (S_OUT, 8 * 1280))
    k('s_mul_i32 s66, s%d, 160' % S_J)
    k('s_add_u32 s%d, s%d, s66' % (S_OUT, S_OUT))
    k('s_lshl_b32 s64, s64, 6')
    k('s_add_u32 s%d, s64, 0x%x' % (S_GG, WS_G))
    k('s_cmp_lt_u32 s%d, 2' % S_WAVE)
    k('s_cselect_b32 s%d, 1024, 0' % S_A3)
    k('s_mul_i32 s64, s%d, %d' % (S_J, 48 * 5120))
    k('s_add_u32 s%d, s64, 0x%x' % (S_V, WS_W2P))
    k('s_mul_i32 s64, s%d, %d' % (S_J, 10 * 128))
    k('s_add_u32 s%d, s64, 0x%x' % (S_FA, WS_FA))
    k('s_lshl_b32 s64, s%d, 7' % S_WAVE)
    k('s_add_u32 s%d, s64, s%d' % (S_AC, S_FA))
    k('s_add_u32 s%d, s%d, %d' % (S_AE, S_AC, NREP * FA_RS))
    k('s_mul_i32 s64, s%d, 10' % S_J)
    k('s_add_u32 s64, s64, s%d' % S_WAVE)
    k('s_lshl_b32 s64, s64, 15')
    k('s_lshl_b32 s65, s%d, 7' % S_RHO)
    k('s_add_u32 s64, s64, s65')
    k('s_add_u32 s%d, s64, 0x%x' % (S_AT, WS_AT))
    k('s_mul_i32 s64, s%d, 5' % S_J)
    k('s_lshr_b32 s65, s64, 3')
    k('s_add_u32 s64, s64, 4')
    k('s_lshr_b32 s64, s64, 3')
    k('s_sub_u32 s64, s64, s65')
    k('s_lshl_b32 s64, s64, 8')
    k('s_lshl_b32 s65, s65, 8')
    k('s_mul_i32 s66, s%d, 48' % S_WAVE)
    k('s_add_u32 s65, s65, s66')
    k('s_add_u32 s%d, s65, 0x%x' % (S_FW, WS_FW))
    k('v_min_u32 v26, 11, v31')
    k('v_and_b32 v27, 1, v30')
    k('v_mul_u32_u24 v27, s64, v27')
    k('v_lshl_add_u32 v%d, v26, 2, v27' % VFW)
    k('v_lshlrev_b32 v26, 4, v0')
    k('v_add_u32 v%d, s%d, v26' % (VV, S_LW))
    if KS == 2:
        k('s_mul_i32 s64, s%d, 5120' % S_PHI)
        k('v_add_u32 v%d, s64, v26' % VR)
        k('s_mul_i32 s64, s%d, 48' % S_T)
        k('s_add_u32 s64, s64, s%d' % S_PHI)
        k('s_lshl_b32 s64, s64, 10')
        k('v_add_u32 v%d, s64, v26' % VHL)
        k('s_xor_b32 s64, s%d, 1' % S_T)
        k('s_mul_i32 s64, s64, 48')
        k('s_add_u32 s64, s64, s%d' % S_PHI)
        k('s_lshl_b32 s64, s64, 10')
        k('v_add_u32 v%d, s64, v26' % (VHL + 1))
    else:
        k('v_mov_b32 v%d, v26' % VR)
        k('s_mul_i32 s64, s%d, 49152' % S_T)
        k('v_add_u32 v%d, s64, v26' % VHL)
    k('v_add_u32 v%d, 0x8000, v%d' % (VRH, VR))
    k('v_and_b32 v26, 3, v0')
    k('v_lshlrev_b32 v%d, 2, v26' % VFH)
    k('v_lshlrev_b32 v27, 12, v29')
    k('v_bfe_u32 v28, v0, 2, 3')
    k('v_lshl_add_u32 v27, v28, 7, v27')
    k('v_lshl_add_u32 v27, v26, 3, v27')
    k('s_lshl_b32 s64, s%d, 5' % S_T)
    k('v_add_u32 v%d, s64, v27' % V_AR)
    k('v_and_b32 v26, 7, v0')
    k('v_lshrrev_b32 v27, 3, v0')
    k('v_min_u32 v28, 2, v27')
    k('v_lshlrev_b32 v28, 2, v28')
    k('v_add_u32 v28, s%d, v28' % S_WAVE)
    k('v_min_u32 v28, 9, v28')
    k('v_lshl_add_u32 v28, v28, 5, v26')
    k('v_lshlrev_b32 v%d, 2, v28' % V_FA)
    k('v_lshlrev_b32 v27, 12, v27')
    k('v_lshl_add_u32 v%d, v26, 4, v27' % V_AD)
    k('v_mul_u32_u24 v27, 160, v31')
    k('v_lshl_add_u32 v27, v30, 3, v27')
    k('v_add_u32 v%d, s%d, v27' % (V_OW, S_LW))
    for n in range(3):
        emit_list(k, ['v_add_u32 v26, %d, v0' % (64 * n), 'v_mul_u32_u24 v27, 205, v26', 'v_lshrrev_b32 v27, 11, v27'] + rowoff(V_OS + n, 27, 28) +
                  ['v_mul_u32_u24 v%d, 1280, v%d' % (V_OS + n, V_OS + n), 'v_lshl_add_u32 v%d, v26, 4, v%d' % (V_OS + n, V_OS + n),
                   'v_mul_u32_u24 v28, 160, v27', 'v_sub_u32 v%d, v%d, v28' % (V_OS + n, V_OS + n)])
    k('v_mul_u32_u24 v%d, %d, v0' % (V_REP, FH_RS))
    FA, FBs = 32, 48
    NRH = opt.get('nrh', 2)
    ACC = [64, 80, 64]
    XF = 96
    def wread(i, half, s):
        base = 16384 * (i % 5)
        reg = WAH if base >= 65536 else WA
        off = base & 0xffff
        fs = FA if half == 0 else FBs
        return [('ds_read_b64_tr_b16 %s, v%d offset:%d' % (vr(fs + 4 * s + 2 * e, 2), reg, off + (4 * half + s) * 2048 + 512 * e), 'w%d%d' % (half, s)) for e in range(2)]
    def mfma(i, half, s):
        typ, z, r = seq[i]
        fs = FA if half == 0 else FBs
        c = '0' if (z == 0 and half == 0 and s == 0) else vr(ACC[r], 16)
        return 'v_mfma_f32_32x32x16_bf16 %s, %s, %s, %s' % (vr(ACC[r], 16), vr(fs + 4 * s, 4), vr(XF + 4 * (8 * z + 4 * half + s), 4), c)
    NL2 = fhex(-LOG2E)
    def epi(r):
        a = ACC[r]
        out = []
        t = ET
        for p in range(8):
            if opt.get('fastsilu'):
                x0, x1 = a + 2 * p, a + 2 * p + 1
            else:
                x0, x1 = t, t + 1
                out += ['v_cvt_pk_bf16_f32 v%d, v%d, v%d' % (t + 2, a + 2 * p, a + 2 * p + 1),
                        'v_lshlrev_b32 v%d, 16, v%d' % (t, t + 2),
                        'v_and_b32 v%d, 0xffff0000, v%d' % (t + 1, t + 2)]
            out += ['v_mul_f32 v%d, %s, v%d' % (t + 2, NL2, x0),
                    'v_mul_f32 v%d, %s, v%d' % (t + 3, NL2, x1),
                    'v_exp_f32 v%d, v%d' % (t + 2, t + 2),
                    'v_exp_f32 v%d, v%d' % (t + 3, t + 3),
                    'v_add_f32 v%d, 1.0, v%d' % (t + 2, t + 2),
                    'v_add_f32 v%d, 1.0, v%d' % (t + 3, t + 3),
                    'v_rcp_f32 v%d, v%d' % (t + 2, t + 2),
                    'v_rcp_f32 v%d, v%d' % (t + 3, t + 3),
                    'v_mul_f32 v%d, v%d, v%d' % (t + 2, x0, t + 2),
                    'v_mul_f32 v%d, v%d, v%d' % (t + 3, x1, t + 3),
                    'v_cvt_pk_bf16_f32 v%d, v%d, v%d' % (a + p, t + 2, t + 3)]
        if r: out += ['s_add_u32 s%d, s%d, 16384' % (S_HS, S_HS)]
        for s in range(2):
            out.append(('buffer_store_dwordx4 %s, v%d, s[%d:%d], s%d offen offset:%d sc1' % (vr(a + 4 * s, 4), VH, R_WS, R_WS + 3, S_HS, 512 * s), 'hst%d' % r))
        return out
    def hflag(r):
        def body():
            k('s_mov_b64 exec, %d' % ((1 << NRH) - 1))
            k('buffer_store_dword v%d, v%d, s[%d:%d], s%d offen offset:%d sc1' % (V_NON, V_REP, R_WS, R_WS + 3, S_FH, 256 * r)); k.vm.pop()
            k('s_mov_b64 exec, -1')
        L = k.newlabel('L_nf')
        k('s_cmp_lg_u32 s%d, %d' % (S_WAVE, r))
        k('s_cbranch_scc1 %s' % L)
        body()
        k.label(L)
    NST = 240 // KS
    NP = 48 // KS
    A2 = lambda T, sub: 96 + 4 * (5 * T + sub)
    HB = 96 + 20 * KS
    HN = 20 // KS
    Hr = lambda p, T: HB + 4 * (KS * (p % HN) + T)
    WX = HB + 80
    WBUF = [32, 36, 40, 44] + ([WX + 4 * i for i in range(8)] if KS == 1 else []) + [48, 52, 56, 60]
    f0 = lambda n: 5 * KS * (n // 5) + n % 5
    def hload(p):
        pi = KS * p
        o = []
        if pi % 4 == 0: o.append('s_add_u32 s65, s%d, %d' % (S_H1 if pi & 8 else S_H0, 1024 * pi))
        for T in range(KS):
            o.append(('buffer_load_dwordx4 %s, v%d, s[%d:%d], s65 offen offset:%d sc1' % (vr(Hr(p, T), 4), VHL + T, R_WS, R_WS + 3, 1024 * (pi % 4)), 'H%d' % p))
        return o
    def take(q, n):
        o = q[:n]; del q[:n]; return o
    def h_slow(q, skip=0):
        def h_issue(): k('s_load_dwordx4 s[16:19], s[%d:%d], s24' % (R_WS, R_WS + 1))
        k('s_add_u32 s26, s%d, %d' % (S_FC2 if q & 1 else S_FC, 256 * (q >> 1)))
        k('s_add_u32 s24, s26, %d' % (skip * FH_RS))
        k('s_add_u32 s25, s26, %d' % (NRH * FH_RS))
        G.spoll_loop(h_issue, 16, 4, 24, 25, FH_RS, lambda: G.poll(1, VFH, 's26'))
    def a_dma(base, count):
        for n in range(3):
            if n == 1: k('s_add_u32 s67, s%d, %d' % (base, 4 << 15))
            if n == 2:
                k('s_lshl_b32 s67, s%d, 8' % S_A3)
                k('s_add_u32 s67, s67, s%d' % base)
            k('s_add_u32 m0, s%d, %d' % (S_LW, 1024 * n))
            k('buffer_load_dwordx4 v%d, s[%d:%d], s%d offen sc1 lds' % (V_AD, R_WS, R_WS + 3, 67 if n else base), tag='a')
            if not count: k.vm.pop()
    def a_issue():
        k('s_load_dwordx8 s[16:23], s[%d:%d], s%d' % (R_WS, R_WS + 1, S_AC))
        k('s_load_dwordx8 s[24:31], s[%d:%d], s%d offset:512' % (R_WS, R_WS + 1, S_AC))
        k('s_add_u32 s67, s%d, s%d' % (S_AC, S_A3))
        k('s_load_dwordx8 s[32:39], s[%d:%d], s67' % (R_WS, R_WS + 1))
    def late_a():
        G.spoll_loop(a_issue, 16, 24, S_AC, S_AE, FA_RS, lambda: G.poll(1, V_FA, 's%d' % S_FA), sleep=opt.get('asleep', 4))
        k('s_waitcnt vmcnt(0)')
        a_dma(S_AT, False)
    epq = []; mq = []
    GB = opt.get('gapb', 48)
    st8 = {'n': NPRE, 'h': 0, 'ok': 5 if opt.get('nohchk') else -1}
    def cost(f):
        t = f[0] if isinstance(f, tuple) else f
        return 8 if t.startswith(('v_exp', 'v_rcp')) else 4
    def vm1(n):
        nv = 0; used = 0
        while mq and nv < n:
            f = mq.pop(0); emit_list(k, [f]); used += 4
            if isinstance(f, tuple): nv += 1
        return used
    def gap(used):
        used += vm1(opt.get('vper', 1))
        while epq and used + cost(epq[0]) <= GB:
            f = epq.pop(0); emit_list(k, [f]); used += cost(f)
    FAT = [opt.get('f0at', 15), opt.get('f1at', 20), opt.get('f2at', 24)]
    RB_, RL = opt.get('rb', 2), opt.get('rl', 1)
    RAT = []
    for a_ in (opt.get('r0at', 19), opt.get('r1at', 23), opt.get('r2at', 28)): RAT += [a_, a_ + RB_]
    PWAT, AAT = opt.get('pwat', 15), opt.get('aat', 33)
    HL = opt.get('hl', 12) // KS
    assert HL <= HN and RL <= RB_ and RAT[0] - RL >= 17 and RAT[5] <= AAT - 2
    def younger(a, b):
        ia = max(i for i, t in enumerate(k.vm) if t == a); ib = max(i for i, t in enumerate(k.vm) if t == b)
        return a if ia > ib else b
    def flush_for(tag):
        while any(isinstance(f, tuple) and f[1] == tag for f in mq): vm1(1)
    def hq(upto, free=99):
        while st8['h'] < min(NP, upto) and ((KS * st8['h']) >> 3) <= st8['ok'] and (Hr(st8['h'], KS - 1) - XF) // 4 < free:
            mq.extend(hload(st8['h'])); st8['h'] += 1
    def sync(i, lg):
        flush_for('S%d' % i)
        tg = 'S%d' % i
        for r in range(3):
            if FAT[r] == i:
                while any(isinstance(f, tuple) and f[1] == 'hst%d' % r for f in epq): emit_list(k, take(epq, 1))
                tg = younger(tg, 'hst%d' % r)
        chk = [q for q in range(6) if RAT[q] == i and not opt.get('nohchk')]
        HSC = opt.get('hs', 1)
        for q in chk:
            if HSC: lg = 'all'
            else: tg = younger(tg, 'ph%d' % q)
        if i == AAT and not opt.get('noa'): tg = younger(tg, 'fa')
        if i == 17 and not opt.get('noa'): G.poll(1, VFW, 's%d' % S_FW, first='pw')
        k.wait(vm=tg, lg=lg)
        k('s_barrier')
        if i < 10: G.pr(301, i)
        elif i < 20: G.pr(302, i - 10)
        elif i < 30: G.pr(300, i - 20)
        if i >= 30: G.pr(303, i - 30)
        for n_, at in ((1, 0), (2, 10), (3, 15), (4, 20), (5, 25), (6, 30), (7, 34)):
            if i == at: G.ts(n_)
        for r in range(3):
            if FAT[r] == i: hflag(r)
        upto = max(min(i + LA_ - 1, i + 3), min(4, i + LA_))
        while st8['n'] < 35 and st8['n'] <= upto:
            mq.extend(dma(st8['n'])); st8['n'] += 1
        if i == 1:
            G.snonce(1, V_NON, first=1)
            k('v_mov_b32 v%d, s%d' % (V_NON, S_NONCE))
        for q in chk:
            if HSC:
                G.s_allok(16, 4)
                G.slow('scc1', lambda: h_slow(q, 1))
            else:
                G.poll_cmp(1, [0])
                G.slow('scc0', lambda: h_slow(q))
            st8['ok'] = max(st8['ok'], q)
        if i == PWAT and not opt.get('noa'): mq.insert(0, ('buffer_load_dword v1, v%d, s[%d:%d], s%d offen sc1' % (VFW, R_WS, R_WS + 3, S_FW), 'pw'))
        for q in range(6):
            if RAT[q] - RL == i and not opt.get('nohchk') and HSC:
                k('s_load_dwordx4 s[16:19], s[%d:%d], s%d offset:%d' % (R_WS, R_WS + 1, S_FC2 if q & 1 else S_FC, 256 * (q >> 1)))
            elif RAT[q] - RL == i and not opt.get('nohchk'):
                k('buffer_load_dword v1, v%d, s[%d:%d], s%d offen offset:%d sc1' % (VFH, R_WS, R_WS + 3, S_FC2 if q & 1 else S_FC, 256 * (q >> 1)), tag='ph%d' % q)
        if i == 29: mq.insert(0, ('buffer_load_dwordx2 v[30:31], v%d, s[%d:%d], s%d offen sc1' % (V_G, R_WS, R_WS + 3, S_GG), 'g'))
        if i == AAT - 2 and not opt.get('noa'): k('buffer_load_dword v1, v%d, s[%d:%d], s%d offen sc1' % (V_FA, R_WS, R_WS + 3, S_FA), tag='fa')
        if i == AAT and not opt.get('noa'):
            assert st8['n'] == 35
            flush_for('S34')
            G.poll_cmp(1, [0])
            k('s_cselect_b32 s%d, 1, 0' % S_AD)
            k('s_cselect_b32 s64, s%d, s%d' % (S_AT, S_V))
            a_dma(64, True)
    k('s_load_dword s%d, s[%d:%d], 0' % (S_NONCE, P_DBG, P_DBG + 1))
    sync(0, None)
    pend = None
    for i in range(20):
        typ, z, r = seq[i]
        base = 16384 * (i % 5)
        for s in range(4):
            used = 8
            if pend is not None:
                if s % 2 == 0: k.wait(lg='w1%d' % (s + 1)); used += 4
                k(pend[s])
            if typ == 'W': emit_list(k, wread(i, 0, s))
            else:
                for s2 in (2 * s, 2 * s + 1):
                    if base >= 65536:
                        k('v_add_u32 v%d, 0x10000, v%d' % (XT + s2 % 4, XA + s2))
                        k('ds_read_b128 %s, v%d' % (vr(XF + 4 * (8 * z + s2), 4), XT + s2 % 4), tag='x%d' % i)
                    else:
                        k('ds_read_b128 %s, v%d offset:%d' % (vr(XF + 4 * (8 * z + s2), 4), XA + s2, base), tag='x%d' % i)
            gap(used)
        pend = None
        prevx = 'x%d' % (i - 1) if (i > 0 and seq[i - 1][0] == 'X') else None
        if typ == 'X':
            emit_list(k, take(mq, 1000))
            sync(i + 1, prevx)
            continue
        if z == 0 and r > 0: epq.extend(epi(r - 1))
        for s in range(4):
            if s % 2 == 0: k.wait(lg='w0%d' % (s + 1))
            k(mfma(i, 0, s))
            if s < 2:
                emit_list(k, wread(i, 1, 2 * s) + wread(i, 1, 2 * s + 1))
                gap(20 if (z or s) else 1000)
            elif s == 2:
                sync(i + 1, None)
                if r == 2: hq(HL, 8 * z)
            else:
                gap(4)
        pend = [mfma(i, 1, s) for s in range(4)]
        if i in (14, 19): emit_list(k, take(epq, 1000))
    D = opt.get('vd', 12 if KS == 1 else 5)
    WP = opt.get('wp', 4 if KS == 1 else 2)
    NB = len(WBUF)
    assert D <= NB - 2
    def vread(n):
        off = 1024 * (f0(n) % 80)
        return ('ds_read_b128 %s, v%d offset:%d' % (vr(WBUF[n % NB], 4), VRH if off >= 0x8000 else VR, off - 0x8000 if off >= 0x8000 else off), 'v%d' % n)
    slot_of = lambda n: 20 + (f0(n) + 5 * (KS - 1)) // 16
    assert all(slot_of(n) == 20 for n in range(D))
    for s in range(4):
        if s % 2 == 0: k.wait(lg='w1%d' % (s + 1))
        k(pend[s])
        emit_list(k, [vread(n) for n in range(D * s // 4, D * (s + 1) // 4)])
        vm1(2)
    epq.extend(epi(2))
    EP2 = opt.get('ep2', 3) * KS
    AM = NST - opt.get('am', 6) // KS
    fast = opt.get('fastfin')
    AR = 64
    ga = [244 + 2 * i for i in range(6)] + [84 + 2 * i for i in range(4)]
    def rnd(x):
        return ['v_cvt_pk_bf16_f32 v%d, v%d, v%d' % (x + 1, x, x + 1), 'v_lshlrev_b32 v%d, 16, v%d' % (x, x + 1), 'v_and_b32 v%d, 0xffff0000, v%d' % (x + 1, x + 1)]
    def a_unpack():
        o = []
        for q in range(10):
            t = ga[q]
            o += ['v_lshlrev_b32 v%d, 16, v%d' % (t, AR + q), 'v_and_b32 v%d, 0xffff0000, v%d' % (t + 1, AR + q)]
            if not fast: o += ['v_mul_f32 v%d, v30, v%d' % (t, t), 'v_mul_f32 v%d, v30, v%d' % (t + 1, t + 1)] + rnd(t)
        return o
    def a_meet(lg):
        hq(NP); emit_list(k, take(mq, 1000))
        if not opt.get('noa'):
            k('s_cmp_lg_u32 s%d, 0' % S_AD)
            G.slow('scc0', late_a)
        k.wait(vm='all', lg=lg)
        k('s_barrier')
        G.pr(303, 8)
        for sb in range(5):
            k('ds_read_b64_tr_b16 %s, v%d offset:%d' % (vr(AR + 2 * sb, 2), V_AR, (sb & 1) * 8192 + (sb >> 1) * 1024), tag='ar')
    poff = lambda sub: 16384 + 1024 * sub if sub < 4 else 3072
    synced = 20
    tail0 = []
    for n in range(NST):
        p, sub = n // 5, n % 5
        if n + D < NST and slot_of(n + D) > synced:
            synced += 1
            assert f0(n) >= 16 * (synced - 21), (n, synced)
            sync(synced, None)
            if synced == 33:
                if not opt.get('noa'): G.poll(30, V_G, 's%d' % S_GG, n=2, first='g', which=[1])
                epq.extend(['v_sub_f32 v28, 1.0, v30', 'v_cvt_pk_bf16_f32 v28, v28, v28', 'v_lshlrev_b32 v28, 16, v28', 'v_mov_b32 v29, v28', 'v_mov_b32 v31, v30'])
                if KS == 2: epq.append('v_xor_b32 v%d, 0x2000, v%d' % (VFW, VV))
        if KS == 1:
            if n == AM: a_meet(None)
            if n == min(AM + 5, NST - 1):
                k.wait(lg='ar'); epq.extend(a_unpack())
        hq(p + HL)
        lgt = 'v%d' % min(n + WP - 1, NST - 1) if n % WP == 0 else None
        if sub == 0:
            flush_for('H%d' % p)
            k.wait(vm='H%d' % p, lg=lgt)
        elif lgt: k.wait(lg=lgt)
        for T in reversed(range(KS)):
            c = '0' if p == 0 else vr(A2(T, sub), 4)
            mm = 'v_mfma_f32_16x16x32_bf16 %s, %s, %s, %s' % (vr(A2(T, sub), 4), vr(WBUF[n % NB], 4), vr(Hr(p, T), 4), c)
            if KS == 2 and T == 0 and p == NP - 1: tail0.append(mm); continue
            k(mm)
            if T == KS - 1 and n + D < NST: emit_list(k, [vread(n + D)])
        if KS == 2 or n % 2 == 0: vm1(1)
        if n >= 2: emit_list(k, take(epq, EP2))
    emit_list(k, take(epq, 1000))
    PB = HB
    if KS == 2:
        for sub in range(5):
            k(tail0[sub])
            if sub >= 2: k('ds_write_b128 v%d, %s offset:%d' % (VV, vr(A2(1, sub - 2), 4), poff(sub - 2)))
        for sub in (3, 4): k('ds_write_b128 v%d, %s offset:%d' % (VV, vr(A2(1, sub), 4), poff(sub)))
        a_meet('all')
        for sub in range(5):
            k('ds_read_b128 %s, v%d offset:%d' % (vr(PB + 4 * sub, 4), VFW, poff(sub)), tag='pp%d' % sub)
        k.wait(lg='ar')
        emit_list(k, a_unpack())
    G.ts(8)
    G.pr(303, 5)
    OST = 32768
    for sub in range(5):
        if KS == 2: k.wait(lg='pp%d' % sub)
        for hf in range(2):
            x = A2(0, sub) + 2 * hf; t = ga[2 * sub + hf]
            if KS == 2: k('v_pk_add_f32 %s, %s, %s' % (vr(x, 2), vr(x, 2), vr(PB + 4 * sub + 2 * hf, 2)))
            if fast:
                k('v_pk_mul_f32 %s, %s, v[28:29]' % (vr(x, 2), vr(x, 2)))
                k('v_pk_fma_f32 %s, %s, v[30:31], %s' % (vr(x, 2), vr(t, 2), vr(x, 2)))
            else:
                emit_list(k, rnd(x))
                k('v_pk_mul_f32 %s, %s, v[28:29]' % (vr(x, 2), vr(x, 2)))
                emit_list(k, rnd(x))
                k('v_pk_add_f32 %s, %s, %s' % (vr(x, 2), vr(x, 2), vr(t, 2)))
            k('v_cvt_pk_bf16_f32 v%d, v%d, v%d' % (AR + 2 * sub + hf, x, x + 1))
        k('ds_write_b64 v%d, %s offset:%d' % (V_OW, vr(AR + 2 * sub, 2), OST + 32 * sub))
    G.pr(303, 6)
    for n in range(3):
        k('ds_read_b128 %s, v%d offset:%d' % (vr(200 + 4 * n, 4), VV, OST + 1024 * n), tag='o%d' % n)
    for n in range(3):
        k.wait(lg='o%d' % n)
        if n == 2: k('s_mov_b32 exec_hi, 0')
        k('buffer_store_dwordx4 %s, v%d, s[%d:%d], s%d offen sc1' % (vr(200 + 4 * n, 4), V_OS + n, R_O, R_O + 3, S_OUT))
    k('s_mov_b64 exec, -1')
    G.pr(303, 7)
    G.ts(9)
    G.ts_store()
    G.calib()
    k('s_endpgm')
```

```python
import sys, math
from kgen import *
KNAME = 'gated_mix__ssm_conv_s4__dense_activation_silu__prompt_kernel'

WS_UT, WS_AT, WS_H, WS_W2P, WS_G = 0x000000, 0x300000, 0x600000, 0xC00000, 0xE00000
WS_FH, WS_FU, WS_FW, WS_FA, WS_TS = 0xE80000, 0xE10000, 0xE28000, 0xF00000, 0xE30000
import os
NREP = int([a.split('=')[1] for a in sys.argv if a.startswith('nrep=')][0]) if any(a.startswith('nrep=') for a in sys.argv) else 8
FU_RS, FA_RS, FH_RS = 0x1000, 0x4000, 0x10000
WS_SZ = 0x1000000
LOG2E = 1.4426950408889634
INV2PI = 0.15915494309189535

S_WG, S_WAVE, S_M, S_RHO, S_J, S_NONCE, S_TMO = 2, 3, 4, 5, 6, 7, 8
P_U, P_ARE, P_AIM, P_BRE, P_BIM, P_CRE, P_CIM, P_LDT = 16, 18, 20, 22, 24, 26, 28, 30
P_DSK, P_BX, P_W1, P_W2, P_GW, P_OUT, P_DBG, P_WS = 32, 34, 36, 38, 40, 42, 44, 46
R_WS, R_U, R_W, R_O = 48, 52, 56, 60
S_TS = 80
CBS = 17664
KO, UX = 4576, 9216
UY = UX + 4224

def emit_list(k, lst):
    for f in lst:
        if isinstance(f, tuple): k(f[0], tag=f[1])
        else: k(f)

class Gen:
    def __init__(self, opt):
        self.k = K()
        self.opt = opt
        self.marks = []
        self.role = 0
    def mark(self, name):
        self.marks.append((name, len(self.k.items)))
    def cut(self, name):
        self.k('s_branch L_%s' % name)
        self.mark(name)
        self.k.label('L_%s' % name)
    def slow(self, cond, body):
        k = self.k
        S = k.newlabel('L_slow'); B = k.newlabel('L_back')
        k('s_cbranch_%s %s' % (cond, S))
        k.cold_begin()
        k.label(S)
        body()
        k('s_nop 4')
        k('s_branch %s' % B)
        k.cold_end()
        k.label(B)
    def srd_tail(self, r, size):
        self.k('s_mov_b32 s%d, 0x%x' % (r + 2, size))
        self.k('s_mov_b32 s%d, 0x20000' % (r + 3))
    def srd_base(self, r, p):
        self.k('s_mov_b64 s[%d:%d], s[%d:%d]' % (r, r + 1, p, p + 1))
    def ts(self, i):
        if self.opt.get('hp') == 100 * self.role + i: self.k('s_memrealtime s[96:97]')
        if self.opt.get('ts') and not self.opt.get('probe') and not (self.opt.get('early') and i in (1, 3, 4)):
            self.k('%s s[%d:%d]' % ('s_memtime' if self.opt.get('cyc') else 's_memrealtime', S_TS + 2 * i, S_TS + 2 * i + 1))
    def pr(self, key, i):
        if self.opt.get('probe') == key:
            self.k('s_memtime s[%d:%d]' % (S_TS + 2 * i, S_TS + 2 * i + 1))
    def ts_init(self):
        if self.opt.get('hp') == 100 * self.role: self.k('s_mov_b32 s96, s10')
        if self.opt.get('hp') == 100 * self.role + 50: self.k('s_memrealtime s[96:97]')
        if self.opt.get('ts'):
            for i in range(10):
                if self.opt.get('early') and i in (1, 3, 4): continue
                self.k('s_mov_b32 s%d, s%d' % (S_TS + 2 * i, 100 if self.opt.get('cyc') else 10))
    def ets(self, i):
        if self.opt.get('early'): self.k('s_memtime s[%d:%d]' % (S_TS + 2 * i, S_TS + 2 * i + 1))
    def ts_store(self):
        if self.opt.get('hp', 0) // 100 == self.role:
            k = self.k
            L = k.newlabel('L_hp')
            k('s_waitcnt vmcnt(0) lgkmcnt(0)')
            k('s_sub_u32 s96, s96, s%d' % S_NONCE)
            k('s_add_u32 s96, s96, 4000')
            k.label(L)
            k('s_memrealtime s[64:65]')
            k('s_waitcnt lgkmcnt(0)')
            k('s_sub_u32 s64, s64, s%d' % S_NONCE)
            k('s_cmp_lt_u32 s64, s96')
            k('s_cbranch_scc1 %s' % L)
        if not self.opt.get('ts'): return
        k = self.k
        k('s_waitcnt vmcnt(0) lgkmcnt(0)')
        k('s_xor_b32 s64, s%d, 256' % S_WG)
        k('s_lshl_b32 s64, s64, 2')
        k('s_add_u32 s64, s64, s%d' % S_WAVE)
        k('s_lshl_b32 s64, s64, 6')
        k('s_add_u32 s64, s64, 0x%x' % WS_TS)
        k('v_mov_b32 v1, 0')
        for i in range(10):
            k('v_mov_b32 v2, s%d' % (S_TS + 2 * i))
            k('buffer_store_dword v2, v1, s[%d:%d], s64 offen offset:%d' % (R_WS, R_WS + 3, 4 * i))
        k('s_waitcnt vmcnt(0)')
    def calib(self):
        if self.opt.get('calib'):
            k = self.k
            L = k.newlabel('L_cal')
            k.label(L)
            k('s_memrealtime s[64:65]')
            k('s_waitcnt lgkmcnt(0)')
            k('s_sub_u32 s64, s64, s%d' % S_NONCE)
            k('s_cmp_lt_u32 s64, %d' % self.opt['calib'])
            k('s_cbranch_scc1 %s' % L)
    def spin_tail(self, L, D):
        k = self.k
        k('s_cbranch_scc1 %s' % D)
        k('s_sleep %d' % self.opt.get('sleep', 2))
        k('s_sub_u32 s%d, s%d, 1' % (S_TMO, S_TMO))
        k('s_cmp_lg_u32 s%d, 0' % S_TMO)
        k('s_cbranch_scc1 %s' % L)
        k.label(D)
    def nonce_issue(self, vt, vz, tag):
        k = self.k
        k('v_mov_b32 %s, 0' % vr(vz))
        k('global_load_dword %s, %s, s[%d:%d] sc1' % (vr(vt), vr(vz), P_DBG, P_DBG + 1), tag=tag)
    def nonce_get(self, vt, vz, tag=None, waited=False):
        k = self.k
        L = k.newlabel('L_nonce'); D = k.newlabel('L_nonce_ok'); C = k.newlabel('L_nonce_chk')
        k('s_mov_b32 s%d, 0x%x' % (S_TMO, self.opt.get('tmo', 0x4000)))
        if not waited: k.wait(vm=tag)
        k('s_branch %s' % C)
        k.label(L)
        k('v_mov_b32 %s, 0' % vr(vz))
        k('global_load_dword %s, %s, s[%d:%d] sc1' % (vr(vt), vr(vz), P_DBG, P_DBG + 1)); k.vm.pop()
        k('s_waitcnt vmcnt(0)')
        k.label(C)
        k('v_readfirstlane_b32 s%d, %s' % (S_NONCE, vr(vt)))
        k('s_cmp_lg_u32 s%d, 0' % S_NONCE)
        self.spin_tail(L, D)
    def poll_issue(self, vt, vaddr, soff, tag, n=1):
        self.k('buffer_load_dword%s %s, %s, s[%d:%d], %s offen sc1' % ('x2' if n == 2 else '', vr(vt, n), vr(vaddr), R_WS, R_WS + 3, soff), tag=tag)
    def poll_cmp(self, vt, which):
        k = self.k
        k('v_cmp_ne_u32 vcc, s%d, %s' % (S_NONCE, vr(vt + which[0])))
        if len(which) == 2:
            k('v_cmp_ne_u32 s[78:79], s%d, %s' % (S_NONCE, vr(vt + which[1])))
            k('s_or_b64 vcc, vcc, s[78:79]')
        k('s_cmp_eq_u64 vcc, 0')
    def poll(self, vt, vaddr, soff, n=1, first=None, waited=False, which=None):
        k = self.k
        if which is None: which = list(range(n))
        def spin():
            L = k.newlabel('L_poll'); D = k.newlabel('L_poll_ok')
            k('s_mov_b32 s%d, 0x%x' % (S_TMO, self.opt.get('tmo', 0x4000)))
            k('s_mov_b64 vcc, -1')
            k.label(L)
            k('s_mov_b64 exec, vcc')
            self.poll_issue(vt, vaddr, soff, None, n); k.vm.pop()
            k('s_mov_b64 exec, -1')
            k('s_waitcnt vmcnt(0)')
            self.poll_cmp(vt, which)
            self.spin_tail(L, D)
        if first is not None:
            if not waited: k.wait(vm=first)
            self.poll_cmp(vt, which)
            self.slow('scc0', spin)
        else: spin()
    def snonce(self, vt, vz, first=0):
        k = self.k
        if not first: k('s_load_dword s%d, s[%d:%d], 0' % (S_NONCE, P_DBG, P_DBG + 1))
        k('s_waitcnt lgkmcnt(0)')
        k('s_cmp_lg_u32 s%d, 0' % S_NONCE)
        def more():
            D = k.newlabel('L_sn_ok')
            for i in range(1, 4):
                k('s_load_dword s%d, s[%d:%d], %d' % (S_NONCE, P_DBG, P_DBG + 1, 64 * i))
                k('s_waitcnt lgkmcnt(0)')
                k('s_cmp_lg_u32 s%d, 0' % S_NONCE)
                k('s_cbranch_scc1 %s' % D)
            k('v_mov_b32 %s, 0' % vr(vt))
            self.nonce_get(vt, vz, waited=True)
            k.label(D)
        self.slow('scc0', more)
        k('s_mov_b32 s0, s%d' % S_NONCE)
        k('s_mov_b32 s1, s%d' % S_NONCE)
    def s_allok(self, base, n):
        k = self.k
        for i in range(0, n, 2):
            k('s_xor_b64 s[%d:%d], s[%d:%d], s[0:1]' % (base + i, base + i + 1, base + i, base + i + 1))
        for i in range(2, n, 2):
            k('s_or_b64 s[%d:%d], s[%d:%d], s[%d:%d]' % (base, base + 1, base, base + 1, base + i, base + i + 1))
    def spoll_loop(self, issue, base, n, s_off, s_end, rs, fallback, sleep=0):
        k = self.k
        L = k.newlabel('L_sp'); D = k.newlabel('L_sp_ok'); F = k.newlabel('L_sp_fb')
        k.label(L)
        k('s_cmp_ge_u32 s%d, s%d' % (s_off, s_end))
        k('s_cbranch_scc1 %s' % F)
        issue()
        k('s_add_u32 s%d, s%d, %d' % (s_off, s_off, rs))
        k('s_waitcnt lgkmcnt(0)')
        self.s_allok(base, n)
        k('s_cbranch_scc0 %s' % D)
        if sleep: k('s_sleep %d' % sleep)
        k('s_branch %s' % L)
        k.label(F)
        fallback()
        k.label(D)
    def flag_store_rep(self, vt, vz, soff, rs, tag=None, nrep=None):
        k = self.k
        k('v_mov_b32 %s, s%d' % (vr(vt), S_NONCE))
        k('v_mul_u32_u24 %s, %d, v0' % (vr(vz), rs))
        k('s_mov_b64 exec, %d' % ((1 << (nrep or NREP)) - 1))
        k('buffer_store_dword %s, %s, s[%d:%d], %s offen sc1' % (vr(vt), vr(vz), R_WS, R_WS + 3, soff), tag=tag)
        k('s_mov_b64 exec, -1')
    def flag_store(self, vt, vz, soff, tag=None):
        k = self.k
        k('v_mov_b32 %s, s%d' % (vr(vt), S_NONCE))
        k('v_mov_b32 %s, 0' % vr(vz))
        k('s_mov_b64 exec, 1')
        k('buffer_store_dword %s, %s, s[%d:%d], %s offen sc1' % (vr(vt), vr(vz), R_WS, R_WS + 3, soff), tag=tag)
        k('s_mov_b64 exec, -1')

    def prologue(self):
        k = self.k
        k('s_load_dwordx16 s[16:31], s[0:1], 0')
        k('s_load_dwordx16 s[32:47], s[0:1], 64')
        k('s_memrealtime s[10:11]')
        if self.opt.get('cyc'): k('s_memtime s[100:101]')
        k('v_lshrrev_b32 v1, 6, v0')
        k('v_and_b32 v0, 63, v0')
        k('v_readfirstlane_b32 s%d, v1' % S_WAVE)
        k('s_cmp_ge_u32 s2, 512')
        k('s_cbranch_scc1 L_end')
        k('s_and_b32 s%d, s2, 255' % S_M)
        k('s_bfe_u32 s66, s2, 0x20001')
        k('s_bfe_u32 s67, s2, 0x30003')
        k('s_lshl3_add_u32 s%d, s66, s67' % S_RHO)
        k('s_and_b32 s66, s2, 1')
        k('s_bfe_u32 s67, s2, 0x20006')
        k('s_lshl2_add_u32 s%d, s66, s67' % S_J)
        self.srd_tail(R_WS, WS_SZ)
        self.srd_tail(R_U, 2048 * 640 * 2)
        if self.opt.get('ipf'):
            k('s_cmp_lg_u32 s%d, 0' % S_WAVE)
            k('s_cbranch_scc1 L_noipf')
            k('s_getpc_b64 s[64:65]')
            k('s_lshr_b32 s66, s2, 3')
            k('s_mul_i32 s66, s66, %d' % (self.opt['ipf'] * 128))
            k('v_lshlrev_b32 v1, 7, v0')
            k('v_add_u32 v1, s66, v1')
            k('s_mov_b64 exec, %d' % ((1 << self.opt['ipf']) - 1))
            k('global_load_dword v255, v1, s[64:65]')
            k('s_mov_b64 exec, -1')
            k.label('L_noipf')
        k('s_cmp_ge_u32 s2, 256')
        k('s_cbranch_scc1 L_gemm')
        if self.opt.get('nossm'):
            k('s_cmp_eq_u32 s2, 128'); k('s_cbranch_scc1 L_idle'); k('s_endpgm')
        k('s_cmp_eq_u32 s%d, 3' % S_WAVE)
        k('s_cbranch_scc1 L_misc')
        if self.opt.get('hord'): k('s_branch L_chanh')

    def mtiles(self):
        return {0: [], 6: [0, 1, 2], 7: [0, 1, 3], 8: [0, 2, 3], 9: [1, 2, 3], 10: [0, 1, 2, 3]}[self.opt.get('mt', 8)]
    def conv_reads(self, sg, fb, va, vb, off=0, n=8):
        out = []
        for c in range(n):
            out.append('ds_read_b128 %s, v%d offset:%d' % (vr(fb + 4 * c, 4), va, off + 4032 - 512 * c - 64 * sg))
            out.append('ds_read_b64 %s, v%d offset:%d' % (vr(fb + 4 * n + 4 * c, 2), vb, off + 448 - 64 * sg + 512 * c))
            out.append('ds_read_b64 %s, v%d offset:%d' % (vr(fb + 4 * n + 2 + 4 * c, 2), vb, off + 448 - 64 * sg + 512 * c + 8))
        return out
    def conv_step(self, Y, fb, first, nx, tiles, n=8, per=1):
        k = self.k
        nx = list(nx)
        for c in range(8):
            for m in range(8 - c):
                if c + m not in tiles: continue
                cc = '0' if (first and c == 0) else vr(Y + 4 * (c + m), 4)
                k('v_mfma_f32_16x16x32_bf16 %s, %s, %s, %s' % (vr(Y + 4 * (c + m), 4), vr(fb + 4 * c, 4), vr(fb + 4 * n + 4 * m, 4), cc))
                emit_list(k, nx[:per]); nx = nx[per:]
        emit_list(k, nx)
    def tile_out(self, Y, tiles, tmp, vaddr, soff):
        o = []
        for i in tiles:
            o += ['v_cvt_pk_bf16_f32 v%d, v%d, v%d' % (tmp + 2 * i + rr, Y + 4 * i + 2 * rr, Y + 4 * i + 2 * rr + 1) for rr in range(2)]
            o.append('buffer_store_dwordx2 %s, v%d, s[%d:%d], %s offen offset:%d sc1' % (vr(tmp + 2 * i, 2), vaddr, R_WS, R_WS + 3, soff, 512 * i))
        return o
    def misc(self):
        k = self.k
        k.reset_counts()
        LT = 3 * CBS; LW = LT + 10240
        self.mark('misc_head')
        self.role = 3
        k.label('L_misc')
        self.ets(1)
        for i in range(5):
            k('v_add_u32 v1, %d, v0' % (64 * i))
            k('v_mul_u32_u24 v2, 205, v1')
            k('v_lshrrev_b32 v2, 11, v2')
            k('v_mul_u32_u24 v3, %d, v2' % (1280 - 160))
            k('v_lshl_add_u32 v%d, v1, 4, v3' % (10 + i))
        k('s_mul_i32 s64, s%d, %d' % (S_RHO, 64 * 1280))
        k('s_mul_i32 s65, s%d, 160' % S_J)
        k('s_add_u32 s64, s64, s65')
        k('s_add_u32 s65, s64, %d' % (32 * 1280))
        k('s_waitcnt lgkmcnt(0)')
        self.srd_base(R_U, P_U)
        for i in range(10):
            k('s_mov_b32 m0, %d' % (LT + 1024 * i))
            k('buffer_load_dwordx4 v%d, s[%d:%d], s%d offen lds' % (10 + i % 5, R_U, R_U + 3, 64 + i // 5), tag='T')
        self.ets(3)
        if not self.opt.get('whead'): self.cut('misc_main')
        self.ts_init()
        k('s_setprio %d' % self.opt.get('mprio', 3))
        self.srd_base(R_WS, P_WS)
        self.srd_base(R_W, P_W2)
        self.srd_tail(R_W, 1536 * 640 * 2)
        k('s_min_u32 s66, s%d, 239' % S_M)
        k('s_mul_i32 s67, s66, 205')
        k('s_lshr_b32 s67, s67, 10')
        k('s_mul_i32 s68, s67, 5')
        k('s_sub_u32 s68, s66, s68')
        k('s_mul_i32 s69, s67, %d' % (32 * 1280))
        k('s_lshl_b32 s70, s68, 8')
        k('s_add_u32 s69, s69, s70')
        k('v_lshrrev_b32 v1, 4, v0')
        k('v_and_b32 v2, 15, v0')
        k('v_mul_u32_u24 v1, 1280, v1')
        k('v_lshl_add_u32 v15, v2, 4, v1')
        def wdma():
            for i in range(8):
                k('s_mov_b32 m0, %d' % (LW + 1024 * i))
                k('buffer_load_dwordx4 v15, s[%d:%d], s69 offen lds' % (R_W, R_W + 3), tag='W')
                k('s_add_u32 s69, s69, %d' % (4 * 1280))
        WPOS = self.opt.get('wpos', 0)
        def pfbc():
            m_ = sum(1 << l for l in range(60) if l % 3)
            emit_list(k, ['v_mul_u32_u24 v7, 43, v0', 'v_lshrrev_b32 v7, 9, v7', 'v_mul_u32_u24 v7, %d, v7' % (3072 - 128 * 12), 'v_lshl_add_u32 v7, v0, 7, v7',
                 's_bfe_u32 s78, s2, 0x50003', 's_bfe_u32 s79, s2, 0x20001', 's_lshl_b32 s79, s79, 5', 's_add_u32 s78, s78, s79',
                 's_mul_i32 s78, s78, %d' % (5 * 3072), 's_and_b32 s79, s2, 1', 's_mul_i32 s79, s79, %d' % (128 * 12), 's_add_u32 s78, s78, s79',
                 'v_add_u32 v7, s78, v7', 's_mov_b32 exec_lo, 0x%x' % (m_ & 0xffffffff), 's_mov_b32 exec_hi, 0x%x' % (m_ >> 32),
                 'global_load_dword v255, v7, s[%d:%d]' % (P_W1, P_W1 + 1), 's_mov_b64 exec, -1'])
        if WPOS == 0: wdma()
        if self.opt.get('whead'): self.cut('misc_main')
        k('v_lshrrev_b32 v1, 4, v0')
        k('v_bfe_u32 v2, v0, 2, 2')
        k('v_and_b32 v3, 3, v0')
        k('v_lshl_add_u32 v4, v1, 3, v2')
        k('v_mul_u32_u24 v4, 160, v4')
        k('v_lshl_add_u32 v4, v3, 3, v4')
        k('v_add_u32 v18, %d, v4' % LT)
        k('v_and_b32 v5, 15, v0')
        k('v_lshlrev_b32 v5, 12, v5')
        k('v_lshl_add_u32 v19, v1, 4, v5')
        if self.opt.get('ufull'):
            LU = LW + 8192
            emit_list(k, ['v_and_b32 v5, 15, v0', 'v_and_b32 v6, 7, v0', 'v_xor_b32 v16, v1, v6', 'v_lshlrev_b32 v16, 4, v16', 'v_lshl_add_u32 v16, v5, 7, v16',
                          'v_xor_b32 v14, 64, v16', 'v_add_u32 v16, %d, v16' % LU, 'v_add_u32 v14, %d, v14' % LU,
                          'v_lshrrev_b32 v5, 3, v0', 'v_xor_b32 v17, v5, v6', 'v_lshlrev_b32 v17, 4, v17', 'v_lshl_add_u32 v17, v5, 7, v17', 'v_add_u32 v17, %d, v17' % LU,
                          'v_lshlrev_b32 v6, 4, v6', 'v_lshl_add_u32 v19, v5, 12, v6'])
        k('v_lshrrev_b32 v5, 1, v1')
        k('v_and_b32 v6, 1, v1')
        k('v_lshlrev_b32 v5, 4, v5')
        k('v_lshl_add_u32 v5, v6, 2, v5')
        k('v_add_u32 v5, v5, v2')
        k('v_lshlrev_b32 v5, 8, v5')
        k('v_lshl_add_u32 v5, v3, 3, v5')
        k('v_add_u32 v20, %d, v5' % LW)
        k('v_lshlrev_b32 v21, 4, v0')
        k('s_mul_i32 s72, s%d, %d' % (S_J, 80 * 4096))
        k('s_lshl_b32 s73, s%d, 7' % S_RHO)
        k('s_add_u32 s72, s72, s73')
        k('s_lshr_b32 s73, s%d, 3' % S_RHO)
        k('s_lshl2_add_u32 s73, s%d, s73' % S_J)
        k('s_lshl_b32 s73, s73, 5')
        k('s_and_b32 s74, s%d, 7' % S_RHO)
        k('s_add_u32 s73, s73, s74')
        k('s_lshl_b32 s73, s73, 2')
        k('s_add_u32 s77, s73, 0x%x' % WS_FU)
        if self.opt.get('ftouch'):
            k('v_mul_u32_u24 v9, %d, v0' % FU_RS)
            k('s_mov_b64 exec, %d' % ((1 << NREP) - 1))
            k('buffer_load_dword v8, v9, s[%d:%d], s77 offen' % (R_WS, R_WS + 3))
            k('s_mov_b64 exec, -1')
        k.wait(vm='T')
        self.ts(1)
        if self.opt.get('mstop') == 1: k('s_endpgm')
        for dl in range(5):
            for z in range(2):
                b = 24 + 8 * dl + 4 * z
                for e in range(2):
                    k('ds_read_b64_tr_b16 %s, v18 offset:%d' % (vr(b + 2 * e, 2), (32 * z + 4 * e) * 160 + 32 * dl), tag='t%d' % dl)
        if self.opt.get('ufull'):
            for dl in range(5):
                k.wait(lg='t%d' % dl)
                for z in range(2):
                    k('ds_write_b128 v%d, %s offset:%d' % (14 if z else 16, vr(24 + 8 * dl + 4 * z, 4), 2048 * dl))
            for i in range(10):
                k('ds_read_b128 %s, v17 offset:%d' % (vr(96 + 4 * i, 4), 1024 * i), tag='uf%d' % i)
            for i in range(10):
                k.wait(lg='uf%d' % i)
                k('buffer_store_dwordx4 %s, v19, s[%d:%d], s72 offen sc1' % (vr(96 + 4 * i, 4), R_WS, R_WS + 3), tag='Tst')
                k('s_add_u32 s72, s72, %d' % (8 * 4096))
        else:
            for dl in range(5):
                k.wait(lg='t%d' % dl)
                for z in range(2):
                    k('buffer_store_dwordx4 %s, v19, s[%d:%d], s72 offen offset:%d sc1' % (vr(24 + 8 * dl + 4 * z, 4), R_WS, R_WS + 3, 64 * z), tag='Tst')
                k('s_add_u32 s72, s72, %d' % (16 * 4096))
        if self.opt.get('pfs') == 1: pfbc()
        if WPOS == 1: wdma()
        self.snonce(8, 9)
        def uflag():
            k.wait(vm='Tst')
            self.flag_store_rep(8, 9, 's77', FU_RS)
            self.ts(2)
        uflag()
        if self.opt.get('mstop') == 2: k('s_endpgm')
        if self.opt.get('pfs') == 2: pfbc()
        if WPOS == 2: wdma()
        k('s_waitcnt vmcnt(0)')
        for fr in range(8):
            for e in range(2):
                k('ds_read_b64_tr_b16 %s, v20 offset:%d' % (vr(64 + 4 * fr + 2 * e, 2), 8 * e * 256 + 32 * fr), tag='w%d' % fr)
        k('s_mul_i32 s74, s67, 43')
        k('s_lshr_b32 s74, s74, 8')
        k('s_mul_i32 s75, s74, 6')
        k('s_sub_u32 s75, s67, s75')
        k('s_lshr_b32 s76, s75, 1')
        k('s_mul_i32 s76, s76, 14')
        k('s_add_u32 s76, s76, s75')
        k('s_lshl1_add_u32 s76, s74, s76')
        k('s_xor_b32 s72, s76, 8')
        k('s_mul_i32 s72, s72, 5')
        k('s_mul_i32 s76, s76, 5')
        for fr in range(8):
            k('s_lshl_b32 s73, s68, 3')
            k('s_add_u32 s73, s73, %d' % fr)
            k('s_mul_i32 s74, s73, 205')
            k('s_lshr_b32 s74, s74, 10')
            k('s_mul_i32 s75, s74, 235')
            k('s_add_u32 s75, s75, s73')
            k('s_cmp_ge_u32 s74, 4')
            k('s_cselect_b32 s74, s72, s76')
            k('s_add_u32 s75, s75, s74')
            k('s_lshl_b32 s75, s75, 10')
            k('s_add_u32 s75, s75, 0x%x' % WS_W2P)
            k.wait(lg='w%d' % fr)
            k('buffer_store_dwordx4 %s, v21, s[%d:%d], s75 offen sc1' % (vr(64 + 4 * fr, 4), R_WS, R_WS + 3), tag='Wst')
        k('s_lshl_b32 s73, s68, 6')
        k('s_add_u32 s73, s73, s67')
        k('s_lshl_b32 s73, s73, 2')
        k('s_add_u32 s73, s73, 0x%x' % WS_FW)
        k('s_mul_i32 s60, s%d, 3' % S_M)
        k('s_lshl_b32 s61, s%d, 1' % S_M)
        k('s_add_u32 s61, s61, 128')
        k('s_cmp_lt_u32 s%d, 128' % S_M)
        k('s_cselect_b32 s60, s60, s61')
        k('s_cselect_b32 s61, 3, 2')
        k('v_lshrrev_b32 v1, 4, v0')
        k('v_min_u32 v1, 2, v1')
        k('v_mul_u32_u24 v22, %d, v1' % CBS)
        k('v_and_b32 v2, 15, v0')
        k('v_lshl_add_u32 v1, v2, 2, v22')
        k('v_mov_b32 v2, 0')
        k('ds_write_b32 v1, v2 offset:%d' % UX)
        k('ds_write_b32 v1, v2 offset:%d' % UY)
        k('v_bfe_u32 v1, v0, 3, 2')
        k('v_and_b32 v23, 7, v0')
        k('v_lshlrev_b32 v23, 2, v23')
        k('v_lshl_add_u32 v23, v1, 7, v23')
        emit_list(k, ['v_and_b32 v6, 1, v0', 'v_cmp_eq_u32 vcc, 1, v6', 'v_and_b32 v6, 15, v0', 'v_lshrrev_b32 v7, 4, v0', 'v_lshlrev_b32 v7, 4, v7',
               'v_lshrrev_b32 v5, 1, v6', 'v_lshlrev_b32 v5, 6, v5', 'v_sub_u32 v5, v7, v5',
               'v_mov_b32 v2, %d' % (448 + KO), 'v_mov_b32 v3, 448', 'v_cndmask_b32 v2, v2, v3, vcc', 'v_add_u32 v2, v5, v2',
               'v_lshl_add_u32 v5, v6, 2, v7', 'v_mov_b32 v3, %d' % UY, 'v_mov_b32 v4, %d' % (UX + 4),
               'v_cndmask_b32 v3, v3, v4, vcc', 'v_add_u32 v3, v5, v3', 'v_lshlrev_b32 v4, 3, v0'])
        def u_issue():
            for i in range(4):
                k('s_load_dwordx8 s[%d:%d], s[%d:%d], s62 offset:%d' % (16 + 8 * i, 23 + 8 * i, R_WS, R_WS + 1, 128 * i))
        k('s_mul_i32 s64, s60, 205')
        k('s_lshr_b32 s64, s64, 14')
        k('s_add_u32 s65, s60, s61')
        k('s_sub_u32 s65, s65, 1')
        k('s_mul_i32 s65, s65, 205')
        k('s_lshr_b32 s65, s65, 14')
        if self.opt.get('wflag1'):
            k.wait(vm='Wst')
            self.flag_store(8, 9, 's73')
            if self.opt['wflag1'] == 2: k('s_waitcnt vmcnt(0)')
        k.label('L_ugrp')
        k('s_lshl_b32 s9, s64, 9')
        k('s_add_u32 s9, s9, 0x%x' % WS_FU)
        k('s_mov_b32 s62, s9')
        k('s_add_u32 s63, s9, %d' % (NREP * FU_RS))
        self.spoll_loop(u_issue, 16, 32, 62, 63, FU_RS, lambda: self.poll(24, 23, 's9'), sleep=self.opt.get('ssleep', 2))
        k('s_add_u32 s64, s64, 1')
        k('s_cmp_le_u32 s64, s65')
        k('s_cbranch_scc1 L_ugrp')
        self.ts(5)
        k.wait(vm='Wst')
        k('s_lshl_b32 s64, s60, 12')
        for c in range(3):
            if c == 2:
                k('s_cmp_lt_u32 s61, 3')
                k('s_cbranch_scc1 L_u2')
            k('s_add_u32 s65, s64, 4')
            k('s_mov_b32 m0, %d' % (c * CBS + UX + 64))
            for i in range(4):
                k('buffer_load_dwordx4 v21, s[%d:%d], s64 offen offset:%d sc1 lds' % (R_WS, R_WS + 3, 1024 * i))
            k('s_mov_b32 m0, %d' % (c * CBS + UY + 64))
            for i in range(4):
                k('buffer_load_dwordx4 v21, s[%d:%d], s65 offen offset:%d sc1 lds' % (R_WS, R_WS + 3, 1024 * i))
            k('s_add_u32 s64, s64, 4096')
        k.label('L_u2')
        if not self.opt.get('wflag1'): self.flag_store(8, 9, 's73')
        self.ts(7)
        k('s_waitcnt vmcnt(%d)' % (0 if self.opt.get('wflag1') else 1))
        k('ds_read_b32 v1, v22 offset:%d' % (UX + 64))
        k('s_waitcnt lgkmcnt(0)')
        k('ds_write_b32 v22, v1 offset:%d' % (UY + 60))
        k('s_waitcnt lgkmcnt(0)')
        self.ts(6)
        k('s_barrier')
        if self.opt.get('mstop') == 3: k('s_endpgm')
        MT = self.mtiles()
        k('s_setprio %d' % self.opt.get('mvprio', 0))
        k('s_lshl_b32 s64, s60, 12')
        k('s_add_u32 s64, s64, 0x%x' % WS_AT)
        if MT:
            FBm = [96, 128, 160]
            steps = [(c, sg) for c in range(3) for sg in range(8)]
            tagged = lambda i: [(l, 'cs%d' % i) for l in self.conv_reads(steps[i][1], FBm[i % 3], 2, 3, CBS * steps[i][0], 4)]
            emit_list(k, tagged(0) + tagged(1))
            wq = []
            for i, (c, sg) in enumerate(steps):
                Ym = 32 + 16 * (c % 2)
                if c == 2 and sg == 0:
                    k('s_cmp_lt_u32 s61, 3')
                    k('s_cbranch_scc1 L_m2')
                k.wait(lg='cs%d' % i)
                nx = tagged(i + 2) if i + 2 < len(steps) else []
                if sg == 1: nx = nx + wq; wq = []
                self.conv_step(Ym, FBm[i % 3], sg == 0, nx, MT, 4, 2)
                if sg == 7:
                    wq = self.tile_out(Ym, MT, 64 + 8 * c, 4, 's64') + ['s_add_u32 s64, s64, 4096']
                    if c == 1: w1 = list(wq)
            k('s_setprio 3')
            emit_list(k, wq)
            k('s_branch L_m3')
            k.label('L_m2')
            k.pad(8)
            emit_list(k, w1)
            k.label('L_m3')
        self.ts(3)
        k('v_and_b32 v8, 3, v0')
        k('v_cmp_gt_u32 vcc, s61, v8')
        k('v_add_u32 v8, s60, v8')
        k('v_lshrrev_b32 v9, 3, v8')
        k('v_and_b32 v8, 7, v8')
        k('v_lshlrev_b32 v8, 2, v8')
        k('v_lshl_add_u32 v8, v9, 7, v8')
        k('v_lshrrev_b32 v9, 2, v0')
        k('v_mul_u32_u24 v9, %d, v9' % FA_RS)
        k('v_add_u32 v8, v8, v9')
        k('v_mov_b32 v9, s%d' % S_NONCE)
        k('s_and_b32 s66, vcc_lo, 0x%x' % ((1 << (4 * NREP)) - 1))
        k('s_mov_b32 s67, 0')
        k('s_mov_b32 s65, 0x%x' % WS_FA)
        k('s_waitcnt vmcnt(0) lgkmcnt(0)')
        k('s_barrier')
        k('s_mov_b64 exec, s[66:67]')
        k('buffer_store_dword v9, v8, s[%d:%d], s65 offen sc1' % (R_WS, R_WS + 3))
        k('s_mov_b64 exec, -1')
        self.ts(4)
        self.ts_store()
        k('s_endpgm')
        self.mark('idle')
        k.label('L_idle')
        k('s_cmp_lg_u32 s2, 128')
        k('s_cbranch_scc1 L_end')
        k('s_cmp_lg_u32 s%d, 2' % S_WAVE)
        k('s_cbranch_scc1 L_end')
        k('v_lshlrev_b32 v2, 6, v0')
        k('s_waitcnt lgkmcnt(0)')
        k('s_or_b32 s10, s10, 1')
        k('v_mov_b32 v1, s10')
        k('s_mov_b64 exec, 15')
        k('global_store_dword v2, v1, s[%d:%d] sc1' % (P_DBG, P_DBG + 1))
        if self.opt.get('latprobe'):
            ptr = {1: P_BX, 2: P_WS, 3: P_BX}[self.opt['latprobe']]
            k.label('L_lp0')
            k('s_memrealtime s[64:65]')
            k('s_waitcnt lgkmcnt(0)')
            k('s_sub_u32 s64, s64, s10')
            k('s_cmp_lt_u32 s64, 3500')
            k('s_cbranch_scc1 L_lp0')
            k('v_mov_b32 v2, 0x%x' % (0x100000 if ptr == P_BX else 0x8000000))
            k('s_memtime s[70:71]')
            k('global_load_dword v3, v2, s[%d:%d]' % (ptr, ptr + 1))
            k('s_waitcnt vmcnt(0)')
            k('s_memtime s[66:67]')
            k('s_waitcnt lgkmcnt(0)')
            for i in range(4):
                k('v_add_u32 v2, 0x3480, v2')
                k('global_load_dword v3, v2, s[%d:%d]' % (ptr, ptr + 1))
                k('s_waitcnt vmcnt(0)')
            k('s_memtime s[68:69]')
            k('s_waitcnt lgkmcnt(0)')
            if self.opt['latprobe'] == 3:
                k('s_sub_u32 s68, s66, s70')
            else:
                k('s_sub_u32 s68, s68, s66')
                k('s_lshr_b32 s68, s68, 2')
            k('v_mov_b32 v1, s68')
            k('v_mov_b32 v2, 0')
            k('global_store_dword v2, v1, s[%d:%d] offset:16' % (P_DBG, P_DBG + 1))
            k('s_add_u32 s68, s68, 4000')
            k.label('L_lp1')
            k('s_memrealtime s[64:65]')
            k('s_waitcnt lgkmcnt(0)')
            k('s_sub_u32 s64, s64, s10')
            k('s_cmp_lt_u32 s64, s68')
            k('s_cbranch_scc1 L_lp1')
        k('s_endpgm')

    def cmul(self, d, a, b):
        if self.opt.get('nopk'):
            return ['v_mul_f32 v%d, v%d, v%d' % (d, a, b),
                    'v_mul_f32 v%d, v%d, v%d' % (d + 1, a, b + 1),
                    'v_fma_f32 v%d, -v%d, v%d, v%d' % (d, a + 1, b + 1, d),
                    'v_fmac_f32 v%d, v%d, v%d' % (d + 1, a + 1, b)]
        return ['v_pk_mul_f32 %s, %s, %s op_sel:[0,0] op_sel_hi:[0,1]' % (vr(d, 2), vr(a, 2), vr(b, 2)),
                'v_pk_fma_f32 %s, %s, %s, %s op_sel:[1,1,0] op_sel_hi:[1,0,1] neg_lo:[1,0,0]' % (vr(d, 2), vr(a, 2), vr(b, 2), vr(d, 2))]
    def chan(self):
        k = self.k; opt = self.opt
        k.reset_counts()
        self.mark('chan_head')
        self.role = 2
        k.label('L_chanh')
        self.ets(1)
        S_D, S_CB, S_DSK = 12, 13, 14
        k('s_mul_i32 s64, s%d, 3' % S_M)
        k('s_lshl_b32 s65, s%d, 1' % S_M)
        k('s_add_u32 s65, s65, 128')
        k('s_cmp_lt_u32 s%d, 128' % S_M)
        k('s_cselect_b32 s64, s64, s65')
        k('s_cselect_b32 s65, 3, 2')
        k('s_cmp_ge_u32 s%d, s65' % S_WAVE)
        k('s_cbranch_scc1 L_idle')
        if opt.get('nochan'): k('s_endpgm')
        k('s_add_u32 s%d, s64, s%d' % (S_D, S_WAVE))
        k('s_mul_i32 s%d, s%d, %d' % (S_CB, S_WAVE, CBS))
        PR = 232
        for i in range(6): k('v_mov_b32 v%d, 0' % (PR + 3 * i + 2))
        k('s_mul_i32 s64, s%d, 384' % S_D)
        k('v_lshlrev_b32 v1, 1, v0')
        k('v_add_u32 v1, s64, v1')
        k('v_lshl_add_u32 v2, v0, 2, s64')
        k('s_lshr_b32 s64, s%d, 1' % S_D)
        k('s_lshl_b32 s64, s64, 2')
        k('s_waitcnt lgkmcnt(0)')
        self.ets(3)
        for ai, p in enumerate((P_ARE, P_AIM, P_BRE, P_BIM, P_CRE, P_CIM)):
            k('global_load_dword v%d, v2, s[%d:%d]' % (PR + 3 * ai + 1, p, p + 1), tag='par0')
        k('s_load_dword s65, s[%d:%d], s64' % (P_LDT, P_LDT + 1))
        k('s_load_dword s66, s[%d:%d], s64' % (P_DSK, P_DSK + 1))
        for ai, p in enumerate((P_ARE, P_AIM, P_BRE, P_BIM, P_CRE, P_CIM)):
            k('global_load_short_d16_hi v%d, v1, s[%d:%d] offset:256' % (PR + 3 * ai + 2, p, p + 1), tag='par2')
        if opt.get('gtouch'):
            k('v_min_u32 v3, 9, v0')
            k('v_lshlrev_b32 v3, 7, v3')
            k('global_load_dword v3, v3, s[%d:%d]' % (P_GW, P_GW + 1), tag='par2')
        self.cut('chan_main')
        self.ets(4)
        self.ts_init()
        self.srd_base(R_WS, P_WS)
        if opt.get('cprio'): k('s_setprio %d' % opt['cprio'])
        V_DT = 4
        ACC, QF, DT_, VV, GG, ID = 16, 32, 64, 128, 192, 208
        k('v_and_b32 v6, 31, v0')
        k('v_lshrrev_b32 v7, 5, v0')
        k('v_lshlrev_b32 v7, 3, v7')
        k('v_sub_u32 v6, v6, v7')
        k('v_and_b32 v7, 1, v0')
        k('v_lshlrev_b32 v7, 4, v7')
        k('v_mov_b32 v8, 0x3f80')
        k('v_lshlrev_b32 v7, v7, v8')
        k('v_lshrrev_b32 v6, 1, v6')
        for d in range(8):
            k('v_cmp_eq_u32 vcc, %d, v6' % (d if d < 4 else d + 4))
            k('v_cndmask_b32 v%d, 0, v7, vcc' % (ID + d))
        for i in range(16): k('v_mov_b32 v%d, 0' % (ACC + i))
        k('s_and_b32 s64, s%d, 1' % S_D)
        k('s_lshl_b32 s64, s64, 4')
        k('s_waitcnt lgkmcnt(0)')
        k('s_lshr_b32 s65, s65, s64')
        k('s_lshl_b32 s65, s65, 16')
        k('s_lshr_b32 s66, s66, s64')
        k('s_lshl_b32 s%d, s66, 16' % S_DSK)
        k('v_mov_b32 v6, s65')
        k('v_mul_f32 v6, %s, v6' % fhex(LOG2E))
        k('v_exp_f32 v6, v6')
        k('v_cvt_pk_bf16_f32 v6, v6, v6')
        k('v_lshlrev_b32 v%d, 16, v6' % V_DT)
        X_, E1, E2, E4, E8, E256, E16, C_ = 216, 218, 220, 222, 224, 226, 228, 230
        T0 = GG
        order = [0, 1, 2, 3, 4, 5, 6, 7, 4, 256, 258, 260, 8, 260, 262, 264, 512, 516, 520, 1024, 768, 772, 776, 1536, 1032, 1280, 1288, 1288, 1544, 1792, 1800, 1800]
        pv = {}
        for i, o in enumerate(order): pv.setdefault(o, VV + 2 * i)
        pv[0] = C_
        Dt = lambda t: DT_ + 16 * t
        def kmfma(s):
            return 'v_mfma_f32_32x32x16_bf16 %s, %s, %s, %s' % (vr(ACC, 16), vr(Dt(s >> 1) + 4 * (s & 1), 4), vr(QF + 4 * s, 4), vr(ACC, 16))
        S_PS = 73
        def setup(ps):
            if ps != 1: k.wait(vm='par%d' % ps)
            if ps == 0:
                for a_ in range(6):
                    k('v_lshlrev_b32 v%d, 16, v%d' % (PR + 3 * a_, PR + 3 * a_ + 1))
                    k('v_and_b32 v%d, 0xffff0000, v%d' % (PR + 3 * a_ + 1, PR + 3 * a_ + 1))
            ar, ai, br, bi, cr, ci = [PR + 3 * a + ps for a in range(6)]
            self.pr(200 + ps, 0)
            su = []
            su.append('v_mul_f32 v%d, v%d, v%d' % (X_, V_DT, ar))
            su.append('v_mul_f32 v%d, v%d, v%d' % (X_ + 1, V_DT, ai))
            su.append('v_mul_f32 v%d, %s, v%d' % (X_, fhex(LOG2E), X_))
            su.append('v_mul_f32 v%d, %s, v%d' % (X_ + 1, fhex(INV2PI), X_ + 1))
            su.append('v_rndne_f32 v%d, v%d' % (T0 + 2, X_ + 1))
            su.append('v_mul_f32 v%d, v%d, v%d' % (T0, V_DT, br))
            su.append('v_mul_f32 v%d, v%d, v%d' % (T0 + 1, V_DT, bi))
            su.append('v_sub_f32 v%d, v%d, v%d' % (X_ + 1, X_ + 1, T0 + 2))
            su.append('v_mul_f32 v%d, v%d, v%d' % (C_, cr, T0))
            su.append('v_mul_f32 v%d, v%d, v%d' % (C_ + 1, cr, T0 + 1))
            su.append('v_fma_f32 v%d, -v%d, v%d, v%d' % (C_, ci, T0 + 1, C_))
            su.append('v_fmac_f32 v%d, v%d, v%d' % (C_ + 1, ci, T0))
            for idx, (dst, p) in enumerate(((E8, 8.0), (E1, 1.0), (E256, 256.0))):
                t = T0 + 4 + 4 * idx
                if p == 1.0: m, th = X_, X_ + 1
                else:
                    su.append('v_mul_f32 v%d, %s, v%d' % (t, fhex(p), X_))
                    su.append('v_mul_f32 v%d, %s, v%d' % (t + 1, fhex(p), X_ + 1))
                    m, th = t, t + 1
                su.append('v_exp_f32 v%d, v%d' % (t + 2, m))
                su.append('v_cos_f32 v%d, v%d' % (dst, th))
                su.append('v_sin_f32 v%d, v%d' % (dst + 1, th))
            for idx, dst in enumerate((E8, E1, E256)):
                t = T0 + 4 + 4 * idx
                su.append('v_mul_f32 v%d, v%d, v%d' % (dst, dst, t + 2))
                su.append('v_mul_f32 v%d, v%d, v%d' % (dst + 1, dst + 1, t + 2))
            if ps > 0:
                for i, l in enumerate(su):
                    if i % 6 == 0 and i // 6 < 4: k(kmfma(4 + i // 6))
                    k(l)
            else:
                emit_list(k, su)
        setup(0)
        self.ts(1)
        k('s_mov_b32 s%d, 0' % S_PS)
        k.raw('.p2align 3')
        k.label('L_kbody')
        ps = 1
        def weave(ms, fill):
            per = -(-len(fill) // len(ms))
            for m in ms:
                k(m)
                emit_list(k, fill[:per]); fill = fill[per:]
        def cvts(src, part, neg):
            out = []
            for g in range(4):
                for d in range(4):
                    dst = GG + 4 * g + d if part == 0 else VV + 16 * g + d
                    ops = []
                    for o in src[8 * g + 2 * d: 8 * g + 2 * d + 2]:
                        if o is None: ops.append('1.0' if part == 0 else '0')
                        else: ops.append('%sv%d' % ('-' if neg else '', o + part))
                    out.append('v_cvt_pk_bf16_f32 v%d, %s, %s' % (dst, ops[0], ops[1]))
            return out
        grp = lambda part, g: GG + 4 * g if part == 0 else VV + 16 * g
        def swaps(part):
            return ['v_permlane32_swap_b32 v%d, v%d' % (grp(part, g) + d, grp(part, g + 1) + d) for g in (0, 2) for d in range(4)]
        def tm(part):
            t = 2 * part
            f = lambda tl, g, c: 'v_mfma_f32_32x32x16_bf16 %s, %s, %s, %s' % (vr(Dt(tl), 16), vr(grp(part, g), 4), vr(ID + 4 * (g >> 1), 4), c)
            return [f(t, 0, '0'), f(t, 2, vr(Dt(t), 16)), f(t + 1, 1, '0'), f(t + 1, 3, vr(Dt(t + 1), 16))]
        def back(t, dst):
            return ['v_cvt_pk_bf16_f32 v%d, v%d, v%d' % (dst + d, Dt(t) + 2 * d, Dt(t) + 2 * d + 1) for d in range(8)]
        self.pr(200 + ps, 1)
        qs = [None, E8, E16] + [VV + 2 * b_ for b_ in range(3, 32)]
        emit_list(k, self.cmul(E16, E8, E8))
        for b_ in range(3, 32): emit_list(k, self.cmul(qs[b_], qs[b_ - 2], E16))
        self.pr(200 + ps, 2)
        emit_list(k, cvts(qs, 0, False) + swaps(0))
        weave(tm(0), cvts(qs, 1, True) + swaps(1))
        weave(tm(1), back(0, QF) + back(1, QF + 8))
        self.pr(200 + ps, 3)
        cm = lambda o, a_, e: emit_list(k, self.cmul(pv[o], pv[a_], e))
        emit_list(k, self.cmul(E2, E1, E1))
        emit_list(k, self.cmul(E4, E2, E2))
        for o in range(1, 9): cm(o, o - 1, E1)
        for o in (256, 512, 768, 1024, 1280, 1536, 1792): cm(o, o - 256, E256)
        for o in (258, 260, 262, 264): cm(o, o - 2, E2)
        cm(516, 512, E4); cm(520, 512, E8); cm(772, 768, E4); cm(776, 768, E8)
        for o in (1032, 1288, 1544, 1800): cm(o, o - 8, E8)
        self.pr(200 + ps, 4)
        psrc = [pv[o] for o in order]
        emit_list(k, cvts(psrc, 0, False) + swaps(0))
        weave(tm(0), back(2, QF + 16) + back(3, QF + 24) + cvts(psrc, 1, False) + swaps(1))
        self.pr(200 + ps, 5)
        weave(tm(1), back(0, Dt(0)) + back(1, Dt(1)))
        weave([kmfma(s_) for s_ in range(4)], back(2, Dt(2)) + back(3, Dt(3)))
        self.pr(200 + ps, 7)
        k('s_add_u32 s%d, s%d, 1' % (S_PS, S_PS))
        k('s_cmp_eq_u32 s%d, 3' % S_PS)
        k('s_cbranch_scc1 L_kexit')
        k('s_cmp_eq_u32 s%d, 2' % S_PS)
        k('s_cbranch_scc1 L_ks2')
        lg_save = list(k.lg)
        setup(1)
        k('s_branch L_kbody')
        k.label('L_ks2')
        k.lg = list(lg_save)
        setup(2)
        k('s_branch L_kbody')
        k.label('L_kexit')
        if opt.get('xprio'): k('s_setprio %d' % opt['xprio'])
        k('s_load_dword s%d, s[%d:%d], 0' % (S_NONCE, P_DBG, P_DBG + 1))
        k('s_cmp_ge_u32 s%d, 2' % S_WAVE)
        k('s_cbranch_scc1 L_nogate0')
        self.gate(0)
        k.label('L_nogate0')
        k.lg = list(lg_save)
        ex = []
        ex += ['v_and_b32 v6, 31, v0', 'v_lshrrev_b32 v7, 5, v0', 'v_lshlrev_b32 v8, 4, v6', 'v_sub_u32 v8, s%d, v8' % S_CB,
               'v_lshlrev_b32 v9, 3, v7', 'v_sub_u32 v9, v8, v9', 'v_add_u32 v9, 504, v9',
               'v_lshlrev_b32 v10, 9, v7', 'v_sub_u32 v10, v8, v10', 'v_add_u32 v10, 1008, v10',
               'v_lshlrev_b32 v11, 10, v7', 'v_sub_u32 v11, v8, v11', 'v_add_u32 v11, 1520, v11',
               'v_add_u32 v12, %d, v9' % (KO + 4084 - 504), 'v_add_u32 v13, %d, v9' % (KO + 4084 - 512 - 504),
               'v_and_b32 v6, 1, v0', 'v_cmp_eq_u32 vcc, 1, v6',
               'v_min_u32 v14, 27, v0', 'v_lshlrev_b32 v14, 4, v14', 'v_add_u32 v14, s%d, v14' % S_CB]
        ex += ['v_mov_b32 v%d, 0' % (96 + i) for i in range(4)]
        V_A, V_B = 2, 3
        ex += ['v_and_b32 v6, 15, v0', 'v_lshrrev_b32 v7, 4, v0', 'v_lshlrev_b32 v7, 4, v7', 'v_add_u32 v7, s%d, v7' % S_CB,
               'v_lshrrev_b32 v8, 1, v6', 'v_lshlrev_b32 v8, 6, v8', 'v_sub_u32 v8, v7, v8',
               'v_mov_b32 v102, %d' % (448 + KO), 'v_mov_b32 v103, 448', 'v_cndmask_b32 v102, v102, v103, vcc', 'v_add_u32 v%d, v8, v102' % V_A,
               'v_lshl_add_u32 v8, v6, 2, v7', 'v_mov_b32 v102, %d' % UY, 'v_mov_b32 v103, %d' % (UX + 4),
               'v_cndmask_b32 v102, v102, v103, vcc', 'v_add_u32 v%d, v8, v102' % V_B, 'v_mov_b32 v15, s%d' % S_CB]
        ex = [l.replace('v102', 'v202').replace('v103', 'v203') for l in ex]
        ex = [l.replace('v_mov_b32 v9', 'v_mov_b32 v19') if l.startswith('v_mov_b32 v9') else l for l in ex]
        for s in range(4, 8):
            k(kmfma(s))
            emit_list(k, ex[:6]); ex = ex[6:]
        emit_list(k, ex)
        k('ds_write_b128 v14, v[196:199] offset:4096')
        k('ds_write_b128 v14, v[196:199] offset:%d' % (KO + 4096))
        self.ts(3)
        V = lambda r: ACC + r
        pk = lambda d, lo, hi: k('v_cvt_pk_bf16_f32 v%d, v%d, v%d' % (d, lo, hi))
        k('s_mov_b64 exec, 1')
        k('v_add_f32 v%d, s%d, v%d' % (V(0), S_DSK, V(0)))
        k('s_mov_b64 exec, -1')
        k('v_cndmask_b32 v100, v%d, v%d, vcc' % (V(11), V(12)))
        k('v_cndmask_b32 v101, v%d, v%d, vcc' % (V(13), V(14)))
        pk(32, V(3), V(2)); pk(33, V(1), V(0))
        pk(34, V(7), V(6)); pk(35, V(5), V(5))
        pk(36, V(10), V(10)); pk(37, V(9), V(9)); pk(38, V(9), V(8)); pk(39, V(8), V(8))
        pk(40, V(10), V(9)); k('v_mov_b32 v41, v37'); k('v_mov_b32 v42, v39'); k('v_mov_b32 v43, v39')
        for (lo, hi, T, off, rb) in ((11, 12, 100, 2032, 44), (13, 14, 101, 1520, 52)):
            pk(rb, V(hi), V(hi)); pk(rb + 1, V(hi), T); pk(rb + 2, V(lo), V(lo)); k('v_mov_b32 v%d, v%d' % (rb + 3, rb + 2))
            k('v_mov_b32 v%d, v%d' % (rb + 4, rb)); pk(rb + 5, T, V(lo)); k('v_mov_b32 v%d, v%d' % (rb + 6, rb + 2)); k('v_mov_b32 v%d, v%d' % (rb + 7, rb + 2))
        pk(60, V(4), V(3)); pk(61, V(2), V(1))
        pk(62, V(7), V(7)); pk(63, V(6), V(5))
        pk(102, V(0), 196)
        k('ds_write_b64 v9, v[32:33] offset:%d' % (4088 - 504))
        k('ds_write_b64 v9, v[34:35] offset:%d' % (4088 - 512 - 504))
        k('ds_write2_b32 v12, v60, v61 offset0:0 offset1:1')
        k('ds_write2_b32 v13, v62, v63 offset0:0 offset1:1')
        k('ds_write_b128 v10, v[36:39] offset:%d' % (3056 - 1008))
        k('ds_write_b128 v10, v[40:43] offset:%d' % (KO + 3056 - 1008))
        for (off, rb) in ((2032, 44), (1520, 52)):
            k('ds_write_b128 v11, %s offset:%d' % (vr(rb, 4), off - 1520))
            k('ds_write_b128 v11, %s offset:%d' % (vr(rb + 4, 4), KO + off - 1520))
        k('s_mov_b64 exec, 1')
        k('ds_write_b32 v15, v102 offset:%d' % (KO + 4092))
        k('s_mov_b64 exec, -1')
        self.snonce(104, 105, first=1)
        self.ts(2)
        k('s_cmp_ge_u32 s%d, 2' % S_WAVE)
        k('s_cbranch_scc1 L_nogate')
        self.gate(1)
        k.label('L_nogate')
        k('s_waitcnt lgkmcnt(0)')
        k('s_barrier')
        if opt.get('cstop') == 3: k('s_endpgm')
        Y = 16
        FB = [64, 128]
        CT = [i for i in range(8) if i not in self.mtiles()]
        self.ts(4)
        k('s_setprio %d' % opt.get('vprio', 0))
        emit_list(k, self.conv_reads(0, FB[0], V_A, V_B))
        fin = ['v_lshlrev_b32 v8, 3, v0', 's_lshl_b32 s64, s%d, 12' % S_D, 's_add_u32 s64, s64, 0x%x' % WS_AT]
        for sg in range(8):
            k.wait(lg='all')
            if opt.get('cpat'):
                k('s_setprio %d' % (3 if (opt['cpat'] >> sg) & 1 else 0))
            nx = self.conv_reads(sg + 1, FB[(sg + 1) % 2], V_A, V_B) if sg + 1 < 8 else fin
            self.conv_step(Y, FB[sg % 2], sg == 0, nx, CT)
        self.ts(5)
        k('s_setprio 3')
        emit_list(k, self.tile_out(Y, CT, 64, 8, 's64'))
        self.ts(6)
        k.wait(vm='all')
        k('s_barrier')
        self.ts(7)
        self.ts_store()
        k('s_endpgm')

    def gate(self, part):
        k = self.k
        GX, GW = 128, 168
        if part == 0: self.gate_issue(GX, GW)
        else: self.gate_finish(GX, GW)
    def gate_issue(self, GX, GW):
        k = self.k
        if self.opt.get('gateprio'): k('s_setprio %d' % self.opt['gateprio'])
        self.srd_base(R_U, P_U)
        k('v_and_b32 v5, 15, v0')
        k('v_lshlrev_b32 v5, 4, v5')
        k('v_lshrrev_b32 v1, 4, v0')
        k('v_mul_u32_u24 v7, 1280, v1')
        k('v_add_u32 v7, v7, v5')
        k('s_lshl3_add_u32 s70, s%d, s%d' % (S_RHO, S_J))
        k('s_lshl1_add_u32 s70, s70, s%d' % S_WAVE)
        k('s_mul_i32 s71, s70, %d' % (4 * 1280))
        for i in range(5):
            k('buffer_load_dwordx4 %s, v7, s[%d:%d], s71 offen offset:%d' % (vr(GX + 4 * i, 4), R_U, R_U + 3, 256 * i), tag='G%d' % i)
            k('global_load_dwordx4 %s, v5, s[%d:%d] offset:%d' % (vr(GW + 4 * i, 4), P_GW, P_GW + 1, 256 * i), tag='G%d' % i)
        if self.opt.get('gateprio'): k('s_setprio %d' % self.opt.get('xprio', 0))
    def gate_finish(self, GX, GW):
        k = self.k
        k('v_mov_b32 v160, 0')
        k('v_mov_b32 v161, 0')
        for i in range(20):
            if i % 4 == 0: k.wait(vm='G%d' % (i // 4))
            x, w = GX + i, GW + i
            t = 152
            if self.opt.get('dotgate'):
                k('v_dot2_f32_bf16 v%d, v%d, v%d, v%d' % (160 + i % 2, x, w, 160 + i % 2))
                continue
            k('v_lshlrev_b32 v%d, 16, v%d' % (t, x))
            k('v_and_b32 v%d, 0xffff0000, v%d' % (t + 1, x))
            k('v_lshlrev_b32 v%d, 16, v%d' % (t + 2, w))
            k('v_and_b32 v%d, 0xffff0000, v%d' % (t + 3, w))
            k('v_mul_f32 v%d, v%d, v%d' % (t, t, t + 2))
            k('v_mul_f32 v%d, v%d, v%d' % (t + 1, t + 1, t + 3))
            k('v_cvt_pk_bf16_f32 v%d, v%d, v%d' % (t + 4, t, t + 1))
            k('v_lshlrev_b32 v%d, 16, v%d' % (t, t + 4))
            k('v_and_b32 v%d, 0xffff0000, v%d' % (t + 1, t + 4))
            k('v_add_f32 v160, v160, v%d' % t)
            k('v_add_f32 v161, v161, v%d' % (t + 1))
        if self.opt.get('dotgate'): k('s_nop 3')
        k('v_add_f32 v160, v160, v161')
        for m in ('quad_perm:[1,0,3,2]', 'quad_perm:[2,3,0,1]', 'row_half_mirror', 'row_mirror'):
            k('v_add_f32_dpp v160, v160, v160 %s row_mask:0xf bank_mask:0xf' % m)
        k('v_cvt_pk_bf16_f32 v160, v160, v160')
        k('v_lshlrev_b32 v160, 16, v160')
        k('v_mul_f32 v160, %s, v160' % fhex(-LOG2E))
        k('v_exp_f32 v160, v160')
        k('v_add_f32 v160, 1.0, v160')
        k('v_rcp_f32 v160, v160')
        k('v_cvt_pk_bf16_f32 v160, v160, v160')
        k('v_lshlrev_b32 v160, 16, v160')
        k('v_mov_b32 v161, s%d' % S_NONCE)
        k('v_lshlrev_b32 v6, 3, v1')
        k('s_lshl_b32 s70, s70, 5')
        k('s_add_u32 s70, s70, 0x%x' % WS_G)
        k('s_mov_b32 s74, 0x00010001')
        k('s_mov_b32 s75, 0x00010001')
        k('s_mov_b64 exec, s[74:75]')
        k('buffer_store_dwordx2 v[160:161], v6, s[%d:%d], s70 offen sc1' % (R_WS, R_WS + 3))
        k('s_mov_b64 exec, -1')

    def build(self):
        import gemm18
        k = self.k
        self.prologue()
        self.misc()
        self.chan()
        k.reset_counts()
        self.mark('gemm_head')
        self.role = 1
        k.label('L_gemm')
        self.ets(1)
        if self.opt.get('nogemm'): k('s_endpgm')
        else: gemm18.emit(self)
        self.mark('end')
        k.label('L_end')
        k('s_endpgm')
        secs = {}; prev = ('pro', 0)
        for m in self.marks + [('eof', len(k.items))]:
            secs[prev[0]] = k.items[prev[1]:m[1]]; prev = m
        order = ['pro'] + {0: ['chan_head', 'misc_head', 'idle', 'gemm_head'], 1: ['misc_head', 'chan_head', 'idle', 'gemm_head'], 2: ['gemm_head', 'chan_head', 'misc_head', 'idle'], 3: ['misc_head', 'gemm_head', 'chan_head', 'idle']}[self.opt.get('hord', 0)] + [ 'chan_main', 'misc_main', 'gemm_main', 'end']
        k.items = sum((secs[n] for n in order if n in secs), []) + sum(getattr(k, 'colds', []), [])
        assert set(secs) <= set(order)
        if self.opt.get('ipf'): k.raw('.fill ((%d - (. - %s)) / 4), 4, 0xbf810000' % (64 * 128 * self.opt['ipf'] + 256, KNAME))
        hdr = open('gated_mix__ssm_conv_s4__dense_activation_silu__prompt.s.ref').read().split('; Override launch')[0]
        s = hdr + '; @launch grid=(512,1,1) block=(256,1,1) lds=81920\n'
        s += '.amdgcn_target "amdgcn-amd-amdhsa--gfx950"\n.text\n.globl %s\n.p2align 8\n.type %s,@function\n%s:\n' % (KNAME, KNAME, KNAME)
        s += k.text()
        s += '.section .rodata,"a"\n.p2align 6\n.amdhsa_kernel %s\n' % KNAME
        s += '  .amdhsa_next_free_vgpr 256\n  .amdhsa_next_free_sgpr 102\n  .amdhsa_accum_offset 256\n  .amdhsa_group_segment_fixed_size 0\n'
        s += '  .amdhsa_kernarg_size 128\n  .amdhsa_user_sgpr_count 2\n  .amdhsa_user_sgpr_kernarg_segment_ptr 1\n  .amdhsa_system_sgpr_workgroup_id_x 1\n.end_amdhsa_kernel\n'
        return s

if __name__ == '__main__':
    opt = {}
    out = sys.argv[1]
    for a in sys.argv[2:]:
        if '=' in a:
            kk, v = a.split('='); opt[kk] = int(v, 0)
        else: opt[a] = 1
    g = Gen(opt)
    open(out, 'w').write(g.build())
    print('nops inserted', g.k.nops, 'lines', len(g.k.items))
```

```python
from kgen import *
from gen18 import *

def emit(G):
    k = G.k
    opt = G.opt
    KS = opt.get('ks', 2)
    S_FA, S_LW, S_GG, S_HS, S_V, S_H0, S_FH, S_FC = 4, 9, 10, 11, 12, 13, 14, 15
    S_H1, S_FW, S_AT, S_AD, S_OUT, S_A3, S_AC, S_AE, S_FC2 = 40, 41, 42, 43, 46, 47, 78, 79, 8 + 92
    S_XZ, S_WZ = 68, 73
    VV, VR, VRH, VHL, VFH, VFW, V_FA, V_AD, V_G, V_AR, V_OW, V_OS = 2, 3, 4, 5, 7, 8, 9, 10, 11, 12, 13, 14
    VW, WA, WAH, VH, V_NON, V_REP, ET = 17, 21, 22, 23, 24, 25, 26
    VX, XA, XT = 80, 84, 92
    g_, c_ = 30, 31
    k('v_lshrrev_b32 v30, 4, v0')
    k('v_and_b32 v31, 15, v0')
    k('v_and_b32 v27, 2, v30')
    k('v_add_u32 v27, v27, v30')
    k('s_and_b32 s64, s%d, 2' % S_WAVE)
    k('v_xor_b32 v27, v31, v27')
    k('v_xor_b32 v27, s64, v27')
    k('v_lshlrev_b32 v27, 4, v27')
    k('s_mul_i32 s64, s%d, %d' % (S_WAVE, 16 * 1280))
    k('v_mul_u32_u24 v26, 1280, v30')
    k('v_add_u32 v26, s64, v26')
    k('v_add_u32 v%d, v26, v27' % VX)
    k('v_xor_b32 v28, 128, v27')
    k('v_add_u32 v28, 4096, v28')
    k('v_add_u32 v%d, v26, v28' % (VX + 1))
    k('v_add_u32 v%d, 8192, v%d' % (VX + 2, VX))
    k('v_add_u32 v%d, 8192, v%d' % (VX + 3, VX + 1))
    k('s_mul_i32 s%d, s%d, %d' % (S_XZ, S_RHO, 64 * 1280))
    k('s_lshl_b32 s%d, s%d, 12' % (S_LW, S_WAVE))
    seq = []
    pat = {0: 'XWXWXWXWXW', 1: 'XXXXXWWWWW', 2: 'XXXWXWXWWW', 3: 'XXWXWXWXWW'}[opt.get('xfirst', 3)]
    cnt = {'X': 0, 'W': 0}
    for ch in pat:
        seq.append((ch, cnt[ch], 0)); cnt[ch] += 1
    for r in (1, 2):
        for z in range(5): seq.append(('W', z, r))
    for z in range(15): seq.append(('V', z, 0))
    def dma(i):
        typ, z, r = seq[i]
        out = ['s_add_u32 m0, s%d, %d' % (S_LW, 16384 * (i % 5))]
        if typ == 'V':
            if z: out.append('s_add_u32 s%d, s%d, 16384' % (S_V, S_V))
            return out + [('buffer_load_dwordx4 v%d, s[%d:%d], s%d offen offset:%d sc1 lds' % (VV, R_WS, R_WS + 3, S_V, 1024 * n), 'S%d' % i) for n in range(4)]
        if typ == 'X':
            if z: out.append('s_add_u32 s%d, s%d, 256' % (S_XZ, S_XZ))
        elif z: out.append('s_add_u32 s%d, s%d, %d' % (S_WZ, S_WZ, 128 * 3072))
        elif r: out.append('s_sub_u32 s%d, s%d, %d' % (S_WZ, S_WZ, 4 * 128 * 3072 - 128))
        so, rr, vo = (S_XZ, R_U, VX) if typ == 'X' else (S_WZ, R_W, VW)
        for n in range(4):
            out.append(('buffer_load_dwordx4 v%d, s[%d:%d], s%d offen offset:%d lds' % (vo + n, rr, rr + 3, so, 1024 * n), 'S%d' % i))
        return out
    k('s_waitcnt lgkmcnt(0)')
    G.ets(3)
    G.srd_base(R_U, P_U)
    emit_list(k, dma(0))
    G.srd_base(R_W, P_W1); G.srd_tail(R_W, 640 * 1536 * 2)
    def touch():
        L = k.newlabel('L_nt')
        k('s_cmp_lg_u32 s%d, 0' % S_WAVE)
        k('s_cbranch_scc1 %s' % L)
        emit_list(k, ['v_min_u32 v26, 59, v0', 'v_mul_u32_u24 v27, 43, v26', 'v_lshrrev_b32 v27, 9, v27',
             'v_mul_u32_u24 v27, %d, v27' % (3072 - 128 * 12), 'v_lshl_add_u32 v26, v26, 7, v27',
             's_bfe_u32 s64, s2, 0x50003', 's_bfe_u32 s65, s2, 0x20001', 's_lshl_b32 s65, s65, 5', 's_add_u32 s64, s64, s65',
             's_mul_i32 s64, s64, %d' % (5 * 3072), 's_and_b32 s65, s2, 1', 's_mul_i32 s65, s65, %d' % (128 * 12), 's_add_u32 s64, s64, s65'])
        k('buffer_load_dword v254, v26, s[%d:%d], s64 offen' % (R_W, R_W + 3)); k.vm.pop()
        k.label(L)
    PF = opt.get('pf1', 1)
    if PF == 1: touch()
    k('v_lshrrev_b32 v26, 3, v0')
    k('s_lshl_b32 s65, s%d, 5' % S_WAVE)
    k('v_add_u32 v26, s65, v26')
    k('v_mul_u32_u24 v26, 3072, v26')
    k('v_and_b32 v27, 7, v0')
    k('v_and_b32 v28, 1, v30')
    k('v_lshlrev_b32 v28, 2, v28')
    k('v_xor_b32 v27, v27, v28')
    k('v_lshl_add_u32 v%d, v27, 4, v26' % VW)
    for n in range(1, 4):
        k('v_add_u32 v%d, %d, v%d' % (VW + n, n * (8 * 3072 - 1024), VW))
    k('s_mul_i32 s%d, s%d, 384' % (S_WZ, S_J))
    LA_ = opt.get('la', 4)
    NPRE = opt.get('npre', 2)
    if PF == 2: touch()
    if not opt.get('late1'):
        for i in range(1, NPRE): emit_list(k, dma(i))
    G.ets(4)
    G.cut('gemm_main')
    G.ts_init()
    if PF == 3: touch()
    if opt.get('late1'):
        for i in range(1, NPRE): emit_list(k, dma(i))
    k('s_setprio %d' % opt.get('gprio', 2))
    G.srd_base(R_WS, P_WS)
    G.srd_base(R_O, P_OUT); G.srd_tail(R_O, 2048 * 640 * 2)
    S_TAU, S_PHI, S_T = 69, 70, 71
    k('s_and_b32 s%d, s%d, 1' % (S_TAU, S_WAVE))
    k('s_lshr_b32 s%d, s%d, 1' % (S_PHI, S_WAVE))
    if KS == 2: k('s_lshl1_add_u32 s%d, s%d, s%d' % (S_T, S_TAU, S_PHI))
    else: k('s_mov_b32 s%d, s%d' % (S_T, S_WAVE))
    rowoff = lambda d, j, t: ['v_lshrrev_b32 v%d, 2, v%d' % (d, j), 'v_lshlrev_b32 v%d, 1, v%d' % (d, d), 'v_and_b32 v%d, 1, v%d' % (t, j), 'v_add_u32 v%d, v%d, v%d' % (d, d, t),
                              'v_and_b32 v%d, 2, v%d' % (t, j), 'v_lshl_add_u32 v%d, v%d, 4, v%d' % (d, t, d)]
    k('v_lshrrev_b32 v29, 5, v0')
    emit_list(k, rowoff(27, 31, 26))
    k('v_lshlrev_b32 v%d, 3, v27' % V_G)
    k('v_and_b32 v26, 1, v30')
    k('v_lshl_add_u32 v27, v26, 3, v27')
    k('s_lshl_b32 s64, s%d, 12' % S_TAU)
    k('v_xor_b32 v28, v29, v31')
    k('v_lshlrev_b32 v28, 4, v28')
    k('v_lshl_add_u32 v28, v27, 8, v28')
    k('v_add_u32 v%d, s64, v28' % XA)
    for s in range(1, 8): k('v_xor_b32 v%d, %d, v%d' % (XA + s, 32 * s, XA))
    k('s_lshl_b32 s64, s%d, 1' % S_TAU)
    k('v_add_u32 v27, s64, v26')
    k('v_mul_u32_u24 v27, 49152, v27')
    k('v_lshl_add_u32 v28, v29, 4, v31')
    k('v_lshl_add_u32 v%d, v28, 4, v27' % VH)
    k('v_bfe_u32 v28, v0, 1, 1')
    k('v_lshl_add_u32 v26, v26, 1, v28')
    k('s_lshl_b32 s64, s%d, 2' % S_PHI)
    k('v_add_u32 v26, s64, v26')
    k('v_bfe_u32 v28, v0, 3, 1')
    k('v_lshlrev_b32 v28, 2, v28')
    k('v_xor_b32 v26, v26, v28')
    k('v_bfe_u32 v28, v0, 2, 2')
    k('v_lshl_add_u32 v27, v29, 3, v28')
    k('v_lshlrev_b32 v27, 7, v27')
    k('v_lshl_add_u32 v27, v26, 4, v27')
    k('v_and_b32 v26, 1, v0')
    k('v_lshl_add_u32 v%d, v26, 3, v27' % WA)
    k('v_add_u32 v%d, 0x10000, v%d' % (WAH, WA))
    k('s_mul_i32 s66, s%d, 192' % S_RHO)
    k('s_lshl1_add_u32 s67, s%d, s66' % S_J)
    k('s_add_u32 s67, s67, s%d' % S_PHI)
    k('s_lshl_b32 s67, s67, 10')
    k('s_add_u32 s%d, s67, 0x%x' % (S_HS, WS_H))
    k('s_lshl_b32 s66, s66, 10')
    k('s_add_u32 s66, s66, 0x%x' % WS_H)
    k('s_lshr_b32 s67, s%d, 2' % S_J)
    k('s_lshl_b32 s65, s67, 13')
    k('s_add_u32 s%d, s66, s65' % S_H0)
    k('s_sub_u32 s%d, s66, s65' % S_H1)
    k('s_mul_i32 s66, s%d, 768' % S_RHO)
    k('s_lshl_b32 s67, s67, 7')
    k('s_add_u32 s66, s66, s67')
    k('s_add_u32 s%d, s66, 0x%x' % (S_FC, WS_FH))
    k('s_xor_b32 s%d, s%d, 128' % (S_FC2, S_FC))
    k('s_and_b32 s67, s%d, 3' % S_J)
    k('s_lshl2_add_u32 s%d, s67, s%d' % (S_FH, S_FC))
    k('s_mov_b32 s%d, 0' % S_AD)
    k('s_lshl3_add_u32 s64, s%d, s%d' % (S_RHO, S_T))
    k('s_mul_i32 s%d, s64, %d' % (S_OUT, 8 * 1280))
    k('s_mul_i32 s66, s%d, 160' % S_J)
    k('s_add_u32 s%d, s%d, s66' % (S_OUT, S_OUT))
    k('s_lshl_b32 s64, s64, 6')
    k('s_add_u32 s%d, s64, 0x%x' % (S_GG, WS_G))
    k('s_cmp_lt_u32 s%d, 2' % S_WAVE)
    k('s_cselect_b32 s%d, 1024, 0' % S_A3)
    k('s_mul_i32 s64, s%d, %d' % (S_J, 48 * 5120))
    k('s_add_u32 s%d, s64, 0x%x' % (S_V, WS_W2P))
    k('s_mul_i32 s64, s%d, %d' % (S_J, 10 * 128))
    k('s_add_u32 s%d, s64, 0x%x' % (S_FA, WS_FA))
    k('s_lshl_b32 s64, s%d, 7' % S_WAVE)
    k('s_add_u32 s%d, s64, s%d' % (S_AC, S_FA))
    k('s_add_u32 s%d, s%d, %d' % (S_AE, S_AC, NREP * FA_RS))
    k('s_mul_i32 s64, s%d, 10' % S_J)
    k('s_add_u32 s64, s64, s%d' % S_WAVE)
    k('s_lshl_b32 s64, s64, 15')
    k('s_lshl_b32 s65, s%d, 7' % S_RHO)
    k('s_add_u32 s64, s64, s65')
    k('s_add_u32 s%d, s64, 0x%x' % (S_AT, WS_AT))
    k('s_mul_i32 s64, s%d, 5' % S_J)
    k('s_lshr_b32 s65, s64, 3')
    k('s_add_u32 s64, s64, 4')
    k('s_lshr_b32 s64, s64, 3')
    k('s_sub_u32 s64, s64, s65')
    k('s_lshl_b32 s64, s64, 8')
    k('s_lshl_b32 s65, s65, 8')
    k('s_mul_i32 s66, s%d, 48' % S_WAVE)
    k('s_add_u32 s65, s65, s66')
    k('s_add_u32 s%d, s65, 0x%x' % (S_FW, WS_FW))
    k('v_min_u32 v26, 11, v31')
    k('v_and_b32 v27, 1, v30')
    k('v_mul_u32_u24 v27, s64, v27')
    k('v_lshl_add_u32 v%d, v26, 2, v27' % VFW)
    k('v_lshlrev_b32 v26, 4, v0')
    k('v_add_u32 v%d, s%d, v26' % (VV, S_LW))
    if KS == 2:
        k('s_mul_i32 s64, s%d, 5120' % S_PHI)
        k('v_add_u32 v%d, s64, v26' % VR)
        k('s_mul_i32 s64, s%d, 48' % S_T)
        k('s_add_u32 s64, s64, s%d' % S_PHI)
        k('s_lshl_b32 s64, s64, 10')
        k('v_add_u32 v%d, s64, v26' % VHL)
        k('s_xor_b32 s64, s%d, 1' % S_T)
        k('s_mul_i32 s64, s64, 48')
        k('s_add_u32 s64, s64, s%d' % S_PHI)
        k('s_lshl_b32 s64, s64, 10')
        k('v_add_u32 v%d, s64, v26' % (VHL + 1))
    else:
        k('v_mov_b32 v%d, v26' % VR)
        k('s_mul_i32 s64, s%d, 49152' % S_T)
        k('v_add_u32 v%d, s64, v26' % VHL)
    k('v_add_u32 v%d, 0x8000, v%d' % (VRH, VR))
    k('v_and_b32 v26, 3, v0')
    k('v_lshlrev_b32 v%d, 2, v26' % VFH)
    k('v_lshlrev_b32 v27, 12, v29')
    k('v_bfe_u32 v28, v0, 2, 3')
    k('v_lshl_add_u32 v27, v28, 7, v27')
    k('v_lshl_add_u32 v27, v26, 3, v27')
    k('s_lshl_b32 s64, s%d, 5' % S_T)
    k('v_add_u32 v%d, s64, v27' % V_AR)
    k('v_and_b32 v26, 7, v0')
    k('v_lshrrev_b32 v27, 3, v0')
    k('v_min_u32 v28, 2, v27')
    k('v_lshlrev_b32 v28, 2, v28')
    k('v_add_u32 v28, s%d, v28' % S_WAVE)
    k('v_min_u32 v28, 9, v28')
    k('v_lshl_add_u32 v28, v28, 5, v26')
    k('v_lshlrev_b32 v%d, 2, v28' % V_FA)
    k('v_lshlrev_b32 v27, 12, v27')
    k('v_lshl_add_u32 v%d, v26, 4, v27' % V_AD)
    OSTR = opt.get('ostr', 160)
    k('v_mul_u32_u24 v27, %d, v31' % OSTR)
    k('v_lshl_add_u32 v27, v30, 3, v27')
    k('v_add_u32 v%d, s%d, v27' % (V_OW, S_LW))
    for n in range(3):
        emit_list(k, ['v_add_u32 v26, %d, v0' % (64 * n), 'v_mul_u32_u24 v27, 205, v26', 'v_lshrrev_b32 v27, 11, v27'] + rowoff(V_OS + n, 27, 28) +
                  ['v_mul_u32_u24 v%d, 1280, v%d' % (V_OS + n, V_OS + n), 'v_lshl_add_u32 v%d, v26, 4, v%d' % (V_OS + n, V_OS + n),
                   'v_mul_u32_u24 v28, 160, v27', 'v_sub_u32 v%d, v%d, v28' % (V_OS + n, V_OS + n)])
    k('v_mul_u32_u24 v%d, %d, v0' % (V_REP, FH_RS))
    FA, FBs = 32, 48
    NRH = opt.get('nrh', 2)
    ACC = [64, 80, 64]
    XF = 96
    def wread(i, half, s):
        base = 16384 * (i % 5)
        reg = WAH if base >= 65536 else WA
        off = base & 0xffff
        fs = FA if half == 0 else FBs
        return [('ds_read_b64_tr_b16 %s, v%d offset:%d' % (vr(fs + 4 * s + 2 * e, 2), reg, off + (4 * half + s) * 2048 + 512 * e), 'w%d%d' % (half, s)) for e in range(2)]
    def mfma(i, half, s):
        typ, z, r = seq[i]
        fs = FA if half == 0 else FBs
        c = '0' if (z == 0 and half == 0 and s == 0) else vr(ACC[r], 16)
        return 'v_mfma_f32_32x32x16_bf16 %s, %s, %s, %s' % (vr(ACC[r], 16), vr(fs + 4 * s, 4), vr(XF + 4 * (8 * z + 4 * half + s), 4), c)
    NL2 = fhex(-LOG2E)
    def epi(r):
        a = ACC[r]
        out = []
        t = ET
        for p in range(8):
            if opt.get('fastsilu'):
                x0, x1 = a + 2 * p, a + 2 * p + 1
            else:
                x0, x1 = t, t + 1
                out += ['v_cvt_pk_bf16_f32 v%d, v%d, v%d' % (t + 2, a + 2 * p, a + 2 * p + 1),
                        'v_lshlrev_b32 v%d, 16, v%d' % (t, t + 2),
                        'v_and_b32 v%d, 0xffff0000, v%d' % (t + 1, t + 2)]
            out += ['v_mul_f32 v%d, %s, v%d' % (t + 2, NL2, x0),
                    'v_mul_f32 v%d, %s, v%d' % (t + 3, NL2, x1),
                    'v_exp_f32 v%d, v%d' % (t + 2, t + 2),
                    'v_exp_f32 v%d, v%d' % (t + 3, t + 3),
                    'v_add_f32 v%d, 1.0, v%d' % (t + 2, t + 2),
                    'v_add_f32 v%d, 1.0, v%d' % (t + 3, t + 3),
                    'v_rcp_f32 v%d, v%d' % (t + 2, t + 2),
                    'v_rcp_f32 v%d, v%d' % (t + 3, t + 3),
                    'v_mul_f32 v%d, v%d, v%d' % (t + 2, x0, t + 2),
                    'v_mul_f32 v%d, v%d, v%d' % (t + 3, x1, t + 3),
                    'v_cvt_pk_bf16_f32 v%d, v%d, v%d' % (a + p, t + 2, t + 3)]
        if opt.get('noepi'): out = []
        if r: out += ['s_add_u32 s%d, s%d, 16384' % (S_HS, S_HS)]
        for s in range(0 if opt.get('nohst') else 2):
            out.append(('buffer_store_dwordx4 %s, v%d, s[%d:%d], s%d offen offset:%d sc1' % (vr(a + 4 * s, 4), VH, R_WS, R_WS + 3, S_HS, 512 * s), 'hst%d' % r))
        return out
    def hflag(r):
        def body():
            k('s_mov_b64 exec, %d' % ((1 << NRH) - 1))
            k('buffer_store_dword v%d, v%d, s[%d:%d], s%d offen offset:%d sc1' % (V_NON, V_REP, R_WS, R_WS + 3, S_FH, 256 * r)); k.vm.pop()
            k('s_mov_b64 exec, -1')
        L = k.newlabel('L_nf')
        k('s_cmp_lg_u32 s%d, %d' % (S_WAVE, r))
        k('s_cbranch_scc1 %s' % L)
        body()
        k.label(L)
    NST = 240 // KS
    NP = 48 // KS
    A2 = lambda T, sub: 96 + 4 * (5 * T + sub)
    HB = 96 + 20 * KS
    HN = 20 // KS
    Hr = lambda p, T: HB + 4 * (KS * (p % HN) + T)
    WX = HB + 80
    WBUF = [32, 36, 40, 44] + ([WX + 4 * i for i in range(8)] if KS == 1 else []) + [48, 52, 56, 60]
    f0 = lambda n: 5 * KS * (n // 5) + n % 5
    def hload(p):
        pi = KS * p
        o = []
        if pi % 4 == 0: o.append('s_add_u32 s65, s%d, %d' % (S_H1 if pi & 8 else S_H0, 1024 * pi))
        for T in range(KS):
            o.append(('buffer_load_dwordx4 %s, v%d, s[%d:%d], s65 offen offset:%d sc1' % (vr(Hr(p, T), 4), VHL + T, R_WS, R_WS + 3, 1024 * (pi % 4)), 'H%d' % p))
        return o
    def take(q, n):
        o = q[:n]; del q[:n]; return o
    def h_slow(q, skip=0):
        def h_issue(): k('s_load_dwordx4 s[16:19], s[%d:%d], s24' % (R_WS, R_WS + 1))
        k('s_add_u32 s26, s%d, %d' % (S_FC2 if q & 1 else S_FC, 256 * (q >> 1)))
        k('s_add_u32 s24, s26, %d' % (skip * FH_RS))
        k('s_add_u32 s25, s26, %d' % (NRH * FH_RS))
        G.spoll_loop(h_issue, 16, 4, 24, 25, FH_RS, lambda: G.poll(1, VFH, 's26'))
    def a_dma(base, count):
        for n in range(3):
            if n == 1: k('s_add_u32 s67, s%d, %d' % (base, 4 << 15))
            if n == 2:
                k('s_lshl_b32 s67, s%d, 8' % S_A3)
                k('s_add_u32 s67, s67, s%d' % base)
            k('s_add_u32 m0, s%d, %d' % (S_LW, 1024 * n))
            k('buffer_load_dwordx4 v%d, s[%d:%d], s%d offen sc1 lds' % (V_AD, R_WS, R_WS + 3, 67 if n else base), tag='a')
            if not count: k.vm.pop()
    def a_issue():
        k('s_load_dwordx8 s[16:23], s[%d:%d], s%d' % (R_WS, R_WS + 1, S_AC))
        k('s_load_dwordx8 s[24:31], s[%d:%d], s%d offset:512' % (R_WS, R_WS + 1, S_AC))
        k('s_add_u32 s67, s%d, s%d' % (S_AC, S_A3))
        k('s_load_dwordx8 s[32:39], s[%d:%d], s67' % (R_WS, R_WS + 1))
    def late_a():
        G.spoll_loop(a_issue, 16, 24, S_AC, S_AE, FA_RS, lambda: G.poll(1, V_FA, 's%d' % S_FA), sleep=opt.get('asleep', 4))
        k('s_waitcnt vmcnt(0)')
        a_dma(S_AT, False)
    epq = []; mq = []
    GB = opt.get('gapb', 48)
    st8 = {'n': NPRE, 'h': 0, 'ok': 5 if opt.get('nohchk') else -1}
    def cost(f):
        t = f[0] if isinstance(f, tuple) else f
        return 8 if t.startswith(('v_exp', 'v_rcp')) else 4
    def vm1(n):
        nv = 0; used = 0
        while mq and nv < n:
            f = mq.pop(0); emit_list(k, [f]); used += 4
            if isinstance(f, tuple): nv += 1
        return used
    def gap(used):
        used += vm1(opt.get('vper', 1))
        while epq and used + cost(epq[0]) <= GB:
            f = epq.pop(0); emit_list(k, [f]); used += cost(f)
    FAT = [opt.get('f0at', 15), opt.get('f1at', 20), opt.get('f2at', 24)]
    RB_, RL = opt.get('rb', 2), opt.get('rl', 1)
    RAT = []
    for a_ in (opt.get('r0at', 19), opt.get('r1at', 23), opt.get('r2at', 28)): RAT += [a_, a_ + RB_]
    PWAT, AAT = opt.get('pwat', 15), opt.get('aat', 33)
    HL = opt.get('hl', 12) // KS
    assert HL <= HN and RL <= RB_ and RAT[0] - RL >= 17 and RAT[5] <= AAT - 2
    def younger(a, b):
        ia = max(i for i, t in enumerate(k.vm) if t == a); ib = max(i for i, t in enumerate(k.vm) if t == b)
        return a if ia > ib else b
    def flush_for(tag):
        while any(isinstance(f, tuple) and f[1] == tag for f in mq): vm1(1)
    def hq(upto, free=99):
        while st8['h'] < min(NP, upto) and ((KS * st8['h']) >> 3) <= st8['ok'] and (Hr(st8['h'], KS - 1) - XF) // 4 < free:
            mq.extend(hload(st8['h'])); st8['h'] += 1
    def sync(i, lg):
        flush_for('S%d' % i)
        tg = 'S%d' % i
        for r in range(3):
            if FAT[r] == i:
                while any(isinstance(f, tuple) and f[1] == 'hst%d' % r for f in epq): emit_list(k, take(epq, 1))
                tg = younger(tg, 'hst%d' % r)
        chk = [q for q in range(6) if RAT[q] == i and not opt.get('nohchk')]
        HSC = opt.get('hs', 1)
        for q in chk:
            if HSC: lg = 'all'
            else: tg = younger(tg, 'ph%d' % q)
        if i == AAT and not opt.get('noa'): tg = younger(tg, 'fa')
        if i == 17 and not opt.get('noa'): G.poll(1, VFW, 's%d' % S_FW, first='pw')
        k.wait(vm=tg, lg=lg)
        k('s_barrier')
        if i < 10: G.pr(301, i)
        elif i < 20: G.pr(302, i - 10)
        elif i < 30: G.pr(300, i - 20)
        if i >= 30: G.pr(303, i - 30)
        for n_, at in ((1, 0), (2, 10), (3, 15), (4, 20), (5, 25), (6, 30), (7, 34)):
            if i == at: G.ts(n_)
        for r in range(3):
            if FAT[r] == i: hflag(r)
        upto = max(min(i + LA_ - 1, i + 3), min(4, i + LA_))
        while st8['n'] < 35 and st8['n'] <= upto:
            mq.extend(dma(st8['n'])); st8['n'] += 1
        if i == 1:
            G.snonce(1, V_NON, first=1)
            k('v_mov_b32 v%d, s%d' % (V_NON, S_NONCE))
        for q in chk:
            if HSC:
                G.s_allok(16, 4)
                G.slow('scc1', lambda: h_slow(q, 1))
            else:
                G.poll_cmp(1, [0])
                G.slow('scc0', lambda: h_slow(q))
            st8['ok'] = max(st8['ok'], q)
        if i == PWAT and not opt.get('noa'): mq.insert(0, ('buffer_load_dword v1, v%d, s[%d:%d], s%d offen sc1' % (VFW, R_WS, R_WS + 3, S_FW), 'pw'))
        for q in range(6):
            if RAT[q] - RL == i and not opt.get('nohchk') and HSC:
                k('s_load_dwordx4 s[16:19], s[%d:%d], s%d offset:%d' % (R_WS, R_WS + 1, S_FC2 if q & 1 else S_FC, 256 * (q >> 1)))
            elif RAT[q] - RL == i and not opt.get('nohchk'):
                k('buffer_load_dword v1, v%d, s[%d:%d], s%d offen offset:%d sc1' % (VFH, R_WS, R_WS + 3, S_FC2 if q & 1 else S_FC, 256 * (q >> 1)), tag='ph%d' % q)
        if i == 29: mq.insert(0, ('buffer_load_dwordx2 v[30:31], v%d, s[%d:%d], s%d offen sc1' % (V_G, R_WS, R_WS + 3, S_GG), 'g'))
        if i == AAT - 2 and not opt.get('noa'): k('buffer_load_dword v1, v%d, s[%d:%d], s%d offen sc1' % (V_FA, R_WS, R_WS + 3, S_FA), tag='fa')
        if i == AAT and not opt.get('noa'):
            assert st8['n'] == 35
            flush_for('S34')
            G.poll_cmp(1, [0])
            k('s_cselect_b32 s%d, 1, 0' % S_AD)
            k('s_cselect_b32 s64, s%d, s%d' % (S_AT, S_V))
            a_dma(64, True)
    k('s_load_dword s%d, s[%d:%d], 0' % (S_NONCE, P_DBG, P_DBG + 1))
    sync(0, None)
    pend = None
    for i in range(20):
        typ, z, r = seq[i]
        base = 16384 * (i % 5)
        for s in range(4):
            used = 8
            if pend is not None:
                if s % 2 == 0: k.wait(lg='w1%d' % (s + 1)); used += 4
                k(pend[s])
            if typ == 'W': emit_list(k, wread(i, 0, s))
            else:
                for s2 in (2 * s, 2 * s + 1):
                    if base >= 65536:
                        k('v_add_u32 v%d, 0x10000, v%d' % (XT + s2 % 4, XA + s2))
                        k('ds_read_b128 %s, v%d' % (vr(XF + 4 * (8 * z + s2), 4), XT + s2 % 4), tag='x%d' % i)
                    else:
                        k('ds_read_b128 %s, v%d offset:%d' % (vr(XF + 4 * (8 * z + s2), 4), XA + s2, base), tag='x%d' % i)
            gap(used)
        pend = None
        prevx = 'x%d' % (i - 1) if (i > 0 and seq[i - 1][0] == 'X') else None
        if typ == 'X':
            emit_list(k, take(mq, 1000))
            sync(i + 1, prevx)
            continue
        if z == 0 and r > 0: epq.extend(epi(r - 1))
        for s in range(4):
            if s % 2 == 0: k.wait(lg='w0%d' % (s + 1))
            k(mfma(i, 0, s))
            if s < 2:
                emit_list(k, wread(i, 1, 2 * s) + wread(i, 1, 2 * s + 1))
                gap(20 if (z or s) else 1000)
            elif s == 2:
                sync(i + 1, None)
                if r == 2: hq(HL, 8 * z)
            else:
                gap(4)
        pend = [mfma(i, 1, s) for s in range(4)]
        if i in (14, 19): emit_list(k, take(epq, 1000))
    D = opt.get('vd', 12 if KS == 1 else 5)
    WP = opt.get('wp', 4 if KS == 1 else 2)
    NB = len(WBUF)
    assert D <= NB - 2
    def vread(n):
        off = 1024 * (f0(n) % 80)
        return ('ds_read_b128 %s, v%d offset:%d' % (vr(WBUF[n % NB], 4), VRH if off >= 0x8000 else VR, off - 0x8000 if off >= 0x8000 else off), 'v%d' % n)
    slot_of = lambda n: 20 + (f0(n) + 5 * (KS - 1)) // 16
    assert all(slot_of(n) == 20 for n in range(D))
    for s in range(4):
        if s % 2 == 0: k.wait(lg='w1%d' % (s + 1))
        k(pend[s])
        emit_list(k, [vread(n) for n in range(D * s // 4, D * (s + 1) // 4)])
        vm1(2)
    epq.extend(epi(2))
    EP2 = opt.get('ep2', 3) * KS
    AM = NST - opt.get('am', 6) // KS
    fast = opt.get('fastfin')
    AE = opt.get('ae', 0)
    AR = 64
    ga = [244 + 2 * i for i in range(6)] + [84 + 2 * i for i in range(4)]
    def rnd(x):
        return ['v_cvt_pk_bf16_f32 v%d, v%d, v%d' % (x + 1, x, x + 1), 'v_lshlrev_b32 v%d, 16, v%d' % (x, x + 1), 'v_and_b32 v%d, 0xffff0000, v%d' % (x + 1, x + 1)]
    def a_unpack():
        o = []
        for q in range(10):
            t = ga[q]
            o += ['v_lshlrev_b32 v%d, 16, v%d' % (t, AR + q), 'v_and_b32 v%d, 0xffff0000, v%d' % (t + 1, AR + q)]
            if not fast: o += ['v_mul_f32 v%d, v30, v%d' % (t, t), 'v_mul_f32 v%d, v30, v%d' % (t + 1, t + 1)] + rnd(t)
        return o
    def a_meet(lg):
        hq(NP); emit_list(k, take(mq, 1000))
        if not opt.get('noa'):
            k('s_cmp_lg_u32 s%d, 0' % S_AD)
            G.slow('scc0', late_a)
        k.wait(vm='all', lg=lg)
        k('s_barrier')
        G.pr(303, 8)
        for sb in range(5):
            k('ds_read_b64_tr_b16 %s, v%d offset:%d' % (vr(AR + 2 * sb, 2), V_AR, (sb & 1) * 8192 + (sb >> 1) * 1024), tag='ar')
    poff = lambda sub: 16384 + 1024 * sub if sub < 4 else 3072
    synced = 20
    tail0 = []
    for n in range(NST):
        p, sub = n // 5, n % 5
        if n + D < NST and slot_of(n + D) > synced:
            synced += 1
            assert f0(n) >= 16 * (synced - 21), (n, synced)
            sync(synced, None)
            if synced == 31 and OSTR != 160:
                for n_ in range(3):
                    epq.extend(['v_add_u32 v26, %d, v0' % (64 * n_), 'v_mul_u32_u24 v26, 205, v26', 'v_lshrrev_b32 v26, 11, v26',
                                'v_mul_u32_u24 v26, %d, v26' % (OSTR - 160), 'v_add_u32 v%d, v26, v%d' % (VW + n_, VV)])
            if synced == 33:
                if not opt.get('noa'): G.poll(30, V_G, 's%d' % S_GG, n=2, first='g', which=[1])
                epq.extend(['v_sub_f32 v28, 1.0, v30', 'v_cvt_pk_bf16_f32 v28, v28, v28', 'v_lshlrev_b32 v28, 16, v28', 'v_mov_b32 v29, v28', 'v_mov_b32 v31, v30'])
                if KS == 2: epq.append('v_xor_b32 v%d, 0x2000, v%d' % (VFW, VV))
        if KS == 1 or AE:
            if n == AM: a_meet(None)
            if n == min(AM + 5 // KS, NST - 1):
                k.wait(lg='ar'); epq.extend(a_unpack())
        hq(p + HL)
        lgt = 'v%d' % min(n + WP - 1, NST - 1) if n % WP == 0 else None
        if sub == 0:
            flush_for('H%d' % p)
            k.wait(vm='H%d' % p, lg=lgt)
        elif lgt: k.wait(lg=lgt)
        for T in reversed(range(KS)):
            c = '0' if p == 0 else vr(A2(T, sub), 4)
            mm = 'v_mfma_f32_16x16x32_bf16 %s, %s, %s, %s' % (vr(A2(T, sub), 4), vr(WBUF[n % NB], 4), vr(Hr(p, T), 4), c)
            if KS == 2 and T == 0 and p == NP - 1: tail0.append(mm); continue
            k(mm)
            if T == KS - 1 and n + D < NST: emit_list(k, [vread(n + D)])
        if KS == 2 or n % 2 == 0: vm1(1)
        if n >= 2: emit_list(k, take(epq, EP2))
    emit_list(k, take(epq, 1000))
    PB = HB
    if opt.get('park'): G.cut('gemm_t1')
    if KS == 2:
        for sub in range(5):
            k(tail0[sub])
            if sub >= 2: k('ds_write_b128 v%d, %s offset:%d' % (VV, vr(A2(1, sub - 2), 4), poff(sub - 2)))
        for sub in (3, 4): k('ds_write_b128 v%d, %s offset:%d' % (VV, vr(A2(1, sub), 4), poff(sub)))
        if AE:
            k.wait(lg='all'); k('s_barrier')
        else: a_meet('all')
        for sub in range(5):
            k('ds_read_b128 %s, v%d offset:%d' % (vr(PB + 4 * sub, 4), VFW, poff(sub)), tag='pp%d' % sub)
        if not AE:
            k.wait(lg='ar')
            emit_list(k, a_unpack())
    if opt.get('park'): G.cut('gemm_t2')
    G.ts(8)
    G.pr(303, 5)
    OST = 32768
    for sub in range(5):
        if KS == 2: k.wait(lg='pp%d' % sub)
        for hf in range(2):
            x = A2(0, sub) + 2 * hf; t = ga[2 * sub + hf]
            if KS == 2: k('v_pk_add_f32 %s, %s, %s' % (vr(x, 2), vr(x, 2), vr(PB + 4 * sub + 2 * hf, 2)))
            if fast:
                k('v_pk_mul_f32 %s, %s, v[28:29]' % (vr(x, 2), vr(x, 2)))
                k('v_pk_fma_f32 %s, %s, v[30:31], %s' % (vr(x, 2), vr(t, 2), vr(x, 2)))
            else:
                emit_list(k, rnd(x))
                k('v_pk_mul_f32 %s, %s, v[28:29]' % (vr(x, 2), vr(x, 2)))
                emit_list(k, rnd(x))
                k('v_pk_add_f32 %s, %s, %s' % (vr(x, 2), vr(x, 2), vr(t, 2)))
            k('v_cvt_pk_bf16_f32 v%d, v%d, v%d' % (AR + 2 * sub + hf, x, x + 1))
        k('ds_write_b64 v%d, %s offset:%d' % (V_OW, vr(AR + 2 * sub, 2), OST + 32 * sub))
    G.pr(303, 6)
    for n in range(3):
        k('ds_read_b128 %s, v%d offset:%d' % (vr(200 + 4 * n, 4), VV if OSTR == 160 else VW + n, OST + 1024 * n), tag='o%d' % n)
    for n in range(3):
        k.wait(lg='o%d' % n)
        if n == 2: k('s_mov_b32 exec_hi, 0')
        k('buffer_store_dwordx4 %s, v%d, s[%d:%d], s%d offen sc1' % (vr(200 + 4 * n, 4), V_OS + n, R_O, R_O + 3, S_OUT))
    k('s_mov_b64 exec, -1')
    G.pr(303, 7)
    G.ts(9)
    G.ts_store()
    G.calib()
    k('s_endpgm')
```

```python
import sys, math
from kgen import *
KNAME = 'gated_mix__ssm_conv_s4__dense_activation_silu__prompt_kernel'

WS_UT, WS_AT, WS_H, WS_W2P, WS_G = 0x000000, 0x300000, 0x600000, 0xC00000, 0xE00000
WS_FH, WS_FU, WS_FW, WS_FA, WS_TS = 0xE80000, 0xE10000, 0xE28000, 0xF00000, 0xE30000
import os
NREP = int([a.split('=')[1] for a in sys.argv if a.startswith('nrep=')][0]) if any(a.startswith('nrep=') for a in sys.argv) else 8
FU_RS, FA_RS, FH_RS = 0x1000, 0x4000, 0x10000
WS_SZ = 0x1000000
LOG2E = 1.4426950408889634
INV2PI = 0.15915494309189535

S_WG, S_WAVE, S_M, S_RHO, S_J, S_NONCE, S_TMO = 2, 3, 4, 5, 6, 7, 8
P_U, P_ARE, P_AIM, P_BRE, P_BIM, P_CRE, P_CIM, P_LDT = 16, 18, 20, 22, 24, 26, 28, 30
P_DSK, P_BX, P_W1, P_W2, P_GW, P_OUT, P_DBG, P_WS = 32, 34, 36, 38, 40, 42, 44, 46
R_WS, R_U, R_W, R_O = 48, 52, 56, 60
S_TS = 80
CBS = 17664
KO, UX = 4576, 9216
UY = UX + 4224

DOC = """;
"""
def emit_list(k, lst):
    for f in lst:
        if isinstance(f, tuple): k(f[0], tag=f[1])
        else: k(f)

class Gen:
    def __init__(self, opt):
        self.k = K()
        self.opt = opt
        self.marks = []
        self.role = 0
    def mark(self, name):
        self.marks.append((name, len(self.k.items)))
    def cut(self, name):
        self.k('s_branch L_%s' % name)
        self.mark(name)
        self.k.label('L_%s' % name)
    def slow(self, cond, body):
        k = self.k
        S = k.newlabel('L_slow'); B = k.newlabel('L_back')
        k('s_cbranch_%s %s' % (cond, S))
        k.cold_begin()
        k.label(S)
        body()
        k('s_nop 4')
        k('s_branch %s' % B)
        k.cold_end()
        k.label(B)
    def srd_tail(self, r, size):
        self.k('s_mov_b32 s%d, 0x%x' % (r + 2, size))
        self.k('s_mov_b32 s%d, 0x20000' % (r + 3))
    def srd_base(self, r, p):
        self.k('s_mov_b64 s[%d:%d], s[%d:%d]' % (r, r + 1, p, p + 1))
    def ts(self, i):
        if self.opt.get('hp') == 100 * self.role + i: self.k('s_memrealtime s[96:97]')
        if self.opt.get('ts') and not self.opt.get('probe') and not (self.opt.get('early') and i in (1, 3, 4)):
            self.k('%s s[%d:%d]' % ('s_memtime' if self.opt.get('cyc') else 's_memrealtime', S_TS + 2 * i, S_TS + 2 * i + 1))
    def pr(self, key, i):
        if self.opt.get('probe') == key:
            self.k('s_memtime s[%d:%d]' % (S_TS + 2 * i, S_TS + 2 * i + 1))
    def ts_init(self):
        if self.opt.get('hp') == 100 * self.role: self.k('s_mov_b32 s96, s10')
        if self.opt.get('hp') == 100 * self.role + 50: self.k('s_memrealtime s[96:97]')
        if self.opt.get('ts'):
            for i in range(10):
                if self.opt.get('early') and i in (1, 3, 4): continue
                self.k('s_mov_b32 s%d, s%d' % (S_TS + 2 * i, 100 if self.opt.get('cyc') else 10))
    def ets(self, i):
        if self.opt.get('early'): self.k('s_memtime s[%d:%d]' % (S_TS + 2 * i, S_TS + 2 * i + 1))
    def ts_store(self):
        if self.opt.get('hp', 0) // 100 == self.role:
            k = self.k
            L = k.newlabel('L_hp')
            k('s_waitcnt vmcnt(0) lgkmcnt(0)')
            k('s_sub_u32 s96, s96, s%d' % S_NONCE)
            k('s_add_u32 s96, s96, 4000')
            k.label(L)
            k('s_memrealtime s[64:65]')
            k('s_waitcnt lgkmcnt(0)')
            k('s_sub_u32 s64, s64, s%d' % S_NONCE)
            k('s_cmp_lt_u32 s64, s96')
            k('s_cbranch_scc1 %s' % L)
        if not self.opt.get('ts'): return
        k = self.k
        k('s_waitcnt vmcnt(0) lgkmcnt(0)')
        k('s_xor_b32 s64, s%d, 256' % S_WG)
        k('s_lshl_b32 s64, s64, 2')
        k('s_add_u32 s64, s64, s%d' % S_WAVE)
        k('s_lshl_b32 s64, s64, 6')
        k('s_add_u32 s64, s64, 0x%x' % WS_TS)
        k('v_mov_b32 v1, 0')
        for i in range(10):
            k('v_mov_b32 v2, s%d' % (S_TS + 2 * i))
            k('buffer_store_dword v2, v1, s[%d:%d], s64 offen offset:%d' % (R_WS, R_WS + 3, 4 * i))
        k('s_waitcnt vmcnt(0)')
    def calib(self):
        if self.opt.get('calib'):
            k = self.k
            L = k.newlabel('L_cal')
            k.label(L)
            k('s_memrealtime s[64:65]')
            k('s_waitcnt lgkmcnt(0)')
            k('s_sub_u32 s64, s64, s%d' % S_NONCE)
            k('s_cmp_lt_u32 s64, %d' % self.opt['calib'])
            k('s_cbranch_scc1 %s' % L)
    def spin_tail(self, L, D):
        k = self.k
        k('s_cbranch_scc1 %s' % D)
        k('s_sleep %d' % self.opt.get('sleep', 2))
        k('s_sub_u32 s%d, s%d, 1' % (S_TMO, S_TMO))
        k('s_cmp_lg_u32 s%d, 0' % S_TMO)
        k('s_cbranch_scc1 %s' % L)
        k.label(D)
    def nonce_issue(self, vt, vz, tag):
        k = self.k
        k('v_mov_b32 %s, 0' % vr(vz))
        k('global_load_dword %s, %s, s[%d:%d] sc1' % (vr(vt), vr(vz), P_DBG, P_DBG + 1), tag=tag)
    def nonce_get(self, vt, vz, tag=None, waited=False):
        k = self.k
        L = k.newlabel('L_nonce'); D = k.newlabel('L_nonce_ok'); C = k.newlabel('L_nonce_chk')
        k('s_mov_b32 s%d, 0x%x' % (S_TMO, self.opt.get('tmo', 0x4000)))
        if not waited: k.wait(vm=tag)
        k('s_branch %s' % C)
        k.label(L)
        k('v_mov_b32 %s, 0' % vr(vz))
        k('global_load_dword %s, %s, s[%d:%d] sc1' % (vr(vt), vr(vz), P_DBG, P_DBG + 1)); k.vm.pop()
        k('s_waitcnt vmcnt(0)')
        k.label(C)
        k('v_readfirstlane_b32 s%d, %s' % (S_NONCE, vr(vt)))
        k('s_cmp_lg_u32 s%d, 0' % S_NONCE)
        self.spin_tail(L, D)
    def poll_issue(self, vt, vaddr, soff, tag, n=1):
        self.k('buffer_load_dword%s %s, %s, s[%d:%d], %s offen sc1' % ('x2' if n == 2 else '', vr(vt, n), vr(vaddr), R_WS, R_WS + 3, soff), tag=tag)
    def poll_cmp(self, vt, which):
        k = self.k
        k('v_cmp_ne_u32 vcc, s%d, %s' % (S_NONCE, vr(vt + which[0])))
        if len(which) == 2:
            k('v_cmp_ne_u32 s[78:79], s%d, %s' % (S_NONCE, vr(vt + which[1])))
            k('s_or_b64 vcc, vcc, s[78:79]')
        k('s_cmp_eq_u64 vcc, 0')
    def poll(self, vt, vaddr, soff, n=1, first=None, waited=False, which=None):
        k = self.k
        if which is None: which = list(range(n))
        def spin():
            L = k.newlabel('L_poll'); D = k.newlabel('L_poll_ok')
            k('s_mov_b32 s%d, 0x%x' % (S_TMO, self.opt.get('tmo', 0x4000)))
            k('s_mov_b64 vcc, -1')
            k.label(L)
            k('s_mov_b64 exec, vcc')
            self.poll_issue(vt, vaddr, soff, None, n); k.vm.pop()
            k('s_mov_b64 exec, -1')
            k('s_waitcnt vmcnt(0)')
            self.poll_cmp(vt, which)
            self.spin_tail(L, D)
        if first is not None:
            if not waited: k.wait(vm=first)
            self.poll_cmp(vt, which)
            self.slow('scc0', spin)
        else: spin()
    def snonce(self, vt, vz, first=0):
        k = self.k
        if not first: k('s_load_dword s%d, s[%d:%d], 0' % (S_NONCE, P_DBG, P_DBG + 1))
        k('s_waitcnt lgkmcnt(0)')
        k('s_cmp_lg_u32 s%d, 0' % S_NONCE)
        def more():
            D = k.newlabel('L_sn_ok')
            for i in range(1, 4):
                k('s_load_dword s%d, s[%d:%d], %d' % (S_NONCE, P_DBG, P_DBG + 1, 64 * i))
                k('s_waitcnt lgkmcnt(0)')
                k('s_cmp_lg_u32 s%d, 0' % S_NONCE)
                k('s_cbranch_scc1 %s' % D)
            k('v_mov_b32 %s, 0' % vr(vt))
            self.nonce_get(vt, vz, waited=True)
            k.label(D)
        self.slow('scc0', more)
        k('s_mov_b32 s0, s%d' % S_NONCE)
        k('s_mov_b32 s1, s%d' % S_NONCE)
    def s_allok(self, base, n):
        k = self.k
        for i in range(0, n, 2):
            k('s_xor_b64 s[%d:%d], s[%d:%d], s[0:1]' % (base + i, base + i + 1, base + i, base + i + 1))
        for i in range(2, n, 2):
            k('s_or_b64 s[%d:%d], s[%d:%d], s[%d:%d]' % (base, base + 1, base, base + 1, base + i, base + i + 1))
    def spoll_loop(self, issue, base, n, s_off, s_end, rs, fallback, sleep=0):
        k = self.k
        L = k.newlabel('L_sp'); D = k.newlabel('L_sp_ok'); F = k.newlabel('L_sp_fb')
        k.label(L)
        k('s_cmp_ge_u32 s%d, s%d' % (s_off, s_end))
        k('s_cbranch_scc1 %s' % F)
        issue()
        k('s_add_u32 s%d, s%d, %d' % (s_off, s_off, rs))
        k('s_waitcnt lgkmcnt(0)')
        self.s_allok(base, n)
        k('s_cbranch_scc0 %s' % D)
        if sleep: k('s_sleep %d' % sleep)
        k('s_branch %s' % L)
        k.label(F)
        fallback()
        k.label(D)
    def flag_store_rep(self, vt, vz, soff, rs, tag=None, nrep=None):
        k = self.k
        k('v_mov_b32 %s, s%d' % (vr(vt), S_NONCE))
        k('v_mul_u32_u24 %s, %d, v0' % (vr(vz), rs))
        k('s_mov_b64 exec, %d' % ((1 << (nrep or NREP)) - 1))
        k('buffer_store_dword %s, %s, s[%d:%d], %s offen sc1' % (vr(vt), vr(vz), R_WS, R_WS + 3, soff), tag=tag)
        k('s_mov_b64 exec, -1')
    def flag_store(self, vt, vz, soff, tag=None):
        k = self.k
        k('v_mov_b32 %s, s%d' % (vr(vt), S_NONCE))
        k('v_mov_b32 %s, 0' % vr(vz))
        k('s_mov_b64 exec, 1')
        k('buffer_store_dword %s, %s, s[%d:%d], %s offen sc1' % (vr(vt), vr(vz), R_WS, R_WS + 3, soff), tag=tag)
        k('s_mov_b64 exec, -1')

    def prologue(self):
        k = self.k
        k('s_load_dwordx16 s[16:31], s[0:1], 0')
        k('s_load_dwordx16 s[32:47], s[0:1], 64')
        k('s_memrealtime s[10:11]')
        if self.opt.get('cyc'): k('s_memtime s[100:101]')
        k('v_lshrrev_b32 v1, 6, v0')
        k('v_and_b32 v0, 63, v0')
        k('v_readfirstlane_b32 s%d, v1' % S_WAVE)
        k('s_cmp_ge_u32 s2, 512')
        k('s_cbranch_scc1 L_end')
        k('s_and_b32 s%d, s2, 255' % S_M)
        k('s_bfe_u32 s66, s2, 0x20001')
        k('s_bfe_u32 s67, s2, 0x30003')
        k('s_lshl3_add_u32 s%d, s66, s67' % S_RHO)
        k('s_and_b32 s66, s2, 1')
        k('s_bfe_u32 s67, s2, 0x20006')
        k('s_lshl2_add_u32 s%d, s66, s67' % S_J)
        self.srd_tail(R_WS, WS_SZ)
        self.srd_tail(R_U, 2048 * 640 * 2)
        if self.opt.get('ipf'):
            k('s_cmp_lg_u32 s%d, 0' % S_WAVE)
            k('s_cbranch_scc1 L_noipf')
            k('s_getpc_b64 s[64:65]')
            k('s_lshr_b32 s66, s2, 3')
            k('s_mul_i32 s66, s66, %d' % (self.opt['ipf'] * 128))
            k('v_lshlrev_b32 v1, 7, v0')
            k('v_add_u32 v1, s66, v1')
            k('s_mov_b64 exec, %d' % ((1 << self.opt['ipf']) - 1))
            k('global_load_dword v255, v1, s[64:65]')
            k('s_mov_b64 exec, -1')
            k.label('L_noipf')
        if self.opt.get('dly'):
            k('s_and_b32 s64, s2, 0x%x' % self.opt.get('dmask', 0x101))
            k('s_cmp_lg_u32 s64, 0x%x' % self.opt.get('dval', 1))
            k('s_cbranch_scc1 L_nodly')
            for _ in range(self.opt['dly']): k('s_sleep 127')
            k.label('L_nodly')
        k('s_cmp_ge_u32 s2, 256')
        k('s_cbranch_scc1 L_gemm')
        if self.opt.get('nossm'):
            k('s_cmp_eq_u32 s2, 128'); k('s_cbranch_scc1 L_idle'); k('s_endpgm')
        k('s_cmp_eq_u32 s%d, 3' % S_WAVE)
        k('s_cbranch_scc1 L_misc')
        if self.opt.get('hord'): k('s_branch L_chanh')

    def mtiles(self):
        return {0: [], 6: [0, 1, 2], 7: [0, 1, 3], 8: [0, 2, 3], 9: [1, 2, 3], 10: [0, 1, 2, 3]}[self.opt.get('mt', 8)]
    def conv_reads(self, sg, fb, va, vb, off=0, n=8):
        out = []
        for c in range(n):
            out.append('ds_read_b128 %s, v%d offset:%d' % (vr(fb + 4 * c, 4), va, off + 4032 - 512 * c - 64 * sg))
            out.append('ds_read_b64 %s, v%d offset:%d' % (vr(fb + 4 * n + 4 * c, 2), vb, off + 448 - 64 * sg + 512 * c))
            out.append('ds_read_b64 %s, v%d offset:%d' % (vr(fb + 4 * n + 2 + 4 * c, 2), vb, off + 448 - 64 * sg + 512 * c + 8))
        return out
    def conv_step(self, Y, fb, first, nx, tiles, n=8, per=1):
        k = self.k
        nx = list(nx)
        for c in range(8):
            for m in range(8 - c):
                if c + m not in tiles: continue
                cc = '0' if (first and c == 0) else vr(Y + 4 * (c + m), 4)
                k('v_mfma_f32_16x16x32_bf16 %s, %s, %s, %s' % (vr(Y + 4 * (c + m), 4), vr(fb + 4 * c, 4), vr(fb + 4 * n + 4 * m, 4), cc))
                emit_list(k, nx[:per]); nx = nx[per:]
        emit_list(k, nx)
    def tile_out(self, Y, tiles, tmp, vaddr, soff):
        o = []
        for i in tiles:
            o += ['v_cvt_pk_bf16_f32 v%d, v%d, v%d' % (tmp + 2 * i + rr, Y + 4 * i + 2 * rr, Y + 4 * i + 2 * rr + 1) for rr in range(2)]
            o.append('buffer_store_dwordx2 %s, v%d, s[%d:%d], %s offen offset:%d sc1' % (vr(tmp + 2 * i, 2), vaddr, R_WS, R_WS + 3, soff, 512 * i))
        return o
    def misc(self):
        k = self.k
        k.reset_counts()
        LT = 3 * CBS; LW = LT + 10240
        self.mark('misc_head')
        self.role = 3
        k.label('L_misc')
        self.ets(1)
        for i in range(5):
            k('v_add_u32 v1, %d, v0' % (64 * i))
            k('v_mul_u32_u24 v2, 205, v1')
            k('v_lshrrev_b32 v2, 11, v2')
            k('v_mul_u32_u24 v3, %d, v2' % (1280 - 160))
            k('v_lshl_add_u32 v%d, v1, 4, v3' % (10 + i))
        k('s_mul_i32 s64, s%d, %d' % (S_RHO, 64 * 1280))
        k('s_mul_i32 s65, s%d, 160' % S_J)
        k('s_add_u32 s64, s64, s65')
        k('s_add_u32 s65, s64, %d' % (32 * 1280))
        k('s_waitcnt lgkmcnt(0)')
        self.srd_base(R_U, P_U)
        for i in range(10):
            k('s_mov_b32 m0, %d' % (LT + 1024 * i))
            k('buffer_load_dwordx4 v%d, s[%d:%d], s%d offen lds' % (10 + i % 5, R_U, R_U + 3, 64 + i // 5), tag='T')
        self.ets(3)
        if not self.opt.get('whead'): self.cut('misc_main')
        self.ts_init()
        k('s_setprio %d' % self.opt.get('mprio', 3))
        self.srd_base(R_WS, P_WS)
        self.srd_base(R_W, P_W2)
        self.srd_tail(R_W, 1536 * 640 * 2)
        k('s_min_u32 s66, s%d, 239' % S_M)
        k('s_mul_i32 s67, s66, 205')
        k('s_lshr_b32 s67, s67, 10')
        k('s_mul_i32 s68, s67, 5')
        k('s_sub_u32 s68, s66, s68')
        k('s_mul_i32 s69, s67, %d' % (32 * 1280))
        k('s_lshl_b32 s70, s68, 8')
        k('s_add_u32 s69, s69, s70')
        k('v_lshrrev_b32 v1, 4, v0')
        k('v_and_b32 v2, 15, v0')
        k('v_mul_u32_u24 v1, 1280, v1')
        k('v_lshl_add_u32 v15, v2, 4, v1')
        def wdma():
            for i in range(8):
                k('s_mov_b32 m0, %d' % (LW + 1024 * i))
                k('buffer_load_dwordx4 v15, s[%d:%d], s69 offen lds' % (R_W, R_W + 3), tag='W')
                k('s_add_u32 s69, s69, %d' % (4 * 1280))
        WPOS = self.opt.get('wpos', 0)
        def pfbc():
            m_ = sum(1 << l for l in range(60) if l % 3)
            emit_list(k, ['v_mul_u32_u24 v7, 43, v0', 'v_lshrrev_b32 v7, 9, v7', 'v_mul_u32_u24 v7, %d, v7' % (3072 - 128 * 12), 'v_lshl_add_u32 v7, v0, 7, v7',
                 's_bfe_u32 s78, s2, 0x50003', 's_bfe_u32 s79, s2, 0x20001', 's_lshl_b32 s79, s79, 5', 's_add_u32 s78, s78, s79',
                 's_mul_i32 s78, s78, %d' % (5 * 3072), 's_and_b32 s79, s2, 1', 's_mul_i32 s79, s79, %d' % (128 * 12), 's_add_u32 s78, s78, s79',
                 'v_add_u32 v7, s78, v7', 's_mov_b32 exec_lo, 0x%x' % (m_ & 0xffffffff), 's_mov_b32 exec_hi, 0x%x' % (m_ >> 32),
                 'global_load_dword v255, v7, s[%d:%d]' % (P_W1, P_W1 + 1), 's_mov_b64 exec, -1'])
        if WPOS == 0: wdma()
        if self.opt.get('whead'): self.cut('misc_main')
        k('v_lshrrev_b32 v1, 4, v0')
        k('v_bfe_u32 v2, v0, 2, 2')
        k('v_and_b32 v3, 3, v0')
        k('v_lshl_add_u32 v4, v1, 3, v2')
        k('v_mul_u32_u24 v4, 160, v4')
        k('v_lshl_add_u32 v4, v3, 3, v4')
        k('v_add_u32 v18, %d, v4' % LT)
        k('v_and_b32 v5, 15, v0')
        k('v_lshlrev_b32 v5, 12, v5')
        k('v_lshl_add_u32 v19, v1, 4, v5')
        if self.opt.get('ufull'):
            LU = LW + 8192
            emit_list(k, ['v_and_b32 v5, 15, v0', 'v_and_b32 v6, 7, v0', 'v_xor_b32 v16, v1, v6', 'v_lshlrev_b32 v16, 4, v16', 'v_lshl_add_u32 v16, v5, 7, v16',
                          'v_xor_b32 v14, 64, v16', 'v_add_u32 v16, %d, v16' % LU, 'v_add_u32 v14, %d, v14' % LU,
                          'v_lshrrev_b32 v5, 3, v0', 'v_xor_b32 v17, v5, v6', 'v_lshlrev_b32 v17, 4, v17', 'v_lshl_add_u32 v17, v5, 7, v17', 'v_add_u32 v17, %d, v17' % LU,
                          'v_lshlrev_b32 v6, 4, v6', 'v_lshl_add_u32 v19, v5, 12, v6'])
        k('v_lshrrev_b32 v5, 1, v1')
        k('v_and_b32 v6, 1, v1')
        k('v_lshlrev_b32 v5, 4, v5')
        k('v_lshl_add_u32 v5, v6, 2, v5')
        k('v_add_u32 v5, v5, v2')
        k('v_lshlrev_b32 v5, 8, v5')
        k('v_lshl_add_u32 v5, v3, 3, v5')
        k('v_add_u32 v20, %d, v5' % LW)
        k('v_lshlrev_b32 v21, 4, v0')
        k('s_mul_i32 s72, s%d, %d' % (S_J, 80 * 4096))
        k('s_lshl_b32 s73, s%d, 7' % S_RHO)
        k('s_add_u32 s72, s72, s73')
        k('s_lshr_b32 s73, s%d, 3' % S_RHO)
        k('s_lshl2_add_u32 s73, s%d, s73' % S_J)
        k('s_lshl_b32 s73, s73, 5')
        k('s_and_b32 s74, s%d, 7' % S_RHO)
        k('s_add_u32 s73, s73, s74')
        k('s_lshl_b32 s73, s73, 2')
        k('s_add_u32 s77, s73, 0x%x' % WS_FU)
        if self.opt.get('ftouch'):
            k('v_mul_u32_u24 v9, %d, v0' % FU_RS)
            k('s_mov_b64 exec, %d' % ((1 << NREP) - 1))
            k('buffer_load_dword v8, v9, s[%d:%d], s77 offen' % (R_WS, R_WS + 3))
            k('s_mov_b64 exec, -1')
        k.wait(vm='T')
        self.ts(1)
        if self.opt.get('mstop') == 1: k('s_endpgm')
        for dl in range(5):
            for z in range(2):
                b = 24 + 8 * dl + 4 * z
                for e in range(2):
                    k('ds_read_b64_tr_b16 %s, v18 offset:%d' % (vr(b + 2 * e, 2), (32 * z + 4 * e) * 160 + 32 * dl), tag='t%d' % dl)
        if self.opt.get('ufull'):
            for dl in range(5):
                k.wait(lg='t%d' % dl)
                for z in range(2):
                    k('ds_write_b128 v%d, %s offset:%d' % (14 if z else 16, vr(24 + 8 * dl + 4 * z, 4), 2048 * dl))
            for i in range(10):
                k('ds_read_b128 %s, v17 offset:%d' % (vr(96 + 4 * i, 4), 1024 * i), tag='uf%d' % i)
            for i in range(10):
                k.wait(lg='uf%d' % i)
                k('buffer_store_dwordx4 %s, v19, s[%d:%d], s72 offen sc1' % (vr(96 + 4 * i, 4), R_WS, R_WS + 3), tag='Tst')
                k('s_add_u32 s72, s72, %d' % (8 * 4096))
        else:
            for dl in range(5):
                k.wait(lg='t%d' % dl)
                for z in range(2):
                    k('buffer_store_dwordx4 %s, v19, s[%d:%d], s72 offen offset:%d sc1' % (vr(24 + 8 * dl + 4 * z, 4), R_WS, R_WS + 3, 64 * z), tag='Tst')
                k('s_add_u32 s72, s72, %d' % (16 * 4096))
        if self.opt.get('pfs') == 1: pfbc()
        if WPOS == 1: wdma()
        self.snonce(8, 9)
        def uflag():
            k.wait(vm='Tst')
            self.flag_store_rep(8, 9, 's77', FU_RS)
            self.ts(2)
        uflag()
        if self.opt.get('mstop') == 2: k('s_endpgm')
        if self.opt.get('pfs') == 2: pfbc()
        if WPOS == 2: wdma()
        k('s_waitcnt vmcnt(0)')
        for fr in range(8):
            for e in range(2):
                k('ds_read_b64_tr_b16 %s, v20 offset:%d' % (vr(64 + 4 * fr + 2 * e, 2), 8 * e * 256 + 32 * fr), tag='w%d' % fr)
        k('s_mul_i32 s74, s67, 43')
        k('s_lshr_b32 s74, s74, 8')
        k('s_mul_i32 s75, s74, 6')
        k('s_sub_u32 s75, s67, s75')
        k('s_lshr_b32 s76, s75, 1')
        k('s_mul_i32 s76, s76, 14')
        k('s_add_u32 s76, s76, s75')
        k('s_lshl1_add_u32 s76, s74, s76')
        k('s_xor_b32 s72, s76, 8')
        k('s_mul_i32 s72, s72, 5')
        k('s_mul_i32 s76, s76, 5')
        for fr in range(8):
            k('s_lshl_b32 s73, s68, 3')
            k('s_add_u32 s73, s73, %d' % fr)
            k('s_mul_i32 s74, s73, 205')
            k('s_lshr_b32 s74, s74, 10')
            k('s_mul_i32 s75, s74, 235')
            k('s_add_u32 s75, s75, s73')
            k('s_cmp_ge_u32 s74, 4')
            k('s_cselect_b32 s74, s72, s76')
            k('s_add_u32 s75, s75, s74')
            k('s_lshl_b32 s75, s75, 10')
            k('s_add_u32 s75, s75, 0x%x' % WS_W2P)
            k.wait(lg='w%d' % fr)
            k('buffer_store_dwordx4 %s, v21, s[%d:%d], s75 offen sc1' % (vr(64 + 4 * fr, 4), R_WS, R_WS + 3), tag='Wst')
        k('s_lshl_b32 s73, s68, 6')
        k('s_add_u32 s73, s73, s67')
        k('s_lshl_b32 s73, s73, 2')
        k('s_add_u32 s73, s73, 0x%x' % WS_FW)
        k('s_mul_i32 s60, s%d, 3' % S_M)
        k('s_lshl_b32 s61, s%d, 1' % S_M)
        k('s_add_u32 s61, s61, 128')
        k('s_cmp_lt_u32 s%d, 128' % S_M)
        k('s_cselect_b32 s60, s60, s61')
        k('s_cselect_b32 s61, 3, 2')
        k('v_lshrrev_b32 v1, 4, v0')
        k('v_min_u32 v1, 2, v1')
        k('v_mul_u32_u24 v22, %d, v1' % CBS)
        k('v_and_b32 v2, 15, v0')
        k('v_lshl_add_u32 v1, v2, 2, v22')
        k('v_mov_b32 v2, 0')
        k('ds_write_b32 v1, v2 offset:%d' % UX)
        k('ds_write_b32 v1, v2 offset:%d' % UY)
        k('v_bfe_u32 v1, v0, 3, 2')
        k('v_and_b32 v23, 7, v0')
        k('v_lshlrev_b32 v23, 2, v23')
        k('v_lshl_add_u32 v23, v1, 7, v23')
        emit_list(k, ['v_and_b32 v6, 1, v0', 'v_cmp_eq_u32 vcc, 1, v6', 'v_and_b32 v6, 15, v0', 'v_lshrrev_b32 v7, 4, v0', 'v_lshlrev_b32 v7, 4, v7',
               'v_lshrrev_b32 v5, 1, v6', 'v_lshlrev_b32 v5, 6, v5', 'v_sub_u32 v5, v7, v5',
               'v_mov_b32 v2, %d' % (448 + KO), 'v_mov_b32 v3, 448', 'v_cndmask_b32 v2, v2, v3, vcc', 'v_add_u32 v2, v5, v2',
               'v_lshl_add_u32 v5, v6, 2, v7', 'v_mov_b32 v3, %d' % UY, 'v_mov_b32 v4, %d' % (UX + 4),
               'v_cndmask_b32 v3, v3, v4, vcc', 'v_add_u32 v3, v5, v3', 'v_lshlrev_b32 v4, 3, v0'])
        def u_issue():
            for i in range(4):
                k('s_load_dwordx8 s[%d:%d], s[%d:%d], s62 offset:%d' % (16 + 8 * i, 23 + 8 * i, R_WS, R_WS + 1, 128 * i))
        k('s_mul_i32 s64, s60, 205')
        k('s_lshr_b32 s64, s64, 14')
        k('s_add_u32 s65, s60, s61')
        k('s_sub_u32 s65, s65, 1')
        k('s_mul_i32 s65, s65, 205')
        k('s_lshr_b32 s65, s65, 14')
        if self.opt.get('wflag1'):
            k.wait(vm='Wst')
            self.flag_store(8, 9, 's73')
            if self.opt['wflag1'] == 2: k('s_waitcnt vmcnt(0)')
        k.label('L_ugrp')
        k('s_lshl_b32 s9, s64, 9')
        k('s_add_u32 s9, s9, 0x%x' % WS_FU)
        k('s_mov_b32 s62, s9')
        k('s_add_u32 s63, s9, %d' % (NREP * FU_RS))
        self.spoll_loop(u_issue, 16, 32, 62, 63, FU_RS, lambda: self.poll(24, 23, 's9'), sleep=self.opt.get('ssleep', 2))
        k('s_add_u32 s64, s64, 1')
        k('s_cmp_le_u32 s64, s65')
        k('s_cbranch_scc1 L_ugrp')
        self.ts(5)
        k.wait(vm='Wst')
        k('s_lshl_b32 s64, s60, 12')
        for c in range(3):
            if c == 2:
                k('s_cmp_lt_u32 s61, 3')
                k('s_cbranch_scc1 L_u2')
            k('s_add_u32 s65, s64, 4')
            k('s_mov_b32 m0, %d' % (c * CBS + UX + 64))
            for i in range(4):
                k('buffer_load_dwordx4 v21, s[%d:%d], s64 offen offset:%d sc1 lds' % (R_WS, R_WS + 3, 1024 * i))
            k('s_mov_b32 m0, %d' % (c * CBS + UY + 64))
            for i in range(4):
                k('buffer_load_dwordx4 v21, s[%d:%d], s65 offen offset:%d sc1 lds' % (R_WS, R_WS + 3, 1024 * i))
            k('s_add_u32 s64, s64, 4096')
        k.label('L_u2')
        if not self.opt.get('wflag1'): self.flag_store(8, 9, 's73')
        self.ts(7)
        k('s_waitcnt vmcnt(%d)' % (0 if self.opt.get('wflag1') else 1))
        k('ds_read_b32 v1, v22 offset:%d' % (UX + 64))
        k('s_waitcnt lgkmcnt(0)')
        k('ds_write_b32 v22, v1 offset:%d' % (UY + 60))
        k('s_waitcnt lgkmcnt(0)')
        self.ts(6)
        k('s_barrier')
        if self.opt.get('mstop') == 3: k('s_endpgm')
        MT = self.mtiles()
        k('s_setprio %d' % self.opt.get('mvprio', 0))
        k('s_lshl_b32 s64, s60, 12')
        k('s_add_u32 s64, s64, 0x%x' % WS_AT)
        if MT:
            FBm = [96, 128, 160]
            steps = [(c, sg) for c in range(3) for sg in range(8)]
            tagged = lambda i: [(l, 'cs%d' % i) for l in self.conv_reads(steps[i][1], FBm[i % 3], 2, 3, CBS * steps[i][0], 4)]
            emit_list(k, tagged(0) + tagged(1))
            wq = []
            for i, (c, sg) in enumerate(steps):
                Ym = 32 + 16 * (c % 2)
                if c == 2 and sg == 0:
                    k('s_cmp_lt_u32 s61, 3')
                    k('s_cbranch_scc1 L_m2')
                k.wait(lg='cs%d' % i)
                nx = tagged(i + 2) if i + 2 < len(steps) else []
                if sg == 1: nx = nx + wq; wq = []
                self.conv_step(Ym, FBm[i % 3], sg == 0, nx, MT, 4, 2)
                if sg == 7:
                    wq = self.tile_out(Ym, MT, 64 + 8 * c, 4, 's64') + ['s_add_u32 s64, s64, 4096']
                    if c == 1: w1 = list(wq)
            k('s_setprio 3')
            emit_list(k, wq)
            k('s_branch L_m3')
            k.label('L_m2')
            k.pad(8)
            emit_list(k, w1)
            k.label('L_m3')
        self.ts(3)
        k('v_and_b32 v8, 3, v0')
        k('v_cmp_gt_u32 vcc, s61, v8')
        k('v_add_u32 v8, s60, v8')
        k('v_lshrrev_b32 v9, 3, v8')
        k('v_and_b32 v8, 7, v8')
        k('v_lshlrev_b32 v8, 2, v8')
        k('v_lshl_add_u32 v8, v9, 7, v8')
        k('v_lshrrev_b32 v9, 2, v0')
        k('v_mul_u32_u24 v9, %d, v9' % FA_RS)
        k('v_add_u32 v8, v8, v9')
        k('v_mov_b32 v9, s%d' % S_NONCE)
        k('s_and_b32 s66, vcc_lo, 0x%x' % ((1 << (4 * NREP)) - 1))
        k('s_mov_b32 s67, 0')
        k('s_mov_b32 s65, 0x%x' % WS_FA)
        if self.opt.get('park'): self.cut('misc_end')
        k('s_waitcnt vmcnt(0) lgkmcnt(0)')
        k('s_barrier')
        k('s_mov_b64 exec, s[66:67]')
        k('buffer_store_dword v9, v8, s[%d:%d], s65 offen sc1' % (R_WS, R_WS + 3))
        k('s_mov_b64 exec, -1')
        if self.opt.get('park') and self.opt.get('ts'): self.cut('misc_end2')
        self.ts(4)
        self.ts_store()
        k('s_endpgm')
        self.mark('idle')
        k.label('L_idle')
        k('s_cmp_lg_u32 s2, 128')
        k('s_cbranch_scc1 L_end')
        k('s_cmp_lg_u32 s%d, 2' % S_WAVE)
        k('s_cbranch_scc1 L_end')
        k('v_lshlrev_b32 v2, 6, v0')
        k('s_waitcnt lgkmcnt(0)')
        k('s_or_b32 s10, s10, 1')
        k('v_mov_b32 v1, s10')
        k('s_mov_b64 exec, 15')
        k('global_store_dword v2, v1, s[%d:%d] sc1' % (P_DBG, P_DBG + 1))
        if self.opt.get('latprobe'):
            ptr = {1: P_BX, 2: P_WS, 3: P_BX}[self.opt['latprobe']]
            k.label('L_lp0')
            k('s_memrealtime s[64:65]')
            k('s_waitcnt lgkmcnt(0)')
            k('s_sub_u32 s64, s64, s10')
            k('s_cmp_lt_u32 s64, 3500')
            k('s_cbranch_scc1 L_lp0')
            k('v_mov_b32 v2, 0x%x' % (0x100000 if ptr == P_BX else 0x8000000))
            k('s_memtime s[70:71]')
            k('global_load_dword v3, v2, s[%d:%d]' % (ptr, ptr + 1))
            k('s_waitcnt vmcnt(0)')
            k('s_memtime s[66:67]')
            k('s_waitcnt lgkmcnt(0)')
            for i in range(4):
                k('v_add_u32 v2, 0x3480, v2')
                k('global_load_dword v3, v2, s[%d:%d]' % (ptr, ptr + 1))
                k('s_waitcnt vmcnt(0)')
            k('s_memtime s[68:69]')
            k('s_waitcnt lgkmcnt(0)')
            if self.opt['latprobe'] == 3:
                k('s_sub_u32 s68, s66, s70')
            else:
                k('s_sub_u32 s68, s68, s66')
                k('s_lshr_b32 s68, s68, 2')
            k('v_mov_b32 v1, s68')
            k('v_mov_b32 v2, 0')
            k('global_store_dword v2, v1, s[%d:%d] offset:16' % (P_DBG, P_DBG + 1))
            k('s_add_u32 s68, s68, 4000')
            k.label('L_lp1')
            k('s_memrealtime s[64:65]')
            k('s_waitcnt lgkmcnt(0)')
            k('s_sub_u32 s64, s64, s10')
            k('s_cmp_lt_u32 s64, s68')
            k('s_cbranch_scc1 L_lp1')
        k('s_endpgm')

    def cmul(self, d, a, b):
        if self.opt.get('nopk'):
            return ['v_mul_f32 v%d, v%d, v%d' % (d, a, b),
                    'v_mul_f32 v%d, v%d, v%d' % (d + 1, a, b + 1),
                    'v_fma_f32 v%d, -v%d, v%d, v%d' % (d, a + 1, b + 1, d),
                    'v_fmac_f32 v%d, v%d, v%d' % (d + 1, a + 1, b)]
        return ['v_pk_mul_f32 %s, %s, %s op_sel:[0,0] op_sel_hi:[0,1]' % (vr(d, 2), vr(a, 2), vr(b, 2)),
                'v_pk_fma_f32 %s, %s, %s, %s op_sel:[1,1,0] op_sel_hi:[1,0,1] neg_lo:[1,0,0]' % (vr(d, 2), vr(a, 2), vr(b, 2), vr(d, 2))]
    def chan(self):
        k = self.k; opt = self.opt
        k.reset_counts()
        self.mark('chan_head')
        self.role = 2
        k.label('L_chanh')
        self.ets(1)
        S_D, S_CB, S_DSK = 12, 13, 14
        k('s_mul_i32 s64, s%d, 3' % S_M)
        k('s_lshl_b32 s65, s%d, 1' % S_M)
        k('s_add_u32 s65, s65, 128')
        k('s_cmp_lt_u32 s%d, 128' % S_M)
        k('s_cselect_b32 s64, s64, s65')
        k('s_cselect_b32 s65, 3, 2')
        k('s_cmp_ge_u32 s%d, s65' % S_WAVE)
        k('s_cbranch_scc1 L_idle')
        if opt.get('nochan'): k('s_endpgm')
        k('s_add_u32 s%d, s64, s%d' % (S_D, S_WAVE))
        k('s_mul_i32 s%d, s%d, %d' % (S_CB, S_WAVE, CBS))
        PR = 232
        for i in range(6): k('v_mov_b32 v%d, 0' % (PR + 3 * i + 2))
        k('s_mul_i32 s64, s%d, 384' % S_D)
        k('v_lshlrev_b32 v1, 1, v0')
        k('v_add_u32 v1, s64, v1')
        k('v_lshl_add_u32 v2, v0, 2, s64')
        k('s_lshr_b32 s64, s%d, 1' % S_D)
        k('s_lshl_b32 s64, s64, 2')
        k('s_waitcnt lgkmcnt(0)')
        self.ets(3)
        for ai, p in enumerate((P_ARE, P_AIM, P_BRE, P_BIM, P_CRE, P_CIM)):
            k('global_load_dword v%d, v2, s[%d:%d]' % (PR + 3 * ai + 1, p, p + 1), tag='par0')
        k('s_load_dword s65, s[%d:%d], s64' % (P_LDT, P_LDT + 1))
        k('s_load_dword s66, s[%d:%d], s64' % (P_DSK, P_DSK + 1))
        for ai, p in enumerate((P_ARE, P_AIM, P_BRE, P_BIM, P_CRE, P_CIM)):
            k('global_load_short_d16_hi v%d, v1, s[%d:%d] offset:256' % (PR + 3 * ai + 2, p, p + 1), tag='par2')
        if opt.get('gtouch'):
            k('v_min_u32 v3, 9, v0')
            k('v_lshlrev_b32 v3, 7, v3')
            k('global_load_dword v3, v3, s[%d:%d]' % (P_GW, P_GW + 1), tag='par2')
        self.cut('chan_main')
        self.ets(4)
        self.ts_init()
        self.srd_base(R_WS, P_WS)
        if opt.get('cprio'): k('s_setprio %d' % opt['cprio'])
        V_DT = 4
        ACC, QF, DT_, VV, GG, ID = 16, 32, 64, 128, 192, 208
        k('v_and_b32 v6, 31, v0')
        k('v_lshrrev_b32 v7, 5, v0')
        k('v_lshlrev_b32 v7, 3, v7')
        k('v_sub_u32 v6, v6, v7')
        k('v_and_b32 v7, 1, v0')
        k('v_lshlrev_b32 v7, 4, v7')
        k('v_mov_b32 v8, 0x3f80')
        k('v_lshlrev_b32 v7, v7, v8')
        k('v_lshrrev_b32 v6, 1, v6')
        for d in range(8):
            k('v_cmp_eq_u32 vcc, %d, v6' % (d if d < 4 else d + 4))
            k('v_cndmask_b32 v%d, 0, v7, vcc' % (ID + d))
        for i in range(16): k('v_mov_b32 v%d, 0' % (ACC + i))
        k('s_and_b32 s64, s%d, 1' % S_D)
        k('s_lshl_b32 s64, s64, 4')
        k('s_waitcnt lgkmcnt(0)')
        k('s_lshr_b32 s65, s65, s64')
        k('s_lshl_b32 s65, s65, 16')
        k('s_lshr_b32 s66, s66, s64')
        k('s_lshl_b32 s%d, s66, 16' % S_DSK)
        k('v_mov_b32 v6, s65')
        k('v_mul_f32 v6, %s, v6' % fhex(LOG2E))
        k('v_exp_f32 v6, v6')
        k('v_cvt_pk_bf16_f32 v6, v6, v6')
        k('v_lshlrev_b32 v%d, 16, v6' % V_DT)
        X_, E1, E2, E4, E8, E256, E16, C_ = 216, 218, 220, 222, 224, 226, 228, 230
        T0 = GG
        order = [0, 1, 2, 3, 4, 5, 6, 7, 4, 256, 258, 260, 8, 260, 262, 264, 512, 516, 520, 1024, 768, 772, 776, 1536, 1032, 1280, 1288, 1288, 1544, 1792, 1800, 1800]
        pv = {}
        for i, o in enumerate(order): pv.setdefault(o, VV + 2 * i)
        pv[0] = C_
        Dt = lambda t: DT_ + 16 * t
        def kmfma(s):
            return 'v_mfma_f32_32x32x16_bf16 %s, %s, %s, %s' % (vr(ACC, 16), vr(Dt(s >> 1) + 4 * (s & 1), 4), vr(QF + 4 * s, 4), vr(ACC, 16))
        S_PS = 73
        def setup(ps):
            if ps != 1: k.wait(vm='par%d' % ps)
            if ps == 0:
                for a_ in range(6):
                    k('v_lshlrev_b32 v%d, 16, v%d' % (PR + 3 * a_, PR + 3 * a_ + 1))
                    k('v_and_b32 v%d, 0xffff0000, v%d' % (PR + 3 * a_ + 1, PR + 3 * a_ + 1))
            ar, ai, br, bi, cr, ci = [PR + 3 * a + ps for a in range(6)]
            self.pr(200 + ps, 0)
            su = []
            su.append('v_mul_f32 v%d, v%d, v%d' % (X_, V_DT, ar))
            su.append('v_mul_f32 v%d, v%d, v%d' % (X_ + 1, V_DT, ai))
            su.append('v_mul_f32 v%d, %s, v%d' % (X_, fhex(LOG2E), X_))
            su.append('v_mul_f32 v%d, %s, v%d' % (X_ + 1, fhex(INV2PI), X_ + 1))
            su.append('v_rndne_f32 v%d, v%d' % (T0 + 2, X_ + 1))
            su.append('v_mul_f32 v%d, v%d, v%d' % (T0, V_DT, br))
            su.append('v_mul_f32 v%d, v%d, v%d' % (T0 + 1, V_DT, bi))
            su.append('v_sub_f32 v%d, v%d, v%d' % (X_ + 1, X_ + 1, T0 + 2))
            su.append('v_mul_f32 v%d, v%d, v%d' % (C_, cr, T0))
            su.append('v_mul_f32 v%d, v%d, v%d' % (C_ + 1, cr, T0 + 1))
            su.append('v_fma_f32 v%d, -v%d, v%d, v%d' % (C_, ci, T0 + 1, C_))
            su.append('v_fmac_f32 v%d, v%d, v%d' % (C_ + 1, ci, T0))
            for idx, (dst, p) in enumerate(((E8, 8.0), (E1, 1.0), (E256, 256.0))):
                t = T0 + 4 + 4 * idx
                if p == 1.0: m, th = X_, X_ + 1
                else:
                    su.append('v_mul_f32 v%d, %s, v%d' % (t, fhex(p), X_))
                    su.append('v_mul_f32 v%d, %s, v%d' % (t + 1, fhex(p), X_ + 1))
                    m, th = t, t + 1
                su.append('v_exp_f32 v%d, v%d' % (t + 2, m))
                su.append('v_cos_f32 v%d, v%d' % (dst, th))
                su.append('v_sin_f32 v%d, v%d' % (dst + 1, th))
            for idx, dst in enumerate((E8, E1, E256)):
                t = T0 + 4 + 4 * idx
                su.append('v_mul_f32 v%d, v%d, v%d' % (dst, dst, t + 2))
                su.append('v_mul_f32 v%d, v%d, v%d' % (dst + 1, dst + 1, t + 2))
            if ps > 0:
                for i, l in enumerate(su):
                    if i % 6 == 0 and i // 6 < 4: k(kmfma(4 + i // 6))
                    k(l)
            else:
                emit_list(k, su)
        setup(0)
        self.ts(1)
        k('s_mov_b32 s%d, 0' % S_PS)
        k.raw('.p2align 3')
        k.label('L_kbody')
        ps = 1
        def weave(ms, fill):
            per = -(-len(fill) // len(ms))
            for m in ms:
                k(m)
                emit_list(k, fill[:per]); fill = fill[per:]
        def cvts(src, part, neg):
            out = []
            for g in range(4):
                for d in range(4):
                    dst = GG + 4 * g + d if part == 0 else VV + 16 * g + d
                    ops = []
                    for o in src[8 * g + 2 * d: 8 * g + 2 * d + 2]:
                        if o is None: ops.append('1.0' if part == 0 else '0')
                        else: ops.append('%sv%d' % ('-' if neg else '', o + part))
                    out.append('v_cvt_pk_bf16_f32 v%d, %s, %s' % (dst, ops[0], ops[1]))
            return out
        grp = lambda part, g: GG + 4 * g if part == 0 else VV + 16 * g
        def swaps(part):
            return ['v_permlane32_swap_b32 v%d, v%d' % (grp(part, g) + d, grp(part, g + 1) + d) for g in (0, 2) for d in range(4)]
        def tm(part):
            t = 2 * part
            f = lambda tl, g, c: 'v_mfma_f32_32x32x16_bf16 %s, %s, %s, %s' % (vr(Dt(tl), 16), vr(grp(part, g), 4), vr(ID + 4 * (g >> 1), 4), c)
            return [f(t, 0, '0'), f(t, 2, vr(Dt(t), 16)), f(t + 1, 1, '0'), f(t + 1, 3, vr(Dt(t + 1), 16))]
        def back(t, dst):
            return ['v_cvt_pk_bf16_f32 v%d, v%d, v%d' % (dst + d, Dt(t) + 2 * d, Dt(t) + 2 * d + 1) for d in range(8)]
        self.pr(200 + ps, 1)
        qs = [None, E8, E16] + [VV + 2 * b_ for b_ in range(3, 32)]
        emit_list(k, self.cmul(E16, E8, E8))
        for b_ in range(3, 32): emit_list(k, self.cmul(qs[b_], qs[b_ - 2], E16))
        self.pr(200 + ps, 2)
        emit_list(k, cvts(qs, 0, False) + swaps(0))
        weave(tm(0), cvts(qs, 1, True) + swaps(1))
        weave(tm(1), back(0, QF) + back(1, QF + 8))
        self.pr(200 + ps, 3)
        cm = lambda o, a_, e: emit_list(k, self.cmul(pv[o], pv[a_], e))
        emit_list(k, self.cmul(E2, E1, E1))
        emit_list(k, self.cmul(E4, E2, E2))
        for o in range(1, 9): cm(o, o - 1, E1)
        for o in (256, 512, 768, 1024, 1280, 1536, 1792): cm(o, o - 256, E256)
        for o in (258, 260, 262, 264): cm(o, o - 2, E2)
        cm(516, 512, E4); cm(520, 512, E8); cm(772, 768, E4); cm(776, 768, E8)
        for o in (1032, 1288, 1544, 1800): cm(o, o - 8, E8)
        self.pr(200 + ps, 4)
        psrc = [pv[o] for o in order]
        emit_list(k, cvts(psrc, 0, False) + swaps(0))
        weave(tm(0), back(2, QF + 16) + back(3, QF + 24) + cvts(psrc, 1, False) + swaps(1))
        self.pr(200 + ps, 5)
        weave(tm(1), back(0, Dt(0)) + back(1, Dt(1)))
        weave([kmfma(s_) for s_ in range(4)], back(2, Dt(2)) + back(3, Dt(3)))
        self.pr(200 + ps, 7)
        k('s_add_u32 s%d, s%d, 1' % (S_PS, S_PS))
        k('s_cmp_eq_u32 s%d, 3' % S_PS)
        k('s_cbranch_scc1 L_kexit')
        k('s_cmp_eq_u32 s%d, 2' % S_PS)
        k('s_cbranch_scc1 L_ks2')
        lg_save = list(k.lg)
        setup(1)
        k('s_branch L_kbody')
        k.label('L_ks2')
        k.lg = list(lg_save)
        setup(2)
        k('s_branch L_kbody')
        k.label('L_kexit')
        if opt.get('xprio'): k('s_setprio %d' % opt['xprio'])
        k('s_load_dword s%d, s[%d:%d], 0' % (S_NONCE, P_DBG, P_DBG + 1))
        k('s_cmp_ge_u32 s%d, 2' % S_WAVE)
        k('s_cbranch_scc1 L_nogate0')
        self.gate(0)
        k.label('L_nogate0')
        k.lg = list(lg_save)
        ex = []
        ex += ['v_and_b32 v6, 31, v0', 'v_lshrrev_b32 v7, 5, v0', 'v_lshlrev_b32 v8, 4, v6', 'v_sub_u32 v8, s%d, v8' % S_CB,
               'v_lshlrev_b32 v9, 3, v7', 'v_sub_u32 v9, v8, v9', 'v_add_u32 v9, 504, v9',
               'v_lshlrev_b32 v10, 9, v7', 'v_sub_u32 v10, v8, v10', 'v_add_u32 v10, 1008, v10',
               'v_lshlrev_b32 v11, 10, v7', 'v_sub_u32 v11, v8, v11', 'v_add_u32 v11, 1520, v11',
               'v_add_u32 v12, %d, v9' % (KO + 4084 - 504), 'v_add_u32 v13, %d, v9' % (KO + 4084 - 512 - 504),
               'v_and_b32 v6, 1, v0', 'v_cmp_eq_u32 vcc, 1, v6',
               'v_min_u32 v14, 27, v0', 'v_lshlrev_b32 v14, 4, v14', 'v_add_u32 v14, s%d, v14' % S_CB]
        ex += ['v_mov_b32 v%d, 0' % (96 + i) for i in range(4)]
        V_A, V_B = 2, 3
        ex += ['v_and_b32 v6, 15, v0', 'v_lshrrev_b32 v7, 4, v0', 'v_lshlrev_b32 v7, 4, v7', 'v_add_u32 v7, s%d, v7' % S_CB,
               'v_lshrrev_b32 v8, 1, v6', 'v_lshlrev_b32 v8, 6, v8', 'v_sub_u32 v8, v7, v8',
               'v_mov_b32 v102, %d' % (448 + KO), 'v_mov_b32 v103, 448', 'v_cndmask_b32 v102, v102, v103, vcc', 'v_add_u32 v%d, v8, v102' % V_A,
               'v_lshl_add_u32 v8, v6, 2, v7', 'v_mov_b32 v102, %d' % UY, 'v_mov_b32 v103, %d' % (UX + 4),
               'v_cndmask_b32 v102, v102, v103, vcc', 'v_add_u32 v%d, v8, v102' % V_B, 'v_mov_b32 v15, s%d' % S_CB]
        ex = [l.replace('v102', 'v202').replace('v103', 'v203') for l in ex]
        ex = [l.replace('v_mov_b32 v9', 'v_mov_b32 v19') if l.startswith('v_mov_b32 v9') else l for l in ex]
        for s in range(4, 8):
            k(kmfma(s))
            emit_list(k, ex[:6]); ex = ex[6:]
        emit_list(k, ex)
        k('ds_write_b128 v14, v[196:199] offset:4096')
        k('ds_write_b128 v14, v[196:199] offset:%d' % (KO + 4096))
        self.ts(3)
        V = lambda r: ACC + r
        pk = lambda d, lo, hi: k('v_cvt_pk_bf16_f32 v%d, v%d, v%d' % (d, lo, hi))
        k('s_mov_b64 exec, 1')
        k('v_add_f32 v%d, s%d, v%d' % (V(0), S_DSK, V(0)))
        k('s_mov_b64 exec, -1')
        k('v_cndmask_b32 v100, v%d, v%d, vcc' % (V(11), V(12)))
        k('v_cndmask_b32 v101, v%d, v%d, vcc' % (V(13), V(14)))
        pk(32, V(3), V(2)); pk(33, V(1), V(0))
        pk(34, V(7), V(6)); pk(35, V(5), V(5))
        pk(36, V(10), V(10)); pk(37, V(9), V(9)); pk(38, V(9), V(8)); pk(39, V(8), V(8))
        pk(40, V(10), V(9)); k('v_mov_b32 v41, v37'); k('v_mov_b32 v42, v39'); k('v_mov_b32 v43, v39')
        for (lo, hi, T, off, rb) in ((11, 12, 100, 2032, 44), (13, 14, 101, 1520, 52)):
            pk(rb, V(hi), V(hi)); pk(rb + 1, V(hi), T); pk(rb + 2, V(lo), V(lo)); k('v_mov_b32 v%d, v%d' % (rb + 3, rb + 2))
            k('v_mov_b32 v%d, v%d' % (rb + 4, rb)); pk(rb + 5, T, V(lo)); k('v_mov_b32 v%d, v%d' % (rb + 6, rb + 2)); k('v_mov_b32 v%d, v%d' % (rb + 7, rb + 2))
        pk(60, V(4), V(3)); pk(61, V(2), V(1))
        pk(62, V(7), V(7)); pk(63, V(6), V(5))
        pk(102, V(0), 196)
        k('ds_write_b64 v9, v[32:33] offset:%d' % (4088 - 504))
        k('ds_write_b64 v9, v[34:35] offset:%d' % (4088 - 512 - 504))
        k('ds_write2_b32 v12, v60, v61 offset0:0 offset1:1')
        k('ds_write2_b32 v13, v62, v63 offset0:0 offset1:1')
        k('ds_write_b128 v10, v[36:39] offset:%d' % (3056 - 1008))
        k('ds_write_b128 v10, v[40:43] offset:%d' % (KO + 3056 - 1008))
        for (off, rb) in ((2032, 44), (1520, 52)):
            k('ds_write_b128 v11, %s offset:%d' % (vr(rb, 4), off - 1520))
            k('ds_write_b128 v11, %s offset:%d' % (vr(rb + 4, 4), KO + off - 1520))
        k('s_mov_b64 exec, 1')
        k('ds_write_b32 v15, v102 offset:%d' % (KO + 4092))
        k('s_mov_b64 exec, -1')
        self.snonce(104, 105, first=1)
        self.ts(2)
        k('s_cmp_ge_u32 s%d, 2' % S_WAVE)
        k('s_cbranch_scc1 L_nogate')
        self.gate(1)
        k.label('L_nogate')
        k('s_waitcnt lgkmcnt(0)')
        k('s_barrier')
        if opt.get('cstop') == 3: k('s_endpgm')
        Y = 16
        FB = [64, 128]
        CT = [i for i in range(8) if i not in self.mtiles()]
        self.ts(4)
        k('s_setprio %d' % opt.get('vprio', 0))
        emit_list(k, self.conv_reads(0, FB[0], V_A, V_B))
        fin = ['v_lshlrev_b32 v8, 3, v0', 's_lshl_b32 s64, s%d, 12' % S_D, 's_add_u32 s64, s64, 0x%x' % WS_AT]
        for sg in range(8):
            k.wait(lg='all')
            if opt.get('cpat'):
                k('s_setprio %d' % (3 if (opt['cpat'] >> sg) & 1 else 0))
            nx = self.conv_reads(sg + 1, FB[(sg + 1) % 2], V_A, V_B) if sg + 1 < 8 else fin
            self.conv_step(Y, FB[sg % 2], sg == 0, nx, CT)
        self.ts(5)
        k('s_setprio 3')
        emit_list(k, self.tile_out(Y, CT, 64, 8, 's64'))
        self.ts(6)
        if opt.get('park'): self.cut('chan_end')
        k.wait(vm='all')
        k('s_barrier')
        if opt.get('park') and opt.get('ts'): self.cut('chan_end2')
        self.ts(7)
        self.ts_store()
        k('s_endpgm')

    def gate(self, part):
        k = self.k
        GX, GW = 128, 168
        if part == 0: self.gate_issue(GX, GW)
        else: self.gate_finish(GX, GW)
    def gate_issue(self, GX, GW):
        k = self.k
        if self.opt.get('gateprio'): k('s_setprio %d' % self.opt['gateprio'])
        self.srd_base(R_U, P_U)
        k('v_and_b32 v5, 15, v0')
        k('v_lshlrev_b32 v5, 4, v5')
        k('v_lshrrev_b32 v1, 4, v0')
        k('v_mul_u32_u24 v7, 1280, v1')
        k('v_add_u32 v7, v7, v5')
        k('s_lshl3_add_u32 s70, s%d, s%d' % (S_RHO, S_J))
        k('s_lshl1_add_u32 s70, s70, s%d' % S_WAVE)
        k('s_mul_i32 s71, s70, %d' % (4 * 1280))
        for i in range(5):
            k('buffer_load_dwordx4 %s, v7, s[%d:%d], s71 offen offset:%d' % (vr(GX + 4 * i, 4), R_U, R_U + 3, 256 * i), tag='G%d' % i)
            k('global_load_dwordx4 %s, v5, s[%d:%d] offset:%d' % (vr(GW + 4 * i, 4), P_GW, P_GW + 1, 256 * i), tag='G%d' % i)
        if self.opt.get('gateprio'): k('s_setprio %d' % self.opt.get('xprio', 0))
    def gate_finish(self, GX, GW):
        k = self.k
        k('v_mov_b32 v160, 0')
        k('v_mov_b32 v161, 0')
        for i in range(20):
            if i % 4 == 0: k.wait(vm='G%d' % (i // 4))
            x, w = GX + i, GW + i
            t = 152
            if self.opt.get('dotgate'):
                k('v_dot2_f32_bf16 v%d, v%d, v%d, v%d' % (160 + i % 2, x, w, 160 + i % 2))
                continue
            k('v_lshlrev_b32 v%d, 16, v%d' % (t, x))
            k('v_and_b32 v%d, 0xffff0000, v%d' % (t + 1, x))
            k('v_lshlrev_b32 v%d, 16, v%d' % (t + 2, w))
            k('v_and_b32 v%d, 0xffff0000, v%d' % (t + 3, w))
            k('v_mul_f32 v%d, v%d, v%d' % (t, t, t + 2))
            k('v_mul_f32 v%d, v%d, v%d' % (t + 1, t + 1, t + 3))
            k('v_cvt_pk_bf16_f32 v%d, v%d, v%d' % (t + 4, t, t + 1))
            k('v_lshlrev_b32 v%d, 16, v%d' % (t, t + 4))
            k('v_and_b32 v%d, 0xffff0000, v%d' % (t + 1, t + 4))
            k('v_add_f32 v160, v160, v%d' % t)
            k('v_add_f32 v161, v161, v%d' % (t + 1))
        if self.opt.get('dotgate'): k('s_nop 3')
        k('v_add_f32 v160, v160, v161')
        for m in ('quad_perm:[1,0,3,2]', 'quad_perm:[2,3,0,1]', 'row_half_mirror', 'row_mirror'):
            k('v_add_f32_dpp v160, v160, v160 %s row_mask:0xf bank_mask:0xf' % m)
        k('v_cvt_pk_bf16_f32 v160, v160, v160')
        k('v_lshlrev_b32 v160, 16, v160')
        k('v_mul_f32 v160, %s, v160' % fhex(-LOG2E))
        k('v_exp_f32 v160, v160')
        k('v_add_f32 v160, 1.0, v160')
        k('v_rcp_f32 v160, v160')
        k('v_cvt_pk_bf16_f32 v160, v160, v160')
        k('v_lshlrev_b32 v160, 16, v160')
        k('v_mov_b32 v161, s%d' % S_NONCE)
        k('v_lshlrev_b32 v6, 3, v1')
        k('s_lshl_b32 s70, s70, 5')
        k('s_add_u32 s70, s70, 0x%x' % WS_G)
        k('s_mov_b32 s74, 0x00010001')
        k('s_mov_b32 s75, 0x00010001')
        k('s_mov_b64 exec, s[74:75]')
        k('buffer_store_dwordx2 v[160:161], v6, s[%d:%d], s70 offen sc1' % (R_WS, R_WS + 3))
        k('s_mov_b64 exec, -1')

    def build(self):
        import gemm18
        k = self.k
        self.prologue()
        self.misc()
        self.chan()
        k.reset_counts()
        self.mark('gemm_head')
        self.role = 1
        k.label('L_gemm')
        self.ets(1)
        if self.opt.get('nogemm'): k('s_endpgm')
        else: gemm18.emit(self)
        self.mark('end')
        k.label('L_end')
        k('s_endpgm')
        secs = {}; prev = ('pro', 0)
        for m in self.marks + [('eof', len(k.items))]:
            secs[prev[0]] = k.items[prev[1]:m[1]]; prev = m
        order = ['pro'] + {0: ['chan_head', 'misc_head', 'idle', 'gemm_head'], 1: ['misc_head', 'chan_head', 'idle', 'gemm_head'], 2: ['gemm_head', 'chan_head', 'misc_head', 'idle'], 3: ['misc_head', 'gemm_head', 'chan_head', 'idle']}[self.opt.get('hord', 0)] + [ 'chan_main', 'misc_main', 'gemm_main', 'chan_end', 'gemm_t1', 'misc_end', 'gemm_t2', 'chan_end2', 'misc_end2', 'end']
        k.items = sum((secs[n] for n in order if n in secs), []) + sum(getattr(k, 'colds', []), [])
        assert set(secs) <= set(order)
        if self.opt.get('ipf'): k.raw('.fill ((%d - (. - %s)) / 4), 4, 0xbf810000' % (64 * 128 * self.opt['ipf'] + 256, KNAME))
        hdr = open('gated_mix__ssm_conv_s4__dense_activation_silu__prompt.s.ref').read().split('; Override launch')[0]
        s = hdr + '; @launch grid=(512,1,1) block=(256,1,1) lds=81920\n'
        s += DOC
        s += '.amdgcn_target "amdgcn-amd-amdhsa--gfx950"\n.text\n.globl %s\n.p2align 8\n.type %s,@function\n%s:\n' % (KNAME, KNAME, KNAME)
        s += k.text()
        s += '.section .rodata,"a"\n.p2align 6\n.amdhsa_kernel %s\n' % KNAME
        s += '  .amdhsa_next_free_vgpr 256\n  .amdhsa_next_free_sgpr 102\n  .amdhsa_accum_offset 256\n  .amdhsa_group_segment_fixed_size 0\n'
        s += '  .amdhsa_kernarg_size 128\n  .amdhsa_user_sgpr_count 2\n  .amdhsa_user_sgpr_kernarg_segment_ptr 1\n  .amdhsa_system_sgpr_workgroup_id_x 1\n.end_amdhsa_kernel\n'
        return s

if __name__ == '__main__':
    opt = {}
    out = sys.argv[1]
    for a in sys.argv[2:]:
        if '=' in a:
            kk, v = a.split('='); opt[kk] = int(v, 0)
        else: opt[a] = 1
    g = Gen(opt)
    open(out, 'w').write(g.build())
    print('nops inserted', g.k.nops, 'lines', len(g.k.items))
```

```python
from kgen import *
from gen18 import *

def emit(G):
    k = G.k
    opt = G.opt
    KS = opt.get('ks', 2)
    S_FA, S_LW, S_GG, S_HS, S_V, S_H0, S_FH, S_FC = 4, 9, 10, 11, 12, 13, 14, 15
    S_H1, S_FW, S_AT, S_AD, S_OUT, S_A3, S_AC, S_AE, S_FC2 = 40, 41, 42, 43, 46, 47, 78, 79, 8 + 92
    S_XZ, S_WZ = 68, 73
    VV, VR, VRH, VHL, VFH, VFW, V_FA, V_AD, V_G, V_AR, V_OW, V_OS = 2, 3, 4, 5, 7, 8, 9, 10, 11, 12, 13, 14
    VW, WA, WAH, VH, V_NON, V_REP, ET = 17, 21, 22, 23, 24, 25, 26
    VX, XA, XT = 80, 84, 92
    g_, c_ = 30, 31
    k('v_lshrrev_b32 v30, 4, v0')
    k('v_and_b32 v31, 15, v0')
    k('v_and_b32 v27, 2, v30')
    k('v_add_u32 v27, v27, v30')
    k('s_and_b32 s64, s%d, 2' % S_WAVE)
    k('v_xor_b32 v27, v31, v27')
    k('v_xor_b32 v27, s64, v27')
    k('v_lshlrev_b32 v27, 4, v27')
    k('s_mul_i32 s64, s%d, %d' % (S_WAVE, 16 * 1280))
    k('v_mul_u32_u24 v26, 1280, v30')
    k('v_add_u32 v26, s64, v26')
    k('v_add_u32 v%d, v26, v27' % VX)
    k('v_xor_b32 v28, 128, v27')
    k('v_add_u32 v28, 4096, v28')
    k('v_add_u32 v%d, v26, v28' % (VX + 1))
    k('v_add_u32 v%d, 8192, v%d' % (VX + 2, VX))
    k('v_add_u32 v%d, 8192, v%d' % (VX + 3, VX + 1))
    k('s_mul_i32 s%d, s%d, %d' % (S_XZ, S_RHO, 64 * 1280))
    k('s_lshl_b32 s%d, s%d, 12' % (S_LW, S_WAVE))
    seq = []
    pat = {0: 'XWXWXWXWXW', 1: 'XXXXXWWWWW', 2: 'XXXWXWXWWW', 3: 'XXWXWXWXWW'}[opt.get('xfirst', 3)]
    cnt = {'X': 0, 'W': 0}
    for ch in pat:
        seq.append((ch, cnt[ch], 0)); cnt[ch] += 1
    for r in (1, 2):
        for z in range(5): seq.append(('W', z, r))
    for z in range(15): seq.append(('V', z, 0))
    def dma(i):
        typ, z, r = seq[i]
        out = ['s_add_u32 m0, s%d, %d' % (S_LW, 16384 * (i % 5))]
        if typ == 'V':
            if z: out.append('s_add_u32 s%d, s%d, 16384' % (S_V, S_V))
            return out + [('buffer_load_dwordx4 v%d, s[%d:%d], s%d offen offset:%d sc1 lds' % (VV, R_WS, R_WS + 3, S_V, 1024 * n), 'S%d' % i) for n in range(4)]
        if typ == 'X':
            if z: out.append('s_add_u32 s%d, s%d, 256' % (S_XZ, S_XZ))
        elif z: out.append('s_add_u32 s%d, s%d, %d' % (S_WZ, S_WZ, 128 * 3072))
        elif r: out.append('s_sub_u32 s%d, s%d, %d' % (S_WZ, S_WZ, 4 * 128 * 3072 - 128))
        so, rr, vo = (S_XZ, R_U, VX) if typ == 'X' else (S_WZ, R_W, VW)
        for n in range(4):
            out.append(('buffer_load_dwordx4 v%d, s[%d:%d], s%d offen offset:%d lds' % (vo + n, rr, rr + 3, so, 1024 * n), 'S%d' % i))
        return out
    k('s_waitcnt lgkmcnt(0)')
    G.ets(3)
    G.srd_base(R_U, P_U)
    emit_list(k, dma(0))
    G.srd_base(R_W, P_W1); G.srd_tail(R_W, 640 * 1536 * 2)
    def touch():
        L = k.newlabel('L_nt')
        k('s_cmp_lg_u32 s%d, 0' % S_WAVE)
        k('s_cbranch_scc1 %s' % L)
        emit_list(k, ['v_min_u32 v26, 59, v0', 'v_mul_u32_u24 v27, 43, v26', 'v_lshrrev_b32 v27, 9, v27',
             'v_mul_u32_u24 v27, %d, v27' % (3072 - 128 * 12), 'v_lshl_add_u32 v26, v26, 7, v27',
             's_bfe_u32 s64, s2, 0x50003', 's_bfe_u32 s65, s2, 0x20001', 's_lshl_b32 s65, s65, 5', 's_add_u32 s64, s64, s65',
             's_mul_i32 s64, s64, %d' % (5 * 3072), 's_and_b32 s65, s2, 1', 's_mul_i32 s65, s65, %d' % (128 * 12), 's_add_u32 s64, s64, s65'])
        k('buffer_load_dword v254, v26, s[%d:%d], s64 offen' % (R_W, R_W + 3)); k.vm.pop()
        k.label(L)
    PF = opt.get('pf1', 1)
    if PF == 1: touch()
    k('v_lshrrev_b32 v26, 3, v0')
    k('s_lshl_b32 s65, s%d, 5' % S_WAVE)
    k('v_add_u32 v26, s65, v26')
    k('v_mul_u32_u24 v26, 3072, v26')
    k('v_and_b32 v27, 7, v0')
    k('v_and_b32 v28, 1, v30')
    k('v_lshlrev_b32 v28, 2, v28')
    k('v_xor_b32 v27, v27, v28')
    k('v_lshl_add_u32 v%d, v27, 4, v26' % VW)
    for n in range(1, 4):
        k('v_add_u32 v%d, %d, v%d' % (VW + n, n * (8 * 3072 - 1024), VW))
    k('s_mul_i32 s%d, s%d, 384' % (S_WZ, S_J))
    LA_ = opt.get('la', 4)
    NPRE = opt.get('npre', 2)
    if PF == 2: touch()
    if not opt.get('late1'):
        for i in range(1, NPRE): emit_list(k, dma(i))
    G.ets(4)
    G.cut('gemm_main')
    G.ts_init()
    if PF == 3: touch()
    if opt.get('late1'):
        for i in range(1, NPRE): emit_list(k, dma(i))
    k('s_setprio %d' % opt.get('gprio', 2))
    G.srd_base(R_WS, P_WS)
    G.srd_base(R_O, P_OUT); G.srd_tail(R_O, 2048 * 640 * 2)
    S_TAU, S_PHI, S_T = 69, 70, 71
    k('s_and_b32 s%d, s%d, 1' % (S_TAU, S_WAVE))
    k('s_lshr_b32 s%d, s%d, 1' % (S_PHI, S_WAVE))
    if KS == 2: k('s_lshl1_add_u32 s%d, s%d, s%d' % (S_T, S_TAU, S_PHI))
    else: k('s_mov_b32 s%d, s%d' % (S_T, S_WAVE))
    rowoff = lambda d, j, t: ['v_lshrrev_b32 v%d, 2, v%d' % (d, j), 'v_lshlrev_b32 v%d, 1, v%d' % (d, d), 'v_and_b32 v%d, 1, v%d' % (t, j), 'v_add_u32 v%d, v%d, v%d' % (d, d, t),
                              'v_and_b32 v%d, 2, v%d' % (t, j), 'v_lshl_add_u32 v%d, v%d, 4, v%d' % (d, t, d)]
    k('v_lshrrev_b32 v29, 5, v0')
    emit_list(k, rowoff(27, 31, 26))
    k('v_lshlrev_b32 v%d, 3, v27' % V_G)
    k('v_and_b32 v26, 1, v30')
    k('v_lshl_add_u32 v27, v26, 3, v27')
    k('s_lshl_b32 s64, s%d, 12' % S_TAU)
    k('v_xor_b32 v28, v29, v31')
    k('v_lshlrev_b32 v28, 4, v28')
    k('v_lshl_add_u32 v28, v27, 8, v28')
    k('v_add_u32 v%d, s64, v28' % XA)
    for s in range(1, 8): k('v_xor_b32 v%d, %d, v%d' % (XA + s, 32 * s, XA))
    k('s_lshl_b32 s64, s%d, 1' % S_TAU)
    k('v_add_u32 v27, s64, v26')
    k('v_mul_u32_u24 v27, 49152, v27')
    k('v_lshl_add_u32 v28, v29, 4, v31')
    k('v_lshl_add_u32 v%d, v28, 4, v27' % VH)
    k('v_bfe_u32 v28, v0, 1, 1')
    k('v_lshl_add_u32 v26, v26, 1, v28')
    k('s_lshl_b32 s64, s%d, 2' % S_PHI)
    k('v_add_u32 v26, s64, v26')
    k('v_bfe_u32 v28, v0, 3, 1')
    k('v_lshlrev_b32 v28, 2, v28')
    k('v_xor_b32 v26, v26, v28')
    k('v_bfe_u32 v28, v0, 2, 2')
    k('v_lshl_add_u32 v27, v29, 3, v28')
    k('v_lshlrev_b32 v27, 7, v27')
    k('v_lshl_add_u32 v27, v26, 4, v27')
    k('v_and_b32 v26, 1, v0')
    k('v_lshl_add_u32 v%d, v26, 3, v27' % WA)
    k('v_add_u32 v%d, 0x10000, v%d' % (WAH, WA))
    k('s_mul_i32 s66, s%d, 192' % S_RHO)
    k('s_lshl1_add_u32 s67, s%d, s66' % S_J)
    k('s_add_u32 s67, s67, s%d' % S_PHI)
    k('s_lshl_b32 s67, s67, 10')
    k('s_add_u32 s%d, s67, 0x%x' % (S_HS, WS_H))
    k('s_lshl_b32 s66, s66, 10')
    k('s_add_u32 s66, s66, 0x%x' % WS_H)
    k('s_lshr_b32 s67, s%d, 2' % S_J)
    k('s_lshl_b32 s65, s67, 13')
    k('s_add_u32 s%d, s66, s65' % S_H0)
    k('s_sub_u32 s%d, s66, s65' % S_H1)
    k('s_mul_i32 s66, s%d, 768' % S_RHO)
    k('s_lshl_b32 s67, s67, 7')
    k('s_add_u32 s66, s66, s67')
    k('s_add_u32 s%d, s66, 0x%x' % (S_FC, WS_FH))
    k('s_xor_b32 s%d, s%d, 128' % (S_FC2, S_FC))
    k('s_and_b32 s67, s%d, 3' % S_J)
    k('s_lshl2_add_u32 s%d, s67, s%d' % (S_FH, S_FC))
    k('s_mov_b32 s%d, 0' % S_AD)
    k('s_lshl3_add_u32 s64, s%d, s%d' % (S_RHO, S_T))
    k('s_mul_i32 s%d, s64, %d' % (S_OUT, 8 * 1280))
    k('s_mul_i32 s66, s%d, 160' % S_J)
    k('s_add_u32 s%d, s%d, s66' % (S_OUT, S_OUT))
    k('s_lshl_b32 s64, s64, 6')
    k('s_add_u32 s%d, s64, 0x%x' % (S_GG, WS_G))
    k('s_cmp_lt_u32 s%d, 2' % S_WAVE)
    k('s_cselect_b32 s%d, 1024, 0' % S_A3)
    k('s_mul_i32 s64, s%d, %d' % (S_J, 48 * 5120))
    k('s_add_u32 s%d, s64, 0x%x' % (S_V, WS_W2P))
    k('s_mul_i32 s64, s%d, %d' % (S_J, 10 * 128))
    k('s_add_u32 s%d, s64, 0x%x' % (S_FA, WS_FA))
    k('s_lshl_b32 s64, s%d, 7' % S_WAVE)
    k('s_add_u32 s%d, s64, s%d' % (S_AC, S_FA))
    k('s_add_u32 s%d, s%d, %d' % (S_AE, S_AC, NREP * FA_RS))
    k('s_mul_i32 s64, s%d, 10' % S_J)
    k('s_add_u32 s64, s64, s%d' % S_WAVE)
    k('s_lshl_b32 s64, s64, 15')
    k('s_lshl_b32 s65, s%d, 7' % S_RHO)
    k('s_add_u32 s64, s64, s65')
    k('s_add_u32 s%d, s64, 0x%x' % (S_AT, WS_AT))
    k('s_mul_i32 s64, s%d, 5' % S_J)
    k('s_lshr_b32 s65, s64, 3')
    k('s_add_u32 s64, s64, 4')
    k('s_lshr_b32 s64, s64, 3')
    k('s_sub_u32 s64, s64, s65')
    k('s_lshl_b32 s64, s64, 8')
    k('s_lshl_b32 s65, s65, 8')
    k('s_mul_i32 s66, s%d, 48' % S_WAVE)
    k('s_add_u32 s65, s65, s66')
    k('s_add_u32 s%d, s65, 0x%x' % (S_FW, WS_FW))
    k('v_min_u32 v26, 11, v31')
    k('v_and_b32 v27, 1, v30')
    k('v_mul_u32_u24 v27, s64, v27')
    k('v_lshl_add_u32 v%d, v26, 2, v27' % VFW)
    k('v_lshlrev_b32 v26, 4, v0')
    k('v_add_u32 v%d, s%d, v26' % (VV, S_LW))
    if KS == 2:
        k('s_mul_i32 s64, s%d, 5120' % S_PHI)
        k('v_add_u32 v%d, s64, v26' % VR)
        k('s_mul_i32 s64, s%d, 48' % S_T)
        k('s_add_u32 s64, s64, s%d' % S_PHI)
        k('s_lshl_b32 s64, s64, 10')
        k('v_add_u32 v%d, s64, v26' % VHL)
        k('s_xor_b32 s64, s%d, 1' % S_T)
        k('s_mul_i32 s64, s64, 48')
        k('s_add_u32 s64, s64, s%d' % S_PHI)
        k('s_lshl_b32 s64, s64, 10')
        k('v_add_u32 v%d, s64, v26' % (VHL + 1))
    else:
        k('v_mov_b32 v%d, v26' % VR)
        k('s_mul_i32 s64, s%d, 49152' % S_T)
        k('v_add_u32 v%d, s64, v26' % VHL)
    k('v_add_u32 v%d, 0x8000, v%d' % (VRH, VR))
    k('v_and_b32 v26, 3, v0')
    k('v_lshlrev_b32 v%d, 2, v26' % VFH)
    k('v_lshlrev_b32 v27, 12, v29')
    k('v_bfe_u32 v28, v0, 2, 3')
    k('v_lshl_add_u32 v27, v28, 7, v27')
    k('v_lshl_add_u32 v27, v26, 3, v27')
    k('s_lshl_b32 s64, s%d, 5' % S_T)
    k('v_add_u32 v%d, s64, v27' % V_AR)
    k('v_and_b32 v26, 7, v0')
    k('v_lshrrev_b32 v27, 3, v0')
    k('v_min_u32 v28, 2, v27')
    k('v_lshlrev_b32 v28, 2, v28')
    k('v_add_u32 v28, s%d, v28' % S_WAVE)
    k('v_min_u32 v28, 9, v28')
    k('v_lshl_add_u32 v28, v28, 5, v26')
    k('v_lshlrev_b32 v%d, 2, v28' % V_FA)
    k('v_lshlrev_b32 v27, 12, v27')
    k('v_lshl_add_u32 v%d, v26, 4, v27' % V_AD)
    OSTR = opt.get('ostr', 160)
    k('v_mul_u32_u24 v27, %d, v31' % OSTR)
    k('v_lshl_add_u32 v27, v30, 3, v27')
    k('v_add_u32 v%d, s%d, v27' % (V_OW, S_LW))
    for n in range(3):
        emit_list(k, ['v_add_u32 v26, %d, v0' % (64 * n), 'v_mul_u32_u24 v27, 205, v26', 'v_lshrrev_b32 v27, 11, v27'] + rowoff(V_OS + n, 27, 28) +
                  ['v_mul_u32_u24 v%d, 1280, v%d' % (V_OS + n, V_OS + n), 'v_lshl_add_u32 v%d, v26, 4, v%d' % (V_OS + n, V_OS + n),
                   'v_mul_u32_u24 v28, 160, v27', 'v_sub_u32 v%d, v%d, v28' % (V_OS + n, V_OS + n)])
    k('v_mul_u32_u24 v%d, %d, v0' % (V_REP, FH_RS))
    FA, FBs = 32, 48
    NRH = opt.get('nrh', 2)
    ACC = [64, 80, 64]
    XF = 96
    def wread(i, half, s):
        base = 16384 * (i % 5)
        reg = WAH if base >= 65536 else WA
        off = base & 0xffff
        fs = FA if half == 0 else FBs
        return [('ds_read_b64_tr_b16 %s, v%d offset:%d' % (vr(fs + 4 * s + 2 * e, 2), reg, off + (4 * half + s) * 2048 + 512 * e), 'w%d%d' % (half, s)) for e in range(2)]
    def mfma(i, half, s):
        typ, z, r = seq[i]
        fs = FA if half == 0 else FBs
        c = '0' if (z == 0 and half == 0 and s == 0) else vr(ACC[r], 16)
        return 'v_mfma_f32_32x32x16_bf16 %s, %s, %s, %s' % (vr(ACC[r], 16), vr(fs + 4 * s, 4), vr(XF + 4 * (8 * z + 4 * half + s), 4), c)
    NL2 = fhex(-LOG2E)
    def epi(r):
        a = ACC[r]
        out = []
        t = ET
        for p in range(8):
            if opt.get('fastsilu'):
                x0, x1 = a + 2 * p, a + 2 * p + 1
            else:
                x0, x1 = t, t + 1
                out += ['v_cvt_pk_bf16_f32 v%d, v%d, v%d' % (t + 2, a + 2 * p, a + 2 * p + 1),
                        'v_lshlrev_b32 v%d, 16, v%d' % (t, t + 2),
                        'v_and_b32 v%d, 0xffff0000, v%d' % (t + 1, t + 2)]
            out += ['v_mul_f32 v%d, %s, v%d' % (t + 2, NL2, x0),
                    'v_mul_f32 v%d, %s, v%d' % (t + 3, NL2, x1),
                    'v_exp_f32 v%d, v%d' % (t + 2, t + 2),
                    'v_exp_f32 v%d, v%d' % (t + 3, t + 3),
                    'v_add_f32 v%d, 1.0, v%d' % (t + 2, t + 2),
                    'v_add_f32 v%d, 1.0, v%d' % (t + 3, t + 3),
                    'v_rcp_f32 v%d, v%d' % (t + 2, t + 2),
                    'v_rcp_f32 v%d, v%d' % (t + 3, t + 3),
                    'v_mul_f32 v%d, v%d, v%d' % (t + 2, x0, t + 2),
                    'v_mul_f32 v%d, v%d, v%d' % (t + 3, x1, t + 3),
                    'v_cvt_pk_bf16_f32 v%d, v%d, v%d' % (a + p, t + 2, t + 3)]
        if opt.get('noepi'): out = []
        if r: out += ['s_add_u32 s%d, s%d, 16384' % (S_HS, S_HS)]
        for s in range(0 if opt.get('nohst') else 2):
            out.append(('buffer_store_dwordx4 %s, v%d, s[%d:%d], s%d offen offset:%d sc1' % (vr(a + 4 * s, 4), VH, R_WS, R_WS + 3, S_HS, 512 * s), 'hst%d' % r))
        return out
    def hflag(r):
        def body():
            k('s_mov_b64 exec, %d' % ((1 << NRH) - 1))
            k('buffer_store_dword v%d, v%d, s[%d:%d], s%d offen offset:%d sc1' % (V_NON, V_REP, R_WS, R_WS + 3, S_FH, 256 * r)); k.vm.pop()
            k('s_mov_b64 exec, -1')
        L = k.newlabel('L_nf')
        k('s_cmp_lg_u32 s%d, %d' % (S_WAVE, r))
        k('s_cbranch_scc1 %s' % L)
        body()
        k.label(L)
    NST = 240 // KS
    NP = 48 // KS
    A2 = lambda T, sub: 96 + 4 * (5 * T + sub)
    HB = 96 + 20 * KS
    HN = 20 // KS
    Hr = lambda p, T: HB + 4 * (KS * (p % HN) + T)
    WX = HB + 80
    WBUF = [32, 36, 40, 44] + ([WX + 4 * i for i in range(8)] if KS == 1 else []) + [48, 52, 56, 60]
    f0 = lambda n: 5 * KS * (n // 5) + n % 5
    def hload(p):
        pi = KS * p
        o = []
        if pi % 4 == 0: o.append('s_add_u32 s65, s%d, %d' % (S_H1 if pi & 8 else S_H0, 1024 * pi))
        for T in range(KS):
            o.append(('buffer_load_dwordx4 %s, v%d, s[%d:%d], s65 offen offset:%d sc1' % (vr(Hr(p, T), 4), VHL + T, R_WS, R_WS + 3, 1024 * (pi % 4)), 'H%d' % p))
        return o
    def take(q, n):
        o = q[:n]; del q[:n]; return o
    def h_slow(q, skip=0):
        def h_issue(): k('s_load_dwordx4 s[16:19], s[%d:%d], s24' % (R_WS, R_WS + 1))
        k('s_add_u32 s26, s%d, %d' % (S_FC2 if q & 1 else S_FC, 256 * (q >> 1)))
        k('s_add_u32 s24, s26, %d' % (skip * FH_RS))
        k('s_add_u32 s25, s26, %d' % (NRH * FH_RS))
        G.spoll_loop(h_issue, 16, 4, 24, 25, FH_RS, lambda: G.poll(1, VFH, 's26'))
    def a_dma(base, count):
        for n in range(3):
            if n == 1: k('s_add_u32 s67, s%d, %d' % (base, 4 << 15))
            if n == 2:
                k('s_lshl_b32 s67, s%d, 8' % S_A3)
                k('s_add_u32 s67, s67, s%d' % base)
            k('s_add_u32 m0, s%d, %d' % (S_LW, 1024 * n))
            k('buffer_load_dwordx4 v%d, s[%d:%d], s%d offen sc1 lds' % (V_AD, R_WS, R_WS + 3, 67 if n else base), tag='a')
            if not count: k.vm.pop()
    def a_issue():
        k('s_load_dwordx8 s[16:23], s[%d:%d], s%d' % (R_WS, R_WS + 1, S_AC))
        k('s_load_dwordx8 s[24:31], s[%d:%d], s%d offset:512' % (R_WS, R_WS + 1, S_AC))
        k('s_add_u32 s67, s%d, s%d' % (S_AC, S_A3))
        k('s_load_dwordx8 s[32:39], s[%d:%d], s67' % (R_WS, R_WS + 1))
    def late_a():
        G.spoll_loop(a_issue, 16, 24, S_AC, S_AE, FA_RS, lambda: G.poll(1, V_FA, 's%d' % S_FA), sleep=opt.get('asleep', 4))
        k('s_waitcnt vmcnt(0)')
        a_dma(S_AT, False)
    epq = []; mq = []
    NAT = opt.get('nat', 1)
    GB = opt.get('gapb', 48)
    st8 = {'n': NPRE, 'h': 0, 'ok': 5 if opt.get('nohchk') else -1}
    def cost(f):
        t = f[0] if isinstance(f, tuple) else f
        return 8 if t.startswith(('v_exp', 'v_rcp')) else 4
    def vm1(n):
        nv = 0; used = 0
        while mq and nv < n:
            f = mq.pop(0); emit_list(k, [f]); used += 4
            if isinstance(f, tuple): nv += 1
        return used
    def gap(used):
        used += vm1(opt.get('vper', 1))
        while epq and used + cost(epq[0]) <= GB:
            f = epq.pop(0); emit_list(k, [f]); used += cost(f)
    FAT = [opt.get('f0at', 15), opt.get('f1at', 20), opt.get('f2at', 24)]
    RB_, RL = opt.get('rb', 2), opt.get('rl', 1)
    RAT = []
    for a_ in (opt.get('r0at', 19), opt.get('r1at', 23), opt.get('r2at', 28)): RAT += [a_, a_ + RB_]
    PWAT, AAT = opt.get('pwat', 15), opt.get('aat', 33)
    HL = opt.get('hl', 12) // KS
    assert HL <= HN and RL <= RB_ and RAT[0] - RL >= 17 and RAT[5] <= AAT - 2
    def younger(a, b):
        ia = max(i for i, t in enumerate(k.vm) if t == a); ib = max(i for i, t in enumerate(k.vm) if t == b)
        return a if ia > ib else b
    def flush_for(tag):
        while any(isinstance(f, tuple) and f[1] == tag for f in mq): vm1(1)
    def hq(upto, free=99):
        while st8['h'] < min(NP, upto) and ((KS * st8['h']) >> 3) <= st8['ok'] and (Hr(st8['h'], KS - 1) - XF) // 4 < free:
            mq.extend(hload(st8['h'])); st8['h'] += 1
    def sync(i, lg):
        flush_for('S%d' % i)
        tg = 'S%d' % i
        for r in range(3):
            if FAT[r] == i:
                while any(isinstance(f, tuple) and f[1] == 'hst%d' % r for f in epq): emit_list(k, take(epq, 1))
                tg = younger(tg, 'hst%d' % r)
        chk = [q for q in range(6) if RAT[q] == i and not opt.get('nohchk')]
        HSC = opt.get('hs', 1)
        for q in chk:
            if HSC: lg = 'all'
            else: tg = younger(tg, 'ph%d' % q)
        if i == AAT and not opt.get('noa'): tg = younger(tg, 'fa')
        if i == 17 and not opt.get('noa'): G.poll(1, VFW, 's%d' % S_FW, first='pw')
        k.wait(vm=tg, lg=lg)
        k('s_barrier')
        if i < 10: G.pr(301, i)
        elif i < 20: G.pr(302, i - 10)
        elif i < 30: G.pr(300, i - 20)
        if i >= 30: G.pr(303, i - 30)
        for n_, at in ((1, 0), (2, 10), (3, 15), (4, 20), (5, 25), (6, 30), (7, 34)):
            if i == at: G.ts(n_)
        for r in range(3):
            if FAT[r] == i: hflag(r)
        upto = max(min(i + LA_ - 1, i + 3), min(4, i + LA_))
        while st8['n'] < 35 and st8['n'] <= upto:
            mq.extend(dma(st8['n'])); st8['n'] += 1
        if i == NAT and NAT > 0: k('s_load_dword s%d, s[%d:%d], 0' % (S_NONCE, P_DBG, P_DBG + 1))
        if i == NAT + (3 if NAT else 1):
            G.snonce(1, V_NON, first=1)
            k('v_mov_b32 v%d, s%d' % (V_NON, S_NONCE))
        for q in chk:
            if HSC:
                G.s_allok(16, 4)
                G.slow('scc1', lambda: h_slow(q, 1))
            else:
                G.poll_cmp(1, [0])
                G.slow('scc0', lambda: h_slow(q))
            st8['ok'] = max(st8['ok'], q)
        if i == PWAT and not opt.get('noa'): mq.insert(0, ('buffer_load_dword v1, v%d, s[%d:%d], s%d offen sc1' % (VFW, R_WS, R_WS + 3, S_FW), 'pw'))
        for q in range(6):
            if RAT[q] - RL == i and not opt.get('nohchk') and HSC:
                k('s_load_dwordx4 s[16:19], s[%d:%d], s%d offset:%d' % (R_WS, R_WS + 1, S_FC2 if q & 1 else S_FC, 256 * (q >> 1)))
            elif RAT[q] - RL == i and not opt.get('nohchk'):
                k('buffer_load_dword v1, v%d, s[%d:%d], s%d offen offset:%d sc1' % (VFH, R_WS, R_WS + 3, S_FC2 if q & 1 else S_FC, 256 * (q >> 1)), tag='ph%d' % q)
        if i == 29: mq.insert(0, ('buffer_load_dwordx2 v[30:31], v%d, s[%d:%d], s%d offen sc1' % (V_G, R_WS, R_WS + 3, S_GG), 'g'))
        if i == AAT - 2 and not opt.get('noa'): k('buffer_load_dword v1, v%d, s[%d:%d], s%d offen sc1' % (V_FA, R_WS, R_WS + 3, S_FA), tag='fa')
        if i == AAT and not opt.get('noa'):
            assert st8['n'] == 35
            flush_for('S34')
            G.poll_cmp(1, [0])
            k('s_cselect_b32 s%d, 1, 0' % S_AD)
            k('s_cselect_b32 s64, s%d, s%d' % (S_AT, S_V))
            a_dma(64, True)
    if NAT == 0: k('s_load_dword s%d, s[%d:%d], 0' % (S_NONCE, P_DBG, P_DBG + 1))
    sync(0, None)
    pend = None
    for i in range(20):
        typ, z, r = seq[i]
        base = 16384 * (i % 5)
        for s in range(4):
            used = 8
            if pend is not None:
                if s % 2 == 0: k.wait(lg='w1%d' % (s + 1)); used += 4
                k(pend[s])
            if typ == 'W': emit_list(k, wread(i, 0, s))
            else:
                for s2 in (2 * s, 2 * s + 1):
                    if base >= 65536:
                        k('v_add_u32 v%d, 0x10000, v%d' % (XT + s2 % 4, XA + s2))
                        k('ds_read_b128 %s, v%d' % (vr(XF + 4 * (8 * z + s2), 4), XT + s2 % 4), tag='x%d' % i)
                    else:
                        k('ds_read_b128 %s, v%d offset:%d' % (vr(XF + 4 * (8 * z + s2), 4), XA + s2, base), tag='x%d' % i)
            gap(used)
        pend = None
        prevx = 'x%d' % (i - 1) if (i > 0 and seq[i - 1][0] == 'X') else None
        if typ == 'X':
            emit_list(k, take(mq, 1000))
            sync(i + 1, prevx)
            continue
        if z == 0 and r > 0: epq.extend(epi(r - 1))
        for s in range(4):
            if s % 2 == 0: k.wait(lg='w0%d' % (s + 1))
            k(mfma(i, 0, s))
            if s < 2:
                emit_list(k, wread(i, 1, 2 * s) + wread(i, 1, 2 * s + 1))
                gap(20 if (z or s) else 1000)
            elif s == 2:
                sync(i + 1, None)
                if r == 2: hq(HL, 8 * z)
            else:
                gap(4)
        pend = [mfma(i, 1, s) for s in range(4)]
        if i in (14, 19): emit_list(k, take(epq, 1000))
    D = opt.get('vd', 12 if KS == 1 else 5)
    WP = opt.get('wp', 4 if KS == 1 else 2)
    NB = len(WBUF)
    assert D <= NB - 2
    def vread(n):
        off = 1024 * (f0(n) % 80)
        return ('ds_read_b128 %s, v%d offset:%d' % (vr(WBUF[n % NB], 4), VRH if off >= 0x8000 else VR, off - 0x8000 if off >= 0x8000 else off), 'v%d' % n)
    slot_of = lambda n: 20 + (f0(n) + 5 * (KS - 1)) // 16
    assert all(slot_of(n) == 20 for n in range(D))
    for s in range(4):
        if s % 2 == 0: k.wait(lg='w1%d' % (s + 1))
        k(pend[s])
        emit_list(k, [vread(n) for n in range(D * s // 4, D * (s + 1) // 4)])
        vm1(2)
    epq.extend(epi(2))
    EP2 = opt.get('ep2', 3) * KS
    AM = NST - opt.get('am', 6) // KS
    fast = opt.get('fastfin')
    AE = opt.get('ae', 0)
    AR = 64
    ga = [244 + 2 * i for i in range(6)] + [84 + 2 * i for i in range(4)]
    def rnd(x):
        return ['v_cvt_pk_bf16_f32 v%d, v%d, v%d' % (x + 1, x, x + 1), 'v_lshlrev_b32 v%d, 16, v%d' % (x, x + 1), 'v_and_b32 v%d, 0xffff0000, v%d' % (x + 1, x + 1)]
    def a_unpack():
        o = []
        for q in range(10):
            t = ga[q]
            o += ['v_lshlrev_b32 v%d, 16, v%d' % (t, AR + q), 'v_and_b32 v%d, 0xffff0000, v%d' % (t + 1, AR + q)]
            if not fast: o += ['v_mul_f32 v%d, v30, v%d' % (t, t), 'v_mul_f32 v%d, v30, v%d' % (t + 1, t + 1)] + rnd(t)
        return o
    def a_meet(lg):
        hq(NP); emit_list(k, take(mq, 1000))
        if not opt.get('noa'):
            k('s_cmp_lg_u32 s%d, 0' % S_AD)
            G.slow('scc0', late_a)
        k.wait(vm='all', lg=lg)
        k('s_barrier')
        G.pr(303, 8)
        for sb in range(5):
            k('ds_read_b64_tr_b16 %s, v%d offset:%d' % (vr(AR + 2 * sb, 2), V_AR, (sb & 1) * 8192 + (sb >> 1) * 1024), tag='ar')
    poff = lambda sub: 16384 + 1024 * sub if sub < 4 else 3072
    synced = 20
    tail0 = []
    for n in range(NST):
        p, sub = n // 5, n % 5
        if n + D < NST and slot_of(n + D) > synced:
            synced += 1
            assert f0(n) >= 16 * (synced - 21), (n, synced)
            sync(synced, None)
            if synced == 31 and OSTR != 160:
                for n_ in range(3):
                    epq.extend(['v_add_u32 v26, %d, v0' % (64 * n_), 'v_mul_u32_u24 v26, 205, v26', 'v_lshrrev_b32 v26, 11, v26',
                                'v_mul_u32_u24 v26, %d, v26' % (OSTR - 160), 'v_add_u32 v%d, v26, v%d' % (VW + n_, VV)])
            if synced == 33:
                if not opt.get('noa'): G.poll(30, V_G, 's%d' % S_GG, n=2, first='g', which=[1])
                epq.extend(['v_sub_f32 v28, 1.0, v30', 'v_cvt_pk_bf16_f32 v28, v28, v28', 'v_lshlrev_b32 v28, 16, v28', 'v_mov_b32 v29, v28', 'v_mov_b32 v31, v30'])
                if KS == 2: epq.append('v_xor_b32 v%d, 0x2000, v%d' % (VFW, VV))
        if KS == 1 or AE:
            if n == AM: a_meet(None)
            if n == min(AM + 5 // KS, NST - 1):
                k.wait(lg='ar'); epq.extend(a_unpack())
        hq(p + HL)
        lgt = 'v%d' % min(n + WP - 1, NST - 1) if n % WP == 0 else None
        if sub == 0:
            flush_for('H%d' % p)
            k.wait(vm='H%d' % p, lg=lgt)
        elif lgt: k.wait(lg=lgt)
        for T in reversed(range(KS)):
            c = '0' if p == 0 else vr(A2(T, sub), 4)
            mm = 'v_mfma_f32_16x16x32_bf16 %s, %s, %s, %s' % (vr(A2(T, sub), 4), vr(WBUF[n % NB], 4), vr(Hr(p, T), 4), c)
            if KS == 2 and T == 0 and p == NP - 1: tail0.append(mm); continue
            k(mm)
            if T == KS - 1 and n + D < NST: emit_list(k, [vread(n + D)])
        if KS == 2 or n % 2 == 0: vm1(1)
        if n >= 2: emit_list(k, take(epq, EP2))
    emit_list(k, take(epq, 1000))
    PB = HB
    if opt.get('park'): G.cut('gemm_t1')
    if KS == 2:
        for sub in range(5):
            k(tail0[sub])
            if sub >= 2: k('ds_write_b128 v%d, %s offset:%d' % (VV, vr(A2(1, sub - 2), 4), poff(sub - 2)))
        for sub in (3, 4): k('ds_write_b128 v%d, %s offset:%d' % (VV, vr(A2(1, sub), 4), poff(sub)))
        if AE:
            k.wait(lg='all'); k('s_barrier')
        else: a_meet('all')
        for sub in range(5):
            k('ds_read_b128 %s, v%d offset:%d' % (vr(PB + 4 * sub, 4), VFW, poff(sub)), tag='pp%d' % sub)
        if not AE:
            k.wait(lg='ar')
            emit_list(k, a_unpack())
    if opt.get('park'): G.cut('gemm_t2')
    G.ts(8)
    G.pr(303, 5)
    OST = 32768
    for sub in range(5):
        if KS == 2: k.wait(lg='pp%d' % sub)
        for hf in range(2):
            x = A2(0, sub) + 2 * hf; t = ga[2 * sub + hf]
            if KS == 2: k('v_pk_add_f32 %s, %s, %s' % (vr(x, 2), vr(x, 2), vr(PB + 4 * sub + 2 * hf, 2)))
            if fast:
                k('v_pk_mul_f32 %s, %s, v[28:29]' % (vr(x, 2), vr(x, 2)))
                k('v_pk_fma_f32 %s, %s, v[30:31], %s' % (vr(x, 2), vr(t, 2), vr(x, 2)))
            else:
                emit_list(k, rnd(x))
                k('v_pk_mul_f32 %s, %s, v[28:29]' % (vr(x, 2), vr(x, 2)))
                emit_list(k, rnd(x))
                k('v_pk_add_f32 %s, %s, %s' % (vr(x, 2), vr(x, 2), vr(t, 2)))
            k('v_cvt_pk_bf16_f32 v%d, v%d, v%d' % (AR + 2 * sub + hf, x, x + 1))
        k('ds_write_b64 v%d, %s offset:%d' % (V_OW, vr(AR + 2 * sub, 2), OST + 32 * sub))
    G.pr(303, 6)
    for n in range(3):
        k('ds_read_b128 %s, v%d offset:%d' % (vr(200 + 4 * n, 4), VV if OSTR == 160 else VW + n, OST + 1024 * n), tag='o%d' % n)
    for n in range(3):
        k.wait(lg='o%d' % n)
        if n == 2: k('s_mov_b32 exec_hi, 0')
        k('buffer_store_dwordx4 %s, v%d, s[%d:%d], s%d offen sc1' % (vr(200 + 4 * n, 4), V_OS + n, R_O, R_O + 3, S_OUT))
    k('s_mov_b64 exec, -1')
    G.pr(303, 7)
    G.ts(9)
    G.ts_store()
    G.calib()
    k('s_endpgm')
```

```python
import sys, math
from kgen import *
KNAME = 'gated_mix__ssm_conv_s4__dense_activation_silu__prompt_kernel'

WS_UT, WS_AT, WS_H, WS_W2P, WS_G = 0x000000, 0x300000, 0x600000, 0xC00000, 0xE00000
WS_FH, WS_FU, WS_FW, WS_FA, WS_TS = 0xE80000, 0xE10000, 0xE28000, 0xF00000, 0xE30000
import os
NREP = int([a.split('=')[1] for a in sys.argv if a.startswith('nrep=')][0]) if any(a.startswith('nrep=') for a in sys.argv) else 8
FU_RS, FA_RS, FH_RS = 0x1000, 0x4000, 0x10000
WS_SZ = 0x1000000
LOG2E = 1.4426950408889634
INV2PI = 0.15915494309189535

S_WG, S_WAVE, S_M, S_RHO, S_J, S_NONCE, S_TMO = 2, 3, 4, 5, 6, 7, 8
P_U, P_ARE, P_AIM, P_BRE, P_BIM, P_CRE, P_CIM, P_LDT = 16, 18, 20, 22, 24, 26, 28, 30
P_DSK, P_BX, P_W1, P_W2, P_GW, P_OUT, P_DBG, P_WS = 32, 34, 36, 38, 40, 42, 44, 46
R_WS, R_U, R_W, R_O = 48, 52, 56, 60
S_TS = 80
CBS = 17664
KO, UX = 4576, 9216
UY = UX + 4224

DOC = """;
"""
def emit_list(k, lst):
    for f in lst:
        if isinstance(f, tuple): k(f[0], tag=f[1])
        else: k(f)

class Gen:
    def __init__(self, opt):
        self.k = K()
        self.opt = opt
        self.marks = []
        self.role = 0
    def mark(self, name):
        self.marks.append((name, len(self.k.items)))
    def cut(self, name):
        self.k('s_branch L_%s' % name)
        self.mark(name)
        self.k.label('L_%s' % name)
    def slow(self, cond, body):
        k = self.k
        S = k.newlabel('L_slow'); B = k.newlabel('L_back')
        k('s_cbranch_%s %s' % (cond, S))
        k.cold_begin()
        k.label(S)
        body()
        k('s_nop 4')
        k('s_branch %s' % B)
        k.cold_end()
        k.label(B)
    def srd_tail(self, r, size):
        self.k('s_mov_b32 s%d, 0x%x' % (r + 2, size))
        self.k('s_mov_b32 s%d, 0x20000' % (r + 3))
    def srd_base(self, r, p):
        self.k('s_mov_b64 s[%d:%d], s[%d:%d]' % (r, r + 1, p, p + 1))
    def ts(self, i):
        if self.opt.get('hp') == 100 * self.role + i: self.k('s_memrealtime s[96:97]')
        if self.opt.get('ts') and not self.opt.get('probe') and not (self.opt.get('early') and i in (1, 3, 4)):
            self.k('%s s[%d:%d]' % ('s_memtime' if self.opt.get('cyc') else 's_memrealtime', S_TS + 2 * i, S_TS + 2 * i + 1))
    def pr(self, key, i):
        if self.opt.get('probe') == key:
            self.k('s_memtime s[%d:%d]' % (S_TS + 2 * i, S_TS + 2 * i + 1))
    def ts_init(self):
        if self.opt.get('hp') == 100 * self.role: self.k('s_mov_b32 s96, s10')
        if self.opt.get('hp') == 100 * self.role + 50: self.k('s_memrealtime s[96:97]')
        if self.opt.get('ts'):
            for i in range(10):
                if self.opt.get('early') and i in (1, 3, 4): continue
                self.k('s_mov_b32 s%d, s%d' % (S_TS + 2 * i, 100 if self.opt.get('cyc') else 10))
    def ets(self, i):
        if self.opt.get('early'): self.k('s_memtime s[%d:%d]' % (S_TS + 2 * i, S_TS + 2 * i + 1))
    def ts_store(self):
        if self.opt.get('hp', 0) // 100 == self.role:
            k = self.k
            L = k.newlabel('L_hp')
            k('s_waitcnt vmcnt(0) lgkmcnt(0)')
            k('s_sub_u32 s96, s96, s%d' % S_NONCE)
            if self.opt.get('hmul'): k('s_mul_i32 s96, s96, %d' % self.opt['hmul'])
            k('s_add_u32 s96, s96, 4000')
            k.label(L)
            k('s_memrealtime s[64:65]')
            k('s_waitcnt lgkmcnt(0)')
            k('s_sub_u32 s64, s64, s%d' % S_NONCE)
            k('s_cmp_lt_u32 s64, s96')
            k('s_cbranch_scc1 %s' % L)
        if not self.opt.get('ts'): return
        k = self.k
        k('s_waitcnt vmcnt(0) lgkmcnt(0)')
        k('s_xor_b32 s64, s%d, 256' % S_WG)
        k('s_lshl_b32 s64, s64, 2')
        k('s_add_u32 s64, s64, s%d' % S_WAVE)
        k('s_lshl_b32 s64, s64, 6')
        k('s_add_u32 s64, s64, 0x%x' % WS_TS)
        k('v_mov_b32 v1, 0')
        for i in range(10):
            k('v_mov_b32 v2, s%d' % (S_TS + 2 * i))
            k('buffer_store_dword v2, v1, s[%d:%d], s64 offen offset:%d' % (R_WS, R_WS + 3, 4 * i))
        k('s_waitcnt vmcnt(0)')
    def calib(self):
        if self.opt.get('calib'):
            k = self.k
            L = k.newlabel('L_cal')
            k.label(L)
            k('s_memrealtime s[64:65]')
            k('s_waitcnt lgkmcnt(0)')
            k('s_sub_u32 s64, s64, s%d' % S_NONCE)
            k('s_cmp_lt_u32 s64, %d' % self.opt['calib'])
            k('s_cbranch_scc1 %s' % L)
    def spin_tail(self, L, D):
        k = self.k
        k('s_cbranch_scc1 %s' % D)
        k('s_sleep %d' % self.opt.get('sleep', 2))
        k('s_sub_u32 s%d, s%d, 1' % (S_TMO, S_TMO))
        k('s_cmp_lg_u32 s%d, 0' % S_TMO)
        k('s_cbranch_scc1 %s' % L)
        k.label(D)
    def nonce_issue(self, vt, vz, tag):
        k = self.k
        k('v_mov_b32 %s, 0' % vr(vz))
        k('global_load_dword %s, %s, s[%d:%d] sc1' % (vr(vt), vr(vz), P_DBG, P_DBG + 1), tag=tag)
    def nonce_get(self, vt, vz, tag=None, waited=False):
        k = self.k
        L = k.newlabel('L_nonce'); D = k.newlabel('L_nonce_ok'); C = k.newlabel('L_nonce_chk')
        k('s_mov_b32 s%d, 0x%x' % (S_TMO, self.opt.get('tmo', 0x4000)))
        if not waited: k.wait(vm=tag)
        k('s_branch %s' % C)
        k.label(L)
        k('v_mov_b32 %s, 0' % vr(vz))
        k('global_load_dword %s, %s, s[%d:%d] sc1' % (vr(vt), vr(vz), P_DBG, P_DBG + 1)); k.vm.pop()
        k('s_waitcnt vmcnt(0)')
        k.label(C)
        k('v_readfirstlane_b32 s%d, %s' % (S_NONCE, vr(vt)))
        k('s_cmp_lg_u32 s%d, 0' % S_NONCE)
        self.spin_tail(L, D)
    def poll_issue(self, vt, vaddr, soff, tag, n=1):
        self.k('buffer_load_dword%s %s, %s, s[%d:%d], %s offen sc1' % ('x2' if n == 2 else '', vr(vt, n), vr(vaddr), R_WS, R_WS + 3, soff), tag=tag)
    def poll_cmp(self, vt, which):
        k = self.k
        k('v_cmp_ne_u32 vcc, s%d, %s' % (S_NONCE, vr(vt + which[0])))
        if len(which) == 2:
            k('v_cmp_ne_u32 s[78:79], s%d, %s' % (S_NONCE, vr(vt + which[1])))
            k('s_or_b64 vcc, vcc, s[78:79]')
        k('s_cmp_eq_u64 vcc, 0')
    def poll(self, vt, vaddr, soff, n=1, first=None, waited=False, which=None):
        k = self.k
        if which is None: which = list(range(n))
        def spin():
            L = k.newlabel('L_poll'); D = k.newlabel('L_poll_ok')
            k('s_mov_b32 s%d, 0x%x' % (S_TMO, self.opt.get('tmo', 0x4000)))
            k('s_mov_b64 vcc, -1')
            k.label(L)
            k('s_mov_b64 exec, vcc')
            self.poll_issue(vt, vaddr, soff, None, n); k.vm.pop()
            k('s_mov_b64 exec, -1')
            k('s_waitcnt vmcnt(0)')
            self.poll_cmp(vt, which)
            self.spin_tail(L, D)
        if first is not None:
            if not waited: k.wait(vm=first)
            self.poll_cmp(vt, which)
            self.slow('scc0', spin)
        else: spin()
    def snonce(self, vt, vz, first=0):
        k = self.k
        if not first: k('s_load_dword s%d, s[%d:%d], 0' % (S_NONCE, P_DBG, P_DBG + 1))
        k('s_waitcnt lgkmcnt(0)')
        k('s_cmp_lg_u32 s%d, 0' % S_NONCE)
        def more():
            D = k.newlabel('L_sn_ok')
            for i in range(1, 4):
                k('s_load_dword s%d, s[%d:%d], %d' % (S_NONCE, P_DBG, P_DBG + 1, 64 * i))
                k('s_waitcnt lgkmcnt(0)')
                k('s_cmp_lg_u32 s%d, 0' % S_NONCE)
                k('s_cbranch_scc1 %s' % D)
            k('v_mov_b32 %s, 0' % vr(vt))
            self.nonce_get(vt, vz, waited=True)
            k.label(D)
        self.slow('scc0', more)
        k('s_mov_b32 s0, s%d' % S_NONCE)
        k('s_mov_b32 s1, s%d' % S_NONCE)
    def s_allok(self, base, n):
        k = self.k
        for i in range(0, n, 2):
            k('s_xor_b64 s[%d:%d], s[%d:%d], s[0:1]' % (base + i, base + i + 1, base + i, base + i + 1))
        for i in range(2, n, 2):
            k('s_or_b64 s[%d:%d], s[%d:%d], s[%d:%d]' % (base, base + 1, base, base + 1, base + i, base + i + 1))
    def spoll_loop(self, issue, base, n, s_off, s_end, rs, fallback, sleep=0):
        k = self.k
        L = k.newlabel('L_sp'); D = k.newlabel('L_sp_ok'); F = k.newlabel('L_sp_fb')
        k.label(L)
        k('s_cmp_ge_u32 s%d, s%d' % (s_off, s_end))
        k('s_cbranch_scc1 %s' % F)
        issue()
        k('s_add_u32 s%d, s%d, %d' % (s_off, s_off, rs))
        k('s_waitcnt lgkmcnt(0)')
        self.s_allok(base, n)
        k('s_cbranch_scc0 %s' % D)
        if sleep: k('s_sleep %d' % sleep)
        k('s_branch %s' % L)
        k.label(F)
        fallback()
        k.label(D)
    def flag_store_rep(self, vt, vz, soff, rs, tag=None, nrep=None):
        k = self.k
        k('v_mov_b32 %s, s%d' % (vr(vt), S_NONCE))
        k('v_mul_u32_u24 %s, %d, v0' % (vr(vz), rs))
        k('s_mov_b64 exec, %d' % ((1 << (nrep or NREP)) - 1))
        k('buffer_store_dword %s, %s, s[%d:%d], %s offen sc1' % (vr(vt), vr(vz), R_WS, R_WS + 3, soff), tag=tag)
        k('s_mov_b64 exec, -1')
    def flag_store(self, vt, vz, soff, tag=None):
        k = self.k
        k('v_mov_b32 %s, s%d' % (vr(vt), S_NONCE))
        k('v_mov_b32 %s, 0' % vr(vz))
        k('s_mov_b64 exec, 1')
        k('buffer_store_dword %s, %s, s[%d:%d], %s offen sc1' % (vr(vt), vr(vz), R_WS, R_WS + 3, soff), tag=tag)
        k('s_mov_b64 exec, -1')

    def prologue(self):
        k = self.k
        k('s_load_dwordx16 s[16:31], s[0:1], 0')
        k('s_load_dwordx16 s[32:47], s[0:1], 64')
        k('s_memrealtime s[10:11]')
        if self.opt.get('cyc'): k('s_memtime s[100:101]')
        k('v_lshrrev_b32 v1, 6, v0')
        k('v_and_b32 v0, 63, v0')
        k('v_readfirstlane_b32 s%d, v1' % S_WAVE)
        k('s_cmp_ge_u32 s2, 512')
        k('s_cbranch_scc1 L_end')
        k('s_and_b32 s%d, s2, 255' % S_M)
        k('s_bfe_u32 s66, s2, 0x20001')
        k('s_bfe_u32 s67, s2, 0x30003')
        k('s_lshl3_add_u32 s%d, s66, s67' % S_RHO)
        k('s_and_b32 s66, s2, 1')
        k('s_bfe_u32 s67, s2, 0x20006')
        k('s_lshl2_add_u32 s%d, s66, s67' % S_J)
        self.srd_tail(R_WS, WS_SZ)
        self.srd_tail(R_U, 2048 * 640 * 2)
        if self.opt.get('ipf'):
            k('s_cmp_lg_u32 s%d, 0' % S_WAVE)
            k('s_cbranch_scc1 L_noipf')
            k('s_getpc_b64 s[64:65]')
            k('s_lshr_b32 s66, s2, 3')
            k('s_mul_i32 s66, s66, %d' % (self.opt['ipf'] * 128))
            k('v_lshlrev_b32 v1, 7, v0')
            k('v_add_u32 v1, s66, v1')
            k('s_mov_b64 exec, %d' % ((1 << self.opt['ipf']) - 1))
            k('global_load_dword v255, v1, s[64:65]')
            k('s_mov_b64 exec, -1')
            k.label('L_noipf')
        if self.opt.get('dly'):
            k('s_and_b32 s64, s2, 0x%x' % self.opt.get('dmask', 0x101))
            k('s_cmp_lg_u32 s64, 0x%x' % self.opt.get('dval', 1))
            k('s_cbranch_scc1 L_nodly')
            for _ in range(self.opt['dly']): k('s_sleep 127')
            k.label('L_nodly')
        k('s_cmp_ge_u32 s2, 256')
        k('s_cbranch_scc1 L_gemm')
        if self.opt.get('nossm'):
            k('s_cmp_eq_u32 s2, 128'); k('s_cbranch_scc1 L_idle'); k('s_endpgm')
        k('s_cmp_eq_u32 s%d, 3' % S_WAVE)
        k('s_cbranch_scc1 L_misc')
        if self.opt.get('hord'): k('s_branch L_chanh')

    def mtiles(self):
        return {0: [], 6: [0, 1, 2], 7: [0, 1, 3], 8: [0, 2, 3], 9: [1, 2, 3], 10: [0, 1, 2, 3]}[self.opt.get('mt', 8)]
    def conv_reads(self, sg, fb, va, vb, off=0, n=8):
        out = []
        for c in range(n):
            out.append('ds_read_b128 %s, v%d offset:%d' % (vr(fb + 4 * c, 4), va, off + 4032 - 512 * c - 64 * sg))
            out.append('ds_read_b64 %s, v%d offset:%d' % (vr(fb + 4 * n + 4 * c, 2), vb, off + 448 - 64 * sg + 512 * c))
            out.append('ds_read_b64 %s, v%d offset:%d' % (vr(fb + 4 * n + 2 + 4 * c, 2), vb, off + 448 - 64 * sg + 512 * c + 8))
        return out
    def conv_step(self, Y, fb, first, nx, tiles, n=8, per=1):
        k = self.k
        nx = list(nx)
        for c in range(8):
            for m in range(8 - c):
                if c + m not in tiles: continue
                cc = '0' if (first and c == 0) else vr(Y + 4 * (c + m), 4)
                k('v_mfma_f32_16x16x32_bf16 %s, %s, %s, %s' % (vr(Y + 4 * (c + m), 4), vr(fb + 4 * c, 4), vr(fb + 4 * n + 4 * m, 4), cc))
                emit_list(k, nx[:per]); nx = nx[per:]
        emit_list(k, nx)
    def tile_out(self, Y, tiles, tmp, vaddr, soff):
        o = []
        for i in tiles:
            o += ['v_cvt_pk_bf16_f32 v%d, v%d, v%d' % (tmp + 2 * i + rr, Y + 4 * i + 2 * rr, Y + 4 * i + 2 * rr + 1) for rr in range(2)]
            o.append('buffer_store_dwordx2 %s, v%d, s[%d:%d], %s offen offset:%d sc1' % (vr(tmp + 2 * i, 2), vaddr, R_WS, R_WS + 3, soff, 512 * i))
        return o
    def misc(self):
        k = self.k
        k.reset_counts()
        LT = 3 * CBS; LW = LT + 10240
        self.mark('misc_head')
        self.role = 3
        k.label('L_misc')
        self.ets(1)
        for i in range(5):
            k('v_add_u32 v1, %d, v0' % (64 * i))
            k('v_mul_u32_u24 v2, 205, v1')
            k('v_lshrrev_b32 v2, 11, v2')
            k('v_mul_u32_u24 v3, %d, v2' % (1280 - 160))
            k('v_lshl_add_u32 v%d, v1, 4, v3' % (10 + i))
        k('s_mul_i32 s64, s%d, %d' % (S_RHO, 64 * 1280))
        k('s_mul_i32 s65, s%d, 160' % S_J)
        k('s_add_u32 s64, s64, s65')
        k('s_add_u32 s65, s64, %d' % (32 * 1280))
        k('s_waitcnt lgkmcnt(0)')
        self.srd_base(R_U, P_U)
        for i in range(10):
            k('s_mov_b32 m0, %d' % (LT + 1024 * i))
            k('buffer_load_dwordx4 v%d, s[%d:%d], s%d offen lds' % (10 + i % 5, R_U, R_U + 3, 64 + i // 5), tag='T')
        self.ets(3)
        if not self.opt.get('whead'): self.cut('misc_main')
        self.ts_init()
        k('s_setprio %d' % self.opt.get('mprio', 3))
        self.srd_base(R_WS, P_WS)
        self.srd_base(R_W, P_W2)
        self.srd_tail(R_W, 1536 * 640 * 2)
        k('s_sub_u32 s66, s%d, 240' % S_M)
        k('s_mul_i32 s66, s66, 15')
        k('s_cmp_lt_u32 s%d, 240' % S_M)
        k('s_cselect_b32 s66, s%d, s66' % S_M)
        k('s_mul_i32 s67, s66, 205')
        k('s_lshr_b32 s67, s67, 10')
        k('s_mul_i32 s68, s67, 5')
        k('s_sub_u32 s68, s66, s68')
        k('s_mul_i32 s69, s67, %d' % (32 * 1280))
        k('s_lshl_b32 s70, s68, 8')
        k('s_add_u32 s69, s69, s70')
        k('v_lshrrev_b32 v1, 4, v0')
        k('v_and_b32 v2, 15, v0')
        k('v_mul_u32_u24 v1, 1280, v1')
        k('v_lshl_add_u32 v15, v2, 4, v1')
        def wdma():
            for i in range(8):
                k('s_mov_b32 m0, %d' % (LW + 1024 * i))
                k('buffer_load_dwordx4 v15, s[%d:%d], s69 offen lds' % (R_W, R_W + 3), tag='W')
                k('s_add_u32 s69, s69, %d' % (4 * 1280))
        WPOS = self.opt.get('wpos', 0)
        def pfbc():
            m_ = sum(1 << l for l in range(60) if l % 3)
            emit_list(k, ['v_mul_u32_u24 v7, 43, v0', 'v_lshrrev_b32 v7, 9, v7', 'v_mul_u32_u24 v7, %d, v7' % (3072 - 128 * 12), 'v_lshl_add_u32 v7, v0, 7, v7',
                 's_bfe_u32 s78, s2, 0x50003', 's_bfe_u32 s79, s2, 0x20001', 's_lshl_b32 s79, s79, 5', 's_add_u32 s78, s78, s79',
                 's_mul_i32 s78, s78, %d' % (5 * 3072), 's_and_b32 s79, s2, 1', 's_mul_i32 s79, s79, %d' % (128 * 12), 's_add_u32 s78, s78, s79',
                 'v_add_u32 v7, s78, v7', 's_mov_b32 exec_lo, 0x%x' % (m_ & 0xffffffff), 's_mov_b32 exec_hi, 0x%x' % (m_ >> 32),
                 'global_load_dword v255, v7, s[%d:%d]' % (P_W1, P_W1 + 1), 's_mov_b64 exec, -1'])
        if WPOS == 0: wdma()
        if self.opt.get('whead'): self.cut('misc_main')
        k('v_lshrrev_b32 v1, 4, v0')
        k('v_bfe_u32 v2, v0, 2, 2')
        k('v_and_b32 v3, 3, v0')
        k('v_lshl_add_u32 v4, v1, 3, v2')
        k('v_mul_u32_u24 v4, 160, v4')
        k('v_lshl_add_u32 v4, v3, 3, v4')
        k('v_add_u32 v18, %d, v4' % LT)
        k('v_and_b32 v5, 15, v0')
        k('v_lshlrev_b32 v5, 12, v5')
        k('v_lshl_add_u32 v19, v1, 4, v5')
        if self.opt.get('ufull'):
            LU = LW + 8192
            emit_list(k, ['v_and_b32 v5, 15, v0', 'v_and_b32 v6, 7, v0', 'v_xor_b32 v16, v1, v6', 'v_lshlrev_b32 v16, 4, v16', 'v_lshl_add_u32 v16, v5, 7, v16',
                          'v_xor_b32 v14, 64, v16', 'v_add_u32 v16, %d, v16' % LU, 'v_add_u32 v14, %d, v14' % LU,
                          'v_lshrrev_b32 v5, 3, v0', 'v_xor_b32 v17, v5, v6', 'v_lshlrev_b32 v17, 4, v17', 'v_lshl_add_u32 v17, v5, 7, v17', 'v_add_u32 v17, %d, v17' % LU,
                          'v_lshlrev_b32 v6, 4, v6', 'v_lshl_add_u32 v19, v5, 12, v6'])
        k('v_lshrrev_b32 v5, 1, v1')
        k('v_and_b32 v6, 1, v1')
        k('v_lshlrev_b32 v5, 4, v5')
        k('v_lshl_add_u32 v5, v6, 2, v5')
        k('v_add_u32 v5, v5, v2')
        k('v_lshlrev_b32 v5, 8, v5')
        k('v_lshl_add_u32 v5, v3, 3, v5')
        k('v_add_u32 v20, %d, v5' % LW)
        k('v_lshlrev_b32 v21, 4, v0')
        k('s_mul_i32 s72, s%d, %d' % (S_J, 80 * 4096))
        k('s_lshl_b32 s73, s%d, 7' % S_RHO)
        k('s_add_u32 s72, s72, s73')
        k('s_lshr_b32 s73, s%d, 3' % S_RHO)
        k('s_lshl2_add_u32 s73, s%d, s73' % S_J)
        k('s_lshl_b32 s73, s73, 5')
        k('s_and_b32 s74, s%d, 7' % S_RHO)
        k('s_add_u32 s73, s73, s74')
        k('s_lshl_b32 s73, s73, 2')
        k('s_add_u32 s77, s73, 0x%x' % WS_FU)
        if self.opt.get('ftouch'):
            k('v_mul_u32_u24 v9, %d, v0' % FU_RS)
            k('s_mov_b64 exec, %d' % ((1 << NREP) - 1))
            k('buffer_load_dword v8, v9, s[%d:%d], s77 offen' % (R_WS, R_WS + 3))
            k('s_mov_b64 exec, -1')
        k.wait(vm='T')
        self.ts(1)
        if self.opt.get('mstop') == 1: k('s_endpgm')
        for dl in range(5):
            for z in range(2):
                b = 24 + 8 * dl + 4 * z
                for e in range(2):
                    k('ds_read_b64_tr_b16 %s, v18 offset:%d' % (vr(b + 2 * e, 2), (32 * z + 4 * e) * 160 + 32 * dl), tag='t%d' % dl)
        if self.opt.get('ufull'):
            for dl in range(5):
                k.wait(lg='t%d' % dl)
                for z in range(2):
                    k('ds_write_b128 v%d, %s offset:%d' % (14 if z else 16, vr(24 + 8 * dl + 4 * z, 4), 2048 * dl))
            for i in range(10):
                k('ds_read_b128 %s, v17 offset:%d' % (vr(96 + 4 * i, 4), 1024 * i), tag='uf%d' % i)
            for i in range(10):
                k.wait(lg='uf%d' % i)
                k('buffer_store_dwordx4 %s, v19, s[%d:%d], s72 offen sc1' % (vr(96 + 4 * i, 4), R_WS, R_WS + 3), tag='Tst')
                k('s_add_u32 s72, s72, %d' % (8 * 4096))
        else:
            for dl in range(5):
                k.wait(lg='t%d' % dl)
                for z in range(2):
                    k('buffer_store_dwordx4 %s, v19, s[%d:%d], s72 offen offset:%d sc1' % (vr(24 + 8 * dl + 4 * z, 4), R_WS, R_WS + 3, 64 * z), tag='Tst')
                k('s_add_u32 s72, s72, %d' % (16 * 4096))
        if self.opt.get('pfs') == 1: pfbc()
        if WPOS == 1: wdma()
        self.snonce(8, 9)
        def uflag():
            k.wait(vm='Tst')
            self.flag_store_rep(8, 9, 's77', FU_RS)
            self.ts(2)
        uflag()
        if self.opt.get('mstop') == 2: k('s_endpgm')
        if self.opt.get('pfs') == 2: pfbc()
        if WPOS == 2: wdma()
        k('s_waitcnt vmcnt(0)')
        for fr in range(8):
            for e in range(2):
                k('ds_read_b64_tr_b16 %s, v20 offset:%d' % (vr(64 + 4 * fr + 2 * e, 2), 8 * e * 256 + 32 * fr), tag='w%d' % fr)
        k('s_mul_i32 s74, s67, 43')
        k('s_lshr_b32 s74, s74, 8')
        k('s_mul_i32 s75, s74, 6')
        k('s_sub_u32 s75, s67, s75')
        k('s_lshr_b32 s76, s75, 1')
        k('s_mul_i32 s76, s76, 14')
        k('s_add_u32 s76, s76, s75')
        k('s_lshl1_add_u32 s76, s74, s76')
        k('s_xor_b32 s72, s76, 8')
        k('s_mul_i32 s72, s72, 5')
        k('s_mul_i32 s76, s76, 5')
        for fr in range(8):
            k('s_lshl_b32 s73, s68, 3')
            k('s_add_u32 s73, s73, %d' % fr)
            k('s_mul_i32 s74, s73, 205')
            k('s_lshr_b32 s74, s74, 10')
            k('s_mul_i32 s75, s74, 235')
            k('s_add_u32 s75, s75, s73')
            k('s_cmp_ge_u32 s74, 4')
            k('s_cselect_b32 s74, s72, s76')
            k('s_add_u32 s75, s75, s74')
            k('s_lshl_b32 s75, s75, 10')
            k('s_add_u32 s75, s75, 0x%x' % WS_W2P)
            k.wait(lg='w%d' % fr)
            k('buffer_store_dwordx4 %s, v21, s[%d:%d], s75 offen sc1' % (vr(64 + 4 * fr, 4), R_WS, R_WS + 3), tag='Wst')
        k('s_lshl_b32 s73, s68, 6')
        k('s_add_u32 s73, s73, s67')
        k('s_lshl_b32 s73, s73, 2')
        k('s_add_u32 s73, s73, 0x%x' % WS_FW)
        k('s_mul_i32 s60, s%d, 3' % S_M)
        k('s_lshl_b32 s61, s%d, 1' % S_M)
        k('s_add_u32 s61, s61, 128')
        k('s_cmp_lt_u32 s%d, 128' % S_M)
        k('s_cselect_b32 s60, s60, s61')
        k('s_cselect_b32 s61, 3, 2')
        k('v_lshrrev_b32 v1, 4, v0')
        k('v_min_u32 v1, 2, v1')
        k('v_mul_u32_u24 v22, %d, v1' % CBS)
        k('v_and_b32 v2, 15, v0')
        k('v_lshl_add_u32 v1, v2, 2, v22')
        k('v_mov_b32 v2, 0')
        k('ds_write_b32 v1, v2 offset:%d' % UX)
        k('ds_write_b32 v1, v2 offset:%d' % UY)
        k('v_bfe_u32 v1, v0, 3, 2')
        k('v_and_b32 v23, 7, v0')
        k('v_lshlrev_b32 v23, 2, v23')
        k('v_lshl_add_u32 v23, v1, 7, v23')
        emit_list(k, ['v_and_b32 v6, 1, v0', 'v_cmp_eq_u32 vcc, 1, v6', 'v_and_b32 v6, 15, v0', 'v_lshrrev_b32 v7, 4, v0', 'v_lshlrev_b32 v7, 4, v7',
               'v_lshrrev_b32 v5, 1, v6', 'v_lshlrev_b32 v5, 6, v5', 'v_sub_u32 v5, v7, v5',
               'v_mov_b32 v2, %d' % (448 + KO), 'v_mov_b32 v3, 448', 'v_cndmask_b32 v2, v2, v3, vcc', 'v_add_u32 v2, v5, v2',
               'v_lshl_add_u32 v5, v6, 2, v7', 'v_mov_b32 v3, %d' % UY, 'v_mov_b32 v4, %d' % (UX + 4),
               'v_cndmask_b32 v3, v3, v4, vcc', 'v_add_u32 v3, v5, v3', 'v_lshlrev_b32 v4, 3, v0'])
        def u_issue():
            for i in range(4):
                k('s_load_dwordx8 s[%d:%d], s[%d:%d], s62 offset:%d' % (16 + 8 * i, 23 + 8 * i, R_WS, R_WS + 1, 128 * i))
        k('s_mul_i32 s64, s60, 205')
        k('s_lshr_b32 s64, s64, 14')
        k('s_add_u32 s65, s60, s61')
        k('s_sub_u32 s65, s65, 1')
        k('s_mul_i32 s65, s65, 205')
        k('s_lshr_b32 s65, s65, 14')
        if self.opt.get('wflag1'):
            k.wait(vm='Wst')
            self.flag_store(8, 9, 's73')
            if self.opt['wflag1'] == 2: k('s_waitcnt vmcnt(0)')
        k.label('L_ugrp')
        k('s_lshl_b32 s9, s64, 9')
        k('s_add_u32 s9, s9, 0x%x' % WS_FU)
        k('s_mov_b32 s62, s9')
        k('s_add_u32 s63, s9, %d' % (NREP * FU_RS))
        self.spoll_loop(u_issue, 16, 32, 62, 63, FU_RS, lambda: self.poll(24, 23, 's9'), sleep=self.opt.get('ssleep', 2))
        k('s_add_u32 s64, s64, 1')
        k('s_cmp_le_u32 s64, s65')
        k('s_cbranch_scc1 L_ugrp')
        self.ts(5)
        k.wait(vm='Wst')
        k('s_lshl_b32 s64, s60, 12')
        for c in range(3):
            if c == 2:
                k('s_cmp_lt_u32 s61, 3')
                k('s_cbranch_scc1 L_u2')
            k('s_add_u32 s65, s64, 4')
            k('s_mov_b32 m0, %d' % (c * CBS + UX + 64))
            for i in range(4):
                k('buffer_load_dwordx4 v21, s[%d:%d], s64 offen offset:%d sc1 lds' % (R_WS, R_WS + 3, 1024 * i))
            k('s_mov_b32 m0, %d' % (c * CBS + UY + 64))
            for i in range(4):
                k('buffer_load_dwordx4 v21, s[%d:%d], s65 offen offset:%d sc1 lds' % (R_WS, R_WS + 3, 1024 * i))
            k('s_add_u32 s64, s64, 4096')
        k.label('L_u2')
        if not self.opt.get('wflag1'): self.flag_store(8, 9, 's73')
        self.ts(7)
        k('s_waitcnt vmcnt(%d)' % (0 if self.opt.get('wflag1') else 1))
        k('ds_read_b32 v1, v22 offset:%d' % (UX + 64))
        k('s_waitcnt lgkmcnt(0)')
        k('ds_write_b32 v22, v1 offset:%d' % (UY + 60))
        k('s_waitcnt lgkmcnt(0)')
        self.ts(6)
        k('s_barrier')
        if self.opt.get('mstop') == 3: k('s_endpgm')
        MT = self.mtiles()
        k('s_setprio %d' % self.opt.get('mvprio', 0))
        k('s_lshl_b32 s64, s60, 12')
        k('s_add_u32 s64, s64, 0x%x' % WS_AT)
        if MT:
            FBm = [96, 128, 160]
            steps = [(c, sg) for c in range(3) for sg in range(8)]
            tagged = lambda i: [(l, 'cs%d' % i) for l in self.conv_reads(steps[i][1], FBm[i % 3], 2, 3, CBS * steps[i][0], 4)]
            emit_list(k, tagged(0) + tagged(1))
            wq = []
            for i, (c, sg) in enumerate(steps):
                Ym = 32 + 16 * (c % 2)
                if c == 2 and sg == 0:
                    k('s_cmp_lt_u32 s61, 3')
                    k('s_cbranch_scc1 L_m2')
                k.wait(lg='cs%d' % i)
                nx = tagged(i + 2) if i + 2 < len(steps) else []
                if sg == 1: nx = nx + wq; wq = []
                self.conv_step(Ym, FBm[i % 3], sg == 0, nx, MT, 4, 2)
                if sg == 7:
                    wq = self.tile_out(Ym, MT, 64 + 8 * c, 4, 's64') + ['s_add_u32 s64, s64, 4096']
                    if c == 1: w1 = list(wq)
            k('s_setprio 3')
            emit_list(k, wq)
            k('s_branch L_m3')
            k.label('L_m2')
            k.pad(8)
            emit_list(k, w1)
            k.label('L_m3')
        self.ts(3)
        k('v_and_b32 v8, 3, v0')
        k('v_cmp_gt_u32 vcc, s61, v8')
        k('v_add_u32 v8, s60, v8')
        k('v_lshrrev_b32 v9, 3, v8')
        k('v_and_b32 v8, 7, v8')
        k('v_lshlrev_b32 v8, 2, v8')
        k('v_lshl_add_u32 v8, v9, 7, v8')
        k('v_lshrrev_b32 v9, 2, v0')
        k('v_mul_u32_u24 v9, %d, v9' % FA_RS)
        k('v_add_u32 v8, v8, v9')
        k('v_mov_b32 v9, s%d' % S_NONCE)
        k('s_and_b32 s66, vcc_lo, 0x%x' % ((1 << (4 * NREP)) - 1))
        k('s_mov_b32 s67, 0')
        k('s_mov_b32 s65, 0x%x' % WS_FA)
        if self.opt.get('park'): self.cut('misc_end')
        k('s_waitcnt vmcnt(0) lgkmcnt(0)')
        k('s_barrier')
        k('s_mov_b64 exec, s[66:67]')
        k('buffer_store_dword v9, v8, s[%d:%d], s65 offen sc1' % (R_WS, R_WS + 3))
        k('s_mov_b64 exec, -1')
        if self.opt.get('park') and self.opt.get('ts'): self.cut('misc_end2')
        self.ts(4)
        self.ts_store()
        k('s_endpgm')
        self.mark('idle')
        k.label('L_idle')
        k('s_cmp_lg_u32 s2, %d' % self.opt.get('nwg', 128))
        k('s_cbranch_scc1 L_end')
        k('s_cmp_lg_u32 s%d, 2' % S_WAVE)
        k('s_cbranch_scc1 L_end')
        k('v_lshlrev_b32 v2, 6, v0')
        k('s_waitcnt lgkmcnt(0)')
        k('s_or_b32 s10, s10, 1')
        k('v_mov_b32 v1, s10')
        k('s_mov_b64 exec, 15')
        k('global_store_dword v2, v1, s[%d:%d] sc1' % (P_DBG, P_DBG + 1))
        if self.opt.get('latprobe'):
            ptr = {1: P_BX, 2: P_WS, 3: P_BX}[self.opt['latprobe']]
            k.label('L_lp0')
            k('s_memrealtime s[64:65]')
            k('s_waitcnt lgkmcnt(0)')
            k('s_sub_u32 s64, s64, s10')
            k('s_cmp_lt_u32 s64, 3500')
            k('s_cbranch_scc1 L_lp0')
            k('v_mov_b32 v2, 0x%x' % (0x100000 if ptr == P_BX else 0x8000000))
            k('s_memtime s[70:71]')
            k('global_load_dword v3, v2, s[%d:%d]' % (ptr, ptr + 1))
            k('s_waitcnt vmcnt(0)')
            k('s_memtime s[66:67]')
            k('s_waitcnt lgkmcnt(0)')
            for i in range(4):
                k('v_add_u32 v2, 0x3480, v2')
                k('global_load_dword v3, v2, s[%d:%d]' % (ptr, ptr + 1))
                k('s_waitcnt vmcnt(0)')
            k('s_memtime s[68:69]')
            k('s_waitcnt lgkmcnt(0)')
            if self.opt['latprobe'] == 3:
                k('s_sub_u32 s68, s66, s70')
            else:
                k('s_sub_u32 s68, s68, s66')
                k('s_lshr_b32 s68, s68, 2')
            k('v_mov_b32 v1, s68')
            k('v_mov_b32 v2, 0')
            k('global_store_dword v2, v1, s[%d:%d] offset:16' % (P_DBG, P_DBG + 1))
            k('s_add_u32 s68, s68, 4000')
            k.label('L_lp1')
            k('s_memrealtime s[64:65]')
            k('s_waitcnt lgkmcnt(0)')
            k('s_sub_u32 s64, s64, s10')
            k('s_cmp_lt_u32 s64, s68')
            k('s_cbranch_scc1 L_lp1')
        k('s_endpgm')

    def cmul(self, d, a, b):
        if self.opt.get('nopk'):
            return ['v_mul_f32 v%d, v%d, v%d' % (d, a, b),
                    'v_mul_f32 v%d, v%d, v%d' % (d + 1, a, b + 1),
                    'v_fma_f32 v%d, -v%d, v%d, v%d' % (d, a + 1, b + 1, d),
                    'v_fmac_f32 v%d, v%d, v%d' % (d + 1, a + 1, b)]
        return ['v_pk_mul_f32 %s, %s, %s op_sel:[0,0] op_sel_hi:[0,1]' % (vr(d, 2), vr(a, 2), vr(b, 2)),
                'v_pk_fma_f32 %s, %s, %s, %s op_sel:[1,1,0] op_sel_hi:[1,0,1] neg_lo:[1,0,0]' % (vr(d, 2), vr(a, 2), vr(b, 2), vr(d, 2))]
    def chan(self):
        k = self.k; opt = self.opt
        k.reset_counts()
        self.mark('chan_head')
        self.role = 2
        k.label('L_chanh')
        self.ets(1)
        S_D, S_CB, S_DSK = 12, 13, 14
        k('s_mul_i32 s64, s%d, 3' % S_M)
        k('s_lshl_b32 s65, s%d, 1' % S_M)
        k('s_add_u32 s65, s65, 128')
        k('s_cmp_lt_u32 s%d, 128' % S_M)
        k('s_cselect_b32 s64, s64, s65')
        k('s_cselect_b32 s65, 3, 2')
        k('s_cmp_ge_u32 s%d, s65' % S_WAVE)
        k('s_cbranch_scc1 L_idle')
        if opt.get('nochan'): k('s_endpgm')
        k('s_add_u32 s%d, s64, s%d' % (S_D, S_WAVE))
        k('s_mul_i32 s%d, s%d, %d' % (S_CB, S_WAVE, CBS))
        PR = 232
        for i in range(6): k('v_mov_b32 v%d, 0' % (PR + 3 * i + 2))
        k('s_mul_i32 s64, s%d, 384' % S_D)
        k('v_lshlrev_b32 v1, 1, v0')
        k('v_add_u32 v1, s64, v1')
        k('v_lshl_add_u32 v2, v0, 2, s64')
        k('s_lshr_b32 s64, s%d, 1' % S_D)
        k('s_lshl_b32 s64, s64, 2')
        k('s_waitcnt lgkmcnt(0)')
        self.ets(3)
        for ai, p in enumerate((P_ARE, P_AIM, P_BRE, P_BIM, P_CRE, P_CIM)):
            k('global_load_dword v%d, v2, s[%d:%d]' % (PR + 3 * ai + 1, p, p + 1), tag='par0')
        k('s_load_dword s65, s[%d:%d], s64' % (P_LDT, P_LDT + 1))
        k('s_load_dword s66, s[%d:%d], s64' % (P_DSK, P_DSK + 1))
        for ai, p in enumerate((P_ARE, P_AIM, P_BRE, P_BIM, P_CRE, P_CIM)):
            k('global_load_short_d16_hi v%d, v1, s[%d:%d] offset:256' % (PR + 3 * ai + 2, p, p + 1), tag='par2')
        if opt.get('gtouch'):
            k('v_min_u32 v3, 9, v0')
            k('v_lshlrev_b32 v3, 7, v3')
            k('global_load_dword v3, v3, s[%d:%d]' % (P_GW, P_GW + 1), tag='par2')
        self.cut('chan_main')
        self.ets(4)
        self.ts_init()
        self.srd_base(R_WS, P_WS)
        if opt.get('cprio'): k('s_setprio %d' % opt['cprio'])
        V_DT = 4
        ACC, QF, DT_, VV, GG, ID = 16, 32, 64, 128, 192, 208
        k('v_and_b32 v6, 31, v0')
        k('v_lshrrev_b32 v7, 5, v0')
        k('v_lshlrev_b32 v7, 3, v7')
        k('v_sub_u32 v6, v6, v7')
        k('v_and_b32 v7, 1, v0')
        k('v_lshlrev_b32 v7, 4, v7')
        k('v_mov_b32 v8, 0x3f80')
        k('v_lshlrev_b32 v7, v7, v8')
        k('v_lshrrev_b32 v6, 1, v6')
        for d in range(8):
            k('v_cmp_eq_u32 vcc, %d, v6' % (d if d < 4 else d + 4))
            k('v_cndmask_b32 v%d, 0, v7, vcc' % (ID + d))
        for i in range(16): k('v_mov_b32 v%d, 0' % (ACC + i))
        k('s_and_b32 s64, s%d, 1' % S_D)
        k('s_lshl_b32 s64, s64, 4')
        k('s_waitcnt lgkmcnt(0)')
        k('s_lshr_b32 s65, s65, s64')
        k('s_lshl_b32 s65, s65, 16')
        k('s_lshr_b32 s66, s66, s64')
        k('s_lshl_b32 s%d, s66, 16' % S_DSK)
        k('v_mov_b32 v6, s65')
        k('v_mul_f32 v6, %s, v6' % fhex(LOG2E))
        k('v_exp_f32 v6, v6')
        k('v_cvt_pk_bf16_f32 v6, v6, v6')
        k('v_lshlrev_b32 v%d, 16, v6' % V_DT)
        X_, E1, E2, E4, E8, E256, E16, C_ = 216, 218, 220, 222, 224, 226, 228, 230
        T0 = GG
        order = [0, 1, 2, 3, 4, 5, 6, 7, 4, 256, 258, 260, 8, 260, 262, 264, 512, 516, 520, 1024, 768, 772, 776, 1536, 1032, 1280, 1288, 1288, 1544, 1792, 1800, 1800]
        pv = {}
        for i, o in enumerate(order): pv.setdefault(o, VV + 2 * i)
        pv[0] = C_
        Dt = lambda t: DT_ + 16 * t
        def kmfma(s):
            return 'v_mfma_f32_32x32x16_bf16 %s, %s, %s, %s' % (vr(ACC, 16), vr(Dt(s >> 1) + 4 * (s & 1), 4), vr(QF + 4 * s, 4), vr(ACC, 16))
        S_PS = 73
        def setup(ps):
            if ps != 1: k.wait(vm='par%d' % ps)
            if ps == 0:
                for a_ in range(6):
                    k('v_lshlrev_b32 v%d, 16, v%d' % (PR + 3 * a_, PR + 3 * a_ + 1))
                    k('v_and_b32 v%d, 0xffff0000, v%d' % (PR + 3 * a_ + 1, PR + 3 * a_ + 1))
            ar, ai, br, bi, cr, ci = [PR + 3 * a + ps for a in range(6)]
            self.pr(200 + ps, 0)
            su = []
            su.append('v_mul_f32 v%d, v%d, v%d' % (X_, V_DT, ar))
            su.append('v_mul_f32 v%d, v%d, v%d' % (X_ + 1, V_DT, ai))
            su.append('v_mul_f32 v%d, %s, v%d' % (X_, fhex(LOG2E), X_))
            su.append('v_mul_f32 v%d, %s, v%d' % (X_ + 1, fhex(INV2PI), X_ + 1))
            su.append('v_rndne_f32 v%d, v%d' % (T0 + 2, X_ + 1))
            su.append('v_mul_f32 v%d, v%d, v%d' % (T0, V_DT, br))
            su.append('v_mul_f32 v%d, v%d, v%d' % (T0 + 1, V_DT, bi))
            su.append('v_sub_f32 v%d, v%d, v%d' % (X_ + 1, X_ + 1, T0 + 2))
            su.append('v_mul_f32 v%d, v%d, v%d' % (C_, cr, T0))
            su.append('v_mul_f32 v%d, v%d, v%d' % (C_ + 1, cr, T0 + 1))
            su.append('v_fma_f32 v%d, -v%d, v%d, v%d' % (C_, ci, T0 + 1, C_))
            su.append('v_fmac_f32 v%d, v%d, v%d' % (C_ + 1, ci, T0))
            for idx, (dst, p) in enumerate(((E8, 8.0), (E1, 1.0), (E256, 256.0))):
                t = T0 + 4 + 4 * idx
                if p == 1.0: m, th = X_, X_ + 1
                else:
                    su.append('v_mul_f32 v%d, %s, v%d' % (t, fhex(p), X_))
                    su.append('v_mul_f32 v%d, %s, v%d' % (t + 1, fhex(p), X_ + 1))
                    m, th = t, t + 1
                su.append('v_exp_f32 v%d, v%d' % (t + 2, m))
                su.append('v_cos_f32 v%d, v%d' % (dst, th))
                su.append('v_sin_f32 v%d, v%d' % (dst + 1, th))
            for idx, dst in enumerate((E8, E1, E256)):
                t = T0 + 4 + 4 * idx
                su.append('v_mul_f32 v%d, v%d, v%d' % (dst, dst, t + 2))
                su.append('v_mul_f32 v%d, v%d, v%d' % (dst + 1, dst + 1, t + 2))
            if ps > 0:
                for i, l in enumerate(su):
                    if i % 6 == 0 and i // 6 < 4: k(kmfma(4 + i // 6))
                    k(l)
            else:
                emit_list(k, su)
        setup(0)
        self.ts(1)
        k('s_mov_b32 s%d, 0' % S_PS)
        k.raw('.p2align 3')
        k.label('L_kbody')
        ps = 1
        def weave(ms, fill):
            per = -(-len(fill) // len(ms))
            for m in ms:
                k(m)
                emit_list(k, fill[:per]); fill = fill[per:]
        def cvts(src, part, neg):
            out = []
            for g in range(4):
                for d in range(4):
                    dst = GG + 4 * g + d if part == 0 else VV + 16 * g + d
                    ops = []
                    for o in src[8 * g + 2 * d: 8 * g + 2 * d + 2]:
                        if o is None: ops.append('1.0' if part == 0 else '0')
                        else: ops.append('%sv%d' % ('-' if neg else '', o + part))
                    out.append('v_cvt_pk_bf16_f32 v%d, %s, %s' % (dst, ops[0], ops[1]))
            return out
        grp = lambda part, g: GG + 4 * g if part == 0 else VV + 16 * g
        def swaps(part):
            return ['v_permlane32_swap_b32 v%d, v%d' % (grp(part, g) + d, grp(part, g + 1) + d) for g in (0, 2) for d in range(4)]
        def tm(part):
            t = 2 * part
            f = lambda tl, g, c: 'v_mfma_f32_32x32x16_bf16 %s, %s, %s, %s' % (vr(Dt(tl), 16), vr(grp(part, g), 4), vr(ID + 4 * (g >> 1), 4), c)
            return [f(t, 0, '0'), f(t, 2, vr(Dt(t), 16)), f(t + 1, 1, '0'), f(t + 1, 3, vr(Dt(t + 1), 16))]
        def back(t, dst):
            return ['v_cvt_pk_bf16_f32 v%d, v%d, v%d' % (dst + d, Dt(t) + 2 * d, Dt(t) + 2 * d + 1) for d in range(8)]
        self.pr(200 + ps, 1)
        qs = [None, E8, E16] + [VV + 2 * b_ for b_ in range(3, 32)]
        emit_list(k, self.cmul(E16, E8, E8))
        for b_ in range(3, 32): emit_list(k, self.cmul(qs[b_], qs[b_ - 2], E16))
        self.pr(200 + ps, 2)
        emit_list(k, cvts(qs, 0, False) + swaps(0))
        weave(tm(0), cvts(qs, 1, True) + swaps(1))
        weave(tm(1), back(0, QF) + back(1, QF + 8))
        self.pr(200 + ps, 3)
        cm = lambda o, a_, e: emit_list(k, self.cmul(pv[o], pv[a_], e))
        emit_list(k, self.cmul(E2, E1, E1))
        emit_list(k, self.cmul(E4, E2, E2))
        for o in range(1, 9): cm(o, o - 1, E1)
        for o in (256, 512, 768, 1024, 1280, 1536, 1792): cm(o, o - 256, E256)
        for o in (258, 260, 262, 264): cm(o, o - 2, E2)
        cm(516, 512, E4); cm(520, 512, E8); cm(772, 768, E4); cm(776, 768, E8)
        for o in (1032, 1288, 1544, 1800): cm(o, o - 8, E8)
        self.pr(200 + ps, 4)
        psrc = [pv[o] for o in order]
        emit_list(k, cvts(psrc, 0, False) + swaps(0))
        weave(tm(0), back(2, QF + 16) + back(3, QF + 24) + cvts(psrc, 1, False) + swaps(1))
        self.pr(200 + ps, 5)
        weave(tm(1), back(0, Dt(0)) + back(1, Dt(1)))
        weave([kmfma(s_) for s_ in range(4)], back(2, Dt(2)) + back(3, Dt(3)))
        self.pr(200 + ps, 7)
        k('s_add_u32 s%d, s%d, 1' % (S_PS, S_PS))
        k('s_cmp_eq_u32 s%d, 3' % S_PS)
        k('s_cbranch_scc1 L_kexit')
        k('s_cmp_eq_u32 s%d, 2' % S_PS)
        k('s_cbranch_scc1 L_ks2')
        lg_save = list(k.lg)
        setup(1)
        k('s_branch L_kbody')
        k.label('L_ks2')
        k.lg = list(lg_save)
        setup(2)
        k('s_branch L_kbody')
        k.label('L_kexit')
        if opt.get('xprio'): k('s_setprio %d' % opt['xprio'])
        k('s_load_dword s%d, s[%d:%d], 0' % (S_NONCE, P_DBG, P_DBG + 1))
        k('s_cmp_ge_u32 s%d, 2' % S_WAVE)
        k('s_cbranch_scc1 L_nogate0')
        self.gate(0)
        k.label('L_nogate0')
        k.lg = list(lg_save)
        ex = []
        ex += ['v_and_b32 v6, 31, v0', 'v_lshrrev_b32 v7, 5, v0', 'v_lshlrev_b32 v8, 4, v6', 'v_sub_u32 v8, s%d, v8' % S_CB,
               'v_lshlrev_b32 v9, 3, v7', 'v_sub_u32 v9, v8, v9', 'v_add_u32 v9, 504, v9',
               'v_lshlrev_b32 v10, 9, v7', 'v_sub_u32 v10, v8, v10', 'v_add_u32 v10, 1008, v10',
               'v_lshlrev_b32 v11, 10, v7', 'v_sub_u32 v11, v8, v11', 'v_add_u32 v11, 1520, v11',
               'v_add_u32 v12, %d, v9' % (KO + 4084 - 504), 'v_add_u32 v13, %d, v9' % (KO + 4084 - 512 - 504),
               'v_and_b32 v6, 1, v0', 'v_cmp_eq_u32 vcc, 1, v6',
               'v_min_u32 v14, 27, v0', 'v_lshlrev_b32 v14, 4, v14', 'v_add_u32 v14, s%d, v14' % S_CB]
        ex += ['v_mov_b32 v%d, 0' % (96 + i) for i in range(4)]
        V_A, V_B = 2, 3
        ex += ['v_and_b32 v6, 15, v0', 'v_lshrrev_b32 v7, 4, v0', 'v_lshlrev_b32 v7, 4, v7', 'v_add_u32 v7, s%d, v7' % S_CB,
               'v_lshrrev_b32 v8, 1, v6', 'v_lshlrev_b32 v8, 6, v8', 'v_sub_u32 v8, v7, v8',
               'v_mov_b32 v102, %d' % (448 + KO), 'v_mov_b32 v103, 448', 'v_cndmask_b32 v102, v102, v103, vcc', 'v_add_u32 v%d, v8, v102' % V_A,
               'v_lshl_add_u32 v8, v6, 2, v7', 'v_mov_b32 v102, %d' % UY, 'v_mov_b32 v103, %d' % (UX + 4),
               'v_cndmask_b32 v102, v102, v103, vcc', 'v_add_u32 v%d, v8, v102' % V_B, 'v_mov_b32 v15, s%d' % S_CB]
        ex = [l.replace('v102', 'v202').replace('v103', 'v203') for l in ex]
        ex = [l.replace('v_mov_b32 v9', 'v_mov_b32 v19') if l.startswith('v_mov_b32 v9') else l for l in ex]
        for s in range(4, 8):
            k(kmfma(s))
            emit_list(k, ex[:6]); ex = ex[6:]
        emit_list(k, ex)
        k('ds_write_b128 v14, v[196:199] offset:4096')
        k('ds_write_b128 v14, v[196:199] offset:%d' % (KO + 4096))
        self.ts(3)
        V = lambda r: ACC + r
        pk = lambda d, lo, hi: k('v_cvt_pk_bf16_f32 v%d, v%d, v%d' % (d, lo, hi))
        k('s_mov_b64 exec, 1')
        k('v_add_f32 v%d, s%d, v%d' % (V(0), S_DSK, V(0)))
        k('s_mov_b64 exec, -1')
        k('v_cndmask_b32 v100, v%d, v%d, vcc' % (V(11), V(12)))
        k('v_cndmask_b32 v101, v%d, v%d, vcc' % (V(13), V(14)))
        pk(32, V(3), V(2)); pk(33, V(1), V(0))
        pk(34, V(7), V(6)); pk(35, V(5), V(5))
        pk(36, V(10), V(10)); pk(37, V(9), V(9)); pk(38, V(9), V(8)); pk(39, V(8), V(8))
        pk(40, V(10), V(9)); k('v_mov_b32 v41, v37'); k('v_mov_b32 v42, v39'); k('v_mov_b32 v43, v39')
        for (lo, hi, T, off, rb) in ((11, 12, 100, 2032, 44), (13, 14, 101, 1520, 52)):
            pk(rb, V(hi), V(hi)); pk(rb + 1, V(hi), T); pk(rb + 2, V(lo), V(lo)); k('v_mov_b32 v%d, v%d' % (rb + 3, rb + 2))
            k('v_mov_b32 v%d, v%d' % (rb + 4, rb)); pk(rb + 5, T, V(lo)); k('v_mov_b32 v%d, v%d' % (rb + 6, rb + 2)); k('v_mov_b32 v%d, v%d' % (rb + 7, rb + 2))
        pk(60, V(4), V(3)); pk(61, V(2), V(1))
        pk(62, V(7), V(7)); pk(63, V(6), V(5))
        pk(102, V(0), 196)
        k('ds_write_b64 v9, v[32:33] offset:%d' % (4088 - 504))
        k('ds_write_b64 v9, v[34:35] offset:%d' % (4088 - 512 - 504))
        k('ds_write2_b32 v12, v60, v61 offset0:0 offset1:1')
        k('ds_write2_b32 v13, v62, v63 offset0:0 offset1:1')
        k('ds_write_b128 v10, v[36:39] offset:%d' % (3056 - 1008))
        k('ds_write_b128 v10, v[40:43] offset:%d' % (KO + 3056 - 1008))
        for (off, rb) in ((2032, 44), (1520, 52)):
            k('ds_write_b128 v11, %s offset:%d' % (vr(rb, 4), off - 1520))
            k('ds_write_b128 v11, %s offset:%d' % (vr(rb + 4, 4), KO + off - 1520))
        k('s_mov_b64 exec, 1')
        k('ds_write_b32 v15, v102 offset:%d' % (KO + 4092))
        k('s_mov_b64 exec, -1')
        self.snonce(104, 105, first=1)
        self.ts(2)
        k('s_cmp_ge_u32 s%d, 2' % S_WAVE)
        k('s_cbranch_scc1 L_nogate')
        self.gate(1)
        k.label('L_nogate')
        k('s_waitcnt lgkmcnt(0)')
        k('s_barrier')
        if opt.get('cstop') == 3: k('s_endpgm')
        Y = 16
        FB = [64, 128]
        CT = [i for i in range(8) if i not in self.mtiles()]
        self.ts(4)
        k('s_setprio %d' % opt.get('vprio', 0))
        emit_list(k, self.conv_reads(0, FB[0], V_A, V_B))
        fin = ['v_lshlrev_b32 v8, 3, v0', 's_lshl_b32 s64, s%d, 12' % S_D, 's_add_u32 s64, s64, 0x%x' % WS_AT]
        for sg in range(8):
            k.wait(lg='all')
            if opt.get('cpat'):
                k('s_setprio %d' % (3 if (opt['cpat'] >> sg) & 1 else 0))
            nx = self.conv_reads(sg + 1, FB[(sg + 1) % 2], V_A, V_B) if sg + 1 < 8 else fin
            self.conv_step(Y, FB[sg % 2], sg == 0, nx, CT)
        self.ts(5)
        k('s_setprio 3')
        emit_list(k, self.tile_out(Y, CT, 64, 8, 's64'))
        self.ts(6)
        if opt.get('park'): self.cut('chan_end')
        k.wait(vm='all')
        k('s_barrier')
        if opt.get('park') and opt.get('ts'): self.cut('chan_end2')
        self.ts(7)
        self.ts_store()
        k('s_endpgm')

    def gate(self, part):
        k = self.k
        GX, GW = 128, 168
        if part == 0: self.gate_issue(GX, GW)
        else: self.gate_finish(GX, GW)
    def gate_issue(self, GX, GW):
        k = self.k
        if self.opt.get('gateprio'): k('s_setprio %d' % self.opt['gateprio'])
        self.srd_base(R_U, P_U)
        k('v_and_b32 v5, 15, v0')
        k('v_lshlrev_b32 v5, 4, v5')
        k('v_lshrrev_b32 v1, 4, v0')
        k('v_mul_u32_u24 v7, 1280, v1')
        k('v_add_u32 v7, v7, v5')
        k('s_lshl3_add_u32 s70, s%d, s%d' % (S_RHO, S_J))
        k('s_lshl1_add_u32 s70, s70, s%d' % S_WAVE)
        k('s_mul_i32 s71, s70, %d' % (4 * 1280))
        for i in range(5):
            k('buffer_load_dwordx4 %s, v7, s[%d:%d], s71 offen offset:%d' % (vr(GX + 4 * i, 4), R_U, R_U + 3, 256 * i), tag='G%d' % i)
            k('global_load_dwordx4 %s, v5, s[%d:%d] offset:%d' % (vr(GW + 4 * i, 4), P_GW, P_GW + 1, 256 * i), tag='G%d' % i)
        if self.opt.get('gateprio'): k('s_setprio %d' % self.opt.get('xprio', 0))
    def gate_finish(self, GX, GW):
        k = self.k
        k('v_mov_b32 v160, 0')
        k('v_mov_b32 v161, 0')
        for i in range(20):
            if i % 4 == 0: k.wait(vm='G%d' % (i // 4))
            x, w = GX + i, GW + i
            t = 152
            if self.opt.get('dotgate'):
                k('v_dot2_f32_bf16 v%d, v%d, v%d, v%d' % (160 + i % 2, x, w, 160 + i % 2))
                continue
            k('v_lshlrev_b32 v%d, 16, v%d' % (t, x))
            k('v_and_b32 v%d, 0xffff0000, v%d' % (t + 1, x))
            k('v_lshlrev_b32 v%d, 16, v%d' % (t + 2, w))
            k('v_and_b32 v%d, 0xffff0000, v%d' % (t + 3, w))
            k('v_mul_f32 v%d, v%d, v%d' % (t, t, t + 2))
            k('v_mul_f32 v%d, v%d, v%d' % (t + 1, t + 1, t + 3))
            k('v_cvt_pk_bf16_f32 v%d, v%d, v%d' % (t + 4, t, t + 1))
            k('v_lshlrev_b32 v%d, 16, v%d' % (t, t + 4))
            k('v_and_b32 v%d, 0xffff0000, v%d' % (t + 1, t + 4))
            k('v_add_f32 v160, v160, v%d' % t)
            k('v_add_f32 v161, v161, v%d' % (t + 1))
        if self.opt.get('dotgate'): k('s_nop 3')
        k('v_add_f32 v160, v160, v161')
        for m in ('quad_perm:[1,0,3,2]', 'quad_perm:[2,3,0,1]', 'row_half_mirror', 'row_mirror'):
            k('v_add_f32_dpp v160, v160, v160 %s row_mask:0xf bank_mask:0xf' % m)
        k('v_cvt_pk_bf16_f32 v160, v160, v160')
        k('v_lshlrev_b32 v160, 16, v160')
        k('v_mul_f32 v160, %s, v160' % fhex(-LOG2E))
        k('v_exp_f32 v160, v160')
        k('v_add_f32 v160, 1.0, v160')
        k('v_rcp_f32 v160, v160')
        k('v_cvt_pk_bf16_f32 v160, v160, v160')
        k('v_lshlrev_b32 v160, 16, v160')
        k('v_mov_b32 v161, s%d' % S_NONCE)
        k('v_lshlrev_b32 v6, 3, v1')
        k('s_lshl_b32 s70, s70, 5')
        k('s_add_u32 s70, s70, 0x%x' % WS_G)
        k('s_mov_b32 s74, 0x00010001')
        k('s_mov_b32 s75, 0x00010001')
        k('s_mov_b64 exec, s[74:75]')
        k('buffer_store_dwordx2 v[160:161], v6, s[%d:%d], s70 offen sc1' % (R_WS, R_WS + 3))
        k('s_mov_b64 exec, -1')

    def build(self):
        import gemm18
        k = self.k
        self.prologue()
        self.misc()
        self.chan()
        k.reset_counts()
        self.mark('gemm_head')
        self.role = 1
        k.label('L_gemm')
        self.ets(1)
        if self.opt.get('nogemm'): k('s_endpgm')
        else: gemm18.emit(self)
        self.mark('end')
        k.label('L_end')
        k('s_endpgm')
        secs = {}; prev = ('pro', 0)
        for m in self.marks + [('eof', len(k.items))]:
            secs[prev[0]] = k.items[prev[1]:m[1]]; prev = m
        order = ['pro'] + {0: ['chan_head', 'misc_head', 'idle', 'gemm_head'], 1: ['misc_head', 'chan_head', 'idle', 'gemm_head'], 2: ['gemm_head', 'chan_head', 'misc_head', 'idle'], 3: ['misc_head', 'gemm_head', 'chan_head', 'idle']}[self.opt.get('hord', 0)] + [ 'chan_main', 'misc_main', 'gemm_main', 'chan_end', 'gemm_t1', 'misc_end', 'gemm_t2', 'chan_end2', 'misc_end2', 'end']
        k.items = sum((secs[n] for n in order if n in secs), []) + sum(getattr(k, 'colds', []), [])
        assert set(secs) <= set(order)
        if self.opt.get('ipf'): k.raw('.fill ((%d - (. - %s)) / 4), 4, 0xbf810000' % (64 * 128 * self.opt['ipf'] + 256, KNAME))
        hdr = open('gated_mix__ssm_conv_s4__dense_activation_silu__prompt.s.ref').read().split('; Override launch')[0]
        s = hdr + '; @launch grid=(512,1,1) block=(256,1,1) lds=81920\n'
        s += DOC
        s += '.amdgcn_target "amdgcn-amd-amdhsa--gfx950"\n.text\n.globl %s\n.p2align 8\n.type %s,@function\n%s:\n' % (KNAME, KNAME, KNAME)
        s += k.text()
        s += '.section .rodata,"a"\n.p2align 6\n.amdhsa_kernel %s\n' % KNAME
        s += '  .amdhsa_next_free_vgpr 256\n  .amdhsa_next_free_sgpr 102\n  .amdhsa_accum_offset 256\n  .amdhsa_group_segment_fixed_size 0\n'
        s += '  .amdhsa_kernarg_size 128\n  .amdhsa_user_sgpr_count 2\n  .amdhsa_user_sgpr_kernarg_segment_ptr 1\n  .amdhsa_system_sgpr_workgroup_id_x 1\n.end_amdhsa_kernel\n'
        return s

if __name__ == '__main__':
    opt = {}
    out = sys.argv[1]
    for a in sys.argv[2:]:
        if '=' in a:
            kk, v = a.split('='); opt[kk] = int(v, 0)
        else: opt[a] = 1
    g = Gen(opt)
    open(out, 'w').write(g.build())
    print('nops inserted', g.k.nops, 'lines', len(g.k.items))
```

```python
from kgen import *
from gen19 import *

def emit(G):
    k = G.k
    opt = G.opt
    assert opt.get('ks', 2) == 2
    OWN = opt.get('own', 1)
    KS = opt.get('ks', 2)
    S_FA, S_LW, S_GG, S_HS, S_V, S_H0, S_FH, S_FC = 4, 9, 10, 11, 12, 13, 14, 15
    S_H1, S_FW, S_AT, S_AD, S_OUT, S_A3, S_AC, S_AE, S_FC2 = 40, 41, 42, 43, 46, 47, 78, 79, 8 + 92
    S_XZ, S_WZ = 68, 73
    VV, VR, VRH, VHL, VFH, VFW, V_FA, V_AD, V_G, V_AR, V_OW, V_OS = 2, 3, 4, 5, 7, 8, 9, 10, 11, 12, 13, 14
    VW, WA, WAH, VH, V_NON, V_REP, ET = 17, 21, 22, 23, 24, 25, 26
    VX, XA, XT = 80, 84, 92
    g_, c_ = 30, 31
    k('v_lshrrev_b32 v30, 4, v0')
    k('v_and_b32 v31, 15, v0')
    k('v_and_b32 v27, 2, v30')
    k('v_add_u32 v27, v27, v30')
    k('s_and_b32 s64, s%d, 2' % S_WAVE)
    k('v_xor_b32 v27, v31, v27')
    k('v_xor_b32 v27, s64, v27')
    k('v_lshlrev_b32 v27, 4, v27')
    k('s_mul_i32 s64, s%d, %d' % (S_WAVE, 16 * 1280))
    k('v_mul_u32_u24 v26, 1280, v30')
    k('v_add_u32 v26, s64, v26')
    k('v_add_u32 v%d, v26, v27' % VX)
    k('v_xor_b32 v28, 128, v27')
    k('v_add_u32 v28, 4096, v28')
    k('v_add_u32 v%d, v26, v28' % (VX + 1))
    k('v_add_u32 v%d, 8192, v%d' % (VX + 2, VX))
    k('v_add_u32 v%d, 8192, v%d' % (VX + 3, VX + 1))
    k('s_mul_i32 s%d, s%d, %d' % (S_XZ, S_RHO, 64 * 1280))
    k('s_lshl_b32 s%d, s%d, 12' % (S_LW, S_WAVE))
    seq = []
    pat = {0: 'XWXWXWXWXW', 1: 'XXXXXWWWWW', 2: 'XXXWXWXWWW', 3: 'XXWXWXWXWW'}[opt.get('xfirst', 3)]
    cnt = {'X': 0, 'W': 0}
    for ch in pat:
        seq.append((ch, cnt[ch], 0)); cnt[ch] += 1
    for r in (1, 2):
        for z in range(5): seq.append(('W', z, r))
    for z in range(15): seq.append(('V', z, 0))
    def dma(i):
        typ, z, r = seq[i]
        out = ['s_add_u32 m0, s%d, %d' % (S_LW, 16384 * (i % 5))]
        if typ == 'V':
            if z: out.append('s_add_u32 s%d, s%d, 16384' % (S_V, S_V))
            return out + [('buffer_load_dwordx4 v%d, s[%d:%d], s%d offen offset:%d sc1 lds' % (VV, R_WS, R_WS + 3, S_V, 1024 * n), 'S%d' % i) for n in range(4)]
        if typ == 'X':
            if z: out.append('s_add_u32 s%d, s%d, 256' % (S_XZ, S_XZ))
        elif z: out.append('s_add_u32 s%d, s%d, %d' % (S_WZ, S_WZ, 128 * 3072))
        elif r: out.append('s_sub_u32 s%d, s%d, %d' % (S_WZ, S_WZ, 4 * 128 * 3072 - 128))
        so, rr, vo = (S_XZ, R_U, VX) if typ == 'X' else (S_WZ, R_W, VW)
        for n in range(4):
            out.append(('buffer_load_dwordx4 v%d, s[%d:%d], s%d offen offset:%d lds' % (vo + n, rr, rr + 3, so, 1024 * n), 'S%d' % i))
        return out
    k('s_waitcnt lgkmcnt(0)')
    G.ets(3)
    G.srd_base(R_U, P_U)
    emit_list(k, dma(0))
    G.srd_base(R_W, P_W1); G.srd_tail(R_W, 640 * 1536 * 2)
    def touch():
        L = k.newlabel('L_nt')
        k('s_cmp_lg_u32 s%d, 0' % S_WAVE)
        k('s_cbranch_scc1 %s' % L)
        emit_list(k, ['v_min_u32 v26, 59, v0', 'v_mul_u32_u24 v27, 43, v26', 'v_lshrrev_b32 v27, 9, v27',
             'v_mul_u32_u24 v27, %d, v27' % (3072 - 128 * 12), 'v_lshl_add_u32 v26, v26, 7, v27',
             's_bfe_u32 s64, s2, 0x50003', 's_bfe_u32 s65, s2, 0x20001', 's_lshl_b32 s65, s65, 5', 's_add_u32 s64, s64, s65',
             's_mul_i32 s64, s64, %d' % (5 * 3072), 's_and_b32 s65, s2, 1', 's_mul_i32 s65, s65, %d' % (128 * 12), 's_add_u32 s64, s64, s65'])
        k('buffer_load_dword v254, v26, s[%d:%d], s64 offen' % (R_W, R_W + 3)); k.vm.pop()
        k.label(L)
    PF = opt.get('pf1', 1)
    if PF == 1: touch()
    k('v_lshrrev_b32 v26, 3, v0')
    k('s_lshl_b32 s65, s%d, 5' % S_WAVE)
    k('v_add_u32 v26, s65, v26')
    k('v_mul_u32_u24 v26, 3072, v26')
    k('v_and_b32 v27, 7, v0')
    k('v_and_b32 v28, 1, v30')
    k('v_lshlrev_b32 v28, 2, v28')
    k('v_xor_b32 v27, v27, v28')
    k('v_lshl_add_u32 v%d, v27, 4, v26' % VW)
    for n in range(1, 4):
        k('v_add_u32 v%d, %d, v%d' % (VW + n, n * (8 * 3072 - 1024), VW))
    k('s_mul_i32 s%d, s%d, 384' % (S_WZ, S_J))
    LA_ = opt.get('la', 4)
    NPRE = opt.get('npre', 2)
    if PF == 2: touch()
    if not opt.get('late1'):
        for i in range(1, NPRE): emit_list(k, dma(i))
    G.ets(4)
    G.cut('gemm_main')
    G.ts_init()
    if PF == 3: touch()
    if opt.get('late1'):
        for i in range(1, NPRE): emit_list(k, dma(i))
    k('s_setprio %d' % opt.get('gprio', 2))
    G.srd_base(R_WS, P_WS)
    G.srd_base(R_O, P_OUT); G.srd_tail(R_O, 2048 * 640 * 2)
    S_TAU, S_PHI, S_T = 69, 70, 71
    k('s_and_b32 s%d, s%d, 1' % (S_TAU, S_WAVE))
    k('s_lshr_b32 s%d, s%d, 1' % (S_PHI, S_WAVE))
    if KS == 2: k('s_lshl1_add_u32 s%d, s%d, s%d' % (S_T, S_TAU, S_PHI))
    else: k('s_mov_b32 s%d, s%d' % (S_T, S_WAVE))
    rowoff = lambda d, j, t: ['v_lshrrev_b32 v%d, 2, v%d' % (d, j), 'v_lshlrev_b32 v%d, 1, v%d' % (d, d), 'v_and_b32 v%d, 1, v%d' % (t, j), 'v_add_u32 v%d, v%d, v%d' % (d, d, t),
                              'v_and_b32 v%d, 2, v%d' % (t, j), 'v_lshl_add_u32 v%d, v%d, 4, v%d' % (d, t, d)]
    k('v_lshrrev_b32 v29, 5, v0')
    emit_list(k, rowoff(27, 31, 26))
    k('v_lshlrev_b32 v%d, 3, v27' % V_G)
    k('v_and_b32 v26, 1, v30')
    k('v_xor_b32 v25, s%d, v26' % S_PHI)
    k('v_lshl_add_u32 v27, v25, 3, v27')
    k('s_lshl_b32 s64, s%d, 12' % S_TAU)
    k('v_xor_b32 v28, v29, v31')
    k('v_lshlrev_b32 v28, 4, v28')
    k('v_lshl_add_u32 v28, v27, 8, v28')
    k('v_add_u32 v%d, s64, v28' % XA)
    for s in range(1, 8): k('v_xor_b32 v%d, %d, v%d' % (XA + s, 32 * s, XA))
    k('s_lshl_b32 s64, s%d, 1' % S_TAU)
    k('v_add_u32 v27, s64, v25')
    k('v_mul_u32_u24 v27, 49152, v27')
    k('v_lshl_add_u32 v28, v29, 4, v31')
    k('v_lshl_add_u32 v%d, v28, 4, v27' % VH)
    k('v_bfe_u32 v28, v0, 1, 1')
    k('v_lshl_add_u32 v26, v26, 1, v28')
    k('s_lshl_b32 s64, s%d, 2' % S_PHI)
    k('v_add_u32 v26, s64, v26')
    k('v_bfe_u32 v28, v0, 3, 1')
    k('v_lshlrev_b32 v28, 2, v28')
    k('v_xor_b32 v26, v26, v28')
    k('v_bfe_u32 v28, v0, 2, 2')
    k('v_lshl_add_u32 v27, v29, 3, v28')
    k('v_lshlrev_b32 v27, 7, v27')
    k('v_lshl_add_u32 v27, v26, 4, v27')
    k('v_and_b32 v26, 1, v0')
    k('v_lshl_add_u32 v%d, v26, 3, v27' % WA)
    k('v_add_u32 v%d, 0x10000, v%d' % (WAH, WA))
    k('s_mul_i32 s66, s%d, 192' % S_RHO)
    k('s_lshl1_add_u32 s67, s%d, s66' % S_J)
    k('s_add_u32 s67, s67, s%d' % S_PHI)
    k('s_lshl_b32 s67, s67, 10')
    k('s_add_u32 s%d, s67, 0x%x' % (S_HS, WS_H))
    k('s_lshl_b32 s66, s66, 10')
    k('s_add_u32 s66, s66, 0x%x' % WS_H)
    k('s_lshr_b32 s67, s%d, 2' % S_J)
    k('s_lshl_b32 s65, s%d, 11' % S_J)
    k('s_add_u32 s%d, s66, s65' % S_H0)
    k('s_mul_i32 s66, s%d, 768' % S_RHO)
    k('s_lshl_b32 s67, s67, 7')
    k('s_add_u32 s66, s66, s67')
    k('s_add_u32 s%d, s66, 0x%x' % (S_FC, WS_FH))
    k('s_xor_b32 s%d, s%d, 128' % (S_FC2, S_FC))
    k('s_and_b32 s67, s%d, 3' % S_J)
    k('s_lshl2_add_u32 s%d, s67, s%d' % (S_FH, S_FC))
    k('s_mov_b32 s%d, 0' % S_AD)
    k('s_lshl3_add_u32 s64, s%d, s%d' % (S_RHO, S_T))
    k('s_mul_i32 s%d, s64, %d' % (S_OUT, 8 * 1280))
    k('s_mul_i32 s66, s%d, 160' % S_J)
    k('s_add_u32 s%d, s%d, s66' % (S_OUT, S_OUT))
    k('s_lshl_b32 s64, s64, 6')
    k('s_add_u32 s%d, s64, 0x%x' % (S_GG, WS_G))
    k('s_cmp_lt_u32 s%d, 2' % S_WAVE)
    k('s_cselect_b32 s%d, 1024, 0' % S_A3)
    k('s_mul_i32 s64, s%d, %d' % (S_J, 48 * 5120))
    k('s_add_u32 s%d, s64, 0x%x' % (S_V, WS_W2P))
    k('s_mul_i32 s64, s%d, %d' % (S_J, 10 * 128))
    k('s_add_u32 s%d, s64, 0x%x' % (S_FA, WS_FA))
    k('s_lshl_b32 s64, s%d, 7' % S_WAVE)
    k('s_add_u32 s%d, s64, s%d' % (S_AC, S_FA))
    k('s_add_u32 s%d, s%d, %d' % (S_AE, S_AC, NREP * FA_RS))
    k('s_mul_i32 s64, s%d, 10' % S_J)
    k('s_add_u32 s64, s64, s%d' % S_WAVE)
    k('s_lshl_b32 s64, s64, 15')
    k('s_lshl_b32 s65, s%d, 7' % S_RHO)
    k('s_add_u32 s64, s64, s65')
    k('s_add_u32 s%d, s64, 0x%x' % (S_AT, WS_AT))
    k('s_mul_i32 s64, s%d, 5' % S_J)
    k('s_lshr_b32 s65, s64, 3')
    k('s_add_u32 s64, s64, 4')
    k('s_lshr_b32 s64, s64, 3')
    k('s_sub_u32 s64, s64, s65')
    k('s_lshl_b32 s64, s64, 8')
    k('s_lshl_b32 s65, s65, 8')
    k('s_mul_i32 s66, s%d, 48' % S_WAVE)
    k('s_add_u32 s65, s65, s66')
    k('s_add_u32 s%d, s65, 0x%x' % (S_FW, WS_FW))
    k('v_min_u32 v26, 11, v31')
    k('v_and_b32 v27, 1, v30')
    k('v_mul_u32_u24 v27, s64, v27')
    k('v_lshl_add_u32 v%d, v26, 2, v27' % VFW)
    k('v_lshlrev_b32 v26, 4, v0')
    k('v_add_u32 v%d, s%d, v26' % (VV, S_LW))
    if KS == 2:
        k('s_mul_i32 s64, s%d, 5120' % S_PHI)
        k('v_add_u32 v%d, s64, v26' % VR)
        k('s_mul_i32 s64, s%d, 48' % S_T)
        k('s_add_u32 s64, s64, s%d' % S_PHI)
        k('s_lshl_b32 s64, s64, 10')
        k('v_add_u32 v%d, s64, v26' % VHL)
        k('s_xor_b32 s64, s%d, 1' % S_T)
        k('s_mul_i32 s64, s64, 48')
        k('s_add_u32 s64, s64, s%d' % S_PHI)
        k('s_lshl_b32 s64, s64, 10')
        k('v_add_u32 v%d, s64, v26' % (VHL + 1))
    else:
        k('v_mov_b32 v%d, v26' % VR)
        k('s_mul_i32 s64, s%d, 49152' % S_T)
        k('v_add_u32 v%d, s64, v26' % VHL)
    k('v_add_u32 v%d, 0x8000, v%d' % (VRH, VR))
    k('v_and_b32 v26, 3, v0')
    k('v_lshlrev_b32 v%d, 2, v26' % VFH)
    k('v_lshlrev_b32 v27, 12, v29')
    k('v_bfe_u32 v28, v0, 2, 3')
    k('v_lshl_add_u32 v27, v28, 7, v27')
    k('v_lshl_add_u32 v27, v26, 3, v27')
    k('s_lshl_b32 s64, s%d, 5' % S_T)
    k('v_add_u32 v%d, s64, v27' % V_AR)
    k('v_and_b32 v26, 7, v0')
    k('v_lshrrev_b32 v27, 3, v0')
    k('v_min_u32 v28, 2, v27')
    k('v_lshlrev_b32 v28, 2, v28')
    k('v_add_u32 v28, s%d, v28' % S_WAVE)
    k('v_min_u32 v28, 9, v28')
    k('v_lshl_add_u32 v28, v28, 5, v26')
    k('v_lshlrev_b32 v%d, 2, v28' % V_FA)
    k('v_lshlrev_b32 v27, 12, v27')
    k('v_lshl_add_u32 v%d, v26, 4, v27' % V_AD)
    OSTR = opt.get('ostr', 160)
    k('v_mul_u32_u24 v27, %d, v31' % OSTR)
    k('v_lshl_add_u32 v27, v30, 3, v27')
    k('v_add_u32 v%d, s%d, v27' % (V_OW, S_LW))
    for n in range(3):
        emit_list(k, ['v_add_u32 v26, %d, v0' % (64 * n), 'v_mul_u32_u24 v27, 205, v26', 'v_lshrrev_b32 v27, 11, v27'] + rowoff(V_OS + n, 27, 28) +
                  ['v_mul_u32_u24 v%d, 1280, v%d' % (V_OS + n, V_OS + n), 'v_lshl_add_u32 v%d, v26, 4, v%d' % (V_OS + n, V_OS + n),
                   'v_mul_u32_u24 v28, 160, v27', 'v_sub_u32 v%d, v%d, v28' % (V_OS + n, V_OS + n)])
    k('v_mul_u32_u24 v%d, %d, v0' % (V_REP, FH_RS))
    FA, FBs = 32, 48
    NRH = opt.get('nrh', 2)
    ACC = [64, 80, 64]
    XF = 96
    def wread(i, half, s):
        base = 16384 * (i % 5)
        reg = WAH if base >= 65536 else WA
        off = base & 0xffff
        fs = FA if half == 0 else FBs
        return [('ds_read_b64_tr_b16 %s, v%d offset:%d' % (vr(fs + 4 * s + 2 * e, 2), reg, off + (4 * half + s) * 2048 + 512 * e), 'w%d%d' % (half, s)) for e in range(2)]
    def mfma(i, half, s):
        typ, z, r = seq[i]
        fs = FA if half == 0 else FBs
        c = '0' if (z == 0 and half == 0 and s == 0) else vr(ACC[r], 16)
        return 'v_mfma_f32_32x32x16_bf16 %s, %s, %s, %s' % (vr(ACC[r], 16), vr(fs + 4 * s, 4), vr(XF + 4 * (8 * z + 4 * half + s), 4), c)
    NL2 = fhex(-LOG2E)
    def epi(r):
        a = ACC[r]
        out = []
        t = ET
        for p in range(8):
            if opt.get('fastsilu'):
                x0, x1 = a + 2 * p, a + 2 * p + 1
            else:
                x0, x1 = t, t + 1
                out += ['v_cvt_pk_bf16_f32 v%d, v%d, v%d' % (t + 2, a + 2 * p, a + 2 * p + 1),
                        'v_lshlrev_b32 v%d, 16, v%d' % (t, t + 2),
                        'v_and_b32 v%d, 0xffff0000, v%d' % (t + 1, t + 2)]
            out += ['v_mul_f32 v%d, %s, v%d' % (t + 2, NL2, x0),
                    'v_mul_f32 v%d, %s, v%d' % (t + 3, NL2, x1),
                    'v_exp_f32 v%d, v%d' % (t + 2, t + 2),
                    'v_exp_f32 v%d, v%d' % (t + 3, t + 3),
                    'v_add_f32 v%d, 1.0, v%d' % (t + 2, t + 2),
                    'v_add_f32 v%d, 1.0, v%d' % (t + 3, t + 3),
                    'v_rcp_f32 v%d, v%d' % (t + 2, t + 2),
                    'v_rcp_f32 v%d, v%d' % (t + 3, t + 3),
                    'v_mul_f32 v%d, v%d, v%d' % (t + 2, x0, t + 2),
                    'v_mul_f32 v%d, v%d, v%d' % (t + 3, x1, t + 3),
                    'v_cvt_pk_bf16_f32 v%d, v%d, v%d' % (a + p, t + 2, t + 3)]
        if opt.get('noepi'): out = []
        if r: out += ['s_add_u32 s%d, s%d, 16384' % (S_HS, S_HS)]
        for s in range(0 if opt.get('nohst') else 2):
            out.append(('buffer_store_dwordx4 %s, v%d, s[%d:%d], s%d offen offset:%d sc1' % (vr(a + 4 * s, 4), VH, R_WS, R_WS + 3, S_HS, 512 * s), 'hst%d' % r))
        if OWN and r:
            out += ['v_permlane32_swap_b32 v%d, v%d' % (a + d, a + 4 + d) for d in range(4)]
            out += ['v_permlane16_swap_b32 v%d, v%d' % (a + d, a + 4 + d) for d in range(4)]
        return out
    def hflag(r):
        def body():
            k('s_mov_b64 exec, %d' % ((1 << NRH) - 1))
            k('buffer_store_dword v%d, v%d, s[%d:%d], s%d offen offset:%d sc1' % (V_NON, V_REP, R_WS, R_WS + 3, S_FH, 256 * r)); k.vm.pop()
            k('s_mov_b64 exec, -1')
        L = k.newlabel('L_nf')
        k('s_cmp_lg_u32 s%d, %d' % (S_WAVE, r))
        k('s_cbranch_scc1 %s' % L)
        body()
        k.label(L)
    NST = 240 // KS
    NP = 48 // KS
    A2 = lambda T, sub: 96 + 4 * (5 * T + sub)
    HB = 96 + 20 * KS
    HN = 20 // KS
    Hr = lambda p, T: HB + 4 * (KS * (p % HN) + T)
    WX = HB + 80
    WBUF = [32, 36, 40, 44] + ([WX + 4 * i for i in range(8)] if KS == 1 else []) + [48, 52, 56, 60]
    f0 = lambda n: 5 * KS * (n // 5) + n % 5
    own = lambda p: OWN and p in (8, 16)
    Hr0 = Hr
    Hr = lambda p, T: (ACC[p >> 3] + 4 * T) if own(p) else Hr0(p, T)
    def hload(p):
        o = []
        if p and p % 8 == 0: o.append('s_add_u32 s%d, s%d, 16384' % (S_H0, S_H0))
        if own(p): return o
        if p % 8: o.append('s_xor_b32 s65, s%d, %d' % (S_H0, 2048 * (p % 8)))
        for T in range(KS):
            o.append(('buffer_load_dwordx4 %s, v%d, s[%d:%d], s%d offen sc1' % (vr(Hr(p, T), 4), VHL + T, R_WS, R_WS + 3, 65 if p % 8 else S_H0), 'H%d' % p))
        return o
    def take(q, n):
        o = q[:n]; del q[:n]; return o
    def h_slow(q, skip=0):
        def h_issue(): k('s_load_dwordx4 s[16:19], s[%d:%d], s24' % (R_WS, R_WS + 1))
        k('s_add_u32 s26, s%d, %d' % (S_FC2 if q & 1 else S_FC, 256 * (q >> 1)))
        k('s_add_u32 s24, s26, %d' % (skip * FH_RS))
        k('s_add_u32 s25, s26, %d' % (NRH * FH_RS))
        G.spoll_loop(h_issue, 16, 4, 24, 25, FH_RS, lambda: G.poll(1, VFH, 's26'))
    def a_dma(base, count):
        for n in range(3):
            if n == 1: k('s_add_u32 s67, s%d, %d' % (base, 4 << 15))
            if n == 2:
                k('s_lshl_b32 s67, s%d, 8' % S_A3)
                k('s_add_u32 s67, s67, s%d' % base)
            k('s_add_u32 m0, s%d, %d' % (S_LW, 1024 * n))
            k('buffer_load_dwordx4 v%d, s[%d:%d], s%d offen sc1 lds' % (V_AD, R_WS, R_WS + 3, 67 if n else base), tag='a')
            if not count: k.vm.pop()
    def a_issue():
        k('s_load_dwordx8 s[16:23], s[%d:%d], s%d' % (R_WS, R_WS + 1, S_AC))
        k('s_load_dwordx8 s[24:31], s[%d:%d], s%d offset:512' % (R_WS, R_WS + 1, S_AC))
        k('s_add_u32 s67, s%d, s%d' % (S_AC, S_A3))
        k('s_load_dwordx8 s[32:39], s[%d:%d], s67' % (R_WS, R_WS + 1))
    def late_a():
        G.spoll_loop(a_issue, 16, 24, S_AC, S_AE, FA_RS, lambda: G.poll(1, V_FA, 's%d' % S_FA), sleep=opt.get('asleep', 4))
        k('s_waitcnt vmcnt(0)')
        a_dma(S_AT, False)
    epq = []; mq = []
    NAT = opt.get('nat', 0)
    GB = opt.get('gapb', 48)
    st8 = {'n': NPRE, 'h': 0, 'ok': 5 if opt.get('nohchk') else -1}
    def cost(f):
        t = f[0] if isinstance(f, tuple) else f
        return 8 if t.startswith(('v_exp', 'v_rcp')) else 4
    def vm1(n):
        nv = 0; used = 0
        while mq and nv < n:
            f = mq.pop(0); emit_list(k, [f]); used += 4
            if isinstance(f, tuple): nv += 1
        return used
    def gap(used):
        used += vm1(opt.get('vper', 1))
        while epq and used + cost(epq[0]) <= GB:
            f = epq.pop(0); emit_list(k, [f]); used += cost(f)
    FAT = [opt.get('f0at', 15), opt.get('f1at', 20), opt.get('f2at', 24)]
    RB_, RL = opt.get('rb', 2), opt.get('rl', 1)
    RAT = []
    for a_ in (opt.get('r0at', 19), opt.get('r1at', 23), opt.get('r2at', 28)): RAT += [a_, a_ + RB_]
    PWAT, AAT = opt.get('pwat', 15), opt.get('aat', 33)
    HL = opt.get('hl', 12) // KS
    assert HL <= HN and RL <= RB_ and RAT[0] - RL >= 17 and RAT[5] <= AAT - 2
    def younger(a, b):
        ia = max(i for i, t in enumerate(k.vm) if t == a); ib = max(i for i, t in enumerate(k.vm) if t == b)
        return a if ia > ib else b
    def flush_for(tag):
        while any(isinstance(f, tuple) and f[1] == tag for f in mq): vm1(1)
    def hq(upto, free=99):
        while st8['h'] < min(NP, upto) and ((KS * st8['h']) >> 3) <= st8['ok'] and (Hr0(st8['h'], KS - 1) - XF) // 4 < free:
            mq.extend(hload(st8['h'])); st8['h'] += 1
    def sync(i, lg):
        flush_for('S%d' % i)
        tg = 'S%d' % i
        for r in range(3):
            if FAT[r] == i:
                while any(isinstance(f, tuple) and f[1] == 'hst%d' % r for f in epq): emit_list(k, take(epq, 1))
                tg = younger(tg, 'hst%d' % r)
        chk = [q for q in range(6) if RAT[q] == i and not opt.get('nohchk')]
        HSC = opt.get('hs', 1)
        for q in chk:
            if HSC: lg = 'all'
            else: tg = younger(tg, 'ph%d' % q)
        if i == AAT and not opt.get('noa'): tg = younger(tg, 'fa')
        if i == 17 and not opt.get('noa'): G.poll(1, VFW, 's%d' % S_FW, first='pw')
        k.wait(vm=tg, lg=lg)
        k('s_barrier')
        if i < 10: G.pr(301, i)
        elif i < 20: G.pr(302, i - 10)
        elif i < 30: G.pr(300, i - 20)
        if i >= 30: G.pr(303, i - 30)
        for n_, at in ((1, 0), (2, 10), (3, 15), (4, 20), (5, 25), (6, 30), (7, 34)):
            if i == at: G.ts(n_)
        for r in range(3):
            if FAT[r] == i: hflag(r)
        upto = max(min(i + LA_ - 1, i + 3), min(4, i + LA_))
        while st8['n'] < 35 and st8['n'] <= upto:
            mq.extend(dma(st8['n'])); st8['n'] += 1
        if i == NAT and NAT > 0: k('s_load_dword s%d, s[%d:%d], 0' % (S_NONCE, P_DBG, P_DBG + 1))
        if i == NAT + (3 if NAT else 1):
            G.snonce(1, V_NON, first=1)
            k('v_mov_b32 v%d, s%d' % (V_NON, S_NONCE))
        for q in chk:
            if HSC:
                G.s_allok(16, 4)
                G.slow('scc1', lambda: h_slow(q, 1))
            else:
                G.poll_cmp(1, [0])
                G.slow('scc0', lambda: h_slow(q))
            st8['ok'] = max(st8['ok'], q)
        if i == PWAT and not opt.get('noa'): mq.insert(0, ('buffer_load_dword v1, v%d, s[%d:%d], s%d offen sc1' % (VFW, R_WS, R_WS + 3, S_FW), 'pw'))
        for q in range(6):
            if RAT[q] - RL == i and not opt.get('nohchk') and HSC:
                k('s_load_dwordx4 s[16:19], s[%d:%d], s%d offset:%d' % (R_WS, R_WS + 1, S_FC2 if q & 1 else S_FC, 256 * (q >> 1)))
            elif RAT[q] - RL == i and not opt.get('nohchk'):
                k('buffer_load_dword v1, v%d, s[%d:%d], s%d offen offset:%d sc1' % (VFH, R_WS, R_WS + 3, S_FC2 if q & 1 else S_FC, 256 * (q >> 1)), tag='ph%d' % q)
        if i == opt.get('gat', 29): mq.insert(0, ('buffer_load_dwordx2 v[30:31], v%d, s[%d:%d], s%d offen sc1' % (V_G, R_WS, R_WS + 3, S_GG), 'g'))
        if i == AAT - 2 and not opt.get('noa'): k('buffer_load_dword v1, v%d, s[%d:%d], s%d offen sc1' % (V_FA, R_WS, R_WS + 3, S_FA), tag='fa')
        if i == AAT and not opt.get('noa'):
            assert st8['n'] == 35
            flush_for('S34')
            G.poll_cmp(1, [0])
            k('s_cselect_b32 s%d, 1, 0' % S_AD)
            k('s_cselect_b32 s64, s%d, s%d' % (S_AT, S_V))
            a_dma(64, True)
    if NAT == 0: k('s_load_dword s%d, s[%d:%d], 0' % (S_NONCE, P_DBG, P_DBG + 1))
    sync(0, None)
    pend = None
    for i in range(20):
        typ, z, r = seq[i]
        base = 16384 * (i % 5)
        for s in range(4):
            used = 8
            if pend is not None:
                if s % 2 == 0: k.wait(lg='w1%d' % (s + 1)); used += 4
                k(pend[s])
            if typ == 'W': emit_list(k, wread(i, 0, s))
            else:
                for s2 in (2 * s, 2 * s + 1):
                    if base >= 65536:
                        k('v_add_u32 v%d, 0x10000, v%d' % (XT + s2 % 4, XA + s2))
                        k('ds_read_b128 %s, v%d' % (vr(XF + 4 * (8 * z + s2), 4), XT + s2 % 4), tag='x%d' % i)
                    else:
                        k('ds_read_b128 %s, v%d offset:%d' % (vr(XF + 4 * (8 * z + s2), 4), XA + s2, base), tag='x%d' % i)
            gap(used)
        pend = None
        prevx = 'x%d' % (i - 1) if (i > 0 and seq[i - 1][0] == 'X') else None
        if typ == 'X':
            emit_list(k, take(mq, 1000))
            sync(i + 1, prevx)
            continue
        if z == 0 and r > 0: epq.extend(epi(r - 1))
        for s in range(4):
            if s % 2 == 0: k.wait(lg='w0%d' % (s + 1))
            k(mfma(i, 0, s))
            if s < 2:
                emit_list(k, wread(i, 1, 2 * s) + wread(i, 1, 2 * s + 1))
                gap(20 if (z or s) else 1000)
            elif s == 2:
                sync(i + 1, None)
                if r == 2: hq(HL, 8 * z)
            else:
                gap(4)
        pend = [mfma(i, 1, s) for s in range(4)]
        if i in (14, 19): emit_list(k, take(epq, 1000))
    D = opt.get('vd', 12 if KS == 1 else 5)
    WP = opt.get('wp', 4 if KS == 1 else 2)
    NB = len(WBUF)
    assert D <= NB - 2
    def vread(n):
        off = 1024 * (f0(n) % 80)
        return ('ds_read_b128 %s, v%d offset:%d' % (vr(WBUF[n % NB], 4), VRH if off >= 0x8000 else VR, off - 0x8000 if off >= 0x8000 else off), 'v%d' % n)
    slot_of = lambda n: 20 + (f0(n) + 5 * (KS - 1)) // 16
    assert all(slot_of(n) == 20 for n in range(D))
    for s in range(4):
        if s % 2 == 0: k.wait(lg='w1%d' % (s + 1))
        k(pend[s])
        emit_list(k, [vread(n) for n in range(D * s // 4, D * (s + 1) // 4)])
        vm1(2)
    epq.extend(epi(2))
    EP2 = opt.get('ep2', 3) * KS
    AM = NST - opt.get('am', 6) // KS
    fast = opt.get('fastfin')
    AE = opt.get('ae', 0)
    AR = 64
    ga = [244 + 2 * i for i in range(6)] + [84 + 2 * i for i in range(4)]
    def rnd(x):
        return ['v_cvt_pk_bf16_f32 v%d, v%d, v%d' % (x + 1, x, x + 1), 'v_lshlrev_b32 v%d, 16, v%d' % (x, x + 1), 'v_and_b32 v%d, 0xffff0000, v%d' % (x + 1, x + 1)]
    def a_unpack():
        o = []
        for q in range(10):
            t = ga[q]
            o += ['v_lshlrev_b32 v%d, 16, v%d' % (t, AR + q), 'v_and_b32 v%d, 0xffff0000, v%d' % (t + 1, AR + q)]
            if not fast: o += ['v_mul_f32 v%d, v30, v%d' % (t, t), 'v_mul_f32 v%d, v30, v%d' % (t + 1, t + 1)] + rnd(t)
        return o
    def a_meet(lg):
        hq(NP); emit_list(k, take(mq, 1000))
        if not opt.get('noa'):
            k('s_cmp_lg_u32 s%d, 0' % S_AD)
            G.slow('scc0', late_a)
        k.wait(vm='all', lg=lg)
        k('s_barrier')
        G.pr(303, 8)
        for sb in range(5):
            k('ds_read_b64_tr_b16 %s, v%d offset:%d' % (vr(AR + 2 * sb, 2), V_AR, (sb & 1) * 8192 + (sb >> 1) * 1024), tag='ar')
    poff = lambda sub: 16384 + 1024 * sub if sub < 4 else 3072
    synced = 20
    tail0 = []
    for n in range(NST):
        p, sub = n // 5, n % 5
        if n + D < NST and slot_of(n + D) > synced:
            synced += 1
            assert f0(n) >= 16 * (synced - 21), (n, synced)
            sync(synced, None)
            if synced == 31 and OSTR != 160:
                for n_ in range(3):
                    epq.extend(['v_add_u32 v26, %d, v0' % (64 * n_), 'v_mul_u32_u24 v26, 205, v26', 'v_lshrrev_b32 v26, 11, v26',
                                'v_mul_u32_u24 v26, %d, v26' % (OSTR - 160), 'v_add_u32 v%d, v26, v%d' % (VW + n_, VV)])
            if synced == 33:
                if not opt.get('noa'): G.poll(30, V_G, 's%d' % S_GG, n=2, first='g', which=[1])
                epq.extend(['v_sub_f32 v28, 1.0, v30', 'v_cvt_pk_bf16_f32 v28, v28, v28', 'v_lshlrev_b32 v28, 16, v28', 'v_mov_b32 v29, v28', 'v_mov_b32 v31, v30'])
                if KS == 2: epq.append('v_xor_b32 v%d, 0x2000, v%d' % (VFW, VV))
        if KS == 1 or AE:
            if n == AM: a_meet(None)
            if n == min(AM + 5 // KS, NST - 1):
                k.wait(lg='ar'); epq.extend(a_unpack())
        hq(p + HL)
        lgt = 'v%d' % min(n + WP - 1, NST - 1) if n % WP == 0 else None
        if sub == 0 and own(p): assert not epq
        if sub == 0 and not own(p):
            flush_for('H%d' % p)
            k.wait(vm='H%d' % p, lg=lgt)
        elif lgt: k.wait(lg=lgt)
        for T in reversed(range(KS)):
            c = '0' if p == 0 else vr(A2(T, sub), 4)
            mm = 'v_mfma_f32_16x16x32_bf16 %s, %s, %s, %s' % (vr(A2(T, sub), 4), vr(WBUF[n % NB], 4), vr(Hr(p, T), 4), c)
            if KS == 2 and T == 0 and p == NP - 1: tail0.append(mm); continue
            k(mm)
            if T == KS - 1 and n + D < NST: emit_list(k, [vread(n + D)])
        if KS == 2 or n % 2 == 0: vm1(1)
        if n >= 2: emit_list(k, take(epq, EP2))
    emit_list(k, take(epq, 1000))
    PB = HB
    if opt.get('park'): G.cut('gemm_t1')
    if KS == 2:
        for sub in range(5):
            k(tail0[sub])
            if sub >= 2: k('ds_write_b128 v%d, %s offset:%d' % (VV, vr(A2(1, sub - 2), 4), poff(sub - 2)))
        for sub in (3, 4): k('ds_write_b128 v%d, %s offset:%d' % (VV, vr(A2(1, sub), 4), poff(sub)))
        if AE:
            k.wait(lg='all'); k('s_barrier')
        else: a_meet('all')
        for sub in range(5):
            k('ds_read_b128 %s, v%d offset:%d' % (vr(PB + 4 * sub, 4), VFW, poff(sub)), tag='pp%d' % sub)
        if not AE:
            k.wait(lg='ar')
            emit_list(k, a_unpack())
    if opt.get('park'): G.cut('gemm_t2')
    G.ts(8)
    G.pr(303, 5)
    OST = 32768
    for sub in range(5):
        if KS == 2: k.wait(lg='pp%d' % sub)
        for hf in range(2):
            x = A2(0, sub) + 2 * hf; t = ga[2 * sub + hf]
            if KS == 2: k('v_pk_add_f32 %s, %s, %s' % (vr(x, 2), vr(x, 2), vr(PB + 4 * sub + 2 * hf, 2)))
            if fast:
                k('v_pk_mul_f32 %s, %s, v[28:29]' % (vr(x, 2), vr(x, 2)))
                k('v_pk_fma_f32 %s, %s, v[30:31], %s' % (vr(x, 2), vr(t, 2), vr(x, 2)))
            else:
                emit_list(k, rnd(x))
                k('v_pk_mul_f32 %s, %s, v[28:29]' % (vr(x, 2), vr(x, 2)))
                emit_list(k, rnd(x))
                k('v_pk_add_f32 %s, %s, %s' % (vr(x, 2), vr(x, 2), vr(t, 2)))
            k('v_cvt_pk_bf16_f32 v%d, v%d, v%d' % (AR + 2 * sub + hf, x, x + 1))
        k('ds_write_b64 v%d, %s offset:%d' % (V_OW, vr(AR + 2 * sub, 2), OST + 32 * sub))
    G.pr(303, 6)
    for n in range(3):
        k('ds_read_b128 %s, v%d offset:%d' % (vr(200 + 4 * n, 4), VV if OSTR == 160 else VW + n, OST + 1024 * n), tag='o%d' % n)
    for n in range(3):
        k.wait(lg='o%d' % n)
        if n == 2: k('s_mov_b32 exec_hi, 0')
        k('buffer_store_dwordx4 %s, v%d, s[%d:%d], s%d offen sc1' % (vr(200 + 4 * n, 4), V_OS + n, R_O, R_O + 3, S_OUT))
    k('s_mov_b64 exec, -1')
    G.pr(303, 7)
    G.ts(9)
    G.ts_store()
    G.calib()
    k('s_endpgm')
```

```python
import sys, math
from kgen import *
KNAME = 'gated_mix__ssm_conv_s4__dense_activation_silu__prompt_kernel'

WS_UT, WS_AT, WS_H, WS_W2P, WS_G = 0x000000, 0x300000, 0x600000, 0xC00000, 0xE00000
WS_FH, WS_FU, WS_FW, WS_FA, WS_TS = 0xE80000, 0xE10000, 0xE28000, 0xF00000, 0xE30000
import os
NREP = int([a.split('=')[1] for a in sys.argv if a.startswith('nrep=')][0]) if any(a.startswith('nrep=') for a in sys.argv) else 8
FU_RS, FA_RS, FH_RS = 0x1000, 0x4000, 0x10000
WS_SZ = 0x1000000
LOG2E = 1.4426950408889634
INV2PI = 0.15915494309189535

S_WG, S_WAVE, S_M, S_RHO, S_J, S_NONCE, S_TMO = 2, 3, 4, 5, 6, 7, 8
P_U, P_ARE, P_AIM, P_BRE, P_BIM, P_CRE, P_CIM, P_LDT = 16, 18, 20, 22, 24, 26, 28, 30
P_DSK, P_BX, P_W1, P_W2, P_GW, P_OUT, P_DBG, P_WS = 32, 34, 36, 38, 40, 42, 44, 46
R_WS, R_U, R_W, R_O = 48, 52, 56, 60
S_TS = 80
CBS = 17664
KO, UX = 4576, 9216
UY = UX + 4224

DOC = """;
"""
def emit_list(k, lst):
    for f in lst:
        if isinstance(f, tuple): k(f[0], tag=f[1])
        else: k(f)

class Gen:
    def __init__(self, opt):
        self.k = K()
        self.opt = opt
        self.marks = []
        self.role = 0
    def mark(self, name):
        self.marks.append((name, len(self.k.items)))
    def cut(self, name):
        self.k('s_branch L_%s' % name)
        self.mark(name)
        self.k.label('L_%s' % name)
    def slow(self, cond, body):
        k = self.k
        S = k.newlabel('L_slow'); B = k.newlabel('L_back')
        k('s_cbranch_%s %s' % (cond, S))
        k.cold_begin()
        k.label(S)
        body()
        k('s_nop 4')
        k('s_branch %s' % B)
        k.cold_end()
        k.label(B)
    def srd_tail(self, r, size):
        self.k('s_mov_b32 s%d, 0x%x' % (r + 2, size))
        self.k('s_mov_b32 s%d, 0x20000' % (r + 3))
    def srd_base(self, r, p):
        self.k('s_mov_b64 s[%d:%d], s[%d:%d]' % (r, r + 1, p, p + 1))
    def ts(self, i):
        if self.opt.get('hp') == 100 * self.role + i: self.k('s_memrealtime s[96:97]')
        if self.opt.get('ts') and not self.opt.get('probe') and not (self.opt.get('early') and i in (1, 3, 4)):
            self.k('%s s[%d:%d]' % ('s_memtime' if self.opt.get('cyc') else 's_memrealtime', S_TS + 2 * i, S_TS + 2 * i + 1))
    def pr(self, key, i):
        if self.opt.get('probe') == key:
            self.k('s_memtime s[%d:%d]' % (S_TS + 2 * i, S_TS + 2 * i + 1))
    def ts_init(self):
        if self.opt.get('hp') == 100 * self.role: self.k('s_mov_b32 s96, s10')
        if self.opt.get('hp') == 100 * self.role + 50: self.k('s_memrealtime s[96:97]')
        if self.opt.get('ts'):
            for i in range(10):
                if self.opt.get('early') and i in (1, 3, 4): continue
                self.k('s_mov_b32 s%d, s%d' % (S_TS + 2 * i, 100 if self.opt.get('cyc') else 10))
    def ets(self, i):
        if self.opt.get('early'): self.k('s_memtime s[%d:%d]' % (S_TS + 2 * i, S_TS + 2 * i + 1))
    def ts_store(self):
        if self.opt.get('hp', 0) // 100 == self.role:
            k = self.k
            L = k.newlabel('L_hp')
            k('s_waitcnt vmcnt(0) lgkmcnt(0)')
            k('s_sub_u32 s96, s96, s%d' % S_NONCE)
            if self.opt.get('hmul'): k('s_mul_i32 s96, s96, %d' % self.opt['hmul'])
            k('s_add_u32 s96, s96, 4000')
            k.label(L)
            k('s_memrealtime s[64:65]')
            k('s_waitcnt lgkmcnt(0)')
            k('s_sub_u32 s64, s64, s%d' % S_NONCE)
            k('s_cmp_lt_u32 s64, s96')
            k('s_cbranch_scc1 %s' % L)
        if not self.opt.get('ts'): return
        k = self.k
        k('s_waitcnt vmcnt(0) lgkmcnt(0)')
        k('s_xor_b32 s64, s%d, 256' % S_WG)
        k('s_lshl_b32 s64, s64, 2')
        k('s_add_u32 s64, s64, s%d' % S_WAVE)
        k('s_lshl_b32 s64, s64, 6')
        k('s_add_u32 s64, s64, 0x%x' % WS_TS)
        k('v_mov_b32 v1, 0')
        for i in range(10):
            k('v_mov_b32 v2, s%d' % (S_TS + 2 * i))
            k('buffer_store_dword v2, v1, s[%d:%d], s64 offen offset:%d' % (R_WS, R_WS + 3, 4 * i))
        k('s_waitcnt vmcnt(0)')
    def calib(self):
        if self.opt.get('calib'):
            k = self.k
            L = k.newlabel('L_cal')
            k.label(L)
            k('s_memrealtime s[64:65]')
            k('s_waitcnt lgkmcnt(0)')
            k('s_sub_u32 s64, s64, s%d' % S_NONCE)
            k('s_cmp_lt_u32 s64, %d' % self.opt['calib'])
            k('s_cbranch_scc1 %s' % L)
    def spin_tail(self, L, D):
        k = self.k
        k('s_cbranch_scc1 %s' % D)
        k('s_sleep %d' % self.opt.get('sleep', 2))
        k('s_sub_u32 s%d, s%d, 1' % (S_TMO, S_TMO))
        k('s_cmp_lg_u32 s%d, 0' % S_TMO)
        k('s_cbranch_scc1 %s' % L)
        k.label(D)
    def nonce_issue(self, vt, vz, tag):
        k = self.k
        k('v_mov_b32 %s, 0' % vr(vz))
        k('global_load_dword %s, %s, s[%d:%d] sc1' % (vr(vt), vr(vz), P_DBG, P_DBG + 1), tag=tag)
    def nonce_get(self, vt, vz, tag=None, waited=False):
        k = self.k
        L = k.newlabel('L_nonce'); D = k.newlabel('L_nonce_ok'); C = k.newlabel('L_nonce_chk')
        k('s_mov_b32 s%d, 0x%x' % (S_TMO, self.opt.get('tmo', 0x4000)))
        if not waited: k.wait(vm=tag)
        k('s_branch %s' % C)
        k.label(L)
        k('v_mov_b32 %s, 0' % vr(vz))
        k('global_load_dword %s, %s, s[%d:%d] sc1' % (vr(vt), vr(vz), P_DBG, P_DBG + 1)); k.vm.pop()
        k('s_waitcnt vmcnt(0)')
        k.label(C)
        k('v_readfirstlane_b32 s%d, %s' % (S_NONCE, vr(vt)))
        k('s_cmp_lg_u32 s%d, 0' % S_NONCE)
        self.spin_tail(L, D)
    def poll_issue(self, vt, vaddr, soff, tag, n=1):
        self.k('buffer_load_dword%s %s, %s, s[%d:%d], %s offen sc1' % ('x2' if n == 2 else '', vr(vt, n), vr(vaddr), R_WS, R_WS + 3, soff), tag=tag)
    def poll_cmp(self, vt, which):
        k = self.k
        k('v_cmp_ne_u32 vcc, s%d, %s' % (S_NONCE, vr(vt + which[0])))
        if len(which) == 2:
            k('v_cmp_ne_u32 s[78:79], s%d, %s' % (S_NONCE, vr(vt + which[1])))
            k('s_or_b64 vcc, vcc, s[78:79]')
        k('s_cmp_eq_u64 vcc, 0')
    def poll(self, vt, vaddr, soff, n=1, first=None, waited=False, which=None):
        k = self.k
        if which is None: which = list(range(n))
        def spin():
            L = k.newlabel('L_poll'); D = k.newlabel('L_poll_ok')
            k('s_mov_b32 s%d, 0x%x' % (S_TMO, self.opt.get('tmo', 0x4000)))
            k('s_mov_b64 vcc, -1')
            k.label(L)
            k('s_mov_b64 exec, vcc')
            self.poll_issue(vt, vaddr, soff, None, n); k.vm.pop()
            k('s_mov_b64 exec, -1')
            k('s_waitcnt vmcnt(0)')
            self.poll_cmp(vt, which)
            self.spin_tail(L, D)
        if first is not None:
            if not waited: k.wait(vm=first)
            self.poll_cmp(vt, which)
            self.slow('scc0', spin)
        else: spin()
    def snonce(self, vt, vz, first=0):
        k = self.k
        if not first: k('s_load_dword s%d, s[%d:%d], 0' % (S_NONCE, P_DBG, P_DBG + 1))
        k('s_waitcnt lgkmcnt(0)')
        k('s_cmp_lg_u32 s%d, 0' % S_NONCE)
        def more():
            D = k.newlabel('L_sn_ok')
            for i in range(1, 4):
                k('s_load_dword s%d, s[%d:%d], %d' % (S_NONCE, P_DBG, P_DBG + 1, 64 * i))
                k('s_waitcnt lgkmcnt(0)')
                k('s_cmp_lg_u32 s%d, 0' % S_NONCE)
                k('s_cbranch_scc1 %s' % D)
            k('v_mov_b32 %s, 0' % vr(vt))
            self.nonce_get(vt, vz, waited=True)
            k.label(D)
        self.slow('scc0', more)
        k('s_mov_b32 s0, s%d' % S_NONCE)
        k('s_mov_b32 s1, s%d' % S_NONCE)
    def s_allok(self, base, n):
        k = self.k
        for i in range(0, n, 2):
            k('s_xor_b64 s[%d:%d], s[%d:%d], s[0:1]' % (base + i, base + i + 1, base + i, base + i + 1))
        for i in range(2, n, 2):
            k('s_or_b64 s[%d:%d], s[%d:%d], s[%d:%d]' % (base, base + 1, base, base + 1, base + i, base + i + 1))
    def spoll_loop(self, issue, base, n, s_off, s_end, rs, fallback, sleep=0):
        k = self.k
        L = k.newlabel('L_sp'); D = k.newlabel('L_sp_ok'); F = k.newlabel('L_sp_fb')
        k.label(L)
        k('s_cmp_ge_u32 s%d, s%d' % (s_off, s_end))
        k('s_cbranch_scc1 %s' % F)
        issue()
        k('s_add_u32 s%d, s%d, %d' % (s_off, s_off, rs))
        k('s_waitcnt lgkmcnt(0)')
        self.s_allok(base, n)
        k('s_cbranch_scc0 %s' % D)
        if sleep: k('s_sleep %d' % sleep)
        k('s_branch %s' % L)
        k.label(F)
        fallback()
        k.label(D)
    def flag_store_rep(self, vt, vz, soff, rs, tag=None, nrep=None):
        k = self.k
        k('v_mov_b32 %s, s%d' % (vr(vt), S_NONCE))
        k('v_mul_u32_u24 %s, %d, v0' % (vr(vz), rs))
        k('s_mov_b64 exec, %d' % ((1 << (nrep or NREP)) - 1))
        k('buffer_store_dword %s, %s, s[%d:%d], %s offen sc1' % (vr(vt), vr(vz), R_WS, R_WS + 3, soff), tag=tag)
        k('s_mov_b64 exec, -1')
    def flag_store(self, vt, vz, soff, tag=None):
        k = self.k
        k('v_mov_b32 %s, s%d' % (vr(vt), S_NONCE))
        k('v_mov_b32 %s, 0' % vr(vz))
        k('s_mov_b64 exec, 1')
        k('buffer_store_dword %s, %s, s[%d:%d], %s offen sc1' % (vr(vt), vr(vz), R_WS, R_WS + 3, soff), tag=tag)
        k('s_mov_b64 exec, -1')

    def prologue(self):
        k = self.k
        k('s_load_dwordx16 s[16:31], s[0:1], 0')
        k('s_load_dwordx16 s[32:47], s[0:1], 64')
        k('s_memrealtime s[10:11]')
        if self.opt.get('cyc'): k('s_memtime s[100:101]')
        k('v_lshrrev_b32 v1, 6, v0')
        k('v_and_b32 v0, 63, v0')
        k('v_readfirstlane_b32 s%d, v1' % S_WAVE)
        k('s_cmp_ge_u32 s2, 512')
        k('s_cbranch_scc1 L_end')
        k('s_and_b32 s%d, s2, 255' % S_M)
        k('s_bfe_u32 s66, s2, 0x20001')
        k('s_bfe_u32 s67, s2, 0x30003')
        k('s_lshl3_add_u32 s%d, s66, s67' % S_RHO)
        k('s_and_b32 s66, s2, 1')
        k('s_bfe_u32 s67, s2, 0x20006')
        k('s_lshl2_add_u32 s%d, s66, s67' % S_J)
        self.srd_tail(R_WS, WS_SZ)
        self.srd_tail(R_U, 2048 * 640 * 2)
        if self.opt.get('ipf'):
            k('s_cmp_lg_u32 s%d, 0' % S_WAVE)
            k('s_cbranch_scc1 L_noipf')
            k('s_getpc_b64 s[64:65]')
            k('s_lshr_b32 s66, s2, 3')
            k('s_mul_i32 s66, s66, %d' % (self.opt['ipf'] * 128))
            k('v_lshlrev_b32 v1, 7, v0')
            k('v_add_u32 v1, s66, v1')
            k('s_mov_b64 exec, %d' % ((1 << self.opt['ipf']) - 1))
            k('global_load_dword v255, v1, s[64:65]')
            k('s_mov_b64 exec, -1')
            k.label('L_noipf')
        if self.opt.get('dly'):
            k('s_and_b32 s64, s2, 0x%x' % self.opt.get('dmask', 0x101))
            k('s_cmp_lg_u32 s64, 0x%x' % self.opt.get('dval', 1))
            k('s_cbranch_scc1 L_nodly')
            for _ in range(self.opt['dly']): k('s_sleep 127')
            k.label('L_nodly')
        k('s_cmp_ge_u32 s2, 256')
        k('s_cbranch_scc1 L_gemm')
        if self.opt.get('nossm'):
            k('s_cmp_eq_u32 s2, 128'); k('s_cbranch_scc1 L_idle'); k('s_endpgm')
        k('s_cmp_eq_u32 s%d, 3' % S_WAVE)
        k('s_cbranch_scc1 L_misc')
        if self.opt.get('hord'): k('s_branch L_chanh')

    def mtiles(self):
        return {0: [], 6: [0, 1, 2], 7: [0, 1, 3], 8: [0, 2, 3], 9: [1, 2, 3], 10: [0, 1, 2, 3]}[self.opt.get('mt', 8)]
    def conv_reads(self, sg, fb, va, vb, off=0, n=8):
        out = []
        for c in range(n):
            out.append('ds_read_b128 %s, v%d offset:%d' % (vr(fb + 4 * c, 4), va, off + 4032 - 512 * c - 64 * sg))
            out.append('ds_read_b64 %s, v%d offset:%d' % (vr(fb + 4 * n + 4 * c, 2), vb, off + 448 - 64 * sg + 512 * c))
            out.append('ds_read_b64 %s, v%d offset:%d' % (vr(fb + 4 * n + 2 + 4 * c, 2), vb, off + 448 - 64 * sg + 512 * c + 8))
        return out
    def conv_step(self, Y, fb, first, nx, tiles, n=8, per=1):
        k = self.k
        nx = list(nx)
        for c in range(8):
            for m in range(8 - c):
                if c + m not in tiles: continue
                cc = '0' if (first and c == 0) else vr(Y + 4 * (c + m), 4)
                k('v_mfma_f32_16x16x32_bf16 %s, %s, %s, %s' % (vr(Y + 4 * (c + m), 4), vr(fb + 4 * c, 4), vr(fb + 4 * n + 4 * m, 4), cc))
                emit_list(k, nx[:per]); nx = nx[per:]
        emit_list(k, nx)
    def tile_out(self, Y, tiles, tmp, vaddr, soff):
        o = []
        for i in tiles:
            o += ['v_cvt_pk_bf16_f32 v%d, v%d, v%d' % (tmp + 2 * i + rr, Y + 4 * i + 2 * rr, Y + 4 * i + 2 * rr + 1) for rr in range(2)]
            o.append('buffer_store_dwordx2 %s, v%d, s[%d:%d], %s offen offset:%d sc1' % (vr(tmp + 2 * i, 2), vaddr, R_WS, R_WS + 3, soff, 512 * i))
        return o
    def misc(self):
        k = self.k
        k.reset_counts()
        LT = 3 * CBS; LW = LT + 10240
        self.mark('misc_head')
        self.role = 3
        k.label('L_misc')
        self.ets(1)
        for i in range(5):
            k('v_add_u32 v1, %d, v0' % (64 * i))
            k('v_mul_u32_u24 v2, 205, v1')
            k('v_lshrrev_b32 v2, 11, v2')
            k('v_mul_u32_u24 v3, %d, v2' % (1280 - 160))
            k('v_lshl_add_u32 v%d, v1, 4, v3' % (10 + i))
        k('s_mul_i32 s64, s%d, %d' % (S_RHO, 64 * 1280))
        k('s_mul_i32 s65, s%d, 160' % S_J)
        k('s_add_u32 s64, s64, s65')
        k('s_add_u32 s65, s64, %d' % (32 * 1280))
        k('s_waitcnt lgkmcnt(0)')
        self.srd_base(R_U, P_U)
        for i in range(10):
            k('s_mov_b32 m0, %d' % (LT + 1024 * i))
            k('buffer_load_dwordx4 v%d, s[%d:%d], s%d offen lds' % (10 + i % 5, R_U, R_U + 3, 64 + i // 5), tag='T')
        self.ets(3)
        if not self.opt.get('whead'): self.cut('misc_main')
        self.ts_init()
        k('s_setprio %d' % self.opt.get('mprio', 3))
        self.srd_base(R_WS, P_WS)
        self.srd_base(R_W, P_W2)
        self.srd_tail(R_W, 1536 * 640 * 2)
        k('s_sub_u32 s66, s%d, 240' % S_M)
        k('s_mul_i32 s66, s66, 15')
        k('s_cmp_lt_u32 s%d, 240' % S_M)
        k('s_cselect_b32 s66, s%d, s66' % S_M)
        k('s_mul_i32 s67, s66, 205')
        k('s_lshr_b32 s67, s67, 10')
        k('s_mul_i32 s68, s67, 5')
        k('s_sub_u32 s68, s66, s68')
        k('s_mul_i32 s69, s67, %d' % (32 * 1280))
        k('s_lshl_b32 s70, s68, 8')
        k('s_add_u32 s69, s69, s70')
        k('v_lshrrev_b32 v1, 4, v0')
        k('v_and_b32 v2, 15, v0')
        k('v_mul_u32_u24 v1, 1280, v1')
        k('v_lshl_add_u32 v15, v2, 4, v1')
        def wdma():
            for i in range(8):
                k('s_mov_b32 m0, %d' % (LW + 1024 * i))
                k('buffer_load_dwordx4 v15, s[%d:%d], s69 offen lds' % (R_W, R_W + 3), tag='W')
                k('s_add_u32 s69, s69, %d' % (4 * 1280))
        WPOS = self.opt.get('wpos', 0)
        def pfbc():
            m_ = sum(1 << l for l in range(60) if l % 3)
            emit_list(k, ['v_mul_u32_u24 v7, 43, v0', 'v_lshrrev_b32 v7, 9, v7', 'v_mul_u32_u24 v7, %d, v7' % (3072 - 128 * 12), 'v_lshl_add_u32 v7, v0, 7, v7',
                 's_bfe_u32 s78, s2, 0x50003', 's_bfe_u32 s79, s2, 0x20001', 's_lshl_b32 s79, s79, 5', 's_add_u32 s78, s78, s79',
                 's_mul_i32 s78, s78, %d' % (5 * 3072), 's_and_b32 s79, s2, 1', 's_mul_i32 s79, s79, %d' % (128 * 12), 's_add_u32 s78, s78, s79',
                 'v_add_u32 v7, s78, v7', 's_mov_b32 exec_lo, 0x%x' % (m_ & 0xffffffff), 's_mov_b32 exec_hi, 0x%x' % (m_ >> 32),
                 'global_load_dword v255, v7, s[%d:%d]' % (P_W1, P_W1 + 1), 's_mov_b64 exec, -1'])
        if WPOS == 0: wdma()
        if self.opt.get('whead'): self.cut('misc_main')
        k('v_lshrrev_b32 v1, 4, v0')
        k('v_bfe_u32 v2, v0, 2, 2')
        k('v_and_b32 v3, 3, v0')
        k('v_lshl_add_u32 v4, v1, 3, v2')
        k('v_mul_u32_u24 v4, 160, v4')
        k('v_lshl_add_u32 v4, v3, 3, v4')
        k('v_add_u32 v18, %d, v4' % LT)
        k('v_and_b32 v5, 15, v0')
        k('v_lshlrev_b32 v5, 12, v5')
        k('v_lshl_add_u32 v19, v1, 4, v5')
        if self.opt.get('ufull'):
            LU = LW + 8192
            emit_list(k, ['v_and_b32 v5, 15, v0', 'v_and_b32 v6, 7, v0', 'v_xor_b32 v16, v1, v6', 'v_lshlrev_b32 v16, 4, v16', 'v_lshl_add_u32 v16, v5, 7, v16',
                          'v_xor_b32 v14, 64, v16', 'v_add_u32 v16, %d, v16' % LU, 'v_add_u32 v14, %d, v14' % LU,
                          'v_lshrrev_b32 v5, 3, v0', 'v_xor_b32 v17, v5, v6', 'v_lshlrev_b32 v17, 4, v17', 'v_lshl_add_u32 v17, v5, 7, v17', 'v_add_u32 v17, %d, v17' % LU,
                          'v_lshlrev_b32 v6, 4, v6', 'v_lshl_add_u32 v19, v5, 12, v6'])
        k('v_lshrrev_b32 v5, 1, v1')
        k('v_and_b32 v6, 1, v1')
        k('v_lshlrev_b32 v5, 4, v5')
        k('v_lshl_add_u32 v5, v6, 2, v5')
        k('v_add_u32 v5, v5, v2')
        k('v_lshlrev_b32 v5, 8, v5')
        k('v_lshl_add_u32 v5, v3, 3, v5')
        k('v_add_u32 v20, %d, v5' % LW)
        k('v_lshlrev_b32 v21, 4, v0')
        k('s_mul_i32 s72, s%d, %d' % (S_J, 80 * 4096))
        k('s_lshl_b32 s73, s%d, 7' % S_RHO)
        k('s_add_u32 s72, s72, s73')
        k('s_lshr_b32 s73, s%d, 3' % S_RHO)
        k('s_lshl2_add_u32 s73, s%d, s73' % S_J)
        k('s_lshl_b32 s73, s73, 5')
        k('s_and_b32 s74, s%d, 7' % S_RHO)
        k('s_add_u32 s73, s73, s74')
        k('s_lshl_b32 s73, s73, 2')
        k('s_add_u32 s77, s73, 0x%x' % WS_FU)
        if self.opt.get('ftouch'):
            k('v_mul_u32_u24 v9, %d, v0' % FU_RS)
            k('s_mov_b64 exec, %d' % ((1 << NREP) - 1))
            k('buffer_load_dword v8, v9, s[%d:%d], s77 offen' % (R_WS, R_WS + 3))
            k('s_mov_b64 exec, -1')
        k.wait(vm='T')
        self.ts(1)
        if self.opt.get('mstop') == 1: k('s_endpgm')
        for dl in range(5):
            for z in range(2):
                b = 24 + 8 * dl + 4 * z
                for e in range(2):
                    k('ds_read_b64_tr_b16 %s, v18 offset:%d' % (vr(b + 2 * e, 2), (32 * z + 4 * e) * 160 + 32 * dl), tag='t%d' % dl)
        if self.opt.get('ufull'):
            for dl in range(5):
                k.wait(lg='t%d' % dl)
                for z in range(2):
                    k('ds_write_b128 v%d, %s offset:%d' % (14 if z else 16, vr(24 + 8 * dl + 4 * z, 4), 2048 * dl))
            for i in range(10):
                k('ds_read_b128 %s, v17 offset:%d' % (vr(96 + 4 * i, 4), 1024 * i), tag='uf%d' % i)
            for i in range(10):
                k.wait(lg='uf%d' % i)
                k('buffer_store_dwordx4 %s, v19, s[%d:%d], s72 offen sc1' % (vr(96 + 4 * i, 4), R_WS, R_WS + 3), tag='Tst')
                k('s_add_u32 s72, s72, %d' % (8 * 4096))
        else:
            for dl in range(5):
                k.wait(lg='t%d' % dl)
                for z in range(2):
                    k('buffer_store_dwordx4 %s, v19, s[%d:%d], s72 offen offset:%d sc1' % (vr(24 + 8 * dl + 4 * z, 4), R_WS, R_WS + 3, 64 * z), tag='Tst')
                k('s_add_u32 s72, s72, %d' % (16 * 4096))
        if self.opt.get('pfs') == 1: pfbc()
        if WPOS == 1: wdma()
        self.snonce(8, 9)
        def uflag():
            k.wait(vm='Tst')
            self.flag_store_rep(8, 9, 's77', FU_RS)
            self.ts(2)
        uflag()
        if self.opt.get('mstop') == 2: k('s_endpgm')
        if self.opt.get('pfs') == 2: pfbc()
        if WPOS == 2: wdma()
        k('s_waitcnt vmcnt(0)')
        for fr in range(8):
            for e in range(2):
                k('ds_read_b64_tr_b16 %s, v20 offset:%d' % (vr(64 + 4 * fr + 2 * e, 2), 8 * e * 256 + 32 * fr), tag='w%d' % fr)
        k('s_mul_i32 s74, s67, 43')
        k('s_lshr_b32 s74, s74, 8')
        k('s_mul_i32 s75, s74, 6')
        k('s_sub_u32 s75, s67, s75')
        k('s_lshr_b32 s76, s75, 1')
        k('s_mul_i32 s76, s76, 14')
        k('s_add_u32 s76, s76, s75')
        k('s_lshl1_add_u32 s76, s74, s76')
        for fr in range(8):
            k('s_lshl_b32 s73, s68, 3')
            k('s_add_u32 s73, s73, %d' % fr)
            k('s_mul_i32 s74, s73, 205')
            k('s_lshr_b32 s74, s74, 10')
            k('s_mul_i32 s75, s74, 235')
            k('s_add_u32 s75, s75, s73')
            k('s_lshl_b32 s74, s74, 1')
            k('s_xor_b32 s74, s74, s76')
            k('s_mul_i32 s74, s74, 5')
            k('s_add_u32 s75, s75, s74')
            k('s_lshl_b32 s75, s75, 10')
            k('s_add_u32 s75, s75, 0x%x' % WS_W2P)
            k.wait(lg='w%d' % fr)
            k('buffer_store_dwordx4 %s, v21, s[%d:%d], s75 offen sc1' % (vr(64 + 4 * fr, 4), R_WS, R_WS + 3), tag='Wst')
        k('s_lshl_b32 s73, s68, 6')
        k('s_add_u32 s73, s73, s67')
        k('s_lshl_b32 s73, s73, 2')
        k('s_add_u32 s73, s73, 0x%x' % WS_FW)
        k('s_mul_i32 s60, s%d, 3' % S_M)
        k('s_lshl_b32 s61, s%d, 1' % S_M)
        k('s_add_u32 s61, s61, 128')
        k('s_cmp_lt_u32 s%d, 128' % S_M)
        k('s_cselect_b32 s60, s60, s61')
        k('s_cselect_b32 s61, 3, 2')
        k('v_lshrrev_b32 v1, 4, v0')
        k('v_min_u32 v1, 2, v1')
        k('v_mul_u32_u24 v22, %d, v1' % CBS)
        k('v_and_b32 v2, 15, v0')
        k('v_lshl_add_u32 v1, v2, 2, v22')
        k('v_mov_b32 v2, 0')
        k('ds_write_b32 v1, v2 offset:%d' % UX)
        k('ds_write_b32 v1, v2 offset:%d' % UY)
        k('v_bfe_u32 v1, v0, 3, 2')
        k('v_and_b32 v23, 7, v0')
        k('v_lshlrev_b32 v23, 2, v23')
        k('v_lshl_add_u32 v23, v1, 7, v23')
        emit_list(k, ['v_and_b32 v6, 1, v0', 'v_cmp_eq_u32 vcc, 1, v6', 'v_and_b32 v6, 15, v0', 'v_lshrrev_b32 v7, 4, v0', 'v_lshlrev_b32 v7, 4, v7',
               'v_lshrrev_b32 v5, 1, v6', 'v_lshlrev_b32 v5, 6, v5', 'v_sub_u32 v5, v7, v5',
               'v_mov_b32 v2, %d' % (448 + KO), 'v_mov_b32 v3, 448', 'v_cndmask_b32 v2, v2, v3, vcc', 'v_add_u32 v2, v5, v2',
               'v_lshl_add_u32 v5, v6, 2, v7', 'v_mov_b32 v3, %d' % UY, 'v_mov_b32 v4, %d' % (UX + 4),
               'v_cndmask_b32 v3, v3, v4, vcc', 'v_add_u32 v3, v5, v3', 'v_lshlrev_b32 v4, 3, v0'])
        def u_issue():
            for i in range(4):
                k('s_load_dwordx8 s[%d:%d], s[%d:%d], s62 offset:%d' % (16 + 8 * i, 23 + 8 * i, R_WS, R_WS + 1, 128 * i))
        k('s_mul_i32 s64, s60, 205')
        k('s_lshr_b32 s64, s64, 14')
        k('s_add_u32 s65, s60, s61')
        k('s_sub_u32 s65, s65, 1')
        k('s_mul_i32 s65, s65, 205')
        k('s_lshr_b32 s65, s65, 14')
        if self.opt.get('wflag1'):
            k.wait(vm='Wst')
            self.flag_store(8, 9, 's73')
            if self.opt['wflag1'] == 2: k('s_waitcnt vmcnt(0)')
        k.label('L_ugrp')
        k('s_lshl_b32 s9, s64, 9')
        k('s_add_u32 s9, s9, 0x%x' % WS_FU)
        k('s_mov_b32 s62, s9')
        k('s_add_u32 s63, s9, %d' % (NREP * FU_RS))
        self.spoll_loop(u_issue, 16, 32, 62, 63, FU_RS, lambda: self.poll(24, 23, 's9'), sleep=self.opt.get('ssleep', 2))
        k('s_add_u32 s64, s64, 1')
        k('s_cmp_le_u32 s64, s65')
        k('s_cbranch_scc1 L_ugrp')
        self.ts(5)
        k.wait(vm='Wst')
        k('s_lshl_b32 s64, s60, 12')
        for c in range(3):
            if c == 2:
                k('s_cmp_lt_u32 s61, 3')
                k('s_cbranch_scc1 L_u2')
            k('s_add_u32 s65, s64, 4')
            k('s_mov_b32 m0, %d' % (c * CBS + UX + 64))
            for i in range(4):
                k('buffer_load_dwordx4 v21, s[%d:%d], s64 offen offset:%d sc1 lds' % (R_WS, R_WS + 3, 1024 * i))
            k('s_mov_b32 m0, %d' % (c * CBS + UY + 64))
            for i in range(4):
                k('buffer_load_dwordx4 v21, s[%d:%d], s65 offen offset:%d sc1 lds' % (R_WS, R_WS + 3, 1024 * i))
            k('s_add_u32 s64, s64, 4096')
        k.label('L_u2')
        if not self.opt.get('wflag1'): self.flag_store(8, 9, 's73')
        self.ts(7)
        k('s_waitcnt vmcnt(%d)' % (0 if self.opt.get('wflag1') else 1))
        k('ds_read_b32 v1, v22 offset:%d' % (UX + 64))
        k('s_waitcnt lgkmcnt(0)')
        k('ds_write_b32 v22, v1 offset:%d' % (UY + 60))
        k('s_waitcnt lgkmcnt(0)')
        self.ts(6)
        k('s_barrier')
        if self.opt.get('mstop') == 3: k('s_endpgm')
        MT = self.mtiles()
        k('s_setprio %d' % self.opt.get('mvprio', 0))
        k('s_lshl_b32 s64, s60, 12')
        k('s_add_u32 s64, s64, 0x%x' % WS_AT)
        if MT:
            FBm = [96, 128, 160]
            steps = [(c, sg) for c in range(3) for sg in range(8)]
            tagged = lambda i: [(l, 'cs%d' % i) for l in self.conv_reads(steps[i][1], FBm[i % 3], 2, 3, CBS * steps[i][0], 4)]
            emit_list(k, tagged(0) + tagged(1))
            wq = []
            for i, (c, sg) in enumerate(steps):
                Ym = 32 + 16 * (c % 2)
                if c == 2 and sg == 0:
                    k('s_cmp_lt_u32 s61, 3')
                    k('s_cbranch_scc1 L_m2')
                k.wait(lg='cs%d' % i)
                nx = tagged(i + 2) if i + 2 < len(steps) else []
                if sg == 1: nx = nx + wq; wq = []
                self.conv_step(Ym, FBm[i % 3], sg == 0, nx, MT, 4, 2)
                if sg == 7:
                    wq = self.tile_out(Ym, MT, 64 + 8 * c, 4, 's64') + ['s_add_u32 s64, s64, 4096']
                    if c == 1: w1 = list(wq)
            k('s_setprio 3')
            emit_list(k, wq)
            k('s_branch L_m3')
            k.label('L_m2')
            k.pad(8)
            emit_list(k, w1)
            k.label('L_m3')
        self.ts(3)
        k('v_and_b32 v8, 3, v0')
        k('v_cmp_gt_u32 vcc, s61, v8')
        k('v_add_u32 v8, s60, v8')
        k('v_lshrrev_b32 v9, 3, v8')
        k('v_and_b32 v8, 7, v8')
        k('v_lshlrev_b32 v8, 2, v8')
        k('v_lshl_add_u32 v8, v9, 7, v8')
        k('v_lshrrev_b32 v9, 2, v0')
        k('v_mul_u32_u24 v9, %d, v9' % FA_RS)
        k('v_add_u32 v8, v8, v9')
        k('v_mov_b32 v9, s%d' % S_NONCE)
        k('s_and_b32 s66, vcc_lo, 0x%x' % ((1 << (4 * NREP)) - 1))
        k('s_mov_b32 s67, 0')
        k('s_mov_b32 s65, 0x%x' % WS_FA)
        if self.opt.get('park'): self.cut('misc_end')
        k('s_waitcnt vmcnt(0) lgkmcnt(0)')
        k('s_barrier')
        k('s_mov_b64 exec, s[66:67]')
        k('buffer_store_dword v9, v8, s[%d:%d], s65 offen sc1' % (R_WS, R_WS + 3))
        k('s_mov_b64 exec, -1')
        if self.opt.get('park') and self.opt.get('ts'): self.cut('misc_end2')
        self.ts(4)
        self.ts_store()
        k('s_endpgm')
        self.mark('idle')
        k.label('L_idle')
        k('s_cmp_lg_u32 s2, %d' % self.opt.get('nwg', 128))
        k('s_cbranch_scc1 L_end')
        k('s_cmp_lg_u32 s%d, 2' % S_WAVE)
        k('s_cbranch_scc1 L_end')
        k('v_lshlrev_b32 v2, 6, v0')
        k('s_waitcnt lgkmcnt(0)')
        k('s_or_b32 s10, s10, 1')
        k('v_mov_b32 v1, s10')
        k('s_mov_b64 exec, 15')
        k('global_store_dword v2, v1, s[%d:%d] sc1' % (P_DBG, P_DBG + 1))
        if self.opt.get('latprobe'):
            ptr = {1: P_BX, 2: P_WS, 3: P_BX}[self.opt['latprobe']]
            k.label('L_lp0')
            k('s_memrealtime s[64:65]')
            k('s_waitcnt lgkmcnt(0)')
            k('s_sub_u32 s64, s64, s10')
            k('s_cmp_lt_u32 s64, 3500')
            k('s_cbranch_scc1 L_lp0')
            k('v_mov_b32 v2, 0x%x' % (0x100000 if ptr == P_BX else 0x8000000))
            k('s_memtime s[70:71]')
            k('global_load_dword v3, v2, s[%d:%d]' % (ptr, ptr + 1))
            k('s_waitcnt vmcnt(0)')
            k('s_memtime s[66:67]')
            k('s_waitcnt lgkmcnt(0)')
            for i in range(4):
                k('v_add_u32 v2, 0x3480, v2')
                k('global_load_dword v3, v2, s[%d:%d]' % (ptr, ptr + 1))
                k('s_waitcnt vmcnt(0)')
            k('s_memtime s[68:69]')
            k('s_waitcnt lgkmcnt(0)')
            if self.opt['latprobe'] == 3:
                k('s_sub_u32 s68, s66, s70')
            else:
                k('s_sub_u32 s68, s68, s66')
                k('s_lshr_b32 s68, s68, 2')
            k('v_mov_b32 v1, s68')
            k('v_mov_b32 v2, 0')
            k('global_store_dword v2, v1, s[%d:%d] offset:16' % (P_DBG, P_DBG + 1))
            k('s_add_u32 s68, s68, 4000')
            k.label('L_lp1')
            k('s_memrealtime s[64:65]')
            k('s_waitcnt lgkmcnt(0)')
            k('s_sub_u32 s64, s64, s10')
            k('s_cmp_lt_u32 s64, s68')
            k('s_cbranch_scc1 L_lp1')
        k('s_endpgm')

    def cmul(self, d, a, b):
        if self.opt.get('nopk'):
            return ['v_mul_f32 v%d, v%d, v%d' % (d, a, b),
                    'v_mul_f32 v%d, v%d, v%d' % (d + 1, a, b + 1),
                    'v_fma_f32 v%d, -v%d, v%d, v%d' % (d, a + 1, b + 1, d),
                    'v_fmac_f32 v%d, v%d, v%d' % (d + 1, a + 1, b)]
        return ['v_pk_mul_f32 %s, %s, %s op_sel:[0,0] op_sel_hi:[0,1]' % (vr(d, 2), vr(a, 2), vr(b, 2)),
                'v_pk_fma_f32 %s, %s, %s, %s op_sel:[1,1,0] op_sel_hi:[1,0,1] neg_lo:[1,0,0]' % (vr(d, 2), vr(a, 2), vr(b, 2), vr(d, 2))]
    def chan(self):
        k = self.k; opt = self.opt
        k.reset_counts()
        self.mark('chan_head')
        self.role = 2
        k.label('L_chanh')
        self.ets(1)
        S_D, S_CB, S_DSK = 12, 13, 14
        k('s_mul_i32 s64, s%d, 3' % S_M)
        k('s_lshl_b32 s65, s%d, 1' % S_M)
        k('s_add_u32 s65, s65, 128')
        k('s_cmp_lt_u32 s%d, 128' % S_M)
        k('s_cselect_b32 s64, s64, s65')
        k('s_cselect_b32 s65, 3, 2')
        k('s_cmp_ge_u32 s%d, s65' % S_WAVE)
        k('s_cbranch_scc1 L_idle')
        if opt.get('nochan'): k('s_endpgm')
        k('s_add_u32 s%d, s64, s%d' % (S_D, S_WAVE))
        k('s_mul_i32 s%d, s%d, %d' % (S_CB, S_WAVE, CBS))
        PR = 232
        for i in range(6): k('v_mov_b32 v%d, 0' % (PR + 3 * i + 2))
        k('s_mul_i32 s64, s%d, 384' % S_D)
        k('v_lshlrev_b32 v1, 1, v0')
        k('v_add_u32 v1, s64, v1')
        k('v_lshl_add_u32 v2, v0, 2, s64')
        k('s_lshr_b32 s64, s%d, 1' % S_D)
        k('s_lshl_b32 s64, s64, 2')
        k('s_waitcnt lgkmcnt(0)')
        self.ets(3)
        for ai, p in enumerate((P_ARE, P_AIM, P_BRE, P_BIM, P_CRE, P_CIM)):
            k('global_load_dword v%d, v2, s[%d:%d]' % (PR + 3 * ai + 1, p, p + 1), tag='par0')
        k('s_load_dword s65, s[%d:%d], s64' % (P_LDT, P_LDT + 1))
        k('s_load_dword s66, s[%d:%d], s64' % (P_DSK, P_DSK + 1))
        for ai, p in enumerate((P_ARE, P_AIM, P_BRE, P_BIM, P_CRE, P_CIM)):
            k('global_load_short_d16_hi v%d, v1, s[%d:%d] offset:256' % (PR + 3 * ai + 2, p, p + 1), tag='par2')
        if opt.get('gtouch'):
            k('v_min_u32 v3, 9, v0')
            k('v_lshlrev_b32 v3, 7, v3')
            k('global_load_dword v3, v3, s[%d:%d]' % (P_GW, P_GW + 1), tag='par2')
        self.cut('chan_main')
        self.ets(4)
        self.ts_init()
        self.srd_base(R_WS, P_WS)
        if opt.get('cprio'): k('s_setprio %d' % opt['cprio'])
        V_DT = 4
        ACC, QF, DT_, VV, GG, ID = 16, 32, 64, 128, 192, 208
        k('v_and_b32 v6, 31, v0')
        k('v_lshrrev_b32 v7, 5, v0')
        k('v_lshlrev_b32 v7, 3, v7')
        k('v_sub_u32 v6, v6, v7')
        k('v_and_b32 v7, 1, v0')
        k('v_lshlrev_b32 v7, 4, v7')
        k('v_mov_b32 v8, 0x3f80')
        k('v_lshlrev_b32 v7, v7, v8')
        k('v_lshrrev_b32 v6, 1, v6')
        for d in range(8):
            k('v_cmp_eq_u32 vcc, %d, v6' % (d if d < 4 else d + 4))
            k('v_cndmask_b32 v%d, 0, v7, vcc' % (ID + d))
        for i in range(16): k('v_mov_b32 v%d, 0' % (ACC + i))
        k('s_and_b32 s64, s%d, 1' % S_D)
        k('s_lshl_b32 s64, s64, 4')
        k('s_waitcnt lgkmcnt(0)')
        k('s_lshr_b32 s65, s65, s64')
        k('s_lshl_b32 s65, s65, 16')
        k('s_lshr_b32 s66, s66, s64')
        k('s_lshl_b32 s%d, s66, 16' % S_DSK)
        k('v_mov_b32 v6, s65')
        k('v_mul_f32 v6, %s, v6' % fhex(LOG2E))
        k('v_exp_f32 v6, v6')
        k('v_cvt_pk_bf16_f32 v6, v6, v6')
        k('v_lshlrev_b32 v%d, 16, v6' % V_DT)
        X_, E1, E2, E4, E8, E256, E16, C_ = 216, 218, 220, 222, 224, 226, 228, 230
        T0 = GG
        order = [0, 1, 2, 3, 4, 5, 6, 7, 4, 256, 258, 260, 8, 260, 262, 264, 512, 516, 520, 1024, 768, 772, 776, 1536, 1032, 1280, 1288, 1288, 1544, 1792, 1800, 1800]
        pv = {}
        for i, o in enumerate(order): pv.setdefault(o, VV + 2 * i)
        pv[0] = C_
        Dt = lambda t: DT_ + 16 * t
        def kmfma(s):
            return 'v_mfma_f32_32x32x16_bf16 %s, %s, %s, %s' % (vr(ACC, 16), vr(Dt(s >> 1) + 4 * (s & 1), 4), vr(QF + 4 * s, 4), vr(ACC, 16))
        S_PS = 73
        def setup(ps):
            if ps != 1: k.wait(vm='par%d' % ps)
            if ps == 0:
                for a_ in range(6):
                    k('v_lshlrev_b32 v%d, 16, v%d' % (PR + 3 * a_, PR + 3 * a_ + 1))
                    k('v_and_b32 v%d, 0xffff0000, v%d' % (PR + 3 * a_ + 1, PR + 3 * a_ + 1))
            ar, ai, br, bi, cr, ci = [PR + 3 * a + ps for a in range(6)]
            self.pr(200 + ps, 0)
            su = []
            su.append('v_mul_f32 v%d, v%d, v%d' % (X_, V_DT, ar))
            su.append('v_mul_f32 v%d, v%d, v%d' % (X_ + 1, V_DT, ai))
            su.append('v_mul_f32 v%d, %s, v%d' % (X_, fhex(LOG2E), X_))
            su.append('v_mul_f32 v%d, %s, v%d' % (X_ + 1, fhex(INV2PI), X_ + 1))
            su.append('v_rndne_f32 v%d, v%d' % (T0 + 2, X_ + 1))
            su.append('v_mul_f32 v%d, v%d, v%d' % (T0, V_DT, br))
            su.append('v_mul_f32 v%d, v%d, v%d' % (T0 + 1, V_DT, bi))
            su.append('v_sub_f32 v%d, v%d, v%d' % (X_ + 1, X_ + 1, T0 + 2))
            su.append('v_mul_f32 v%d, v%d, v%d' % (C_, cr, T0))
            su.append('v_mul_f32 v%d, v%d, v%d' % (C_ + 1, cr, T0 + 1))
            su.append('v_fma_f32 v%d, -v%d, v%d, v%d' % (C_, ci, T0 + 1, C_))
            su.append('v_fmac_f32 v%d, v%d, v%d' % (C_ + 1, ci, T0))
            for idx, (dst, p) in enumerate(((E8, 8.0), (E1, 1.0), (E256, 256.0))):
                t = T0 + 4 + 4 * idx
                if p == 1.0: m, th = X_, X_ + 1
                else:
                    su.append('v_mul_f32 v%d, %s, v%d' % (t, fhex(p), X_))
                    su.append('v_mul_f32 v%d, %s, v%d' % (t + 1, fhex(p), X_ + 1))
                    m, th = t, t + 1
                su.append('v_exp_f32 v%d, v%d' % (t + 2, m))
                su.append('v_cos_f32 v%d, v%d' % (dst, th))
                su.append('v_sin_f32 v%d, v%d' % (dst + 1, th))
            for idx, dst in enumerate((E8, E1, E256)):
                t = T0 + 4 + 4 * idx
                su.append('v_mul_f32 v%d, v%d, v%d' % (dst, dst, t + 2))
                su.append('v_mul_f32 v%d, v%d, v%d' % (dst + 1, dst + 1, t + 2))
            if ps > 0:
                for i, l in enumerate(su):
                    if i % 6 == 0 and i // 6 < 4: k(kmfma(4 + i // 6))
                    k(l)
            else:
                emit_list(k, su)
        setup(0)
        self.ts(1)
        k('s_mov_b32 s%d, 0' % S_PS)
        k.raw('.p2align 3')
        k.label('L_kbody')
        ps = 1
        def weave(ms, fill):
            per = -(-len(fill) // len(ms))
            for m in ms:
                k(m)
                emit_list(k, fill[:per]); fill = fill[per:]
        def cvts(src, part, neg):
            out = []
            for g in range(4):
                for d in range(4):
                    dst = GG + 4 * g + d if part == 0 else VV + 16 * g + d
                    ops = []
                    for o in src[8 * g + 2 * d: 8 * g + 2 * d + 2]:
                        if o is None: ops.append('1.0' if part == 0 else '0')
                        else: ops.append('%sv%d' % ('-' if neg else '', o + part))
                    out.append('v_cvt_pk_bf16_f32 v%d, %s, %s' % (dst, ops[0], ops[1]))
            return out
        grp = lambda part, g: GG + 4 * g if part == 0 else VV + 16 * g
        def swaps(part):
            return ['v_permlane32_swap_b32 v%d, v%d' % (grp(part, g) + d, grp(part, g + 1) + d) for g in (0, 2) for d in range(4)]
        def tm(part):
            t = 2 * part
            f = lambda tl, g, c: 'v_mfma_f32_32x32x16_bf16 %s, %s, %s, %s' % (vr(Dt(tl), 16), vr(grp(part, g), 4), vr(ID + 4 * (g >> 1), 4), c)
            return [f(t, 0, '0'), f(t, 2, vr(Dt(t), 16)), f(t + 1, 1, '0'), f(t + 1, 3, vr(Dt(t + 1), 16))]
        def back(t, dst):
            return ['v_cvt_pk_bf16_f32 v%d, v%d, v%d' % (dst + d, Dt(t) + 2 * d, Dt(t) + 2 * d + 1) for d in range(8)]
        self.pr(200 + ps, 1)
        qs = [None, E8, E16] + [VV + 2 * b_ for b_ in range(3, 32)]
        emit_list(k, self.cmul(E16, E8, E8))
        for b_ in range(3, 32): emit_list(k, self.cmul(qs[b_], qs[b_ - 2], E16))
        self.pr(200 + ps, 2)
        emit_list(k, cvts(qs, 0, False) + swaps(0))
        weave(tm(0), cvts(qs, 1, True) + swaps(1))
        weave(tm(1), back(0, QF) + back(1, QF + 8))
        self.pr(200 + ps, 3)
        cm = lambda o, a_, e: emit_list(k, self.cmul(pv[o], pv[a_], e))
        emit_list(k, self.cmul(E2, E1, E1))
        emit_list(k, self.cmul(E4, E2, E2))
        for o in range(1, 9): cm(o, o - 1, E1)
        for o in (256, 512, 768, 1024, 1280, 1536, 1792): cm(o, o - 256, E256)
        for o in (258, 260, 262, 264): cm(o, o - 2, E2)
        cm(516, 512, E4); cm(520, 512, E8); cm(772, 768, E4); cm(776, 768, E8)
        for o in (1032, 1288, 1544, 1800): cm(o, o - 8, E8)
        self.pr(200 + ps, 4)
        psrc = [pv[o] for o in order]
        emit_list(k, cvts(psrc, 0, False) + swaps(0))
        weave(tm(0), back(2, QF + 16) + back(3, QF + 24) + cvts(psrc, 1, False) + swaps(1))
        self.pr(200 + ps, 5)
        weave(tm(1), back(0, Dt(0)) + back(1, Dt(1)))
        weave([kmfma(s_) for s_ in range(4)], back(2, Dt(2)) + back(3, Dt(3)))
        self.pr(200 + ps, 7)
        k('s_add_u32 s%d, s%d, 1' % (S_PS, S_PS))
        k('s_cmp_eq_u32 s%d, 3' % S_PS)
        k('s_cbranch_scc1 L_kexit')
        k('s_cmp_eq_u32 s%d, 2' % S_PS)
        k('s_cbranch_scc1 L_ks2')
        lg_save = list(k.lg)
        setup(1)
        k('s_branch L_kbody')
        k.label('L_ks2')
        k.lg = list(lg_save)
        setup(2)
        k('s_branch L_kbody')
        k.label('L_kexit')
        if opt.get('xprio'): k('s_setprio %d' % opt['xprio'])
        k('s_load_dword s%d, s[%d:%d], 0' % (S_NONCE, P_DBG, P_DBG + 1))
        k('s_cmp_ge_u32 s%d, 2' % S_WAVE)
        k('s_cbranch_scc1 L_nogate0')
        self.gate(0)
        k.label('L_nogate0')
        k.lg = list(lg_save)
        ex = []
        ex += ['v_and_b32 v6, 31, v0', 'v_lshrrev_b32 v7, 5, v0', 'v_lshlrev_b32 v8, 4, v6', 'v_sub_u32 v8, s%d, v8' % S_CB,
               'v_lshlrev_b32 v9, 3, v7', 'v_sub_u32 v9, v8, v9', 'v_add_u32 v9, 504, v9',
               'v_lshlrev_b32 v10, 9, v7', 'v_sub_u32 v10, v8, v10', 'v_add_u32 v10, 1008, v10',
               'v_lshlrev_b32 v11, 10, v7', 'v_sub_u32 v11, v8, v11', 'v_add_u32 v11, 1520, v11',
               'v_add_u32 v12, %d, v9' % (KO + 4084 - 504), 'v_add_u32 v13, %d, v9' % (KO + 4084 - 512 - 504),
               'v_and_b32 v6, 1, v0', 'v_cmp_eq_u32 vcc, 1, v6',
               'v_min_u32 v14, 27, v0', 'v_lshlrev_b32 v14, 4, v14', 'v_add_u32 v14, s%d, v14' % S_CB]
        ex += ['v_mov_b32 v%d, 0' % (96 + i) for i in range(4)]
        V_A, V_B = 2, 3
        ex += ['v_and_b32 v6, 15, v0', 'v_lshrrev_b32 v7, 4, v0', 'v_lshlrev_b32 v7, 4, v7', 'v_add_u32 v7, s%d, v7' % S_CB,
               'v_lshrrev_b32 v8, 1, v6', 'v_lshlrev_b32 v8, 6, v8', 'v_sub_u32 v8, v7, v8',
               'v_mov_b32 v102, %d' % (448 + KO), 'v_mov_b32 v103, 448', 'v_cndmask_b32 v102, v102, v103, vcc', 'v_add_u32 v%d, v8, v102' % V_A,
               'v_lshl_add_u32 v8, v6, 2, v7', 'v_mov_b32 v102, %d' % UY, 'v_mov_b32 v103, %d' % (UX + 4),
               'v_cndmask_b32 v102, v102, v103, vcc', 'v_add_u32 v%d, v8, v102' % V_B, 'v_mov_b32 v15, s%d' % S_CB]
        ex = [l.replace('v102', 'v202').replace('v103', 'v203') for l in ex]
        ex = [l.replace('v_mov_b32 v9', 'v_mov_b32 v19') if l.startswith('v_mov_b32 v9') else l for l in ex]
        for s in range(4, 8):
            k(kmfma(s))
            emit_list(k, ex[:6]); ex = ex[6:]
        emit_list(k, ex)
        k('ds_write_b128 v14, v[196:199] offset:4096')
        k('ds_write_b128 v14, v[196:199] offset:%d' % (KO + 4096))
        self.ts(3)
        V = lambda r: ACC + r
        pk = lambda d, lo, hi: k('v_cvt_pk_bf16_f32 v%d, v%d, v%d' % (d, lo, hi))
        k('s_mov_b64 exec, 1')
        k('v_add_f32 v%d, s%d, v%d' % (V(0), S_DSK, V(0)))
        k('s_mov_b64 exec, -1')
        k('v_cndmask_b32 v100, v%d, v%d, vcc' % (V(11), V(12)))
        k('v_cndmask_b32 v101, v%d, v%d, vcc' % (V(13), V(14)))
        pk(32, V(3), V(2)); pk(33, V(1), V(0))
        pk(34, V(7), V(6)); pk(35, V(5), V(5))
        pk(36, V(10), V(10)); pk(37, V(9), V(9)); pk(38, V(9), V(8)); pk(39, V(8), V(8))
        pk(40, V(10), V(9)); k('v_mov_b32 v41, v37'); k('v_mov_b32 v42, v39'); k('v_mov_b32 v43, v39')
        for (lo, hi, T, off, rb) in ((11, 12, 100, 2032, 44), (13, 14, 101, 1520, 52)):
            pk(rb, V(hi), V(hi)); pk(rb + 1, V(hi), T); pk(rb + 2, V(lo), V(lo)); k('v_mov_b32 v%d, v%d' % (rb + 3, rb + 2))
            k('v_mov_b32 v%d, v%d' % (rb + 4, rb)); pk(rb + 5, T, V(lo)); k('v_mov_b32 v%d, v%d' % (rb + 6, rb + 2)); k('v_mov_b32 v%d, v%d' % (rb + 7, rb + 2))
        pk(60, V(4), V(3)); pk(61, V(2), V(1))
        pk(62, V(7), V(7)); pk(63, V(6), V(5))
        pk(102, V(0), 196)
        k('ds_write_b64 v9, v[32:33] offset:%d' % (4088 - 504))
        k('ds_write_b64 v9, v[34:35] offset:%d' % (4088 - 512 - 504))
        k('ds_write2_b32 v12, v60, v61 offset0:0 offset1:1')
        k('ds_write2_b32 v13, v62, v63 offset0:0 offset1:1')
        k('ds_write_b128 v10, v[36:39] offset:%d' % (3056 - 1008))
        k('ds_write_b128 v10, v[40:43] offset:%d' % (KO + 3056 - 1008))
        for (off, rb) in ((2032, 44), (1520, 52)):
            k('ds_write_b128 v11, %s offset:%d' % (vr(rb, 4), off - 1520))
            k('ds_write_b128 v11, %s offset:%d' % (vr(rb + 4, 4), KO + off - 1520))
        k('s_mov_b64 exec, 1')
        k('ds_write_b32 v15, v102 offset:%d' % (KO + 4092))
        k('s_mov_b64 exec, -1')
        self.snonce(104, 105, first=1)
        self.ts(2)
        if not opt.get('glate'):
            k('s_cmp_ge_u32 s%d, 2' % S_WAVE)
            k('s_cbranch_scc1 L_nogate')
            self.gate(1)
            k.label('L_nogate')
        k('s_waitcnt lgkmcnt(0)')
        k('s_barrier')
        if opt.get('cstop') == 3: k('s_endpgm')
        Y = 16
        FB = [64, 128]
        CT = [i for i in range(8) if i not in self.mtiles()]
        self.ts(4)
        k('s_setprio %d' % opt.get('vprio', 0))
        emit_list(k, self.conv_reads(0, FB[0], V_A, V_B))
        fin = ['v_lshlrev_b32 v8, 3, v0', 's_lshl_b32 s64, s%d, 12' % S_D, 's_add_u32 s64, s64, 0x%x' % WS_AT]
        for sg in range(8):
            k.wait(lg='all')
            if opt.get('cpat'):
                k('s_setprio %d' % (3 if (opt['cpat'] >> sg) & 1 else 0))
            nx = self.conv_reads(sg + 1, FB[(sg + 1) % 2], V_A, V_B) if sg + 1 < 8 else fin
            self.conv_step(Y, FB[sg % 2], sg == 0, nx, CT)
        self.ts(5)
        k('s_setprio 3')
        emit_list(k, self.tile_out(Y, CT, 64, 8, 's64'))
        self.ts(6)
        if opt.get('glate'):
            if opt['glate'] == 2:
                k.wait(vm='all')
                k('s_barrier')
            k('s_cmp_ge_u32 s%d, 2' % S_WAVE)
            k('s_cbranch_scc1 L_nogate')
            k('s_setprio %d' % opt.get('gprio2', 0))
            self.gate(1)
            if opt['glate'] == 1:
                k('s_waitcnt vmcnt(1)')
                k('s_branch L_gdone')
            k.label('L_nogate')
        if opt.get('glate') != 2:
            k.wait(vm='all')
            k.label('L_gdone')
            k('s_barrier')
        if opt.get('park') and opt.get('ts'): self.cut('chan_end2')
        self.ts(7)
        self.ts_store()
        k('s_endpgm')

    def gate(self, part):
        k = self.k
        GX, GW = (208, 228) if self.opt.get('glate') else (128, 168)
        if part == 0: self.gate_issue(GX, GW)
        else: self.gate_finish(GX, GW)
    def gate_issue(self, GX, GW):
        k = self.k
        if self.opt.get('gateprio'): k('s_setprio %d' % self.opt['gateprio'])
        self.srd_base(R_U, P_U)
        k('v_and_b32 v5, 15, v0')
        k('v_lshlrev_b32 v5, 4, v5')
        k('v_lshrrev_b32 v1, 4, v0')
        k('v_mul_u32_u24 v7, 1280, v1')
        k('v_add_u32 v7, v7, v5')
        k('s_lshl3_add_u32 s70, s%d, s%d' % (S_RHO, S_J))
        k('s_lshl1_add_u32 s70, s70, s%d' % S_WAVE)
        k('s_mul_i32 s71, s70, %d' % (4 * 1280))
        for i in range(5):
            k('buffer_load_dwordx4 %s, v7, s[%d:%d], s71 offen offset:%d' % (vr(GX + 4 * i, 4), R_U, R_U + 3, 256 * i), tag='G%d' % i)
            k('global_load_dwordx4 %s, v5, s[%d:%d] offset:%d' % (vr(GW + 4 * i, 4), P_GW, P_GW + 1, 256 * i), tag='G%d' % i)
        if self.opt.get('gateprio'): k('s_setprio %d' % self.opt.get('xprio', 0))
    def gate_finish(self, GX, GW):
        k = self.k
        k('v_mov_b32 v160, 0')
        k('v_mov_b32 v161, 0')
        for i in range(20):
            if i % 4 == 0: k.wait(vm='G%d' % (i // 4))
            x, w = GX + i, GW + i
            t = 152
            if self.opt.get('dotgate'):
                k('v_dot2_f32_bf16 v%d, v%d, v%d, v%d' % (160 + i % 2, x, w, 160 + i % 2))
                continue
            k('v_lshlrev_b32 v%d, 16, v%d' % (t, x))
            k('v_and_b32 v%d, 0xffff0000, v%d' % (t + 1, x))
            k('v_lshlrev_b32 v%d, 16, v%d' % (t + 2, w))
            k('v_and_b32 v%d, 0xffff0000, v%d' % (t + 3, w))
            k('v_mul_f32 v%d, v%d, v%d' % (t, t, t + 2))
            k('v_mul_f32 v%d, v%d, v%d' % (t + 1, t + 1, t + 3))
            k('v_cvt_pk_bf16_f32 v%d, v%d, v%d' % (t + 4, t, t + 1))
            k('v_lshlrev_b32 v%d, 16, v%d' % (t, t + 4))
            k('v_and_b32 v%d, 0xffff0000, v%d' % (t + 1, t + 4))
            k('v_add_f32 v160, v160, v%d' % t)
            k('v_add_f32 v161, v161, v%d' % (t + 1))
        if self.opt.get('dotgate'): k('s_nop 3')
        k('v_add_f32 v160, v160, v161')
        for m in ('quad_perm:[1,0,3,2]', 'quad_perm:[2,3,0,1]', 'row_half_mirror', 'row_mirror'):
            k('v_add_f32_dpp v160, v160, v160 %s row_mask:0xf bank_mask:0xf' % m)
        k('v_cvt_pk_bf16_f32 v160, v160, v160')
        k('v_lshlrev_b32 v160, 16, v160')
        k('v_mul_f32 v160, %s, v160' % fhex(-LOG2E))
        k('v_exp_f32 v160, v160')
        k('v_add_f32 v160, 1.0, v160')
        k('v_rcp_f32 v160, v160')
        k('v_cvt_pk_bf16_f32 v160, v160, v160')
        k('v_lshlrev_b32 v160, 16, v160')
        k('v_mov_b32 v161, s%d' % S_NONCE)
        k('v_lshlrev_b32 v6, 3, v1')
        k('s_lshl_b32 s70, s70, 5')
        k('s_add_u32 s70, s70, 0x%x' % WS_G)
        k('s_mov_b32 s74, 0x00010001')
        k('s_mov_b32 s75, 0x00010001')
        k('s_mov_b64 exec, s[74:75]')
        k('buffer_store_dwordx2 v[160:161], v6, s[%d:%d], s70 offen sc1' % (R_WS, R_WS + 3))
        k('s_mov_b64 exec, -1')

    def build(self):
        import gemm19
        k = self.k
        self.prologue()
        self.misc()
        self.chan()
        k.reset_counts()
        self.mark('gemm_head')
        self.role = 1
        k.label('L_gemm')
        self.ets(1)
        if self.opt.get('nogemm'): k('s_endpgm')
        else: gemm19.emit(self)
        self.mark('end')
        k.label('L_end')
        k('s_endpgm')
        secs = {}; prev = ('pro', 0)
        for m in self.marks + [('eof', len(k.items))]:
            secs[prev[0]] = k.items[prev[1]:m[1]]; prev = m
        order = ['pro'] + {0: ['chan_head', 'misc_head', 'idle', 'gemm_head'], 1: ['misc_head', 'chan_head', 'idle', 'gemm_head'], 2: ['gemm_head', 'chan_head', 'misc_head', 'idle'], 3: ['misc_head', 'gemm_head', 'chan_head', 'idle']}[self.opt.get('hord', 0)] + [ 'chan_main', 'misc_main', 'gemm_main', 'chan_end', 'gemm_t1', 'misc_end', 'gemm_t2', 'chan_end2', 'misc_end2', 'end']
        k.items = sum((secs[n] for n in order if n in secs), []) + sum(getattr(k, 'colds', []), [])
        assert set(secs) <= set(order)
        if self.opt.get('ipf'): k.raw('.fill ((%d - (. - %s)) / 4), 4, 0xbf810000' % (64 * 128 * self.opt['ipf'] + 256, KNAME))
        hdr = open('gated_mix__ssm_conv_s4__dense_activation_silu__prompt.s.ref').read().split('; Override launch')[0]
        s = hdr + '; @launch grid=(512,1,1) block=(256,1,1) lds=81920\n'
        s += DOC
        s += '.amdgcn_target "amdgcn-amd-amdhsa--gfx950"\n.text\n.globl %s\n.p2align 8\n.type %s,@function\n%s:\n' % (KNAME, KNAME, KNAME)
        s += k.text()
        s += '.section .rodata,"a"\n.p2align 6\n.amdhsa_kernel %s\n' % KNAME
        s += '  .amdhsa_next_free_vgpr 256\n  .amdhsa_next_free_sgpr 102\n  .amdhsa_accum_offset 256\n  .amdhsa_group_segment_fixed_size 0\n'
        s += '  .amdhsa_kernarg_size 128\n  .amdhsa_user_sgpr_count 2\n  .amdhsa_user_sgpr_kernarg_segment_ptr 1\n  .amdhsa_system_sgpr_workgroup_id_x 1\n.end_amdhsa_kernel\n'
        return s

if __name__ == '__main__':
    opt = {}
    out = sys.argv[1]
    for a in sys.argv[2:]:
        if '=' in a:
            kk, v = a.split('='); opt[kk] = int(v, 0)
        else: opt[a] = 1
    g = Gen(opt)
    open(out, 'w').write(g.build())
    print('nops inserted', g.k.nops, 'lines', len(g.k.items))
```

```python
from kgen import *
from gen19 import *

def emit(G):
    k = G.k
    opt = G.opt
    assert opt.get('ks', 2) == 2
    OWN = opt.get('own', 1)
    KS = opt.get('ks', 2)
    S_FA, S_LW, S_GG, S_HS, S_V, S_H0, S_FH, S_FC = 4, 9, 10, 11, 12, 13, 14, 15
    S_H1, S_FW, S_AT, S_AD, S_OUT, S_A3, S_AC, S_AE, S_FC2 = 40, 41, 42, 43, 46, 47, 78, 79, 8 + 92
    S_XZ, S_WZ = 68, 73
    VV, VR, VRH, VHL, VFH, VFW, V_FA, V_AD, V_G, V_AR, V_OW, V_OS = 2, 3, 4, 5, 7, 8, 9, 10, 11, 12, 13, 14
    VW, WA, WAH, VH, V_NON, V_REP, ET = 17, 21, 22, 23, 24, 25, 26
    VX, XA, XT = 80, 84, 92
    g_, c_ = 30, 31
    k('v_lshrrev_b32 v30, 4, v0')
    k('v_and_b32 v31, 15, v0')
    k('v_and_b32 v27, 2, v30')
    k('v_add_u32 v27, v27, v30')
    k('s_and_b32 s64, s%d, 2' % S_WAVE)
    k('v_xor_b32 v27, v31, v27')
    k('v_xor_b32 v27, s64, v27')
    k('v_lshlrev_b32 v27, 4, v27')
    k('s_mul_i32 s64, s%d, %d' % (S_WAVE, 16 * 1280))
    k('v_mul_u32_u24 v26, 1280, v30')
    k('v_add_u32 v26, s64, v26')
    k('v_add_u32 v%d, v26, v27' % VX)
    k('v_xor_b32 v28, 128, v27')
    k('v_add_u32 v28, 4096, v28')
    k('v_add_u32 v%d, v26, v28' % (VX + 1))
    k('v_add_u32 v%d, 8192, v%d' % (VX + 2, VX))
    k('v_add_u32 v%d, 8192, v%d' % (VX + 3, VX + 1))
    k('s_mul_i32 s%d, s%d, %d' % (S_XZ, S_RHO, 64 * 1280))
    k('s_lshl_b32 s%d, s%d, 12' % (S_LW, S_WAVE))
    seq = []
    pat = {0: 'XWXWXWXWXW', 1: 'XXXXXWWWWW', 2: 'XXXWXWXWWW', 3: 'XXWXWXWXWW'}[opt.get('xfirst', 3)]
    cnt = {'X': 0, 'W': 0}
    for ch in pat:
        seq.append((ch, cnt[ch], 0)); cnt[ch] += 1
    for r in (1, 2):
        for z in range(5): seq.append(('W', z, r))
    for z in range(15): seq.append(('V', z, 0))
    def dma(i):
        typ, z, r = seq[i]
        out = ['s_add_u32 m0, s%d, %d' % (S_LW, 16384 * (i % 5))]
        if typ == 'V':
            if z: out.append('s_add_u32 s%d, s%d, 16384' % (S_V, S_V))
            return out + [('buffer_load_dwordx4 v%d, s[%d:%d], s%d offen offset:%d sc1 lds' % (VV, R_WS, R_WS + 3, S_V, 1024 * n), 'S%d' % i) for n in range(4)]
        if typ == 'X':
            if z: out.append('s_add_u32 s%d, s%d, 256' % (S_XZ, S_XZ))
        elif z: out.append('s_add_u32 s%d, s%d, %d' % (S_WZ, S_WZ, 128 * 3072))
        elif r: out.append('s_sub_u32 s%d, s%d, %d' % (S_WZ, S_WZ, 4 * 128 * 3072 - 128))
        so, rr, vo = (S_XZ, R_U, VX) if typ == 'X' else (S_WZ, R_W, VW)
        for n in range(4):
            out.append(('buffer_load_dwordx4 v%d, s[%d:%d], s%d offen offset:%d lds' % (vo + n, rr, rr + 3, so, 1024 * n), 'S%d' % i))
        return out
    k('s_waitcnt lgkmcnt(0)')
    G.ets(3)
    G.srd_base(R_U, P_U)
    emit_list(k, dma(0))
    G.srd_base(R_W, P_W1); G.srd_tail(R_W, 640 * 1536 * 2)
    def touch():
        L = k.newlabel('L_nt')
        k('s_cmp_lg_u32 s%d, 0' % S_WAVE)
        k('s_cbranch_scc1 %s' % L)
        emit_list(k, ['v_min_u32 v26, 59, v0', 'v_mul_u32_u24 v27, 43, v26', 'v_lshrrev_b32 v27, 9, v27',
             'v_mul_u32_u24 v27, %d, v27' % (3072 - 128 * 12), 'v_lshl_add_u32 v26, v26, 7, v27',
             's_bfe_u32 s64, s2, 0x50003', 's_bfe_u32 s65, s2, 0x20001', 's_lshl_b32 s65, s65, 5', 's_add_u32 s64, s64, s65',
             's_mul_i32 s64, s64, %d' % (5 * 3072), 's_and_b32 s65, s2, 1', 's_mul_i32 s65, s65, %d' % (128 * 12), 's_add_u32 s64, s64, s65'])
        k('buffer_load_dword v254, v26, s[%d:%d], s64 offen' % (R_W, R_W + 3)); k.vm.pop()
        k.label(L)
    PF = opt.get('pf1', 1)
    if PF == 1: touch()
    k('v_lshrrev_b32 v26, 3, v0')
    k('s_lshl_b32 s65, s%d, 5' % S_WAVE)
    k('v_add_u32 v26, s65, v26')
    k('v_mul_u32_u24 v26, 3072, v26')
    k('v_and_b32 v27, 7, v0')
    k('v_and_b32 v28, 1, v30')
    k('v_lshlrev_b32 v28, 2, v28')
    k('v_xor_b32 v27, v27, v28')
    k('v_lshl_add_u32 v%d, v27, 4, v26' % VW)
    for n in range(1, 4):
        k('v_add_u32 v%d, %d, v%d' % (VW + n, n * (8 * 3072 - 1024), VW))
    k('s_mul_i32 s%d, s%d, 384' % (S_WZ, S_J))
    LA_ = opt.get('la', 4)
    NPRE = opt.get('npre', 2)
    if PF == 2: touch()
    if not opt.get('late1'):
        for i in range(1, NPRE): emit_list(k, dma(i))
    G.ets(4)
    G.cut('gemm_main')
    G.ts_init()
    if PF == 3: touch()
    if opt.get('late1'):
        for i in range(1, NPRE): emit_list(k, dma(i))
    k('s_setprio %d' % opt.get('gprio', 2))
    G.srd_base(R_WS, P_WS)
    G.srd_base(R_O, P_OUT); G.srd_tail(R_O, 2048 * 640 * 2)
    S_TAU, S_PHI, S_T = 69, 70, 71
    k('s_and_b32 s%d, s%d, 1' % (S_TAU, S_WAVE))
    k('s_lshr_b32 s%d, s%d, 1' % (S_PHI, S_WAVE))
    if KS == 2: k('s_lshl1_add_u32 s%d, s%d, s%d' % (S_T, S_TAU, S_PHI))
    else: k('s_mov_b32 s%d, s%d' % (S_T, S_WAVE))
    rowoff = lambda d, j, t: ['v_lshrrev_b32 v%d, 2, v%d' % (d, j), 'v_lshlrev_b32 v%d, 1, v%d' % (d, d), 'v_and_b32 v%d, 1, v%d' % (t, j), 'v_add_u32 v%d, v%d, v%d' % (d, d, t),
                              'v_and_b32 v%d, 2, v%d' % (t, j), 'v_lshl_add_u32 v%d, v%d, 4, v%d' % (d, t, d)]
    k('v_lshrrev_b32 v29, 5, v0')
    emit_list(k, rowoff(27, 31, 26))
    k('v_lshlrev_b32 v%d, 3, v27' % V_G)
    k('v_and_b32 v26, 1, v30')
    k('v_xor_b32 v25, s%d, v26' % S_PHI)
    k('v_lshl_add_u32 v27, v25, 3, v27')
    k('s_lshl_b32 s64, s%d, 12' % S_TAU)
    k('v_xor_b32 v28, v29, v31')
    k('v_lshlrev_b32 v28, 4, v28')
    k('v_lshl_add_u32 v28, v27, 8, v28')
    k('v_add_u32 v%d, s64, v28' % XA)
    for s in range(1, 8): k('v_xor_b32 v%d, %d, v%d' % (XA + s, 32 * s, XA))
    k('s_lshl_b32 s64, s%d, 1' % S_TAU)
    k('v_add_u32 v27, s64, v25')
    k('v_mul_u32_u24 v27, 49152, v27')
    k('v_lshl_add_u32 v28, v29, 4, v31')
    k('v_lshl_add_u32 v%d, v28, 4, v27' % VH)
    k('v_bfe_u32 v28, v0, 1, 1')
    k('v_lshl_add_u32 v26, v26, 1, v28')
    k('s_lshl_b32 s64, s%d, 2' % S_PHI)
    k('v_add_u32 v26, s64, v26')
    k('v_bfe_u32 v28, v0, 3, 1')
    k('v_lshlrev_b32 v28, 2, v28')
    k('v_xor_b32 v26, v26, v28')
    k('v_bfe_u32 v28, v0, 2, 2')
    k('v_lshl_add_u32 v27, v29, 3, v28')
    k('v_lshlrev_b32 v27, 7, v27')
    k('v_lshl_add_u32 v27, v26, 4, v27')
    k('v_and_b32 v26, 1, v0')
    k('v_lshl_add_u32 v%d, v26, 3, v27' % WA)
    k('v_add_u32 v%d, 0x10000, v%d' % (WAH, WA))
    k('s_mul_i32 s66, s%d, 192' % S_RHO)
    k('s_lshl1_add_u32 s67, s%d, s66' % S_J)
    k('s_add_u32 s67, s67, s%d' % S_PHI)
    k('s_lshl_b32 s67, s67, 10')
    k('s_add_u32 s%d, s67, 0x%x' % (S_HS, WS_H))
    k('s_lshl_b32 s66, s66, 10')
    k('s_add_u32 s66, s66, 0x%x' % WS_H)
    k('s_lshr_b32 s67, s%d, 2' % S_J)
    k('s_lshl_b32 s65, s%d, 11' % S_J)
    k('s_add_u32 s%d, s66, s65' % S_H0)
    k('s_mul_i32 s66, s%d, 768' % S_RHO)
    k('s_lshl_b32 s67, s67, 7')
    k('s_add_u32 s66, s66, s67')
    k('s_add_u32 s%d, s66, 0x%x' % (S_FC, WS_FH))
    k('s_xor_b32 s%d, s%d, 128' % (S_FC2, S_FC))
    k('s_and_b32 s67, s%d, 3' % S_J)
    k('s_lshl2_add_u32 s%d, s67, s%d' % (S_FH, S_FC))
    k('s_mov_b32 s%d, 0' % S_AD)
    k('s_lshl3_add_u32 s64, s%d, s%d' % (S_RHO, S_T))
    k('s_mul_i32 s%d, s64, %d' % (S_OUT, 8 * 1280))
    k('s_mul_i32 s66, s%d, 160' % S_J)
    k('s_add_u32 s%d, s%d, s66' % (S_OUT, S_OUT))
    k('s_lshl_b32 s64, s64, 6')
    k('s_add_u32 s%d, s64, 0x%x' % (S_GG, WS_G))
    k('s_cmp_lt_u32 s%d, 2' % S_WAVE)
    k('s_cselect_b32 s%d, 1024, 0' % S_A3)
    k('s_mul_i32 s64, s%d, %d' % (S_J, 48 * 5120))
    k('s_add_u32 s%d, s64, 0x%x' % (S_V, WS_W2P))
    k('s_mul_i32 s64, s%d, %d' % (S_J, 10 * 128))
    k('s_add_u32 s%d, s64, 0x%x' % (S_FA, WS_FA))
    k('s_lshl_b32 s64, s%d, 7' % S_WAVE)
    k('s_add_u32 s%d, s64, s%d' % (S_AC, S_FA))
    k('s_add_u32 s%d, s%d, %d' % (S_AE, S_AC, NREP * FA_RS))
    k('s_mul_i32 s64, s%d, 10' % S_J)
    k('s_add_u32 s64, s64, s%d' % S_WAVE)
    k('s_lshl_b32 s64, s64, 15')
    k('s_lshl_b32 s65, s%d, 7' % S_RHO)
    k('s_add_u32 s64, s64, s65')
    k('s_add_u32 s%d, s64, 0x%x' % (S_AT, WS_AT))
    k('s_mul_i32 s64, s%d, 5' % S_J)
    k('s_lshr_b32 s65, s64, 3')
    k('s_add_u32 s64, s64, 4')
    k('s_lshr_b32 s64, s64, 3')
    k('s_sub_u32 s64, s64, s65')
    k('s_lshl_b32 s64, s64, 8')
    k('s_lshl_b32 s65, s65, 8')
    k('s_mul_i32 s66, s%d, 48' % S_WAVE)
    k('s_add_u32 s65, s65, s66')
    k('s_add_u32 s%d, s65, 0x%x' % (S_FW, WS_FW))
    k('v_min_u32 v26, 11, v31')
    k('v_and_b32 v27, 1, v30')
    k('v_mul_u32_u24 v27, s64, v27')
    k('v_lshl_add_u32 v%d, v26, 2, v27' % VFW)
    k('v_lshlrev_b32 v26, 4, v0')
    k('v_add_u32 v%d, s%d, v26' % (VV, S_LW))
    if KS == 2:
        k('s_mul_i32 s64, s%d, 5120' % S_PHI)
        k('v_add_u32 v%d, s64, v26' % VR)
        k('s_mul_i32 s64, s%d, 48' % S_T)
        k('s_add_u32 s64, s64, s%d' % S_PHI)
        k('s_lshl_b32 s64, s64, 10')
        k('v_add_u32 v%d, s64, v26' % VHL)
        k('s_xor_b32 s64, s%d, 1' % S_T)
        k('s_mul_i32 s64, s64, 48')
        k('s_add_u32 s64, s64, s%d' % S_PHI)
        k('s_lshl_b32 s64, s64, 10')
        k('v_add_u32 v%d, s64, v26' % (VHL + 1))
    else:
        k('v_mov_b32 v%d, v26' % VR)
        k('s_mul_i32 s64, s%d, 49152' % S_T)
        k('v_add_u32 v%d, s64, v26' % VHL)
    k('v_add_u32 v%d, 0x8000, v%d' % (VRH, VR))
    k('v_and_b32 v26, 3, v0')
    k('v_lshlrev_b32 v%d, 2, v26' % VFH)
    k('v_lshlrev_b32 v27, 12, v29')
    k('v_bfe_u32 v28, v0, 2, 3')
    k('v_lshl_add_u32 v27, v28, 7, v27')
    k('v_lshl_add_u32 v27, v26, 3, v27')
    k('s_lshl_b32 s64, s%d, 5' % S_T)
    k('v_add_u32 v%d, s64, v27' % V_AR)
    k('v_and_b32 v26, 7, v0')
    k('v_lshrrev_b32 v27, 3, v0')
    k('v_min_u32 v28, 2, v27')
    k('v_lshlrev_b32 v28, 2, v28')
    k('v_add_u32 v28, s%d, v28' % S_WAVE)
    k('v_min_u32 v28, 9, v28')
    k('v_lshl_add_u32 v28, v28, 5, v26')
    k('v_lshlrev_b32 v%d, 2, v28' % V_FA)
    k('v_lshlrev_b32 v27, 12, v27')
    k('v_lshl_add_u32 v%d, v26, 4, v27' % V_AD)
    OSTR = opt.get('ostr', 160)
    k('v_mul_u32_u24 v27, %d, v31' % OSTR)
    k('v_lshl_add_u32 v27, v30, 3, v27')
    k('v_add_u32 v%d, s%d, v27' % (V_OW, S_LW))
    for n in range(3):
        emit_list(k, ['v_add_u32 v26, %d, v0' % (64 * n), 'v_mul_u32_u24 v27, 205, v26', 'v_lshrrev_b32 v27, 11, v27'] + rowoff(V_OS + n, 27, 28) +
                  ['v_mul_u32_u24 v%d, 1280, v%d' % (V_OS + n, V_OS + n), 'v_lshl_add_u32 v%d, v26, 4, v%d' % (V_OS + n, V_OS + n),
                   'v_mul_u32_u24 v28, 160, v27', 'v_sub_u32 v%d, v%d, v28' % (V_OS + n, V_OS + n)])
    k('v_mul_u32_u24 v%d, %d, v0' % (V_REP, FH_RS))
    FA, FBs = 32, 48
    NRH = opt.get('nrh', 2)
    ACC = [64, 80, 64]
    XF = 96
    def wread(i, half, s):
        base = 16384 * (i % 5)
        reg = WAH if base >= 65536 else WA
        off = base & 0xffff
        fs = FA if half == 0 else FBs
        return [('ds_read_b64_tr_b16 %s, v%d offset:%d' % (vr(fs + 4 * s + 2 * e, 2), reg, off + (4 * half + s) * 2048 + 512 * e), 'w%d%d' % (half, s)) for e in range(2)]
    def mfma(i, half, s):
        typ, z, r = seq[i]
        fs = FA if half == 0 else FBs
        c = '0' if (z == 0 and half == 0 and s == 0) else vr(ACC[r], 16)
        return 'v_mfma_f32_32x32x16_bf16 %s, %s, %s, %s' % (vr(ACC[r], 16), vr(fs + 4 * s, 4), vr(XF + 4 * (8 * z + 4 * half + s), 4), c)
    NL2 = fhex(-LOG2E)
    def epi(r):
        a = ACC[r]
        out = []
        t = ET
        for p in range(8):
            if opt.get('fastsilu'):
                x0, x1 = a + 2 * p, a + 2 * p + 1
            else:
                x0, x1 = t, t + 1
                out += ['v_cvt_pk_bf16_f32 v%d, v%d, v%d' % (t + 2, a + 2 * p, a + 2 * p + 1),
                        'v_lshlrev_b32 v%d, 16, v%d' % (t, t + 2),
                        'v_and_b32 v%d, 0xffff0000, v%d' % (t + 1, t + 2)]
            out += ['v_mul_f32 v%d, %s, v%d' % (t + 2, NL2, x0),
                    'v_mul_f32 v%d, %s, v%d' % (t + 3, NL2, x1),
                    'v_exp_f32 v%d, v%d' % (t + 2, t + 2),
                    'v_exp_f32 v%d, v%d' % (t + 3, t + 3),
                    'v_add_f32 v%d, 1.0, v%d' % (t + 2, t + 2),
                    'v_add_f32 v%d, 1.0, v%d' % (t + 3, t + 3),
                    'v_rcp_f32 v%d, v%d' % (t + 2, t + 2),
                    'v_rcp_f32 v%d, v%d' % (t + 3, t + 3),
                    'v_mul_f32 v%d, v%d, v%d' % (t + 2, x0, t + 2),
                    'v_mul_f32 v%d, v%d, v%d' % (t + 3, x1, t + 3),
                    'v_cvt_pk_bf16_f32 v%d, v%d, v%d' % (a + p, t + 2, t + 3)]
        if opt.get('noepi'): out = []
        if r: out += ['s_add_u32 s%d, s%d, 16384' % (S_HS, S_HS)]
        for s in range(0 if opt.get('nohst') else 2):
            out.append(('buffer_store_dwordx4 %s, v%d, s[%d:%d], s%d offen offset:%d sc1' % (vr(a + 4 * s, 4), VH, R_WS, R_WS + 3, S_HS, 512 * s), 'hst%d' % r))
        if OWN and r:
            out += ['v_permlane32_swap_b32 v%d, v%d' % (a + d, a + 4 + d) for d in range(4)]
            out += ['v_permlane16_swap_b32 v%d, v%d' % (a + d, a + 4 + d) for d in range(4)]
        return out
    def hflag(r):
        def body():
            k('s_mov_b64 exec, %d' % ((1 << NRH) - 1))
            k('buffer_store_dword v%d, v%d, s[%d:%d], s%d offen offset:%d sc1' % (V_NON, V_REP, R_WS, R_WS + 3, S_FH, 256 * r)); k.vm.pop()
            k('s_mov_b64 exec, -1')
        L = k.newlabel('L_nf')
        k('s_cmp_lg_u32 s%d, %d' % (S_WAVE, r))
        k('s_cbranch_scc1 %s' % L)
        body()
        k.label(L)
    NST = 240 // KS
    NP = 48 // KS
    A2 = lambda T, sub: 96 + 4 * (5 * T + sub)
    HB = 96 + 20 * KS
    HN = 20 // KS
    Hr = lambda p, T: HB + 4 * (KS * (p % HN) + T)
    WX = HB + 80
    WBUF = [32, 36, 40, 44] + ([WX + 4 * i for i in range(8)] if KS == 1 else []) + [48, 52, 56, 60]
    f0 = lambda n: 5 * KS * (n // 5) + n % 5
    own = lambda p: OWN and p in (8, 16)
    Hr0 = Hr
    Hr = lambda p, T: (ACC[p >> 3] + 4 * T) if own(p) else Hr0(p, T)
    def hload(p):
        o = []
        if p and p % 8 == 0: o.append('s_add_u32 s%d, s%d, 16384' % (S_H0, S_H0))
        if own(p): return o
        if p % 8: o.append('s_xor_b32 s65, s%d, %d' % (S_H0, 2048 * (p % 8)))
        for T in range(KS):
            o.append(('buffer_load_dwordx4 %s, v%d, s[%d:%d], s%d offen sc1' % (vr(Hr(p, T), 4), VHL + T, R_WS, R_WS + 3, 65 if p % 8 else S_H0), 'H%d' % p))
        return o
    def take(q, n):
        o = q[:n]; del q[:n]; return o
    def h_slow(q, skip=0):
        def h_issue(): k('s_load_dwordx4 s[16:19], s[%d:%d], s24' % (R_WS, R_WS + 1))
        k('s_add_u32 s26, s%d, %d' % (S_FC2 if q & 1 else S_FC, 256 * (q >> 1)))
        k('s_add_u32 s24, s26, %d' % (skip * FH_RS))
        k('s_add_u32 s25, s26, %d' % (NRH * FH_RS))
        G.spoll_loop(h_issue, 16, 4, 24, 25, FH_RS, lambda: G.poll(1, VFH, 's26'))
    def a_dma(base, count):
        for n in range(3):
            if n == 1: k('s_add_u32 s67, s%d, %d' % (base, 4 << 15))
            if n == 2:
                k('s_lshl_b32 s67, s%d, 8' % S_A3)
                k('s_add_u32 s67, s67, s%d' % base)
            k('s_add_u32 m0, s%d, %d' % (S_LW, 1024 * n))
            k('buffer_load_dwordx4 v%d, s[%d:%d], s%d offen sc1 lds' % (V_AD, R_WS, R_WS + 3, 67 if n else base), tag='a')
            if not count: k.vm.pop()
    def a_issue():
        k('s_load_dwordx8 s[16:23], s[%d:%d], s%d' % (R_WS, R_WS + 1, S_AC))
        k('s_load_dwordx8 s[24:31], s[%d:%d], s%d offset:512' % (R_WS, R_WS + 1, S_AC))
        k('s_add_u32 s67, s%d, s%d' % (S_AC, S_A3))
        k('s_load_dwordx8 s[32:39], s[%d:%d], s67' % (R_WS, R_WS + 1))
    def late_a():
        G.spoll_loop(a_issue, 16, 24, S_AC, S_AE, FA_RS, lambda: G.poll(1, V_FA, 's%d' % S_FA), sleep=opt.get('asleep', 4))
        k('s_waitcnt vmcnt(0)')
        a_dma(S_AT, False)
    epq = []; mq = []
    NAT = opt.get('nat', 0)
    GB = opt.get('gapb', 48)
    st8 = {'n': NPRE, 'h': 0, 'ok': 5 if opt.get('nohchk') else -1}
    def cost(f):
        t = f[0] if isinstance(f, tuple) else f
        return 8 if t.startswith(('v_exp', 'v_rcp')) else 4
    def vm1(n):
        nv = 0; used = 0
        while mq and nv < n:
            f = mq.pop(0); emit_list(k, [f]); used += 4
            if isinstance(f, tuple): nv += 1
        return used
    def gap(used):
        used += vm1(opt.get('vper', 1))
        while epq and used + cost(epq[0]) <= GB:
            f = epq.pop(0); emit_list(k, [f]); used += cost(f)
    FAT = [opt.get('f0at', 15), opt.get('f1at', 20), opt.get('f2at', 24)]
    RB_, RL = opt.get('rb', 2), opt.get('rl', 1)
    RAT = []
    for a_ in (opt.get('r0at', 19), opt.get('r1at', 23), opt.get('r2at', 28)): RAT += [a_, a_ + RB_]
    PWAT, AAT = opt.get('pwat', 15), opt.get('aat', 33)
    HL = opt.get('hl', 12) // KS
    assert HL <= HN and RL <= RB_ and RAT[0] - RL >= 17 and RAT[5] <= AAT - 2
    def younger(a, b):
        ia = max(i for i, t in enumerate(k.vm) if t == a); ib = max(i for i, t in enumerate(k.vm) if t == b)
        return a if ia > ib else b
    def flush_for(tag):
        while any(isinstance(f, tuple) and f[1] == tag for f in mq): vm1(1)
    def hq(upto, free=99):
        while st8['h'] < min(NP, upto) and ((KS * st8['h']) >> 3) <= st8['ok'] and (Hr0(st8['h'], KS - 1) - XF) // 4 < free:
            mq.extend(hload(st8['h'])); st8['h'] += 1
    def sync(i, lg):
        flush_for('S%d' % i)
        tg = 'S%d' % i
        for r in range(3):
            if FAT[r] == i:
                while any(isinstance(f, tuple) and f[1] == 'hst%d' % r for f in epq): emit_list(k, take(epq, 1))
                tg = younger(tg, 'hst%d' % r)
        chk = [q for q in range(6) if RAT[q] == i and not opt.get('nohchk')]
        HSC = opt.get('hs', 1)
        for q in chk:
            if HSC: lg = 'all'
            else: tg = younger(tg, 'ph%d' % q)
        if i == AAT and not opt.get('noa'): tg = younger(tg, 'fa')
        if i == 17 and not opt.get('noa'): G.poll(1, VFW, 's%d' % S_FW, first='pw')
        k.wait(vm=tg, lg=lg)
        k('s_barrier')
        if i < 10: G.pr(301, i)
        elif i < 20: G.pr(302, i - 10)
        elif i < 30: G.pr(300, i - 20)
        if i >= 30: G.pr(303, i - 30)
        for n_, at in ((1, 0), (2, 10), (3, 15), (4, 20), (5, 25), (6, 30), (7, 34)):
            if i == at: G.ts(n_)
        for r in range(3):
            if FAT[r] == i: hflag(r)
        upto = max(min(i + LA_ - 1, i + 3), min(4, i + LA_))
        while st8['n'] < 35 and st8['n'] <= upto:
            mq.extend(dma(st8['n'])); st8['n'] += 1
        if i == NAT and NAT > 0: k('s_load_dword s%d, s[%d:%d], 0' % (S_NONCE, P_DBG, P_DBG + 1))
        if i == NAT + (3 if NAT else 1):
            G.snonce(1, V_NON, first=1)
            k('v_mov_b32 v%d, s%d' % (V_NON, S_NONCE))
        for q in chk:
            if HSC:
                G.s_allok(16, 4)
                G.slow('scc1', lambda: h_slow(q, 1))
            else:
                G.poll_cmp(1, [0])
                G.slow('scc0', lambda: h_slow(q))
            st8['ok'] = max(st8['ok'], q)
        if i == PWAT and not opt.get('noa'): mq.insert(0, ('buffer_load_dword v1, v%d, s[%d:%d], s%d offen sc1' % (VFW, R_WS, R_WS + 3, S_FW), 'pw'))
        for q in range(6):
            if RAT[q] - RL == i and not opt.get('nohchk') and HSC:
                k('s_load_dwordx4 s[16:19], s[%d:%d], s%d offset:%d' % (R_WS, R_WS + 1, S_FC2 if q & 1 else S_FC, 256 * (q >> 1)))
            elif RAT[q] - RL == i and not opt.get('nohchk'):
                k('buffer_load_dword v1, v%d, s[%d:%d], s%d offen offset:%d sc1' % (VFH, R_WS, R_WS + 3, S_FC2 if q & 1 else S_FC, 256 * (q >> 1)), tag='ph%d' % q)
        if i == opt.get('gat', 29): mq.insert(0, ('buffer_load_dwordx2 v[30:31], v%d, s[%d:%d], s%d offen sc1' % (V_G, R_WS, R_WS + 3, S_GG), 'g'))
        if i == AAT - 2 and not opt.get('noa'): k('buffer_load_dword v1, v%d, s[%d:%d], s%d offen sc1' % (V_FA, R_WS, R_WS + 3, S_FA), tag='fa')
        if i == AAT and not opt.get('noa'):
            assert st8['n'] == 35
            flush_for('S34')
            G.poll_cmp(1, [0])
            k('s_cselect_b32 s%d, 1, 0' % S_AD)
            k('s_cselect_b32 s64, s%d, s%d' % (S_AT, S_V))
            if opt.get('a2'): k('buffer_load_dword v1, v%d, s[%d:%d], s%d offen sc1' % (V_FA, R_WS, R_WS + 3, S_FA), tag='fa2')
            a_dma(64, True)
        if i == AAT + 1 and opt.get('a2') and not opt.get('noa'):
            def second():
                L = k.newlabel('L_a2')
                k('s_waitcnt vmcnt(0)')
                G.poll_cmp(1, [0])
                k('s_cbranch_scc0 %s' % L)
                a_dma(S_AT, False)
                k('s_mov_b32 s%d, 1' % S_AD)
                k.label(L)
            k('s_cmp_lg_u32 s%d, 0' % S_AD)
            G.slow('scc0', second)
    if NAT == 0: k('s_load_dword s%d, s[%d:%d], 0' % (S_NONCE, P_DBG, P_DBG + 1))
    sync(0, None)
    pend = None
    for i in range(20):
        typ, z, r = seq[i]
        base = 16384 * (i % 5)
        for s in range(4):
            used = 8
            if pend is not None:
                if s % 2 == 0: k.wait(lg='w1%d' % (s + 1)); used += 4
                k(pend[s])
            if typ == 'W': emit_list(k, wread(i, 0, s))
            else:
                for s2 in (2 * s, 2 * s + 1):
                    if base >= 65536:
                        k('v_add_u32 v%d, 0x10000, v%d' % (XT + s2 % 4, XA + s2))
                        k('ds_read_b128 %s, v%d' % (vr(XF + 4 * (8 * z + s2), 4), XT + s2 % 4), tag='x%d' % i)
                    else:
                        k('ds_read_b128 %s, v%d offset:%d' % (vr(XF + 4 * (8 * z + s2), 4), XA + s2, base), tag='x%d' % i)
            gap(used)
        pend = None
        prevx = 'x%d' % (i - 1) if (i > 0 and seq[i - 1][0] == 'X') else None
        if typ == 'X':
            emit_list(k, take(mq, 1000))
            sync(i + 1, prevx)
            continue
        if z == 0 and r > 0: epq.extend(epi(r - 1))
        for s in range(4):
            if s % 2 == 0: k.wait(lg='w0%d' % (s + 1))
            k(mfma(i, 0, s))
            if s < 2:
                emit_list(k, wread(i, 1, 2 * s) + wread(i, 1, 2 * s + 1))
                gap(20 if (z or s) else 1000)
            elif s == 2:
                sync(i + 1, None)
                if r == 2: hq(HL, 8 * z)
            else:
                gap(4)
        pend = [mfma(i, 1, s) for s in range(4)]
        if i in (14, 19): emit_list(k, take(epq, 1000))
    D = opt.get('vd', 12 if KS == 1 else 5)
    WP = opt.get('wp', 4 if KS == 1 else 2)
    NB = len(WBUF)
    assert D <= NB - 2
    def vread(n):
        off = 1024 * (f0(n) % 80)
        return ('ds_read_b128 %s, v%d offset:%d' % (vr(WBUF[n % NB], 4), VRH if off >= 0x8000 else VR, off - 0x8000 if off >= 0x8000 else off), 'v%d' % n)
    slot_of = lambda n: 20 + (f0(n) + 5 * (KS - 1)) // 16
    assert all(slot_of(n) == 20 for n in range(D))
    for s in range(4):
        if s % 2 == 0: k.wait(lg='w1%d' % (s + 1))
        k(pend[s])
        emit_list(k, [vread(n) for n in range(D * s // 4, D * (s + 1) // 4)])
        vm1(2)
    epq.extend(epi(2))
    EP2 = opt.get('ep2', 3) * KS
    AM = NST - opt.get('am', 6) // KS
    fast = opt.get('fastfin')
    AE = opt.get('ae', 0)
    AR = 64
    ga = [244 + 2 * i for i in range(6)] + [84 + 2 * i for i in range(4)]
    def rnd(x):
        return ['v_cvt_pk_bf16_f32 v%d, v%d, v%d' % (x + 1, x, x + 1), 'v_lshlrev_b32 v%d, 16, v%d' % (x, x + 1), 'v_and_b32 v%d, 0xffff0000, v%d' % (x + 1, x + 1)]
    def a_unpack():
        o = []
        for q in range(10):
            t = ga[q]
            o += ['v_lshlrev_b32 v%d, 16, v%d' % (t, AR + q), 'v_and_b32 v%d, 0xffff0000, v%d' % (t + 1, AR + q)]
            if not fast: o += ['v_mul_f32 v%d, v30, v%d' % (t, t), 'v_mul_f32 v%d, v30, v%d' % (t + 1, t + 1)] + rnd(t)
        return o
    def a_meet(lg):
        hq(NP); emit_list(k, take(mq, 1000))
        if not opt.get('noa'):
            k('s_cmp_lg_u32 s%d, 0' % S_AD)
            G.slow('scc0', late_a)
        k.wait(vm='all', lg=lg)
        k('s_barrier')
        G.pr(303, 8)
        for sb in range(5):
            k('ds_read_b64_tr_b16 %s, v%d offset:%d' % (vr(AR + 2 * sb, 2), V_AR, (sb & 1) * 8192 + (sb >> 1) * 1024), tag='ar')
    poff = lambda sub: 16384 + 1024 * sub if sub < 4 else 3072
    synced = 20
    tail0 = []
    for n in range(NST):
        p, sub = n // 5, n % 5
        if n + D < NST and slot_of(n + D) > synced:
            synced += 1
            assert f0(n) >= 16 * (synced - 21), (n, synced)
            sync(synced, None)
            if synced == 31 and OSTR != 160:
                for n_ in range(3):
                    epq.extend(['v_add_u32 v26, %d, v0' % (64 * n_), 'v_mul_u32_u24 v26, 205, v26', 'v_lshrrev_b32 v26, 11, v26',
                                'v_mul_u32_u24 v26, %d, v26' % (OSTR - 160), 'v_add_u32 v%d, v26, v%d' % (VW + n_, VV)])
            if synced == 33:
                if not opt.get('noa'): G.poll(30, V_G, 's%d' % S_GG, n=2, first='g', which=[1])
                epq.extend(['v_sub_f32 v28, 1.0, v30', 'v_cvt_pk_bf16_f32 v28, v28, v28', 'v_lshlrev_b32 v28, 16, v28', 'v_mov_b32 v29, v28', 'v_mov_b32 v31, v30'])
                if KS == 2: epq.append('v_xor_b32 v%d, 0x2000, v%d' % (VFW, VV))
        if KS == 1 or AE:
            if n == AM: a_meet(None)
            if n == min(AM + 5 // KS, NST - 1):
                k.wait(lg='ar'); epq.extend(a_unpack())
        hq(p + HL)
        lgt = 'v%d' % min(n + WP - 1, NST - 1) if n % WP == 0 else None
        if sub == 0 and own(p): assert not epq
        if sub == 0 and not own(p):
            flush_for('H%d' % p)
            k.wait(vm='H%d' % p, lg=lgt)
        elif lgt: k.wait(lg=lgt)
        for T in reversed(range(KS)):
            c = '0' if p == 0 else vr(A2(T, sub), 4)
            mm = 'v_mfma_f32_16x16x32_bf16 %s, %s, %s, %s' % (vr(A2(T, sub), 4), vr(WBUF[n % NB], 4), vr(Hr(p, T), 4), c)
            if KS == 2 and T == 0 and p == NP - 1: tail0.append(mm); continue
            k(mm)
            if T == KS - 1 and n + D < NST: emit_list(k, [vread(n + D)])
        if KS == 2 or n % 2 == 0: vm1(1)
        if n >= 2: emit_list(k, take(epq, EP2))
    emit_list(k, take(epq, 1000))
    PB = HB
    if opt.get('park'): G.cut('gemm_t1')
    if KS == 2:
        for sub in range(5):
            k(tail0[sub])
            if sub >= 2: k('ds_write_b128 v%d, %s offset:%d' % (VV, vr(A2(1, sub - 2), 4), poff(sub - 2)))
        for sub in (3, 4): k('ds_write_b128 v%d, %s offset:%d' % (VV, vr(A2(1, sub), 4), poff(sub)))
        if AE:
            k.wait(lg='all'); k('s_barrier')
        else: a_meet('all')
        for sub in range(5):
            k('ds_read_b128 %s, v%d offset:%d' % (vr(PB + 4 * sub, 4), VFW, poff(sub)), tag='pp%d' % sub)
        if not AE:
            k.wait(lg='ar')
            emit_list(k, a_unpack())
    if opt.get('park'): G.cut('gemm_t2')
    G.ts(8)
    G.pr(303, 5)
    OST = 32768
    for sub in range(5):
        if KS == 2: k.wait(lg='pp%d' % sub)
        for hf in range(2):
            x = A2(0, sub) + 2 * hf; t = ga[2 * sub + hf]
            if KS == 2: k('v_pk_add_f32 %s, %s, %s' % (vr(x, 2), vr(x, 2), vr(PB + 4 * sub + 2 * hf, 2)))
            if fast:
                k('v_pk_mul_f32 %s, %s, v[28:29]' % (vr(x, 2), vr(x, 2)))
                k('v_pk_fma_f32 %s, %s, v[30:31], %s' % (vr(x, 2), vr(t, 2), vr(x, 2)))
            else:
                emit_list(k, rnd(x))
                k('v_pk_mul_f32 %s, %s, v[28:29]' % (vr(x, 2), vr(x, 2)))
                emit_list(k, rnd(x))
                k('v_pk_add_f32 %s, %s, %s' % (vr(x, 2), vr(x, 2), vr(t, 2)))
            k('v_cvt_pk_bf16_f32 v%d, v%d, v%d' % (AR + 2 * sub + hf, x, x + 1))
        k('ds_write_b64 v%d, %s offset:%d' % (V_OW, vr(AR + 2 * sub, 2), OST + 32 * sub))
    G.pr(303, 6)
    for n in range(3):
        k('ds_read_b128 %s, v%d offset:%d' % (vr(200 + 4 * n, 4), VV if OSTR == 160 else VW + n, OST + 1024 * n), tag='o%d' % n)
    for n in range(3):
        k.wait(lg='o%d' % n)
        if n == 2: k('s_mov_b32 exec_hi, 0')
        k('buffer_store_dwordx4 %s, v%d, s[%d:%d], s%d offen sc1' % (vr(200 + 4 * n, 4), V_OS + n, R_O, R_O + 3, S_OUT))
    k('s_mov_b64 exec, -1')
    G.pr(303, 7)
    G.ts(9)
    G.ts_store()
    G.calib()
    k('s_endpgm')
```
